```python
import torch

def _softmax(x, axis=-1):
    return torch.softmax(x, dim=axis)

def _gelu(x):
    return torch.nn.functional.gelu(x, approximate='tanh')

def _silu(x):
    return torch.nn.functional.silu(x)

def _sigmoid(x):
    return torch.sigmoid(x)

def _layernorm(x, axis=-1, eps=1e-05):
    m = x.mean(dim=axis, keepdim=True)
    v = x.var(dim=axis, keepdim=True, unbiased=False)
    return (x - m) / torch.sqrt(v + eps)

def _scatter_add(tgt, idx, src, axis=0):
    return tgt.clone().index_add_(axis, idx, src)

def _segment_sum(src, seg, n):
    out = torch.zeros((n,) + src.shape[1:], dtype=src.dtype)
    return out.index_add_(0, seg, src)

def _pad(x, pw):
    flat = tuple((v for pair in reversed(pw) for v in pair))
    return torch.nn.functional.pad(x, flat)
kernel_name = 'adaLN_cond__sliding_block_cached__glu_gated_swiglu__decode'

def setup_inputs():

    _w = lambda a: (lambda t: t.to(torch.bfloat16) if t.is_floating_point() else t)(torch.as_tensor(a))

    def _A_setup():
        B, Sq, D = (8, 1, 448)
        Hq, Hkv, Sk, Dh = (16, 8, 8192, 256)
        assert Hq % Hkv == 0, (Hq, Hkv)
        return {'x': _w((lambda *s: torch.randn(*s, dtype=torch.bfloat16) * 0.05)(B, Sq, D)), 'k_cache': _w((lambda *s: torch.randn(*s, dtype=torch.bfloat16) * 0.8)(B, Hkv, Sk, Dh)), 'v_cache': _w((lambda *s: torch.randn(*s, dtype=torch.bfloat16) * 3.2)(B, Hkv, Sk, Dh)), 'wq': _w((lambda *s: torch.randn(*s, dtype=torch.bfloat16) * 0.8)(D, Hq * Dh) * D ** (-0.5)), 'wo': _w((lambda *s: torch.randn(*s, dtype=torch.bfloat16) * 3.2)(Hq * Dh, D) * (Hq * Dh) ** (-0.5))}
    _A_in = _A_setup()

    def _B_setup():
        B, S, D, F = (8, 1, 448, 1792)
        return {'x': _w((lambda *s: torch.randn(*s, dtype=torch.bfloat16) * 0.05)(B, S, D)), 'w1': _w((lambda *s: torch.randn(*s, dtype=torch.bfloat16) * 1.6)(D, F) * (2.0 / D) ** 0.5), 'w3': _w((lambda *s: torch.randn(*s, dtype=torch.bfloat16) * 1.6)(D, F) * (2.0 / D) ** 0.5), 'w2': _w((lambda *s: torch.randn(*s, dtype=torch.bfloat16) * 1.6)(F, D) * (2.0 / F) ** 0.5)}
    _B_in = _B_setup()
    return {'A_x': _A_in['x'], 'A_k_cache': _A_in['k_cache'], 'A_v_cache': _A_in['v_cache'], 'A_wq': _A_in['wq'], 'A_wo': _A_in['wo'], 'B_x': _B_in['x'], 'B_w1': _B_in['w1'], 'B_w3': _B_in['w3'], 'B_w2': _B_in['w2'], 'c': _w((lambda *s: torch.randn(*s, dtype=torch.bfloat16) * 0.4)(8, 448) * 8.0), 'w_mod': _w((lambda *s: torch.randn(*s, dtype=torch.bfloat16) * 0.4)(448, 6 * 448) * 448 ** (-0.5) * 8.0)}

def reference(A_x, A_k_cache, A_v_cache, A_wq, A_wo, B_x, B_w1, B_w3, B_w2, c, w_mod):

    def _A_ref(x, k_cache, v_cache, wq, wo):
        B, Sq, D = x.shape
        Hq, Dh = (16, 256)
        Hkv, Sk = (k_cache.shape[1], k_cache.shape[2])
        W = min(4096, max(256, Sk // 4))
        rep = Hq // Hkv
        q = (lambda x, *d: x.permute(*d))((x @ wq).reshape(B, Sq, Hq, Dh), 0, 2, 1, 3)
        k = (lambda x, n, axis: torch.repeat_interleave(x, n, dim=axis))(k_cache[:, :, Sk - W:, :], rep, axis=1)
        v = (lambda x, n, axis: torch.repeat_interleave(x, n, dim=axis))(v_cache[:, :, Sk - W:, :], rep, axis=1)
        scores = torch.einsum('bhqd,bhkd->bhqk', q, k) * Dh ** (-0.5)
        p = _softmax(scores, axis=-1)
        o = torch.einsum('bhqk,bhkd->bhqd', p, v)
        return (lambda x, *d: x.permute(*d))(o, 0, 2, 1, 3).reshape(B, Sq, Hq * Dh) @ wo

    def _B_ref(x, w1, w3, w2):
        gate = torch.einsum('bsd,df->bsf', x, w1)
        up = torch.einsum('bsd,df->bsf', x, w3)
        h = _silu(gate) * up
        out = torch.einsum('bsf,fd->bsd', h, w2)
        return out
    x = A_x
    mod = (_silu(c) @ w_mod).reshape(c.shape[0], 6, 1, -1)
    sa, ca, ga, sb, cb, gb = (mod[:, 0].clone(), mod[:, 1].clone(), mod[:, 2].clone(), mod[:, 3].clone(), mod[:, 4].clone(), mod[:, 5].clone())
    h = _layernorm(x, axis=-1) * (1 + ca) + sa
    x = x + ga * _A_ref(h, A_k_cache, A_v_cache, A_wq, A_wo)
    h = _layernorm(x, axis=-1) * (1 + cb) + sb
    x = x + gb * _B_ref(h, B_w1, B_w3, B_w2)
    return x
```

```python
import re

TRANS = ('v_exp_f32', 'v_log_f32', 'v_rcp_f32', 'v_rsq_f32', 'v_sqrt_f32', 'v_sin_f32', 'v_cos_f32')


def regs_of(tok):
    tok = tok.strip()
    tok = tok.lstrip('-')
    m = re.fullmatch(r'abs\((.*)\)|\|(.*)\|', tok)
    if m:
        tok = m.group(1) or m.group(2)
    m = re.fullmatch(r'([vs])(\d+)', tok)
    if m:
        return {(m.group(1), int(m.group(2)))}
    m = re.fullmatch(r'([vs])\[(\d+):(\d+)\]', tok)
    if m:
        return {(m.group(1), i) for i in range(int(m.group(2)), int(m.group(3)) + 1)}
    if tok == 'vcc':
        return {('s', 106), ('s', 107)}
    if tok == 'm0':
        return {('s', 124)}
    if tok in ('exec', 'exec_lo', 'exec_hi'):
        return {('s', 126), ('s', 127)}
    return set()


def split_ops(rest):
    out, depth, cur = [], 0, ''
    for ch in rest:
        if ch in '[(':
            depth += 1
        if ch in '])':
            depth -= 1
        if ch == ',' and depth == 0:
            out.append(cur.strip())
            cur = ''
        else:
            cur += ch
    if cur.strip():
        out.append(cur.strip())
    mods = ''
    if out:
        p = out[-1].split(None, 1)
        if len(p) == 2 and not out[-1].startswith('hwreg'):
            out[-1], mods = p[0], p[1]
    return out, mods


class Ins:
    def __init__(self, text):
        self.text = text
        t = text.split(';')[0].strip()
        self.label = t.endswith(':')
        self.dir = t.startswith('.') or t == ''
        self.op = '' if (self.label or self.dir) else t.split()[0]
        self.w = set()
        self.r = set()
        self.kind = 'other'
        self.srcc = set()
        self.ab = set()
        self.sdata = set()
        self.dpp = set()
        self.mods = ''
        if not self.op:
            return
        ops, mods = split_ops(t[len(self.op):])
        self.mods = mods
        R = [regs_of(o) for o in ops]
        op = self.op
        U = lambda l: set().union(*l) if l else set()
        if op.startswith('v_mfma') or op.startswith('v_smfmac'):
            self.kind = 'mfma'
            self.w = R[0]
            if op.startswith('v_smfmac'):
                self.srcc = R[0]
                self.ab = R[1] | R[2] | R[3]
            else:
                self.srcc = R[3]
                self.ab = R[1] | R[2]
            self.r = self.ab | self.srcc
            self.passes = 8 if '32x32' in op else 4
        elif op.startswith('v_'):
            self.kind = 'valu'
            self.w = R[0]
            self.r = U(R[1:])
            if op.startswith('v_permlane'):
                self.w = R[0] | R[1]
                self.r = R[0] | R[1]
            if op.startswith(('v_fmac', 'v_dot2c')) or '_dpp' in op:
                self.r |= R[0]
            if '_dpp' in op:
                self.dpp = R[1]
            if '_co_' in op:
                self.w = R[0] | R[1]
                self.r = U(R[2:])
        elif op.startswith(('buffer_', 'global_')):
            self.kind = 'vmem'
            if 'load' in op and re.search(r'\blds\b', mods):
                self.r = U(R) | {('s', 124)}
                self.isdma = True
            elif 'load' in op:
                self.w = R[0]
                self.r = U(R[1:])
            else:
                self.r = U(R)
                if op.endswith(('x3', 'x4')):
                    self.sdata = R[0] if op.startswith('buffer_') else R[1]
        elif op.startswith('ds_'):
            self.kind = 'ds'
            if op.startswith(('ds_read', 'ds_bpermute', 'ds_swizzle')) or '_rtn' in op:
                self.w = R[0]
                self.r = U(R[1:])
            else:
                self.r = U(R)
        elif op.startswith('s_'):
            self.kind = 'salu'
            if op.startswith(('s_cmp', 's_bitcmp', 's_cbranch', 's_branch', 's_waitcnt', 's_nop', 's_barrier', 's_sleep',
                              's_setprio', 's_endpgm')):
                self.r = U(R)
            else:
                self.w = R[0] if R else set()
                self.r = U(R[1:])

    def states(self):
        if self.op == 's_nop':
            return int(self.text.split()[1]) + 1
        return 1 if self.op else 0


def isv(s):
    return {x for x in s if x[0] == 'v'}


def iss(s):
    return {x for x in s if x[0] == 's'}


def need(p, c):
    n = 0
    if p.kind == 'valu':
        pv, ps = isv(p.w), iss(p.w)
        if c.kind == 'valu':
            if pv & c.dpp:
                n = max(n, 2)
            if c.op.startswith('v_permlane') and pv & c.r:
                n = max(n, 2)
            if c.op.startswith(('v_readlane', 'v_readfirstlane')) and pv & c.r:
                n = max(n, 1)
            if p.op.startswith(TRANS) and pv & c.r:
                n = max(n, 1)
            if ps & c.r:
                n = max(n, 2)
            if p.op.startswith('v_dot2') and pv & (c.r | c.w) and c.op != p.op:
                n = max(n, 3)
            if 'sdwa' in p.op and pv & c.r:
                n = max(n, 1)
        if c.kind == 'mfma' and pv & c.r:
            n = max(n, 3 if p.op.startswith('v_dot2') else 2)
        if c.kind == 'vmem' and ps & c.r:
            n = max(n, 5)
        if c.kind in ('vmem', 'ds') and p.op.startswith(TRANS + ('v_dot2',)) and pv & c.r:
            n = max(n, 3)
    if p.kind == 'mfma':
        big = {4: 8, 8: 12}[p.passes]
        if c.kind == 'mfma':
            if p.w & c.ab:
                n = max(n, big)
            if p.w & c.srcc and not (p.w == c.srcc and p.passes == c.passes):
                n = max(n, big - 2)
            if p.w & c.w and not p.w & c.srcc:
                n = max(n, big - 2)
        elif c.kind in ('valu', 'vmem', 'ds'):
            if p.w & (c.r | c.w):
                n = max(n, big)
            if c.kind == 'valu' and p.srcc & c.w:
                n = max(n, {4: 3, 8: 7}[p.passes])
    if p.kind == 'vmem' and p.sdata and p.sdata & c.w:
        n = max(n, 2)
    if p.kind == 'salu' and ('s', 124) in p.w and getattr(c, 'isdma', False):
        n = max(n, 1)
    return n


def pad(lines):
    ins = [Ins(l) for l in lines]
    out = []
    for c in ins:
        if c.op:
            dist, req = 0, 0
            for p in reversed(out):
                if dist >= 12:
                    break
                if p.op in ('s_branch', 's_endpgm'):
                    break
                if p.op:
                    req = max(req, need(p, c) - dist)
                dist += p.states()
            if req > 0:
                out.append(Ins(f's_nop {req - 1}'))
        out.append(c)
    pos = {i.text.split(';')[0].strip()[:-1]: k for k, i in enumerate(out) if i.label}
    for k, br in enumerate(out):
        if br.op.startswith(('s_cbranch', 's_branch')):
            tgt = br.text.split()[1]
            if tgt.startswith('L_pad'):
                continue
            before, d = [], 1
            for p in reversed(out[:k]):
                if d >= 12 or p.op in ('s_branch', 's_endpgm'):
                    break
                if p.op:
                    before.append((p, d))
                d += p.states()
            d2 = 0
            for c in out[pos[tgt]:]:
                if d2 >= 12:
                    break
                if c.op:
                    for p, d in before:
                        if need(p, c) > d + d2:
                            raise RuntimeError(f'branch-edge hazard: {p.text} -> [{br.text}] -> {c.text}')
                    if c.op in ('s_branch', 's_endpgm'):
                        break
                d2 += c.states()
    return [i.text for i in out]


class Asm:
    def __init__(self):
        self.lines = []
        self.nlab = 0

    def __call__(self, s):
        for l in s.split('\n'):
            l = l.strip()
            if l:
                self.lines.append(l)

    def lab(self, base='L'):
        self.nlab += 1
        return f'{base}_{self.nlab}'

    def text(self):
        return '\n'.join(('' if (l.endswith(':') or l.startswith('.')) else '    ') + l for l in pad(self.lines)) + '\n'


def vr(a, n=1):
    return f'v{a}' if n == 1 else f'v[{a}:{a + n - 1}]'


def sr(a, n=1):
    return f's{a}' if n == 1 else f's[{a}:{a + n - 1}]'
```

```python
import sys
from asmlib import Asm, vr, sr

NAME = 'adaLN_cond__sliding_block_cached__glu_gated_swiglu__decode'

WS_EPOCH = 0x0
WS_MOD = 0x1000
WS_Q = 0x20000
WS_ML = 0x40000
WS_X1 = 0x44000
WS_ST = 0x48000
WS_OP = 0x80000
WS_PA = 0x100000
WS_PF = 0x180000
WS_STAMP = 0x200000
WS_SIZE = 0x400000

F_Q, F_SC, F_P, F_KT, F_VT, F_S1, F_S2 = 0, 4, 8, 16, 20, 24, 28
L_Q, L_P, L_SC, L_A, L_H, L_W = 0x400, 0x800, 0x1000, 0x2000, 0x3C00, 0x4000
BLK = 1152
LDS_BYTES = L_W + 112 * BLK

S_W, S_H, S_B, S_D, S_R = 3, 4, 5, 6, 7
SRD_A, SRD_B, SRD_WS, SRD_C = 8, 12, 16, 20
S_E, S_C, S_CNT, S_JJ, S_E8 = 28, 29, 33, 34, 35
P_X, P_K, P_V, P_WQ, P_WO, P_W1, P_W3, P_W2, P_C, P_WM, P_OUT, P_WS = 40, 42, 44, 46, 48, 52, 54, 56, 58, 60, 62, 66
S_ST0 = 76
SPIN_CAP = 400000
LOG2E = 0x3FB8AA3B

DEF = dict(depth=6, depthV=6, dW=4, dF=63, ktrig=24, vtrig=60, vsync=40, stamps=0, pref=1, wfl='nt', hold=0)


def gen(**kw):
    cfg = dict(DEF)
    cfg.update(kw)
    a = Asm()
    D, DV = cfg['depth'], cfg['depthV']
    WFL = cfg['wfl']

    def stamp(k):
        if cfg['stamps']:
            a(f's_memrealtime {sr(S_ST0 + 2 * k, 2)}')

    def srd(d, p, size):
        a(f's_mov_b32 s{d}, s{p}\ns_mov_b32 s{d + 1}, s{p + 1}\ns_mov_b32 s{d + 2}, {size}\ns_mov_b32 s{d + 3}, 0x20000')

    def retry(lab):
        a(f's_add_u32 s{S_CNT}, s{S_CNT}, 1\ns_cmp_lt_u32 s{S_CNT}, {SPIN_CAP}\ns_cbranch_scc1 {lab}\ns_branch L_exit')

    def spin_lds(flag, n, t, two=False):
        top, done = a.lab('L_spin'), a.lab('L_got')
        a(f'{top}:\nv_mov_b32 v{t}, 0')
        if two:
            a(f'ds_read_b64 {vr(t, 2)}, v{t} offset:{flag}')
        else:
            a(f'ds_read_b32 v{t}, v{t} offset:{flag}')
        a(f's_waitcnt lgkmcnt(0)\nv_readfirstlane_b32 s31, v{t}\ns_cmp_ge_u32 s31, {n}\ns_cbranch_scc1 {done}')
        retry(top)
        a(f'{done}:')

    def flag_add(flag, t, inc=1):
        a(f'v_mov_b32 v{t}, 0\nv_mov_b32 v{t + 1}, {inc}\ns_mov_b64 exec, 1\nds_add_u32 v{t}, v{t + 1} offset:{flag}\ns_mov_b64 exec, -1')

    def rnd(d, s):
        a(f'v_cvt_pk_bf16_f32 v{d}, 0, v{s}')

    def rows_allreduce(op, x, t):
        a(f'v_mov_b32 v{t}, v{x}\nv_permlane16_swap_b32 v{x}, v{t}\n{op} v{x}, v{x}, v{t}')
        a(f'v_mov_b32 v{t}, v{x}\nv_permlane32_swap_b32 v{x}, v{t}\n{op} v{x}, v{x}, v{t}')

    def dpp(op, d, s0, s1, ctl, rm=0xf, bm=0xf):
        a(f'{op}_dpp v{d}, v{s0}, v{s1} {ctl} row_mask:{rm:#x} bank_mask:{bm:#x}')

    hdr = open('cdna_kernels/' + NAME + '.s.ref').read().split('; Override launch')[0]
    head = hdr + f'; @launch grid=(256,1,1) block=(512,1,1) lds={LDS_BYTES}\n'
    a('.amdgcn_target "amdgcn-amd-amdhsa--gfx950"\n.text')
    a(f'.globl {NAME}_kernel\n.p2align 8\n.type {NAME}_kernel,@function\n{NAME}_kernel:')
    a('s_cmp_ge_u32 s2, 256\ns_cbranch_scc1 L_end')
    a('s_load_dwordx16 s[40:55], s[0:1], 0\ns_load_dwordx8 s[56:63], s[0:1], 64\ns_load_dwordx4 s[64:67], s[0:1], 96')
    if cfg['stamps']:
        for k in range(1, 12):
            a(f's_mov_b64 {sr(S_ST0 + 2 * k, 2)}, 0')
    stamp(0)
    a(f'v_lshrrev_b32 v1, 6, v0\nv_and_b32 v0, 63, v0\nv_readfirstlane_b32 s{S_W}, v1')
    a(f's_and_b32 s{S_H}, s2, 7\ns_lshr_b32 s{S_R}, s2, 3\ns_lshr_b32 s{S_B}, s2, 5\ns_and_b32 s{S_D}, s{S_R}, 3')
    a(f's_mov_b32 s{S_CNT}, 0')
    a(f's_cmp_ge_u32 s{S_W}, 4\ns_cbranch_scc1 L_chain')

    QA, QD, SC = 8, 24, 4
    RING = 32
    slot = lambda k: RING + 4 * k
    ACC = slot(8)
    kslot = lambda n: slot(n % 56)
    vlist = list(range(16, 56)) + list(range(0, 8))
    vslot = lambda i: slot(vlist[i % 48])
    a('v_and_b32 v4, 7, v0\nv_lshrrev_b32 v5, 4, v0\nv_lshlrev_b32 v5, 4, v5\nv_lshl_or_b32 v1, v4, 9, v5')
    a('v_and_b32 v5, 8, v0\nv_lshl_or_b32 v1, v5, 3, v1')
    a('v_lshrrev_b32 v5, 3, v0\nv_lshlrev_b32 v4, 4, v4\nv_lshl_or_b32 v2, v5, 9, v4')
    a(f's_lshl_b32 s30, s{S_B}, 3\ns_or_b32 s30, s30, s{S_H}\ns_lshl_b32 s30, s30, 22\ns_add_u32 s30, s30, 0x300000')
    a(f's_lshl_b32 s36, s{S_D}, 14\ns_lshl_b32 s37, s{S_W}, 7\ns_add_u32 s37, s37, s36')
    a(f's_lshl_b32 s31, s{S_W}, 12\ns_add_u32 s36, s36, s31')
    a('v_mov_b32 v4, 0\nv_lshlrev_b32 v5, 2, v0\nds_write_b32 v5, v4')
    a('s_waitcnt lgkmcnt(0)')
    a(f's_add_u32 s{SRD_A}, s{P_K}, s30\ns_addc_u32 s{SRD_A + 1}, s{P_K + 1}, 0\ns_mov_b32 s{SRD_A + 2}, 0x100000\ns_mov_b32 s{SRD_A + 3}, 0x20000')
    if cfg['hold']:
        a('s_barrier')
    kdone, vdone = 0, 0

    def qk_group(gi):
        d = QD + 4 * (gi & 1)
        for j in range(4):
            a(f'v_mfma_f32_16x16x32_bf16 {vr(d, 4)}, {vr(QA + 4 * j, 4)}, {vr(kslot(4 * gi + j), 4)}, {vr(d, 4) if j else 0}')

    def qk_post(gi):
        d = QD + 4 * (gi & 1)
        t, u = gi >> 2, gi & 3
        dpp('v_add_f32', SC + u, d + 1, d, 'row_ror:8', 1 << t, 0x3)
        dpp('v_add_f32', SC + u, d + 2, d + 3, 'row_ror:8', 1 << t, 0xc)

    def qk_some(landed, maxn):
        nonlocal kdone
        todo = [g for g in range(kdone, 16) if 4 * g + 3 <= landed][:maxn]
        for k, g in enumerate(todo):
            qk_group(g)
            if k:
                qk_post(g - 1)
        if todo:
            qk_post(todo[-1])
            kdone = todo[-1] + 1
            if kdone == 16:
                a(f's_lshl_b32 s31, s{S_W}, 10\nv_lshl_add_u32 v3, v0, 4, s31\nds_write_b128 v3, {vr(SC, 4)} offset:{L_SC}\ns_waitcnt lgkmcnt(0)')
                flag_add(F_SC, 4)
                stamp(3)

    def perms(dst_of, e0, G, r):
        lo, hi = vslot(8 * G + e0) + r, vslot(8 * G + e0 + 1) + r
        a(f'v_perm_b32 v{dst_of(2 * r) + e0 // 2}, v{hi}, v{lo}, s38')
        a(f'v_perm_b32 v{dst_of(2 * r + 1) + e0 // 2}, v{hi}, v{lo}, s39')

    def pv_mfma(G, j, b):
        a(f'v_mfma_f32_16x16x32_bf16 {vr(ACC + 4 * j, 4)}, {vr(QD + 4 * (G & 1), 4)}, {vr(b, 4)}, {vr(ACC + 4 * j, 4) if G else 0}')

    def pv_group(G):
        a('s_waitcnt lgkmcnt(0)')
        a(f'ds_read_b128 {vr(QD + 4 * ((G + 1) & 1), 4)}, v3 offset:{L_P + 256 * (G + 1)}')
        tmp = lambda j: QA + 4 * (j & 3)
        for r in range(4):
            for e0 in (0, 2, 4, 6):
                perms(tmp, e0, G, r)
            if r:
                pv_mfma(G, 2 * r - 1, tmp(2 * r - 1))
            pv_mfma(G, 2 * r, tmp(2 * r))
        pv_mfma(G, 7, tmp(7))

    for n in range(128):
        isk = n < 64
        d = D if isk else DV
        if n >= d:
            a(f's_waitcnt vmcnt({d - 1})')
        landed = n - d
        if n == 56:
            stamp(1)
            spin_lds(F_Q, 1, 4)
            stamp(2)
            a('v_lshrrev_b32 v4, 1, v0\nv_and_b32 v4, 1, v4\nv_and_b32 v5, 1, v0\nv_lshrrev_b32 v6, 4, v0\nv_lshlrev_b32 v6, 4, v6')
            a('v_lshl_or_b32 v6, v5, 6, v6\nv_lshl_or_b32 v3, v4, 9, v6')
            for j in range(4):
                a(f'ds_read_b128 {vr(QA + 4 * j, 4)}, v3 offset:{L_Q + 128 * j}')
            a('s_waitcnt lgkmcnt(0)')
            qk_some(landed, 1)
        if isk:
            if n >= 56:
                assert kdone > (n - 56) // 4
            if n and n % 4 == 0:
                a('s_add_u32 s36, s36, 0x10000')
            a(f'buffer_load_dwordx4 {vr(kslot(n), 4)}, v1, {sr(SRD_A, 4)}, s36 offen offset:{128 * (n & 3)} nt')
        else:
            i = n - 64
            sl = vlist[i % 48]
            if i < 48:
                assert kdone > ((sl if sl >= 8 else sl + 56) // 4), (i, kdone)
            else:
                assert vdone > (i - 48) // 8
            a(f's_add_u32 s30, s37, {(i >> 2) * 65536 + (i & 3) * 4096}')
            a(f'buffer_load_dwordx4 {vr(vslot(i), 4)}, v2, {sr(SRD_B, 4)}, s30 offen nt')
        if n == D - 1:
            a(f's_add_u32 s{SRD_B}, s{P_V}, s30\ns_addc_u32 s{SRD_B + 1}, s{P_V + 1}, 0\ns_mov_b32 s{SRD_B + 2}, 0x100000\ns_mov_b32 s{SRD_B + 3}, 0x20000')
            srd(SRD_WS, P_WS, WS_SIZE)
            a('s_mov_b32 s38, 0x05040100\ns_mov_b32 s39, 0x07060302')
            if not cfg['hold']:
                a('s_barrier')
        if n == cfg['ktrig']:
            flag_add(F_KT, 4)
        if n == 64 + cfg['vtrig']:
            flag_add(F_VT, 4)
        if n >= 56 and kdone < 16:
            qk_some(landed, 3)
        if n == 64 + cfg['vsync']:
            assert kdone == 16
            stamp(4)
            spin_lds(F_P, 1, 4, two=True)
            stamp(5)
            a(f'v_readfirstlane_b32 s{S_E}, v5')
            a('v_lshrrev_b32 v4, 1, v0\nv_and_b32 v4, 1, v4\nv_and_b32 v5, 1, v0\nv_lshrrev_b32 v6, 4, v0\nv_lshlrev_b32 v6, 5, v6')
            a('v_lshl_or_b32 v6, v5, 4, v6\nv_lshl_or_b32 v3, v4, 7, v6')
            a(f'ds_read_b128 {vr(QD, 4)}, v3 offset:{L_P}')
        if n >= 64 + cfg['vsync'] and vdone < 7 and 64 + 8 * vdone + 7 <= landed:
            pv_group(vdone)
            vdone += 1
    assert vdone == 7, vdone
    a(f's_lshl_b32 s30, s{S_H}, 2\ns_add_u32 s30, s30, s{S_W}\ns_lshl_b32 s30, s30, 14\ns_lshl_b32 s31, s{S_D}, 12\ns_add_u32 s30, s30, s31')
    a(f's_lshl_b32 s31, s{S_B}, 9\ns_add_u32 s30, s30, s31\ns_add_u32 s30, s30, {WS_OP}')
    a('v_and_b32 v8, 7, v0\nv_lshlrev_b32 v8, 4, v8\nv_and_b32 v9, 8, v0\nv_lshl_or_b32 v8, v9, 5, v8\nv_and_b32 v9, 16, v0\nv_lshl_or_b32 v8, v9, 3, v8')
    a(f's_movk_i32 s31, 0xff\nv_mov_b32 v9, s{S_E}')
    big = lambda j: slot(vlist[24 + j])
    for pr in range(4):
        if 6 - 2 * pr < DV:
            a(f's_waitcnt vmcnt({6 - 2 * pr})')
        if pr < 3:
            for r in range(4):
                perms(big, 2 * pr, 7, r)
    stamp(6)
    a('s_waitcnt lgkmcnt(0)')

    def pv_post(j):
        d = ACC + 4 * j
        dpp('v_add_f32', 4 + (j & 3), d + 1, d, 'row_ror:8', 1 << (j >> 2), 0x3)
        dpp('v_add_f32', 4 + (j & 3), d + 2, d + 3, 'row_ror:8', 1 << (j >> 2), 0xc)
    perms(big, 6, 7, 0)
    perms(big, 6, 7, 1)
    pv_mfma(7, 0, big(0))
    perms(big, 6, 7, 2)
    pv_mfma(7, 1, big(1))
    perms(big, 6, 7, 3)
    for j in range(2, 8):
        pv_mfma(7, j, big(j))
        if j >= 4:
            pv_post(j - 4)
    for j in range(4, 8):
        pv_post(j)
    a('v_bfi_b32 v4, s31, v9, v4')
    a('s_mov_b32 exec_hi, 0')
    a(f'buffer_store_dwordx4 v[4:7], v8, {sr(SRD_WS, 4)}, s30 offen sc1')
    stamp(7)
    a('s_branch L_exit')

    V_R8, V_NT, V_TR, V_AR, V_L16, V_XA, V_MA, V_ST, V_DM = 1, 2, 3, 4, 5, 6, 7, 8, 9
    W56, W112, T0 = 88, 144, 12
    S_A, S_Bs, S_BASE, S_KB0, S_KB1, S_DST, S_ROLE = 68, 69, 70, 71, 72, 73, 74
    MASK8 = 's[36:37]'

    a('L_chain:')
    a(f's_sub_u32 s{S_C}, s{S_W}, 4\ns_lshl_b32 s{S_JJ}, s{S_H}, 2\ns_or_b32 s{S_JJ}, s{S_JJ}, s{S_D}')
    a(f'v_lshrrev_b32 v{V_R8}, 1, v0\nv_and_b32 v{V_R8}, 7, v{V_R8}')
    a(f'v_lshrrev_b32 v10, 4, v0\nv_and_b32 v11, 1, v0\nv_lshlrev_b32 v11, 4, v11\nv_lshl_or_b32 v{V_NT}, v10, 5, v11')
    a(f'v_lshlrev_b32 v{V_L16}, 4, v0')
    a(f'v_and_b32 v11, 7, v0\nv_lshrrev_b32 v12, 3, v0\nv_lshlrev_b32 v12, 4, v12')
    a(f'v_mul_u32_u24 v{V_XA}, 896, v11\nv_add_u32 v{V_XA}, v{V_XA}, v12\nv_lshl_or_b32 v{V_MA}, v11, 8, v12')
    a(f's_add_u32 s{S_KB1}, s{S_C}, 4\ns_min_u32 s{S_KB1}, s{S_KB1}, 6')
    a(f's_mov_b32 s{S_ROLE}, 0')
    a('s_waitcnt lgkmcnt(0)')
    srd(SRD_WS, P_WS, WS_SIZE)
    a(f'v_mov_b32 v13, 0\nbuffer_load_dword v87, v13, {sr(SRD_WS, 4)}, 0 offen sc1 nt')
    a(f's_lshl_b32 s30, s{S_R}, 3\ns_add_u32 s30, s30, s{S_H}\ns_cmp_lt_u32 s30, 42\ns_cbranch_scc1 L_setM')
    a(f's_lshr_b32 s31, s{S_R}, 3\ns_cmp_eq_u32 s31, 1\ns_cbranch_scc1 L_setQ')
    a(f's_cmp_lt_u32 s{S_B}, 7\ns_cbranch_scc1 L_norole\ns_cmp_ge_u32 s{S_JJ}, 28\ns_cbranch_scc1 L_norole')
    srd(SRD_A, P_W2, 1605632)
    a(f's_mov_b32 s{S_ROLE}, 3\ns_movk_i32 s32, 896\ns_movk_i32 s{S_A}, 7168\ns_movk_i32 s{S_Bs}, 128\ns_mul_i32 s{S_BASE}, s{S_JJ}, 57344')
    a('s_branch L_dma0')
    a('L_setM:')
    srd(SRD_A, P_WM, 2408448)
    srd(SRD_C, P_C, 7168)
    a(f's_mov_b32 s{S_ROLE}, 1\ns_movk_i32 s32, 5376\ns_mov_b32 s{S_A}, 43008\ns_mov_b32 s{S_Bs}, 344064\ns_lshl_b32 s{S_BASE}, s30, 7')
    a(f's_lshl_b32 s{S_DST}, s30, 11\ns_add_u32 s{S_DST}, s{S_DST}, {WS_MOD}')
    a('s_branch L_act0')
    a('L_setQ:')
    srd(SRD_A, P_WQ, 3670016)
    srd(SRD_C, P_X, 7168)
    a(f's_lshl_b32 s30, s{S_H}, 3\ns_and_b32 s31, s{S_R}, 7\ns_or_b32 s30, s30, s31')
    a(f's_mov_b32 s{S_ROLE}, 2\ns_movk_i32 s32, 8192\ns_mov_b32 s{S_A}, 65536\ns_mov_b32 s{S_Bs}, 524288\ns_lshl_b32 s{S_BASE}, s30, 7')
    a(f's_lshl_b32 s{S_DST}, s30, 11\ns_add_u32 s{S_DST}, s{S_DST}, {WS_Q}')
    for kb in range(7):
        a(f'buffer_load_dwordx4 {vr(200 + 4 * kb, 4)}, v{V_XA}, {sr(SRD_C, 4)}, 0 offen offset:{128 * kb} nt')
    a('L_act0:')
    a(f's_lshl_b32 s30, s{S_C}, 7\ns_lshl_b32 s31, s{S_KB1}, 7')
    a(f'buffer_load_dwordx4 v[228:231], v{V_XA}, {sr(SRD_C, 4)}, s30 offen nt')
    a(f'buffer_load_dwordx4 v[232:235], v{V_XA}, {sr(SRD_C, 4)}, s31 offen nt')

    def dma(srdn, nt, lds0, depth, first=None):
        a(f's_lshl_b32 s30, s{S_C}, 1\ns_mul_i32 s31, s30, {BLK}\ns_add_u32 m0, s31, {lds0}')
        a(f's_mul_i32 s30, s30, s{S_A}\ns_add_u32 s30, s30, s{S_BASE}\ns_add_u32 s31, s30, s{S_A}')
        for t in range(nt):
            for u in range(2):
                k = 2 * t + u
                if k >= depth:
                    a(f's_waitcnt vmcnt({depth - 1})')
                a(f'buffer_load_dwordx4 v{V_DM}, {sr(srdn, 4)}, s{30 + u} offen {WFL} lds')
                if first is not None and k == min(depth, 2 * nt) - 1:
                    first()
                if k < 2 * nt - 1:
                    a(f's_add_u32 m0, m0, {BLK if u == 0 else 7 * BLK}\ns_add_u32 s{30 + u}, s{30 + u}, s{S_Bs}')

    def trread(dst, nops, vaddr):
        for s in range(nops):
            for rp in range(2):
                a(f'ds_read_b64_tr_b16 {vr(dst + 4 * s + 2 * rp, 2)}, v{vaddr} offset:{s * 4 * BLK + rp * 128}')

    def consts():
        a(f'v_mul_u32_u24 v{V_TR}, {BLK}, v10\nv_and_b32 v13, 15, v0\nv_lshl_add_u32 v{V_TR}, v13, 3, v{V_TR}')
        a(f's_lshl_b32 s26, s{S_C}, 8\ns_add_u32 s26, s26, {L_W}\nv_add_u32 v{V_TR}, s26, v{V_TR}')
        a(f'v_lshlrev_b32 v13, 4, v11\nv_lshl_or_b32 v{V_AR}, v10, 7, v13')
        a(f'v_and_b32 v13, 1, v10\nv_lshlrev_b32 v13, 3, v13\nv_lshrrev_b32 v12, 1, v10\nv_add_u32 v13, v13, v12')
        a(f's_lshl_b32 s26, s{S_C}, 1\nv_add_u32 v13, s26, v13\nv_lshlrev_b32 v13, 4, v13\nv_lshl_or_b32 v{V_ST}, v11, 8, v13')
        a('s_mov_b32 s36, 0x00ff00ff\ns_mov_b32 s37, 0x00ff00ff\nv_mov_b32 v84, 0\nv_mov_b32 v85, 0')

    def get_epoch():
        a(f'v_readfirstlane_b32 s{S_E}, v87\ns_add_u32 s{S_E}, s{S_E}, 1\ns_and_b32 s{S_E8}, s{S_E}, 0xff')

    a('L_dma0:')
    a(f'v_mad_u32_u24 v{V_DM}, v{V_R8}, s32, v{V_NT}')
    dma(SRD_A, 7, L_W, cfg['dW'], first=lambda: a('s_barrier'))
    consts()
    a(f's_waitcnt vmcnt({min(14, cfg["dW"])})')
    get_epoch()
    a(f's_cmp_eq_u32 s{S_ROLE}, 3\ns_cbranch_scc1 L_gemm0')
    for k in range(8):
        a(f'v_lshlrev_b32 v{12 + 2 * k}, 16, v{228 + k}\nv_and_b32 v{13 + 2 * k}, 0xffff0000, v{228 + k}')
    a(f's_cmp_eq_u32 s{S_ROLE}, 2\ns_cbranch_scc1 L_actQ')
    a(f's_mov_b32 s26, {LOG2E | 0x80000000:#x}')
    for k in range(16):
        a(f'v_mul_f32 v{28 + k}, s26, v{12 + k}')
    for k in range(16):
        a(f'v_exp_f32 v{28 + k}, v{28 + k}')
    for k in range(16):
        a(f'v_add_f32 v{28 + k}, 1.0, v{28 + k}')
    for k in range(16):
        a(f'v_rcp_f32 v{28 + k}, v{28 + k}')
    for k in range(16):
        a(f'v_mul_f32 v{12 + k}, v{12 + k}, v{28 + k}')
    a('s_branch L_actW')

    def ln_scalars(mean, var, t):
        rnd(mean, mean)
        rnd(var, var)
        a(f'v_add_f32 v{var}, 0x3727c5ac, v{var}')
        rnd(var, var)
        a(f'v_sqrt_f32 v{var}, v{var}')
        rnd(var, var)
        a(f'v_rcp_f32 v{var}, v{var}')

    def ln_norm(x, n, mean2, rs2):
        for k in range(0, n, 2):
            a(f'v_pk_add_f32 {vr(x + k, 2)}, {vr(x + k, 2)}, {vr(mean2, 2)} op_sel_hi:[1,0] neg_lo:[0,1] neg_hi:[0,1]')
        for k in range(n):
            rnd(x + k, x + k)
        for k in range(0, n, 2):
            a(f'v_pk_mul_f32 {vr(x + k, 2)}, {vr(x + k, 2)}, {vr(rs2, 2)} op_sel_hi:[1,0]')
        for k in range(n):
            rnd(x + k, x + k)

    def ln_mod(x, n, c1, sh):
        for k in range(0, n, 2):
            a(f'v_pk_mul_f32 {vr(x + k, 2)}, {vr(x + k, 2)}, {vr(c1 + k, 2)}')
        for k in range(n):
            rnd(x + k, x + k)
        for k in range(0, n, 2):
            a(f'v_pk_add_f32 {vr(x + k, 2)}, {vr(x + k, 2)}, {vr(sh + k, 2)}')

    def mod_params(blk_shift, blk_scale, sh, c1, raw):
        for q, base in enumerate((blk_shift, blk_scale)):
            a(f's_lshl_b32 s{24 + 2 * q}, s{S_C}, 11\ns_add_u32 s{24 + 2 * q}, s{24 + 2 * q}, {WS_MOD + base * 2048}')
            a(f's_lshl_b32 s{25 + 2 * q}, s{S_KB1}, 11\ns_add_u32 s{25 + 2 * q}, s{25 + 2 * q}, {WS_MOD + base * 2048}')
        top, done = a.lab('L_pm'), a.lab('L_pmd')
        a(f'{top}:')
        for q in range(4):
            for h in range(2):
                a(f'buffer_load_dwordx3 {vr(raw + 8 * q + 4 * h, 3)}, v{V_MA}, {sr(SRD_WS, 4)}, s{24 + q} offen offset:{128 * h} sc1')
        a('s_waitcnt vmcnt(0)')
        a(f'v_xor_b32 v{raw + 3}, s{S_E}, v{raw}')
        for k in range(1, 8):
            a(f'v_bitop3_b32 v{raw + 3}, v{raw + 3}, v{raw + 4 * k}, s{S_E} bitop3:0xf6')
        a(f'v_cmp_ne_u32 vcc, 0, v{raw + 3}\ns_cbranch_vccz {done}')
        retry(top)
        a(f'{done}:')
        for k in range(4):
            for dw in range(2):
                a(f'v_lshlrev_b32 v{sh + 4 * k + 2 * dw}, 16, v{raw + 4 * k + 1 + dw}\nv_and_b32 v{sh + 4 * k + 2 * dw + 1}, 0xffff0000, v{raw + 4 * k + 1 + dw}')
                a(f'v_lshlrev_b32 v{c1 + 4 * k + 2 * dw}, 16, v{raw + 16 + 4 * k + 1 + dw}\nv_and_b32 v{c1 + 4 * k + 2 * dw + 1}, 0xffff0000, v{raw + 16 + 4 * k + 1 + dw}')
        for k in range(16):
            a(f'v_add_f32 v{c1 + k}, 1.0, v{c1 + k}')
        for k in range(16):
            rnd(c1 + k, c1 + k)

    def write_act(x):
        for k in range(8):
            a(f'v_cvt_pk_bf16_f32 v{x + k}, v{x + 2 * k}, v{x + 2 * k + 1}')
        a(f's_lshl_b32 s30, s{S_C}, 10\ns_lshl_b32 s31, s{S_KB1}, 10\nv_add_u32 v10, s30, v{V_L16}\nv_add_u32 v11, s31, v{V_L16}')
        a(f'ds_write_b128 v10, {vr(x, 4)} offset:{L_A}\nds_write_b128 v11, {vr(x + 4, 4)} offset:{L_A}')

    a('L_actQ:')
    for k in range(28):
        a(f'v_lshlrev_b32 v{144 + 2 * k}, 16, v{200 + k}\nv_and_b32 v{145 + 2 * k}, 0xffff0000, v{200 + k}')
    a('v_pk_add_f32 v[28:29], v[144:145], v[146:147]\nv_pk_add_f32 v[30:31], v[148:149], v[150:151]')
    for k in range(4, 28, 2):
        a(f'v_pk_add_f32 v[28:29], v[28:29], {vr(144 + 2 * k, 2)}\nv_pk_add_f32 v[30:31], v[30:31], {vr(146 + 2 * k, 2)}')
    a('v_pk_add_f32 v[28:29], v[28:29], v[30:31]\nv_add_f32 v28, v28, v29')
    dpp('v_add_f32', 28, 28, 28, 'row_ror:8')
    rows_allreduce('v_add_f32', 28, 29)
    a('v_mul_f32 v28, 0x3b124925, v28')
    for k in range(28):
        a(f'v_pk_add_f32 {vr(144 + 2 * k, 2)}, {vr(144 + 2 * k, 2)}, v[28:29] op_sel_hi:[1,0] neg_lo:[0,1] neg_hi:[0,1]')
    a('v_pk_mul_f32 v[30:31], v[144:145], v[144:145]\nv_pk_mul_f32 v[32:33], v[146:147], v[146:147]')
    for k in range(2, 28, 2):
        a(f'v_pk_fma_f32 v[30:31], {vr(144 + 2 * k, 2)}, {vr(144 + 2 * k, 2)}, v[30:31]')
        a(f'v_pk_fma_f32 v[32:33], {vr(146 + 2 * k, 2)}, {vr(146 + 2 * k, 2)}, v[32:33]')
    a('v_pk_add_f32 v[30:31], v[30:31], v[32:33]\nv_add_f32 v30, v30, v31')
    dpp('v_add_f32', 30, 30, 30, 'row_ror:8')
    rows_allreduce('v_add_f32', 30, 31)
    a('v_mul_f32 v30, 0x3b124925, v30')
    ln_scalars(28, 30, 31)
    ln_norm(12, 16, 28, 30)
    stamp(1)
    mod_params(0, 7, 28, 44, 144)
    stamp(2)
    ln_mod(12, 16, 44, 28)
    a('L_actW:')
    write_act(12)
    a('L_gemm0:')
    a('s_waitcnt vmcnt(0) lgkmcnt(0)')
    flag_add(F_S1, 10)
    spin_lds(F_S1, 4, 10)
    stamp(3)
    trread(W56, 14, V_TR)
    a(f's_cmp_eq_u32 s{S_ROLE}, 3\ns_cbranch_scc1 L_mid')
    for s in range(14):
        a(f'ds_read_b128 {vr(T0 + 4 * s, 4)}, v{V_AR} offset:{L_A + 512 * s}')
    a('s_waitcnt lgkmcnt(0)')
    for s in range(14):
        a(f'v_mfma_f32_16x16x32_bf16 v[68:71], {vr(W56 + 4 * s, 4)}, {vr(T0 + 4 * s, 4)}, {"v[68:71]" if s else 0}')
    a(f'v_mov_b32 v72, s{S_E}')
    a('v_cvt_pk_bf16_f32 v73, v68, v69\nv_cvt_pk_bf16_f32 v74, v70, v71')
    a(f's_mov_b64 exec, {MASK8}')
    a(f'buffer_store_dwordx3 v[72:74], v{V_ST}, {sr(SRD_WS, 4)}, s{S_DST} offen sc1')
    a('s_mov_b64 exec, -1')
    stamp(4)
    a('s_branch L_mid')

    a('L_norole:')
    a('s_barrier')
    consts()
    if cfg['pref']:
        skip = a.lab('L_np')
        a(f's_cmp_eq_u32 s{S_R}, 6\ns_cbranch_scc0 {skip}')
        a('s_getpc_b64 s[24:25]\nL_pc0:')
        a(f's_sub_u32 s24, s24, L_pc0-{NAME}_kernel\ns_subb_u32 s25, s25, 0')
        a(f's_lshl_b32 s30, s{S_C}, 13\nv_lshl_add_u32 v12, v0, 7, s30\nv_min_u32 v12, L_end-{NAME}_kernel, v12')
        a('global_load_dword v13, v12, s[24:25]')
        a(f'{skip}:')
    a('s_waitcnt vmcnt(0)')
    get_epoch()

    a('L_mid:')
    a('s_waitcnt lgkmcnt(0)')
    flag_add(F_VT, 12, 16)
    a(f's_cmp_eq_u32 s{S_C}, 0\ns_cbranch_scc0 L_noq')
    spin_lds(F_KT, 1, 12)
    a(f's_lshl_b32 s30, s{S_H}, 14\ns_lshl_b32 s31, s{S_B}, 8\ns_add_u32 s30, s30, s31\ns_add_u32 s30, s30, {WS_Q}\ns_add_u32 s31, s30, 8192')
    a('v_lshrrev_b32 v12, 4, v0\nv_and_b32 v13, 15, v0\nv_lshlrev_b32 v14, 4, v13\nv_lshl_or_b32 v14, v12, 11, v14')
    a('v_and_b32 v15, 7, v0\nv_lshlrev_b32 v15, 4, v15\nv_and_b32 v13, 8, v0\nv_or_b32 v15, v15, v13\nv_lshl_or_b32 v15, v12, 7, v15')
    a('L_qpoll:')
    a(f'buffer_load_dwordx3 v[16:18], v14, {sr(SRD_WS, 4)}, s30 offen sc1\nbuffer_load_dwordx3 v[20:22], v14, {sr(SRD_WS, 4)}, s31 offen sc1')
    a(f's_waitcnt vmcnt(0)\nv_xor_b32 v19, s{S_E}, v16\nv_bitop3_b32 v19, v19, v20, s{S_E} bitop3:0xf6')
    a('v_cmp_ne_u32 vcc, 0, v19\ns_cbranch_vccz L_qgot')
    retry('L_qpoll')
    a('L_qgot:')
    a(f'v_add_u32 v15, {L_Q}, v15')
    a('ds_write2_b32 v15, v17, v18 offset0:0 offset1:1\nds_write2_b32 v15, v21, v22 offset0:128 offset1:129\ns_waitcnt lgkmcnt(0)')
    flag_add(F_Q, 12)
    stamp(5)
    Z_GA, Z_GB, Z_X, Z_TAG, Z_XA, Z_OA = 80, 81, 82, 83, 84, 85
    a(f's_sub_u32 s26, s{S_R}, 16\ns_cmp_lt_u32 s26, 7\ns_cbranch_scc0 L_noq')
    srd(SRD_C, P_X, 7168)
    a(f's_lshl_b32 s30, s26, 11\ns_lshl_b32 s31, s{S_H}, 8\ns_add_u32 s30, s30, s31\ns_add_u32 s31, s30, {WS_MOD + 35 * 2048}\ns_add_u32 s30, s30, {WS_MOD + 14 * 2048}')
    a('v_and_b32 v13, 1, v0\nv_lshlrev_b32 v13, 7, v13\nv_and_b32 v14, 14, v0\nv_lshl_or_b32 v14, v14, 3, v13')
    a(f'v_lshrrev_b32 v12, 4, v0\nv_lshl_or_b32 v{Z_XA}, v12, 2, v14')
    a(f'v_and_b32 v13, 15, v0\nv_lshl_or_b32 v13, v13, 2, v12\nv_lshlrev_b32 v{Z_OA}, 1, v13')
    a(f's_mul_i32 s27, s{S_H}, 896\ns_lshl_b32 s32, s26, 7\ns_add_u32 s27, s27, s32\nv_add_u32 v{Z_OA}, s27, v{Z_OA}')
    a(f'buffer_load_ushort v{Z_X}, v{Z_OA}, {sr(SRD_C, 4)}, 0 offen nt')
    a('L_zpoll:')
    a(f'buffer_load_dwordx3 v[16:18], v14, {sr(SRD_WS, 4)}, s30 offen sc1\nbuffer_load_dwordx3 v[20:22], v14, {sr(SRD_WS, 4)}, s31 offen sc1')
    a(f's_waitcnt vmcnt(0)\nv_xor_b32 v19, s{S_E}, v16\nv_bitop3_b32 v19, v19, v20, s{S_E} bitop3:0xf6')
    a('v_cmp_ne_u32 vcc, 0, v19\ns_cbranch_vccz L_zgot')
    retry('L_zpoll')
    a('L_zgot:')
    a('v_cmp_lt_u32 vcc, 31, v0\nv_cndmask_b32 v17, v17, v18, vcc\nv_cndmask_b32 v21, v21, v22, vcc')
    a('v_and_b32 v13, 16, v0\nv_lshrrev_b32 v17, v13, v17\nv_lshrrev_b32 v21, v13, v21')
    a(f'v_lshlrev_b32 v{Z_GA}, 16, v17\nv_lshlrev_b32 v{Z_GB}, 16, v21\nv_lshlrev_b32 v{Z_X}, 16, v{Z_X}')
    a(f'v_cmp_gt_u32 vcc, 16, v0\nv_mov_b32 v13, s{S_E8}\nv_cndmask_b32 v{Z_TAG}, 0, v13, vcc')
    a('L_noq:')
    F_SH, F_C1 = 52, 68
    a(f's_cmp_eq_u32 s{S_ROLE}, 3\ns_cbranch_scc0 L_nofp')
    spin_lds(F_Q, 1, 12)
    mod_params(21, 28, F_SH, F_C1, 144)
    a('L_nofp:')
    a(f's_cmp_eq_u32 s{S_C}, 1\ns_cbranch_scc0 L_nosm')
    a(f's_lshl_b32 s26, s{S_B}, 3\ns_or_b32 s26, s26, s{S_H}\ns_lshl_b32 s26, s26, 7\ns_add_u32 s26, s26, {WS_ML}\ns_lshl_b32 s27, s{S_D}, 5\ns_add_u32 s27, s27, s26')
    a('v_and_b32 v48, 8, v0\nv_lshlrev_b32 v48, 1, v48\nv_lshrrev_b32 v13, 4, v0\nv_lshl_or_b32 v49, v13, 5, v48')
    a('v_and_b32 v50, 15, v0\nv_lshlrev_b32 v50, 4, v50\nv_lshl_or_b32 v50, v13, 9, v50')
    a('s_mov_b32 s32, 0x3db8aa3b')
    spin_lds(F_SC, 4, 12)
    stamp(6)
    for w in range(4):
        a(f'ds_read_b128 {vr(12 + 4 * w, 4)}, v{V_L16} offset:{L_SC + 1024 * w}')
    a('s_waitcnt lgkmcnt(0)')
    for k in range(16):
        rnd(12 + k, 12 + k)
    a('v_max3_f32 v45, v12, v13, v14')
    for k in range(15, 27, 2):
        a(f'v_max3_f32 v45, v45, v{k}, v{k + 1}')
    a('v_max_f32 v45, v45, v27')

    def head_allreduce(op, x, t):
        dpp(op, x, x, x, 'quad_perm:[1,0,3,2]')
        dpp(op, x, x, x, 'quad_perm:[2,3,0,1]')
        dpp(op, x, x, x, 'row_half_mirror')
        rows_allreduce(op, x, t)

    def exps(m):
        for k in range(16):
            a(f'v_sub_f32 v{28 + k}, v{12 + k}, v{m}')
        for k in range(16):
            a(f'v_mul_f32 v{28 + k}, s32, v{28 + k}')
        for k in range(16):
            a(f'v_exp_f32 v{28 + k}, v{28 + k}')
    head_allreduce('v_max_f32', 45, 47)
    exps(45)
    for st in (8, 4, 2):
        for k in range(0, st, 2):
            a(f'v_pk_add_f32 {vr(28 + k, 2)}, {vr(28 + k, 2)}, {vr(28 + st + k, 2)}')
    a('v_add_f32 v46, v28, v29')
    head_allreduce('v_add_f32', 46, 47)
    a(f'v_mov_b32 v44, s{S_E}\ns_mov_b64 exec, 0x101')
    a(f'buffer_store_dwordx3 v[44:46], v48, {sr(SRD_WS, 4)}, s27 offen sc1\ns_mov_b64 exec, -1')
    a('L_mlpoll:')
    a(f'buffer_load_dwordx3 v[28:30], v49, {sr(SRD_WS, 4)}, s26 offen sc1\ns_waitcnt vmcnt(0)')
    a(f'v_cmp_ne_u32 vcc, s{S_E}, v28\ns_cbranch_vccz L_mlgot')
    retry('L_mlpoll')
    a('L_mlgot:')
    stamp(7)
    a('v_mov_b32 v45, v29')
    rows_allreduce('v_max_f32', 45, 47)
    a('v_sub_f32 v29, v29, v45\nv_mul_f32 v29, s32, v29\nv_exp_f32 v29, v29\nv_mul_f32 v46, v29, v30')
    rows_allreduce('v_add_f32', 46, 47)
    a('v_rcp_f32 v46, v46')
    exps(45)
    for k in range(0, 16, 2):
        a(f'v_pk_mul_f32 {vr(28 + k, 2)}, {vr(28 + k, 2)}, v[46:47] op_sel_hi:[1,0]')
    for uh in range(2):
        for dd in range(4):
            u, x = 2 * uh + (dd >> 1), dd & 1
            a(f'v_cvt_pk_bf16_f32 v{12 + 4 * uh + dd}, v{28 + 4 * (2 * x) + u}, v{28 + 4 * (2 * x + 1) + u}')
    a(f'ds_write_b128 v50, v[12:15] offset:{L_P}\nds_write_b128 v50, v[16:19] offset:{L_P + 256}')
    a(f'v_mov_b32 v20, 1\nv_mov_b32 v21, s{S_E}\nv_mov_b32 v22, 0\ns_waitcnt lgkmcnt(0)\nds_write_b64 v22, v[20:21] offset:{F_P}')
    stamp(8)
    a('L_nosm:')

    a(f's_cmp_eq_u32 s{S_ROLE}, 3\ns_cbranch_scc1 L_ffn')
    a(f's_cmp_eq_u32 s{S_B}, 7\ns_cbranch_scc1 L_exit')
    srd(SRD_A, P_WO, 3670016)
    a(f's_movk_i32 s32, 896\ns_movk_i32 s{S_A}, 7168\ns_mov_b32 s{S_Bs}, 229376')
    a(f's_lshl_b32 s30, s{S_H}, 9\ns_lshl_b32 s31, s{S_D}, 6\ns_add_u32 s30, s30, s31\ns_mul_i32 s30, s30, 896\ns_lshl_b32 s31, s{S_B}, 7\ns_add_u32 s{S_BASE}, s30, s31')
    a(f'v_mad_u32_u24 v{V_DM}, v{V_R8}, s32, v{V_NT}')
    a(f's_lshl_b32 s24, s{S_JJ}, 14\ns_lshl_b32 s30, s{S_C}, 7\ns_add_u32 s24, s24, s30\ns_add_u32 s24, s24, {WS_OP}')
    a('s_add_u32 s25, s24, 4096\ns_add_u32 s26, s24, 8192\ns_add_u32 s27, s24, 12288')
    a(f'v_and_b32 v12, 7, v0\nv_lshl_add_u32 v40, v12, 8, v{V_MA}')
    a(f's_lshr_b32 s30, s{S_C}, 1\ns_lshl_b32 s30, s30, 10\ns_and_b32 s31, s{S_C}, 1\ns_lshl_b32 s31, s31, 3\ns_add_u32 s30, s30, s31\nv_add_u32 v41, s30, v{V_L16}')
    a('v_mul_u32_u24 v42, 57344, v12\nv_lshrrev_b32 v13, 4, v0\nv_lshl_add_u32 v42, v13, 4, v42')
    a(f's_lshl_b32 s{S_DST}, s{S_B}, 13\ns_lshl_b32 s30, s{S_JJ}, 8\ns_add_u32 s{S_DST}, s{S_DST}, s30\ns_lshl_b32 s30, s{S_C}, 6\ns_add_u32 s{S_DST}, s{S_DST}, s30')
    a(f's_add_u32 s{S_DST}, s{S_DST}, {WS_PA}\nv_mov_b32 v43, s{S_E}\ns_movk_i32 s38, 0xff')
    spin_lds(F_VT, 65, 12)
    dma(SRD_A, 2, L_W, 63)
    a('s_waitcnt vmcnt(0)')
    flag_add(F_S2, 12)
    spin_lds(F_S2, 4, 12)
    trread(W56, 4, V_TR)
    stamp(9)

    def poll8(top, done, regs, loads):
        a(f'{top}:')
        loads()
        a('s_waitcnt vmcnt(0)')
        for r in regs:
            a(f'v_xor_b32 v{r}, s{S_E8}, v{r}')
        rest = list(regs)
        if len(rest) >= 3:
            a(f'v_or3_b32 v10, v{rest[0]}, v{rest[1]}, v{rest[2]}')
            rest = rest[3:]
        while len(rest) >= 2:
            a(f'v_or3_b32 v10, v10, v{rest[0]}, v{rest[1]}')
            rest = rest[2:]
        if rest:
            a(f'v_or_b32 v10, v10, v{rest[0]}')
        a('v_and_b32 v10, 0xff, v10')

    def poll_end(top, done):
        a(f'v_cmp_ne_u32 vcc, 0, v10\ns_cbranch_vccz {done}')
        retry(top)
        a(f'{done}:')

    poll8('L_wpoll', 'L_wgot', [12, 16, 20, 24],
          lambda: [a(f'buffer_load_dwordx4 {vr(12 + 4 * s, 4)}, v40, {sr(SRD_WS, 4)}, s{24 + s} offen sc1') for s in range(4)])
    poll_end('L_wpoll', 'L_wgot')
    a('v_pk_add_f32 v[12:13], v[12:13], v[16:17]\nv_pk_add_f32 v[20:21], v[20:21], v[24:25]')
    a('v_pk_add_f32 v[14:15], v[14:15], v[18:19]\nv_pk_add_f32 v[22:23], v[22:23], v[26:27]')
    a('v_pk_add_f32 v[12:13], v[12:13], v[20:21]\nv_pk_add_f32 v[14:15], v[14:15], v[22:23]')
    a('v_cvt_pk_bf16_f32 v12, v12, v13\nv_cvt_pk_bf16_f32 v13, v14, v15')
    a(f'ds_write_b64 v41, v[12:13] offset:{L_A}\ns_waitcnt lgkmcnt(0)\ns_barrier')
    for s in range(4):
        a(f'ds_read_b128 {vr(12 + 4 * s, 4)}, v{V_AR} offset:{L_A + 512 * s}')
    for s in range(4):
        a(f's_waitcnt lgkmcnt({3 - s})')
        a(f'v_mfma_f32_16x16x32_bf16 v[28:31], {vr(W56 + 4 * s, 4)}, {vr(12 + 4 * s, 4)}, {"v[28:31]" if s else 0}')
    a(f's_mov_b64 exec, {MASK8}')
    a('v_bfi_b32 v28, s38, v43, v28')
    a(f'buffer_store_dwordx4 v[28:31], v42, {sr(SRD_WS, 4)}, s{S_DST} offen sc1')
    a('s_mov_b64 exec, -1')
    stamp(10)
    a(f's_cmp_eq_u32 s{S_C}, 0\ns_cbranch_scc0 L_exit')
    a(f's_sub_u32 s26, s{S_R}, 16\ns_cmp_lt_u32 s26, 7\ns_cbranch_scc0 L_exit')
    a(f's_mul_i32 s30, s{S_H}, 7\ns_add_u32 s30, s30, s26\ns_lshl_b32 s30, s30, 13')
    a(f's_add_u32 s24, s30, {WS_PA}\ns_add_u32 s25, s24, 4096')
    a(f's_lshl_b32 s26, s26, 3\ns_add_u32 s26, s26, s{S_H}\ns_lshl_b32 s27, s26, 4\ns_add_u32 s27, s27, {WS_ST}')
    a(f's_lshl_b32 s32, s26, 8\ns_add_u32 s32, s32, {WS_X1}')
    srd(SRD_C, P_OUT, 7168)
    a(f'v_mov_b32 v44, s{S_E}\nv_mov_b32 v47, 0')

    def gather(top, done, n):
        poll8(top, done, [12 + 4 * u for u in range(n)],
              lambda: [a(f'buffer_load_dwordx4 {vr(12 + 4 * u, 4)}, v{V_L16}, {sr(SRD_WS, 4)}, s{24 + (u >> 2)} offen offset:{1024 * (u & 3)} sc1') for u in range(n)])
        poll_end(top, done)
        for st in (4, 2, 1):
            for u in range(st):
                if u + st < n:
                    for h in (0, 2):
                        a(f'v_pk_add_f32 {vr(12 + 4 * u + h, 2)}, {vr(12 + 4 * u + h, 2)}, {vr(12 + 4 * (u + st) + h, 2)}')
        a('v_permlane32_swap_b32 v12, v14\nv_permlane32_swap_b32 v13, v15\nv_pk_add_f32 v[12:13], v[12:13], v[14:15]')
        a('v_permlane16_swap_b32 v12, v13\nv_add_f32 v12, v12, v13')

    gather('L_apoll', 'L_agot', 8)
    rnd(12, 12)
    a(f'v_mul_f32 v12, v{Z_GA}, v12')
    rnd(12, 12)
    a(f'v_add_f32 v12, v{Z_X}, v12')
    rnd(Z_X, 12)
    a(f'v_or_b32 v13, v{Z_TAG}, v{Z_X}\nv_mul_f32 v46, v{Z_X}, v{Z_X}')
    a(f'buffer_store_dword v13, v{Z_XA}, {sr(SRD_WS, 4)}, s32 offen sc1')
    dpp('v_add_f32', 45, Z_X, Z_X, 'row_ror:8')
    dpp('v_add_f32', 46, 46, 46, 'row_ror:8')
    for ctl in ('row_ror:4', 'row_ror:2', 'row_ror:1'):
        dpp('v_add_f32', 45, 45, 45, ctl)
        dpp('v_add_f32', 46, 46, 46, ctl)
    for ctl, rm in (('row_bcast:15', 0xa), ('row_bcast:31', 0xc)):
        dpp('v_add_f32', 45, 45, 45, ctl, rm)
        dpp('v_add_f32', 46, 46, 46, ctl, rm)
    a('s_mov_b32 exec_lo, 0\ns_mov_b32 exec_hi, 0x80000000')
    a(f'buffer_store_dwordx3 v[44:46], v47, {sr(SRD_WS, 4)}, s27 offen sc1\ns_mov_b64 exec, -1')
    stamp(1)
    a(f's_add_u32 s24, s30, {WS_PF}\ns_add_u32 s25, s24, 4096')
    gather('L_fpoll', 'L_fgot', 7)
    rnd(12, 12)
    a(f'v_mul_f32 v12, v{Z_GB}, v12')
    rnd(12, 12)
    a(f'v_add_f32 v12, v{Z_X}, v12\nv_cvt_pk_bf16_f32 v12, v12, v12')
    a(f'buffer_store_short v12, v{Z_OA}, {sr(SRD_C, 4)}, 0 offen')
    stamp(2)
    a('s_cmp_eq_u32 s26, 0\ns_cbranch_scc0 L_exit')
    a(f's_mov_b64 exec, 1\nbuffer_store_dword v44, v47, {sr(SRD_WS, 4)}, 0 offen sc1\ns_mov_b64 exec, -1')
    a('s_branch L_exit')

    a('L_ffn:')
    srd(SRD_A, P_W1, 1605632)
    srd(SRD_B, P_W3, 1605632)
    a(f's_movk_i32 s32, 3584\ns_movk_i32 s{S_A}, 28672\ns_mov_b32 s{S_Bs}, 229376\ns_lshl_b32 s{S_BASE}, s{S_JJ}, 7')
    a(f'v_mad_u32_u24 v{V_DM}, v{V_R8}, s32, v{V_NT}')
    a(f'v_add_u32 v46, {56 * BLK}, v{V_TR}')
    a(f's_lshl_b32 s24, s{S_C}, 11\ns_add_u32 s24, s24, {WS_X1}\ns_lshl_b32 s25, s{S_KB1}, 11\ns_add_u32 s25, s25, {WS_X1}\ns_mov_b32 s26, {WS_ST}')
    a(f'v_min_u32 v47, 55, v0\nv_lshlrev_b32 v47, 4, v47')
    a('v_and_b32 v12, 7, v0\nv_mul_u32_u24 v48, 57344, v12\nv_lshrrev_b32 v13, 4, v0\nv_lshl_add_u32 v48, v13, 4, v48')
    a(f's_lshl_b32 s{S_DST}, s{S_JJ}, 8\ns_lshl_b32 s30, s{S_C}, 6\ns_add_u32 s{S_DST}, s{S_DST}, s30\ns_add_u32 s{S_DST}, s{S_DST}, {WS_PF}')
    a('v_lshrrev_b32 v14, 1, v13\nv_lshlrev_b32 v14, 7, v14\nv_lshl_or_b32 v14, v12, 4, v14\nv_and_b32 v13, 1, v13\nv_lshl_or_b32 v14, v13, 3, v14')
    a(f's_lshl_b32 s30, s{S_C}, 8\nv_add_u32 v49, s30, v14')
    a(f'v_mov_b32 v50, s{S_E}\ns_movk_i32 s38, 0xff\ns_mov_b32 s39, {LOG2E | 0x80000000:#x}')
    a('s_mov_b32 s22, -1\ns_mov_b32 s23, 0x00ffffff')
    spin_lds(F_VT, 65, 12)
    dma(SRD_A, 7, L_W, cfg['dF'])
    dma(SRD_B, 7, L_W + 56 * BLK, cfg['dF'])
    a('s_waitcnt vmcnt(0)')
    flag_add(F_S2, 12)
    spin_lds(F_S2, 4, 12)
    trread(W112, 14, V_TR)
    trread(W112 + 56, 14, 46)
    a('s_waitcnt lgkmcnt(0)')
    stamp(9)

    def x1loads():
        for q in range(2):
            for h in range(2):
                a(f'buffer_load_dwordx4 {vr(12 + 8 * q + 4 * h, 4)}, v{V_MA}, {sr(SRD_WS, 4)}, s{24 + q} offen offset:{128 * h} sc1')
        a(f'buffer_load_dwordx3 v[28:30], v47, {sr(SRD_WS, 4)}, s26 offen sc1')
    poll8('L_xpoll', 'L_xgot', [12, 16, 20, 24], x1loads)
    a(f'v_bitop3_b32 v10, v10, v28, s{S_E} bitop3:0xf6')
    poll_end('L_xpoll', 'L_xgot')
    stamp(10)
    a('v_cndmask_b32 v28, 0, v29, s[22:23]\nv_cndmask_b32 v30, 0, v30, s[22:23]')
    a('v_permlane32_swap_b32 v28, v30\nv_add_f32 v28, v28, v30')
    a('v_mov_b32 v30, v28\nv_permlane16_swap_b32 v28, v30\nv_add_f32 v28, v28, v30')
    dpp('v_add_f32', 28, 28, 28, 'row_ror:8')
    a('v_mul_f32 v28, 0x3b124925, v28\nv_mov_b32 v30, v28\nv_permlane32_swap_b32 v28, v30')
    a('v_fma_f32 v30, -v28, v28, v30\nv_max_f32 v30, 0, v30')
    ln_scalars(28, 30, 31)
    ln_norm(12, 16, 28, 30)
    ln_mod(12, 16, F_C1, F_SH)
    write_act(12)
    a('s_waitcnt lgkmcnt(0)\ns_barrier')
    AB = [12 + 4 * s for s in range(8)] + [52 + 4 * s for s in range(6)]
    for s in range(14):
        a(f'ds_read_b128 {vr(AB[s], 4)}, v{V_AR} offset:{L_A + 512 * s}')
    for s in range(14):
        a(f's_waitcnt lgkmcnt({13 - s})')
        a(f'v_mfma_f32_16x16x32_bf16 v[76:79], {vr(W112 + 4 * s, 4)}, {vr(AB[s], 4)}, {"v[76:79]" if s else 0}')
        a(f'v_mfma_f32_16x16x32_bf16 v[80:83], {vr(W112 + 56 + 4 * s, 4)}, {vr(AB[s], 4)}, {"v[80:83]" if s else 0}')
    for k in range(4):
        rnd(76 + k, 76 + k)
    for k in range(4):
        a(f'v_mul_f32 v{12 + k}, s39, v{76 + k}')
    for k in range(4):
        a(f'v_exp_f32 v{12 + k}, v{12 + k}')
    for k in range(4):
        rnd(80 + k, 80 + k)
    for k in range(4):
        a(f'v_add_f32 v{12 + k}, 1.0, v{12 + k}')
    for k in range(4):
        a(f'v_rcp_f32 v{12 + k}, v{12 + k}')
    a('v_pk_mul_f32 v[12:13], v[12:13], v[76:77]\nv_pk_mul_f32 v[14:15], v[14:15], v[78:79]')
    for k in range(4):
        rnd(12 + k, 12 + k)
    a('v_pk_mul_f32 v[12:13], v[12:13], v[80:81]\nv_pk_mul_f32 v[14:15], v[14:15], v[82:83]')
    a('v_cvt_pk_bf16_f32 v12, v12, v13\nv_cvt_pk_bf16_f32 v13, v14, v15')
    a(f'ds_write_b64 v49, v[12:13] offset:{L_H}\ns_waitcnt lgkmcnt(0)\ns_barrier')
    a(f'ds_read_b128 v[12:15], v{V_AR} offset:{L_H}\nds_read_b128 v[16:19], v{V_AR} offset:{L_H + 512}\ns_waitcnt lgkmcnt(0)')
    for i in range(7):
        a(f'v_mfma_f32_16x16x32_bf16 {vr(52 + 4 * i, 4)}, {vr(W56 + 8 * i, 4)}, v[12:15], 0')
        a(f'v_mfma_f32_16x16x32_bf16 {vr(52 + 4 * i, 4)}, {vr(W56 + 8 * i + 4, 4)}, v[16:19], {vr(52 + 4 * i, 4)}')
    a(f's_mov_b64 exec, {MASK8}')
    for i in range(7):
        a(f'v_bfi_b32 v{52 + 4 * i}, s38, v50, v{52 + 4 * i}')
        a(f'buffer_store_dwordx4 {vr(52 + 4 * i, 4)}, v48, {sr(SRD_WS, 4)}, s{S_DST} offen sc1')
        if i < 6:
            a(f's_add_u32 s{S_DST}, s{S_DST}, 8192')
    a('s_mov_b64 exec, -1')
    stamp(11)

    a('L_exit:')
    if cfg['stamps']:
        a('s_waitcnt lgkmcnt(0)\ns_mov_b64 exec, 1')
        a(f's_lshl_b32 s30, s2, 3\ns_add_u32 s30, s30, s{S_W}\ns_lshl_b32 s30, s30, 6\ns_add_u32 s30, s30, {WS_STAMP}\nv_mov_b32 v0, s30')
        for q in range(3):
            for k in range(4):
                a(f'v_mov_b32 v{4 + k + 4 * q}, s{S_ST0 + 2 * (4 * q + k)}')
            a(f'global_store_dwordx4 v0, {vr(4 + 4 * q, 4)}, {sr(P_WS, 2)} offset:{16 * q}')
        a(f'v_mov_b32 v16, s{S_CNT}\nglobal_store_dword v0, v16, {sr(P_WS, 2)} offset:48')
    a('L_end:\ns_endpgm')
    a('.section .rodata,"a"\n.p2align 6')
    a(f'.amdhsa_kernel {NAME}_kernel')
    a('.amdhsa_next_free_vgpr 256\n.amdhsa_next_free_sgpr 102\n.amdhsa_accum_offset 256\n.amdhsa_group_segment_fixed_size 0')
    a('.amdhsa_kernarg_size 112\n.amdhsa_user_sgpr_count 2\n.amdhsa_user_sgpr_kernarg_segment_ptr 1\n.amdhsa_system_sgpr_workgroup_id_x 1')
    a('.amdhsa_float_denorm_mode_32 3\n.end_amdhsa_kernel')
    return head + a.text()


if __name__ == '__main__':
    kw = {}
    for x in sys.argv[2:]:
        k, v = x.split('=')
        kw[k] = int(v) if v.lstrip('-').isdigit() else v
    open(sys.argv[1], 'w').write(gen(**kw))
```

```python
import sys
from asmlib import Asm, vr, sr

NAME = 'adaLN_cond__sliding_block_cached__glu_gated_swiglu__decode'

WS_EPOCH = 0x0
WS_MOD = 0x1000
WS_Q = 0x20000
WS_ML = 0x40000
WS_X1 = 0x44000
WS_ST = 0x48000
WS_OP = 0x80000
WS_PA = 0x100000
WS_PF = 0x180000
WS_STAMP = 0x200000
WS_SIZE = 0x400000

F_Q, F_SC, F_P, F_KT, F_VT, F_S1, F_S2 = 0, 4, 8, 16, 20, 24, 28
L_Q, L_P, L_SC, L_A, L_H, L_W = 0x400, 0x800, 0x1000, 0x2000, 0x3C00, 0x4000
BLK = 1152
LDS_BYTES = L_W + 112 * BLK

S_W, S_H, S_B, S_D, S_R = 3, 4, 5, 6, 7
SRD_A, SRD_B, SRD_WS, SRD_C = 8, 12, 16, 20
S_E, S_C, S_CNT, S_JJ, S_E8 = 28, 29, 33, 34, 35
P_X, P_K, P_V, P_WQ, P_WO, P_W1, P_W3, P_W2, P_C, P_WM, P_OUT, P_WS = 40, 42, 44, 46, 48, 52, 54, 56, 58, 60, 62, 66
S_ST0 = 76
SPIN_CAP = 400000
LOG2E = 0x3FB8AA3B

DEF = dict(depth=6, depthV=6, dW=4, dF=63, ktrig=24, vtrig=60, vsync=40, stamps=0, pref=1, wfl='nt', hold=0, probe='')


def gen(**kw):
    cfg = dict(DEF)
    cfg.update(kw)
    a = Asm()
    D, DV = cfg['depth'], cfg['depthV']
    WFL = cfg['wfl']

    def stamp(k):
        if cfg['stamps']:
            a(f's_memrealtime {sr(S_ST0 + 2 * k, 2)}')

    def srd(d, p, size):
        a(f's_mov_b32 s{d}, s{p}\ns_mov_b32 s{d + 1}, s{p + 1}\ns_mov_b32 s{d + 2}, {size}\ns_mov_b32 s{d + 3}, 0x20000')

    def retry(lab):
        a(f's_add_u32 s{S_CNT}, s{S_CNT}, 1\ns_cmp_lt_u32 s{S_CNT}, {SPIN_CAP}\ns_cbranch_scc1 {lab}\ns_branch L_exit')

    def spin_lds(flag, n, t, two=False):
        top, done = a.lab('L_spin'), a.lab('L_got')
        a(f'{top}:\nv_mov_b32 v{t}, 0')
        if two:
            a(f'ds_read_b64 {vr(t, 2)}, v{t} offset:{flag}')
        else:
            a(f'ds_read_b32 v{t}, v{t} offset:{flag}')
        a(f's_waitcnt lgkmcnt(0)\nv_readfirstlane_b32 s31, v{t}\ns_cmp_ge_u32 s31, {n}\ns_cbranch_scc1 {done}')
        retry(top)
        a(f'{done}:')

    def flag_add(flag, t, inc=1):
        a(f'v_mov_b32 v{t}, 0\nv_mov_b32 v{t + 1}, {inc}\ns_mov_b64 exec, 1\nds_add_u32 v{t}, v{t + 1} offset:{flag}\ns_mov_b64 exec, -1')

    def rnd(d, s):
        a(f'v_cvt_pk_bf16_f32 v{d}, 0, v{s}')

    def rows_allreduce(op, x, t):
        a(f'v_mov_b32 v{t}, v{x}\nv_permlane16_swap_b32 v{x}, v{t}\n{op} v{x}, v{x}, v{t}')
        a(f'v_mov_b32 v{t}, v{x}\nv_permlane32_swap_b32 v{x}, v{t}\n{op} v{x}, v{x}, v{t}')

    def dpp(op, d, s0, s1, ctl, rm=0xf, bm=0xf):
        a(f'{op}_dpp v{d}, v{s0}, v{s1} {ctl} row_mask:{rm:#x} bank_mask:{bm:#x}')

    hdr = open('cdna_kernels/' + NAME + '.s.ref').read().split('; Override launch')[0]
    head = hdr + f'; @launch grid=(256,1,1) block=(512,1,1) lds={LDS_BYTES}\n'
    a('.amdgcn_target "amdgcn-amd-amdhsa--gfx950"\n.text')
    a(f'.globl {NAME}_kernel\n.p2align 8\n.type {NAME}_kernel,@function\n{NAME}_kernel:')
    a('s_cmp_ge_u32 s2, 256\ns_cbranch_scc1 L_end')
    a('s_load_dwordx16 s[40:55], s[0:1], 0\ns_load_dwordx8 s[56:63], s[0:1], 64\ns_load_dwordx4 s[64:67], s[0:1], 96')
    if cfg['stamps']:
        for k in range(1, 12):
            a(f's_mov_b64 {sr(S_ST0 + 2 * k, 2)}, 0')
    stamp(0)
    a(f'v_lshrrev_b32 v1, 6, v0\nv_and_b32 v0, 63, v0\nv_readfirstlane_b32 s{S_W}, v1')
    a(f's_and_b32 s{S_H}, s2, 7\ns_lshr_b32 s{S_R}, s2, 3\ns_lshr_b32 s{S_B}, s2, 5\ns_and_b32 s{S_D}, s{S_R}, 3')
    a(f's_mov_b32 s{S_CNT}, 0')
    a(f's_cmp_ge_u32 s{S_W}, 4\ns_cbranch_scc1 L_chain')

    QA, QD, SC = 8, 24, 4
    RING = 32
    slot = lambda k: RING + 4 * k
    ACC = slot(8)
    kslot = lambda n: slot(n % 56)
    vlist = list(range(16, 56)) + list(range(0, 8))
    vslot = lambda i: slot(vlist[i % 48])
    a('v_and_b32 v4, 7, v0\nv_lshrrev_b32 v5, 4, v0\nv_lshlrev_b32 v5, 4, v5\nv_lshl_or_b32 v1, v4, 9, v5')
    a('v_and_b32 v5, 8, v0\nv_lshl_or_b32 v1, v5, 3, v1')
    a('v_lshrrev_b32 v5, 3, v0\nv_lshlrev_b32 v4, 4, v4\nv_lshl_or_b32 v2, v5, 9, v4')
    a(f's_lshl_b32 s30, s{S_B}, 3\ns_or_b32 s30, s30, s{S_H}\ns_lshl_b32 s30, s30, 22\ns_add_u32 s30, s30, 0x300000')
    a(f's_lshl_b32 s36, s{S_D}, 14\ns_lshl_b32 s37, s{S_W}, 7\ns_add_u32 s37, s37, s36')
    a(f's_lshl_b32 s31, s{S_W}, 12\ns_add_u32 s36, s36, s31')
    a('v_mov_b32 v4, 0\nv_lshlrev_b32 v5, 2, v0\nds_write_b32 v5, v4')
    a('s_waitcnt lgkmcnt(0)')
    a(f's_add_u32 s{SRD_A}, s{P_K}, s30\ns_addc_u32 s{SRD_A + 1}, s{P_K + 1}, 0\ns_mov_b32 s{SRD_A + 2}, 0x100000\ns_mov_b32 s{SRD_A + 3}, 0x20000')
    if cfg['hold']:
        a('s_barrier')
    kdone, vdone = 0, 0

    def qk_group(gi):
        d = QD + 4 * (gi & 1)
        for j in range(4):
            a(f'v_mfma_f32_16x16x32_bf16 {vr(d, 4)}, {vr(QA + 4 * j, 4)}, {vr(kslot(4 * gi + j), 4)}, {vr(d, 4) if j else 0}')

    def qk_post(gi):
        d = QD + 4 * (gi & 1)
        t, u = gi >> 2, gi & 3
        dpp('v_add_f32', SC + u, d + 1, d, 'row_ror:8', 1 << t, 0x3)
        dpp('v_add_f32', SC + u, d + 2, d + 3, 'row_ror:8', 1 << t, 0xc)

    def qk_some(landed, maxn):
        nonlocal kdone
        todo = [g for g in range(kdone, 16) if 4 * g + 3 <= landed][:maxn]
        for k, g in enumerate(todo):
            qk_group(g)
            if k:
                qk_post(g - 1)
        if todo:
            qk_post(todo[-1])
            kdone = todo[-1] + 1
            if kdone == 16:
                a(f's_lshl_b32 s31, s{S_W}, 10\nv_lshl_add_u32 v3, v0, 4, s31\nds_write_b128 v3, {vr(SC, 4)} offset:{L_SC}\ns_waitcnt lgkmcnt(0)')
                flag_add(F_SC, 4)
                stamp(3)

    def perms(dst_of, e0, G, r):
        lo, hi = vslot(8 * G + e0) + r, vslot(8 * G + e0 + 1) + r
        a(f'v_perm_b32 v{dst_of(2 * r) + e0 // 2}, v{hi}, v{lo}, s38')
        a(f'v_perm_b32 v{dst_of(2 * r + 1) + e0 // 2}, v{hi}, v{lo}, s39')

    def pv_mfma(G, j, b):
        a(f'v_mfma_f32_16x16x32_bf16 {vr(ACC + 4 * j, 4)}, {vr(QD + 4 * (G & 1), 4)}, {vr(b, 4)}, {vr(ACC + 4 * j, 4) if G else 0}')

    def pv_group(G):
        a('s_waitcnt lgkmcnt(0)')
        a(f'ds_read_b128 {vr(QD + 4 * ((G + 1) & 1), 4)}, v3 offset:{L_P + 256 * (G + 1)}')
        tmp = lambda j: QA + 4 * (j & 3)
        for r in range(4):
            for e0 in (0, 2, 4, 6):
                perms(tmp, e0, G, r)
            if r:
                pv_mfma(G, 2 * r - 1, tmp(2 * r - 1))
            pv_mfma(G, 2 * r, tmp(2 * r))
        pv_mfma(G, 7, tmp(7))

    for n in range(128):
        isk = n < 64
        d = D if isk else DV
        if n >= d:
            a(f's_waitcnt vmcnt({d - 1})')
        landed = n - d
        if n == 56:
            stamp(1)
            spin_lds(F_Q, 1, 4)
            stamp(2)
            a('v_lshrrev_b32 v4, 1, v0\nv_and_b32 v4, 1, v4\nv_and_b32 v5, 1, v0\nv_lshrrev_b32 v6, 4, v0\nv_lshlrev_b32 v6, 4, v6')
            a('v_lshl_or_b32 v6, v5, 6, v6\nv_lshl_or_b32 v3, v4, 9, v6')
            for j in range(4):
                a(f'ds_read_b128 {vr(QA + 4 * j, 4)}, v3 offset:{L_Q + 128 * j}')
            a('s_waitcnt lgkmcnt(0)')
            qk_some(landed, 1)
        if isk:
            if n >= 56:
                assert kdone > (n - 56) // 4
            if n and n % 4 == 0:
                a('s_add_u32 s36, s36, 0x10000')
            a(f'buffer_load_dwordx4 {vr(kslot(n), 4)}, v1, {sr(SRD_A, 4)}, s36 offen offset:{128 * (n & 3)} nt')
        else:
            i = n - 64
            sl = vlist[i % 48]
            if i < 48:
                assert kdone > ((sl if sl >= 8 else sl + 56) // 4), (i, kdone)
            else:
                assert vdone > (i - 48) // 8
            a(f's_add_u32 s30, s37, {(i >> 2) * 65536 + (i & 3) * 4096}')
            a(f'buffer_load_dwordx4 {vr(vslot(i), 4)}, v2, {sr(SRD_B, 4)}, s30 offen nt')
        if n == D - 1:
            a(f's_add_u32 s{SRD_B}, s{P_V}, s30\ns_addc_u32 s{SRD_B + 1}, s{P_V + 1}, 0\ns_mov_b32 s{SRD_B + 2}, 0x100000\ns_mov_b32 s{SRD_B + 3}, 0x20000')
            srd(SRD_WS, P_WS, WS_SIZE)
            a('s_mov_b32 s38, 0x05040100\ns_mov_b32 s39, 0x07060302')
            if not cfg['hold']:
                a('s_barrier')
        if n == cfg['ktrig']:
            flag_add(F_KT, 4)
        if n == 64 + cfg['vtrig']:
            flag_add(F_VT, 4)
        if n >= 56 and kdone < 16:
            qk_some(landed, 3)
        if n == 64 + cfg['vsync']:
            assert kdone == 16
            stamp(4)
            spin_lds(F_P, 1, 4, two=True)
            stamp(5)
            a(f'v_readfirstlane_b32 s{S_E}, v5')
            a('v_lshrrev_b32 v4, 1, v0\nv_and_b32 v4, 1, v4\nv_and_b32 v5, 1, v0\nv_lshrrev_b32 v6, 4, v0\nv_lshlrev_b32 v6, 5, v6')
            a('v_lshl_or_b32 v6, v5, 4, v6\nv_lshl_or_b32 v3, v4, 7, v6')
            a(f'ds_read_b128 {vr(QD, 4)}, v3 offset:{L_P}')
        if n >= 64 + cfg['vsync'] and vdone < 7 and 64 + 8 * vdone + 7 <= landed:
            pv_group(vdone)
            vdone += 1
    assert vdone == 7, vdone
    a(f's_lshl_b32 s30, s{S_H}, 2\ns_add_u32 s30, s30, s{S_W}\ns_lshl_b32 s30, s30, 14\ns_lshl_b32 s31, s{S_D}, 12\ns_add_u32 s30, s30, s31')
    a(f's_lshl_b32 s31, s{S_B}, 9\ns_add_u32 s30, s30, s31\ns_add_u32 s30, s30, {WS_OP}')
    a('v_and_b32 v8, 7, v0\nv_lshlrev_b32 v8, 4, v8\nv_and_b32 v9, 8, v0\nv_lshl_or_b32 v8, v9, 5, v8\nv_and_b32 v9, 16, v0\nv_lshl_or_b32 v8, v9, 3, v8')
    a(f's_movk_i32 s31, 0xff\nv_mov_b32 v9, s{S_E}')
    big = lambda j: slot(vlist[24 + j])
    for pr in range(4):
        if 6 - 2 * pr < DV:
            a(f's_waitcnt vmcnt({6 - 2 * pr})')
        if pr < 3:
            for r in range(4):
                perms(big, 2 * pr, 7, r)
    stamp(6)
    a('s_waitcnt lgkmcnt(0)')

    def pv_post(j):
        d = ACC + 4 * j
        dpp('v_add_f32', 4 + (j & 3), d + 1, d, 'row_ror:8', 1 << (j >> 2), 0x3)
        dpp('v_add_f32', 4 + (j & 3), d + 2, d + 3, 'row_ror:8', 1 << (j >> 2), 0xc)
    perms(big, 6, 7, 0)
    perms(big, 6, 7, 1)
    pv_mfma(7, 0, big(0))
    perms(big, 6, 7, 2)
    pv_mfma(7, 1, big(1))
    perms(big, 6, 7, 3)
    for j in range(2, 8):
        pv_mfma(7, j, big(j))
        if j >= 4:
            pv_post(j - 4)
    for j in range(4, 8):
        pv_post(j)
    a('v_bfi_b32 v4, s31, v9, v4')
    a('s_mov_b32 exec_hi, 0')
    a(f'buffer_store_dwordx4 v[4:7], v8, {sr(SRD_WS, 4)}, s30 offen sc1')
    stamp(7)
    a('s_branch L_exit')

    V_R8, V_NT, V_TR, V_AR, V_L16, V_XA, V_MA, V_ST, V_DM = 1, 2, 3, 4, 5, 6, 7, 8, 9
    W56, W112, T0 = 88, 144, 12
    S_A, S_Bs, S_BASE, S_KB0, S_KB1, S_DST, S_ROLE = 68, 69, 70, 71, 72, 73, 74
    MASK8 = 's[36:37]'

    a('L_chain:')
    a(f's_sub_u32 s{S_C}, s{S_W}, 4\ns_lshl_b32 s{S_JJ}, s{S_H}, 2\ns_or_b32 s{S_JJ}, s{S_JJ}, s{S_D}')
    a(f'v_lshrrev_b32 v{V_R8}, 1, v0\nv_and_b32 v{V_R8}, 7, v{V_R8}')
    a(f'v_lshrrev_b32 v10, 4, v0\nv_and_b32 v11, 1, v0\nv_lshlrev_b32 v11, 4, v11\nv_lshl_or_b32 v{V_NT}, v10, 5, v11')
    a(f'v_lshlrev_b32 v{V_L16}, 4, v0')
    a(f'v_and_b32 v11, 7, v0\nv_lshrrev_b32 v12, 3, v0\nv_lshlrev_b32 v12, 4, v12')
    a(f'v_mul_u32_u24 v{V_XA}, 896, v11\nv_add_u32 v{V_XA}, v{V_XA}, v12\nv_lshl_or_b32 v{V_MA}, v11, 8, v12')
    a(f's_add_u32 s{S_KB1}, s{S_C}, 4\ns_min_u32 s{S_KB1}, s{S_KB1}, 6')
    a(f's_mov_b32 s{S_ROLE}, 0')
    a('s_waitcnt lgkmcnt(0)')
    srd(SRD_WS, P_WS, WS_SIZE)
    a(f'v_mov_b32 v13, 0\nbuffer_load_dword v87, v13, {sr(SRD_WS, 4)}, 0 offen sc1 nt')
    a(f's_lshl_b32 s30, s{S_R}, 3\ns_add_u32 s30, s30, s{S_H}\ns_cmp_lt_u32 s30, 42\ns_cbranch_scc1 L_setM')
    a(f's_lshr_b32 s31, s{S_R}, 3\ns_cmp_eq_u32 s31, 1\ns_cbranch_scc1 L_setQ')
    a(f's_cmp_lt_u32 s{S_B}, 7\ns_cbranch_scc1 L_norole\ns_cmp_ge_u32 s{S_JJ}, 28\ns_cbranch_scc1 L_norole')
    srd(SRD_A, P_W2, 1605632)
    a(f's_mov_b32 s{S_ROLE}, 3\ns_movk_i32 s32, 896\ns_movk_i32 s{S_A}, 7168\ns_movk_i32 s{S_Bs}, 128\ns_mul_i32 s{S_BASE}, s{S_JJ}, 57344')
    a('s_branch L_dma0')
    a('L_setM:')
    srd(SRD_A, P_WM, 2408448)
    srd(SRD_C, P_C, 7168)
    a(f's_mov_b32 s{S_ROLE}, 1\ns_movk_i32 s32, 5376\ns_mov_b32 s{S_A}, 43008\ns_mov_b32 s{S_Bs}, 344064\ns_lshl_b32 s{S_BASE}, s30, 7')
    a(f's_lshl_b32 s{S_DST}, s30, 11\ns_add_u32 s{S_DST}, s{S_DST}, {WS_MOD}')
    a('s_branch L_act0')
    a('L_setQ:')
    srd(SRD_A, P_WQ, 3670016)
    srd(SRD_C, P_X, 7168)
    a(f's_lshl_b32 s30, s{S_H}, 3\ns_and_b32 s31, s{S_R}, 7\ns_or_b32 s30, s30, s31')
    a(f's_mov_b32 s{S_ROLE}, 2\ns_movk_i32 s32, 8192\ns_mov_b32 s{S_A}, 65536\ns_mov_b32 s{S_Bs}, 524288\ns_lshl_b32 s{S_BASE}, s30, 7')
    a(f's_lshl_b32 s{S_DST}, s30, 11\ns_add_u32 s{S_DST}, s{S_DST}, {WS_Q}')
    for kb in range(7):
        a(f'buffer_load_dwordx4 {vr(200 + 4 * kb, 4)}, v{V_XA}, {sr(SRD_C, 4)}, 0 offen offset:{128 * kb} nt')
    a('L_act0:')
    a(f's_lshl_b32 s30, s{S_C}, 7\ns_lshl_b32 s31, s{S_KB1}, 7')
    a(f'buffer_load_dwordx4 v[228:231], v{V_XA}, {sr(SRD_C, 4)}, s30 offen nt')
    a(f'buffer_load_dwordx4 v[232:235], v{V_XA}, {sr(SRD_C, 4)}, s31 offen nt')

    def dma(srdn, nt, lds0, depth, first=None):
        a(f's_lshl_b32 s30, s{S_C}, 1\ns_mul_i32 s31, s30, {BLK}\ns_add_u32 m0, s31, {lds0}')
        a(f's_mul_i32 s30, s30, s{S_A}\ns_add_u32 s30, s30, s{S_BASE}\ns_add_u32 s31, s30, s{S_A}')
        for t in range(nt):
            for u in range(2):
                k = 2 * t + u
                if k >= depth:
                    a(f's_waitcnt vmcnt({depth - 1})')
                a(f'buffer_load_dwordx4 v{V_DM}, {sr(srdn, 4)}, s{30 + u} offen {WFL} lds')
                if first is not None and k == min(depth, 2 * nt) - 1:
                    first()
                if k < 2 * nt - 1:
                    a(f's_add_u32 m0, m0, {BLK if u == 0 else 7 * BLK}\ns_add_u32 s{30 + u}, s{30 + u}, s{S_Bs}')

    def trread(dst, nops, vaddr):
        for s in range(nops):
            for rp in range(2):
                a(f'ds_read_b64_tr_b16 {vr(dst + 4 * s + 2 * rp, 2)}, v{vaddr} offset:{s * 4 * BLK + rp * 128}')

    def consts():
        a(f'v_mul_u32_u24 v{V_TR}, {BLK}, v10\nv_and_b32 v13, 15, v0\nv_lshl_add_u32 v{V_TR}, v13, 3, v{V_TR}')
        a(f's_lshl_b32 s26, s{S_C}, 8\ns_add_u32 s26, s26, {L_W}\nv_add_u32 v{V_TR}, s26, v{V_TR}')
        a(f'v_lshlrev_b32 v13, 4, v11\nv_lshl_or_b32 v{V_AR}, v10, 7, v13')
        a(f'v_and_b32 v13, 1, v10\nv_lshlrev_b32 v13, 3, v13\nv_lshrrev_b32 v12, 1, v10\nv_add_u32 v13, v13, v12')
        a(f's_lshl_b32 s26, s{S_C}, 1\nv_add_u32 v13, s26, v13\nv_lshlrev_b32 v13, 4, v13\nv_lshl_or_b32 v{V_ST}, v11, 8, v13')
        a('s_mov_b32 s36, 0x00ff00ff\ns_mov_b32 s37, 0x00ff00ff\nv_mov_b32 v84, 0\nv_mov_b32 v85, 0')

    def get_epoch():
        a(f'v_readfirstlane_b32 s{S_E}, v87\ns_add_u32 s{S_E}, s{S_E}, 1\ns_and_b32 s{S_E8}, s{S_E}, 0xff')

    a('L_dma0:')
    a(f'v_mad_u32_u24 v{V_DM}, v{V_R8}, s32, v{V_NT}')
    dma(SRD_A, 7, L_W, cfg['dW'], first=lambda: a('s_barrier'))
    consts()
    a(f's_waitcnt vmcnt({min(14, cfg["dW"])})')
    get_epoch()
    a(f's_cmp_eq_u32 s{S_ROLE}, 3\ns_cbranch_scc1 L_gemm0')
    for k in range(8):
        a(f'v_lshlrev_b32 v{12 + 2 * k}, 16, v{228 + k}\nv_and_b32 v{13 + 2 * k}, 0xffff0000, v{228 + k}')
    a(f's_cmp_eq_u32 s{S_ROLE}, 2\ns_cbranch_scc1 L_actQ')
    a(f's_mov_b32 s26, {LOG2E | 0x80000000:#x}')
    for k in range(16):
        a(f'v_mul_f32 v{28 + k}, s26, v{12 + k}')
    for k in range(16):
        a(f'v_exp_f32 v{28 + k}, v{28 + k}')
    for k in range(16):
        a(f'v_add_f32 v{28 + k}, 1.0, v{28 + k}')
    for k in range(16):
        a(f'v_rcp_f32 v{28 + k}, v{28 + k}')
    for k in range(16):
        a(f'v_mul_f32 v{12 + k}, v{12 + k}, v{28 + k}')
    a('s_branch L_actW')

    def ln_scalars(mean, var, t):
        rnd(mean, mean)
        rnd(var, var)
        a(f'v_add_f32 v{var}, 0x3727c5ac, v{var}')
        rnd(var, var)
        a(f'v_sqrt_f32 v{var}, v{var}')
        rnd(var, var)
        a(f'v_rcp_f32 v{var}, v{var}')

    def ln_norm(x, n, mean2, rs2):
        for k in range(0, n, 2):
            a(f'v_pk_add_f32 {vr(x + k, 2)}, {vr(x + k, 2)}, {vr(mean2, 2)} op_sel_hi:[1,0] neg_lo:[0,1] neg_hi:[0,1]')
        for k in range(n):
            rnd(x + k, x + k)
        for k in range(0, n, 2):
            a(f'v_pk_mul_f32 {vr(x + k, 2)}, {vr(x + k, 2)}, {vr(rs2, 2)} op_sel_hi:[1,0]')
        for k in range(n):
            rnd(x + k, x + k)

    def ln_mod(x, n, c1, sh):
        for k in range(0, n, 2):
            a(f'v_pk_mul_f32 {vr(x + k, 2)}, {vr(x + k, 2)}, {vr(c1 + k, 2)}')
        for k in range(n):
            rnd(x + k, x + k)
        for k in range(0, n, 2):
            a(f'v_pk_add_f32 {vr(x + k, 2)}, {vr(x + k, 2)}, {vr(sh + k, 2)}')

    def mod_params(blk_shift, blk_scale, sh, c1, raw):
        for q, base in enumerate((blk_shift, blk_scale)):
            a(f's_lshl_b32 s{24 + 2 * q}, s{S_C}, 11\ns_add_u32 s{24 + 2 * q}, s{24 + 2 * q}, {WS_MOD + base * 2048}')
            a(f's_lshl_b32 s{25 + 2 * q}, s{S_KB1}, 11\ns_add_u32 s{25 + 2 * q}, s{25 + 2 * q}, {WS_MOD + base * 2048}')
        top, done = a.lab('L_pm'), a.lab('L_pmd')
        a(f'{top}:')
        for q in range(4):
            for h in range(2):
                a(f'buffer_load_dwordx3 {vr(raw + 8 * q + 4 * h, 3)}, v{V_MA}, {sr(SRD_WS, 4)}, s{24 + q} offen offset:{128 * h} sc1')
        a('s_waitcnt vmcnt(0)')
        a(f'v_xor_b32 v{raw + 3}, s{S_E}, v{raw}')
        for k in range(1, 8):
            a(f'v_bitop3_b32 v{raw + 3}, v{raw + 3}, v{raw + 4 * k}, s{S_E} bitop3:0xf6')
        a(f'v_cmp_ne_u32 vcc, 0, v{raw + 3}\ns_cbranch_vccz {done}')
        retry(top)
        a(f'{done}:')
        for k in range(4):
            for dw in range(2):
                a(f'v_lshlrev_b32 v{sh + 4 * k + 2 * dw}, 16, v{raw + 4 * k + 1 + dw}\nv_and_b32 v{sh + 4 * k + 2 * dw + 1}, 0xffff0000, v{raw + 4 * k + 1 + dw}')
                a(f'v_lshlrev_b32 v{c1 + 4 * k + 2 * dw}, 16, v{raw + 16 + 4 * k + 1 + dw}\nv_and_b32 v{c1 + 4 * k + 2 * dw + 1}, 0xffff0000, v{raw + 16 + 4 * k + 1 + dw}')
        for k in range(16):
            a(f'v_add_f32 v{c1 + k}, 1.0, v{c1 + k}')
        for k in range(16):
            rnd(c1 + k, c1 + k)

    def write_act(x):
        for k in range(8):
            a(f'v_cvt_pk_bf16_f32 v{x + k}, v{x + 2 * k}, v{x + 2 * k + 1}')
        a(f's_lshl_b32 s30, s{S_C}, 10\ns_lshl_b32 s31, s{S_KB1}, 10\nv_add_u32 v10, s30, v{V_L16}\nv_add_u32 v11, s31, v{V_L16}')
        a(f'ds_write_b128 v10, {vr(x, 4)} offset:{L_A}\nds_write_b128 v11, {vr(x + 4, 4)} offset:{L_A}')

    a('L_actQ:')
    for k in range(28):
        a(f'v_lshlrev_b32 v{144 + 2 * k}, 16, v{200 + k}\nv_and_b32 v{145 + 2 * k}, 0xffff0000, v{200 + k}')
    a('v_pk_add_f32 v[28:29], v[144:145], v[146:147]\nv_pk_add_f32 v[30:31], v[148:149], v[150:151]')
    for k in range(4, 28, 2):
        a(f'v_pk_add_f32 v[28:29], v[28:29], {vr(144 + 2 * k, 2)}\nv_pk_add_f32 v[30:31], v[30:31], {vr(146 + 2 * k, 2)}')
    a('v_pk_add_f32 v[28:29], v[28:29], v[30:31]\nv_add_f32 v28, v28, v29')
    dpp('v_add_f32', 28, 28, 28, 'row_ror:8')
    rows_allreduce('v_add_f32', 28, 29)
    a('v_mul_f32 v28, 0x3b124925, v28')
    for k in range(28):
        a(f'v_pk_add_f32 {vr(144 + 2 * k, 2)}, {vr(144 + 2 * k, 2)}, v[28:29] op_sel_hi:[1,0] neg_lo:[0,1] neg_hi:[0,1]')
    a('v_pk_mul_f32 v[30:31], v[144:145], v[144:145]\nv_pk_mul_f32 v[32:33], v[146:147], v[146:147]')
    for k in range(2, 28, 2):
        a(f'v_pk_fma_f32 v[30:31], {vr(144 + 2 * k, 2)}, {vr(144 + 2 * k, 2)}, v[30:31]')
        a(f'v_pk_fma_f32 v[32:33], {vr(146 + 2 * k, 2)}, {vr(146 + 2 * k, 2)}, v[32:33]')
    a('v_pk_add_f32 v[30:31], v[30:31], v[32:33]\nv_add_f32 v30, v30, v31')
    dpp('v_add_f32', 30, 30, 30, 'row_ror:8')
    rows_allreduce('v_add_f32', 30, 31)
    a('v_mul_f32 v30, 0x3b124925, v30')
    ln_scalars(28, 30, 31)
    ln_norm(12, 16, 28, 30)
    stamp(1)
    mod_params(0, 7, 28, 44, 144)
    stamp(2)
    ln_mod(12, 16, 44, 28)
    a('L_actW:')
    write_act(12)
    a('L_gemm0:')
    a('s_waitcnt vmcnt(0) lgkmcnt(0)')
    flag_add(F_S1, 10)
    spin_lds(F_S1, 4, 10)
    stamp(3)
    trread(W56, 14, V_TR)
    a(f's_cmp_eq_u32 s{S_ROLE}, 3\ns_cbranch_scc1 L_mid')
    for s in range(14):
        a(f'ds_read_b128 {vr(T0 + 4 * s, 4)}, v{V_AR} offset:{L_A + 512 * s}')
    a('s_waitcnt lgkmcnt(0)')
    for s in range(14):
        a(f'v_mfma_f32_16x16x32_bf16 v[68:71], {vr(W56 + 4 * s, 4)}, {vr(T0 + 4 * s, 4)}, {"v[68:71]" if s else 0}')
    a(f'v_mov_b32 v72, s{S_E}')
    a('v_cvt_pk_bf16_f32 v73, v68, v69\nv_cvt_pk_bf16_f32 v74, v70, v71')
    a(f's_mov_b64 exec, {MASK8}')
    a(f'buffer_store_dwordx3 v[72:74], v{V_ST}, {sr(SRD_WS, 4)}, s{S_DST} offen sc1')
    a('s_mov_b64 exec, -1')
    stamp(4)
    a('s_branch L_mid')

    a('L_norole:')
    a('s_barrier')
    consts()
    if cfg['pref']:
        skip = a.lab('L_np')
        a(f's_cmp_eq_u32 s{S_R}, 6\ns_cbranch_scc0 {skip}')
        a('s_getpc_b64 s[24:25]\nL_pc0:')
        a(f's_sub_u32 s24, s24, L_pc0-{NAME}_kernel\ns_subb_u32 s25, s25, 0')
        a(f's_lshl_b32 s30, s{S_C}, 13\nv_lshl_add_u32 v12, v0, 7, s30\nv_min_u32 v12, L_end-{NAME}_kernel, v12')
        a('global_load_dword v13, v12, s[24:25]')
        a(f'{skip}:')
    a('s_waitcnt vmcnt(0)')
    get_epoch()

    a('L_mid:')
    a('s_waitcnt lgkmcnt(0)')
    flag_add(F_VT, 12, 16)
    a(f's_cmp_eq_u32 s{S_C}, 0\ns_cbranch_scc0 L_noq')
    spin_lds(F_KT, 1, 12)
    a(f's_lshl_b32 s30, s{S_H}, 14\ns_lshl_b32 s31, s{S_B}, 8\ns_add_u32 s30, s30, s31\ns_add_u32 s30, s30, {WS_Q}\ns_add_u32 s31, s30, 8192')
    a('v_lshrrev_b32 v12, 4, v0\nv_and_b32 v13, 15, v0\nv_lshlrev_b32 v14, 4, v13\nv_lshl_or_b32 v14, v12, 11, v14')
    a('v_and_b32 v15, 7, v0\nv_lshlrev_b32 v15, 4, v15\nv_and_b32 v13, 8, v0\nv_or_b32 v15, v15, v13\nv_lshl_or_b32 v15, v12, 7, v15')
    a('L_qpoll:')
    a(f'buffer_load_dwordx3 v[16:18], v14, {sr(SRD_WS, 4)}, s30 offen sc1\nbuffer_load_dwordx3 v[20:22], v14, {sr(SRD_WS, 4)}, s31 offen sc1')
    a(f's_waitcnt vmcnt(0)\nv_xor_b32 v19, s{S_E}, v16\nv_bitop3_b32 v19, v19, v20, s{S_E} bitop3:0xf6')
    a('v_cmp_ne_u32 vcc, 0, v19\ns_cbranch_vccz L_qgot')
    retry('L_qpoll')
    a('L_qgot:')
    a(f'v_add_u32 v15, {L_Q}, v15')
    a('ds_write2_b32 v15, v17, v18 offset0:0 offset1:1\nds_write2_b32 v15, v21, v22 offset0:128 offset1:129\ns_waitcnt lgkmcnt(0)')
    flag_add(F_Q, 12)
    stamp(5)
    Z_GA, Z_GB, Z_X, Z_TAG, Z_XA, Z_OA = 80, 81, 82, 83, 84, 85
    a(f's_sub_u32 s26, s{S_R}, 16\ns_cmp_lt_u32 s26, 7\ns_cbranch_scc0 L_noq')
    srd(SRD_C, P_X, 7168)
    a(f's_lshl_b32 s30, s26, 11\ns_lshl_b32 s31, s{S_H}, 8\ns_add_u32 s30, s30, s31\ns_add_u32 s31, s30, {WS_MOD + 35 * 2048}\ns_add_u32 s30, s30, {WS_MOD + 14 * 2048}')
    a('v_and_b32 v13, 1, v0\nv_lshlrev_b32 v13, 7, v13\nv_and_b32 v14, 14, v0\nv_lshl_or_b32 v14, v14, 3, v13')
    a(f'v_lshrrev_b32 v12, 4, v0\nv_lshl_or_b32 v{Z_XA}, v12, 2, v14')
    a(f'v_and_b32 v13, 15, v0\nv_lshl_or_b32 v13, v13, 2, v12\nv_lshlrev_b32 v{Z_OA}, 1, v13')
    a(f's_mul_i32 s27, s{S_H}, 896\ns_lshl_b32 s32, s26, 7\ns_add_u32 s27, s27, s32\nv_add_u32 v{Z_OA}, s27, v{Z_OA}')
    a(f'buffer_load_ushort v{Z_X}, v{Z_OA}, {sr(SRD_C, 4)}, 0 offen nt')
    a('L_zpoll:')
    a(f'buffer_load_dwordx3 v[16:18], v14, {sr(SRD_WS, 4)}, s30 offen sc1\nbuffer_load_dwordx3 v[20:22], v14, {sr(SRD_WS, 4)}, s31 offen sc1')
    a(f's_waitcnt vmcnt(0)\nv_xor_b32 v19, s{S_E}, v16\nv_bitop3_b32 v19, v19, v20, s{S_E} bitop3:0xf6')
    a('v_cmp_ne_u32 vcc, 0, v19\ns_cbranch_vccz L_zgot')
    retry('L_zpoll')
    a('L_zgot:')
    a('v_cmp_lt_u32 vcc, 31, v0\nv_cndmask_b32 v17, v17, v18, vcc\nv_cndmask_b32 v21, v21, v22, vcc')
    a('v_and_b32 v13, 16, v0\nv_lshrrev_b32 v17, v13, v17\nv_lshrrev_b32 v21, v13, v21')
    a(f'v_lshlrev_b32 v{Z_GA}, 16, v17\nv_lshlrev_b32 v{Z_GB}, 16, v21\nv_lshlrev_b32 v{Z_X}, 16, v{Z_X}')
    a(f'v_cmp_gt_u32 vcc, 16, v0\nv_mov_b32 v13, s{S_E8}\nv_cndmask_b32 v{Z_TAG}, 0, v13, vcc')
    a('L_noq:')
    F_SH, F_C1 = 52, 68
    a(f's_cmp_eq_u32 s{S_ROLE}, 3\ns_cbranch_scc0 L_nofp')
    spin_lds(F_Q, 1, 12)
    mod_params(21, 28, F_SH, F_C1, 144)
    a('L_nofp:')
    a(f's_cmp_eq_u32 s{S_C}, 1\ns_cbranch_scc0 L_nosm')
    a(f's_lshl_b32 s26, s{S_B}, 3\ns_or_b32 s26, s26, s{S_H}\ns_lshl_b32 s26, s26, 7\ns_add_u32 s26, s26, {WS_ML}\ns_lshl_b32 s27, s{S_D}, 5\ns_add_u32 s27, s27, s26')
    a('v_and_b32 v48, 8, v0\nv_lshlrev_b32 v48, 1, v48\nv_lshrrev_b32 v13, 4, v0\nv_lshl_or_b32 v49, v13, 5, v48')
    a('v_and_b32 v50, 15, v0\nv_lshlrev_b32 v50, 4, v50\nv_lshl_or_b32 v50, v13, 9, v50')
    a('s_mov_b32 s32, 0x3db8aa3b')
    spin_lds(F_SC, 4, 12)
    stamp(6)
    for w in range(4):
        a(f'ds_read_b128 {vr(12 + 4 * w, 4)}, v{V_L16} offset:{L_SC + 1024 * w}')
    a('s_waitcnt lgkmcnt(0)')
    for k in range(16):
        rnd(12 + k, 12 + k)
    a('v_max3_f32 v45, v12, v13, v14')
    for k in range(15, 27, 2):
        a(f'v_max3_f32 v45, v45, v{k}, v{k + 1}')
    a('v_max_f32 v45, v45, v27')

    def head_allreduce(op, x, t):
        dpp(op, x, x, x, 'quad_perm:[1,0,3,2]')
        dpp(op, x, x, x, 'quad_perm:[2,3,0,1]')
        dpp(op, x, x, x, 'row_half_mirror')
        rows_allreduce(op, x, t)

    def exps(m):
        for k in range(16):
            a(f'v_sub_f32 v{28 + k}, v{12 + k}, v{m}')
        for k in range(16):
            a(f'v_mul_f32 v{28 + k}, s32, v{28 + k}')
        for k in range(16):
            a(f'v_exp_f32 v{28 + k}, v{28 + k}')
    head_allreduce('v_max_f32', 45, 47)
    exps(45)
    for st in (8, 4, 2):
        for k in range(0, st, 2):
            a(f'v_pk_add_f32 {vr(28 + k, 2)}, {vr(28 + k, 2)}, {vr(28 + st + k, 2)}')
    a('v_add_f32 v46, v28, v29')
    head_allreduce('v_add_f32', 46, 47)
    a(f'v_mov_b32 v44, s{S_E}\ns_mov_b64 exec, 0x101')
    a(f'buffer_store_dwordx3 v[44:46], v48, {sr(SRD_WS, 4)}, s27 offen sc1\ns_mov_b64 exec, -1')
    a('L_mlpoll:')
    a(f'buffer_load_dwordx3 v[28:30], v49, {sr(SRD_WS, 4)}, s26 offen sc1\ns_waitcnt vmcnt(0)')
    a(f'v_cmp_ne_u32 vcc, s{S_E}, v28\ns_cbranch_vccz L_mlgot')
    retry('L_mlpoll')
    a('L_mlgot:')
    stamp(7)
    a('v_mov_b32 v45, v29')
    rows_allreduce('v_max_f32', 45, 47)
    a('v_sub_f32 v29, v29, v45\nv_mul_f32 v29, s32, v29\nv_exp_f32 v29, v29\nv_mul_f32 v46, v29, v30')
    rows_allreduce('v_add_f32', 46, 47)
    a('v_rcp_f32 v46, v46')
    exps(45)
    for k in range(0, 16, 2):
        a(f'v_pk_mul_f32 {vr(28 + k, 2)}, {vr(28 + k, 2)}, v[46:47] op_sel_hi:[1,0]')
    for uh in range(2):
        for dd in range(4):
            u, x = 2 * uh + (dd >> 1), dd & 1
            a(f'v_cvt_pk_bf16_f32 v{12 + 4 * uh + dd}, v{28 + 4 * (2 * x) + u}, v{28 + 4 * (2 * x + 1) + u}')
    a(f'ds_write_b128 v50, v[12:15] offset:{L_P}\nds_write_b128 v50, v[16:19] offset:{L_P + 256}')
    a(f'v_mov_b32 v20, 1\nv_mov_b32 v21, s{S_E}\nv_mov_b32 v22, 0\ns_waitcnt lgkmcnt(0)\nds_write_b64 v22, v[20:21] offset:{F_P}')
    stamp(8)
    a('L_nosm:')

    a(f's_cmp_eq_u32 s{S_ROLE}, 3\ns_cbranch_scc1 L_ffn')
    a(f's_cmp_eq_u32 s{S_B}, 7\ns_cbranch_scc1 L_exit')
    srd(SRD_A, P_WO, 3670016)
    a(f's_movk_i32 s32, 896\ns_movk_i32 s{S_A}, 7168\ns_mov_b32 s{S_Bs}, 229376')
    a(f's_lshl_b32 s30, s{S_H}, 9\ns_lshl_b32 s31, s{S_D}, 6\ns_add_u32 s30, s30, s31\ns_mul_i32 s30, s30, 896\ns_lshl_b32 s31, s{S_B}, 7\ns_add_u32 s{S_BASE}, s30, s31')
    a(f'v_mad_u32_u24 v{V_DM}, v{V_R8}, s32, v{V_NT}')
    a(f's_lshl_b32 s24, s{S_JJ}, 14\ns_lshl_b32 s30, s{S_C}, 7\ns_add_u32 s24, s24, s30\ns_add_u32 s24, s24, {WS_OP}')
    a('s_add_u32 s25, s24, 4096\ns_add_u32 s26, s24, 8192\ns_add_u32 s27, s24, 12288')
    a(f'v_and_b32 v12, 7, v0\nv_lshl_add_u32 v40, v12, 8, v{V_MA}')
    a(f's_lshr_b32 s30, s{S_C}, 1\ns_lshl_b32 s30, s30, 10\ns_and_b32 s31, s{S_C}, 1\ns_lshl_b32 s31, s31, 3\ns_add_u32 s30, s30, s31\nv_add_u32 v41, s30, v{V_L16}')
    a('v_mul_u32_u24 v42, 57344, v12\nv_lshrrev_b32 v13, 4, v0\nv_lshl_add_u32 v42, v13, 4, v42')
    a(f's_lshl_b32 s{S_DST}, s{S_B}, 13\ns_lshl_b32 s30, s{S_JJ}, 8\ns_add_u32 s{S_DST}, s{S_DST}, s30\ns_lshl_b32 s30, s{S_C}, 6\ns_add_u32 s{S_DST}, s{S_DST}, s30')
    a(f's_add_u32 s{S_DST}, s{S_DST}, {WS_PA}\nv_mov_b32 v43, s{S_E}\ns_movk_i32 s38, 0xff')
    spin_lds(F_VT, 65, 12)
    dma(SRD_A, 2, L_W, 63)
    a('s_waitcnt vmcnt(0)')
    flag_add(F_S2, 12)
    spin_lds(F_S2, 4, 12)
    trread(W56, 4, V_TR)
    stamp(9)

    def poll8(top, done, regs, loads):
        a(f'{top}:')
        loads()
        a('s_waitcnt vmcnt(0)')
        for r in regs:
            a(f'v_xor_b32 v{r}, s{S_E8}, v{r}')
        rest = list(regs)
        if len(rest) >= 3:
            a(f'v_or3_b32 v10, v{rest[0]}, v{rest[1]}, v{rest[2]}')
            rest = rest[3:]
        while len(rest) >= 2:
            a(f'v_or3_b32 v10, v10, v{rest[0]}, v{rest[1]}')
            rest = rest[2:]
        if rest:
            a(f'v_or_b32 v10, v10, v{rest[0]}')
        a('v_and_b32 v10, 0xff, v10')

    def poll_end(top, done):
        a(f'v_cmp_ne_u32 vcc, 0, v10\ns_cbranch_vccz {done}')
        retry(top)
        a(f'{done}:')

    poll8('L_wpoll', 'L_wgot', [12, 16, 20, 24],
          lambda: [a(f'buffer_load_dwordx4 {vr(12 + 4 * s, 4)}, v40, {sr(SRD_WS, 4)}, s{24 + s} offen sc1') for s in range(4)])
    poll_end('L_wpoll', 'L_wgot')
    a('v_pk_add_f32 v[12:13], v[12:13], v[16:17]\nv_pk_add_f32 v[20:21], v[20:21], v[24:25]')
    a('v_pk_add_f32 v[14:15], v[14:15], v[18:19]\nv_pk_add_f32 v[22:23], v[22:23], v[26:27]')
    a('v_pk_add_f32 v[12:13], v[12:13], v[20:21]\nv_pk_add_f32 v[14:15], v[14:15], v[22:23]')
    a('v_cvt_pk_bf16_f32 v12, v12, v13\nv_cvt_pk_bf16_f32 v13, v14, v15')
    a(f'ds_write_b64 v41, v[12:13] offset:{L_A}\ns_waitcnt lgkmcnt(0)\ns_barrier')
    for s in range(4):
        a(f'ds_read_b128 {vr(12 + 4 * s, 4)}, v{V_AR} offset:{L_A + 512 * s}')
    for s in range(4):
        a(f's_waitcnt lgkmcnt({3 - s})')
        a(f'v_mfma_f32_16x16x32_bf16 v[28:31], {vr(W56 + 4 * s, 4)}, {vr(12 + 4 * s, 4)}, {"v[28:31]" if s else 0}')
    a(f's_mov_b64 exec, {MASK8}')
    a('v_bfi_b32 v28, s38, v43, v28')
    a(f'buffer_store_dwordx4 v[28:31], v42, {sr(SRD_WS, 4)}, s{S_DST} offen sc1')
    a('s_mov_b64 exec, -1')
    stamp(10)
    a(f's_cmp_eq_u32 s{S_C}, 0\ns_cbranch_scc0 L_exit')
    a(f's_sub_u32 s26, s{S_R}, 16\ns_cmp_lt_u32 s26, 7\ns_cbranch_scc0 L_exit')
    a(f's_mul_i32 s30, s{S_H}, 7\ns_add_u32 s30, s30, s26\ns_lshl_b32 s30, s30, 13')
    a(f's_add_u32 s24, s30, {WS_PA}\ns_add_u32 s25, s24, 4096')
    a(f's_lshl_b32 s26, s26, 3\ns_add_u32 s26, s26, s{S_H}\ns_lshl_b32 s27, s26, 4\ns_add_u32 s27, s27, {WS_ST}')
    a(f's_lshl_b32 s32, s26, 8\ns_add_u32 s32, s32, {WS_X1}')
    srd(SRD_C, P_OUT, 7168)
    a(f'v_mov_b32 v44, s{S_E}\nv_mov_b32 v47, 0')

    def gather(top, done, n):
        poll8(top, done, [12 + 4 * u for u in range(n)],
              lambda: [a(f'buffer_load_dwordx4 {vr(12 + 4 * u, 4)}, v{V_L16}, {sr(SRD_WS, 4)}, s{24 + (u >> 2)} offen offset:{1024 * (u & 3)} sc1') for u in range(n)])
        poll_end(top, done)
        for st in (4, 2, 1):
            for u in range(st):
                if u + st < n:
                    for h in (0, 2):
                        a(f'v_pk_add_f32 {vr(12 + 4 * u + h, 2)}, {vr(12 + 4 * u + h, 2)}, {vr(12 + 4 * (u + st) + h, 2)}')
        a('v_permlane32_swap_b32 v12, v14\nv_permlane32_swap_b32 v13, v15\nv_pk_add_f32 v[12:13], v[12:13], v[14:15]')
        a('v_permlane16_swap_b32 v12, v13\nv_add_f32 v12, v12, v13')

    gather('L_apoll', 'L_agot', 8)
    rnd(12, 12)
    a(f'v_mul_f32 v12, v{Z_GA}, v12')
    rnd(12, 12)
    a(f'v_add_f32 v12, v{Z_X}, v12')
    rnd(Z_X, 12)
    a(f'v_or_b32 v13, v{Z_TAG}, v{Z_X}\nv_mul_f32 v46, v{Z_X}, v{Z_X}')
    a(f'buffer_store_dword v13, v{Z_XA}, {sr(SRD_WS, 4)}, s32 offen sc1')
    dpp('v_add_f32', 45, Z_X, Z_X, 'row_ror:8')
    dpp('v_add_f32', 46, 46, 46, 'row_ror:8')
    for ctl in ('row_ror:4', 'row_ror:2', 'row_ror:1'):
        dpp('v_add_f32', 45, 45, 45, ctl)
        dpp('v_add_f32', 46, 46, 46, ctl)
    for ctl, rm in (('row_bcast:15', 0xa), ('row_bcast:31', 0xc)):
        dpp('v_add_f32', 45, 45, 45, ctl, rm)
        dpp('v_add_f32', 46, 46, 46, ctl, rm)
    a('s_mov_b32 exec_lo, 0\ns_mov_b32 exec_hi, 0x80000000')
    a(f'buffer_store_dwordx3 v[44:46], v47, {sr(SRD_WS, 4)}, s27 offen sc1\ns_mov_b64 exec, -1')
    stamp(1)
    a(f's_add_u32 s24, s30, {WS_PF}\ns_add_u32 s25, s24, 4096')
    gather('L_fpoll', 'L_fgot', 7)
    rnd(12, 12)
    a(f'v_mul_f32 v12, v{Z_GB}, v12')
    rnd(12, 12)
    a(f'v_add_f32 v12, v{Z_X}, v12\nv_cvt_pk_bf16_f32 v12, v12, v12')
    a(f'buffer_store_short v12, v{Z_OA}, {sr(SRD_C, 4)}, 0 offen')
    stamp(2)
    a('s_cmp_eq_u32 s26, 0\ns_cbranch_scc0 L_exit')
    a(f's_mov_b64 exec, 1\nbuffer_store_dword v44, v47, {sr(SRD_WS, 4)}, 0 offen sc1\ns_mov_b64 exec, -1')
    a('s_branch L_exit')

    a('L_ffn:')
    srd(SRD_A, P_W1, 1605632)
    srd(SRD_B, P_W3, 1605632)
    a(f's_movk_i32 s32, 3584\ns_movk_i32 s{S_A}, 28672\ns_mov_b32 s{S_Bs}, 229376\ns_lshl_b32 s{S_BASE}, s{S_JJ}, 7')
    a(f'v_mad_u32_u24 v{V_DM}, v{V_R8}, s32, v{V_NT}')
    a(f'v_add_u32 v46, {56 * BLK}, v{V_TR}')
    a(f's_lshl_b32 s24, s{S_C}, 11\ns_add_u32 s24, s24, {WS_X1}\ns_lshl_b32 s25, s{S_KB1}, 11\ns_add_u32 s25, s25, {WS_X1}\ns_mov_b32 s26, {WS_ST}')
    a(f'v_min_u32 v47, 55, v0\nv_lshlrev_b32 v47, 4, v47')
    a('v_and_b32 v12, 7, v0\nv_mul_u32_u24 v48, 57344, v12\nv_lshrrev_b32 v13, 4, v0\nv_lshl_add_u32 v48, v13, 4, v48')
    a(f's_lshl_b32 s{S_DST}, s{S_JJ}, 8\ns_lshl_b32 s30, s{S_C}, 6\ns_add_u32 s{S_DST}, s{S_DST}, s30\ns_add_u32 s{S_DST}, s{S_DST}, {WS_PF}')
    a('v_lshrrev_b32 v14, 1, v13\nv_lshlrev_b32 v14, 7, v14\nv_lshl_or_b32 v14, v12, 4, v14\nv_and_b32 v13, 1, v13\nv_lshl_or_b32 v14, v13, 3, v14')
    a(f's_lshl_b32 s30, s{S_C}, 8\nv_add_u32 v49, s30, v14')
    a(f'v_mov_b32 v50, s{S_E}\ns_movk_i32 s38, 0xff\ns_mov_b32 s39, {LOG2E | 0x80000000:#x}')
    a('s_mov_b32 s22, -1\ns_mov_b32 s23, 0x00ffffff')
    spin_lds(F_VT, 65, 12)
    dma(SRD_A, 7, L_W, cfg['dF'])
    dma(SRD_B, 7, L_W + 56 * BLK, cfg['dF'])
    a('s_waitcnt vmcnt(0)')
    flag_add(F_S2, 12)
    spin_lds(F_S2, 4, 12)
    trread(W112, 14, V_TR)
    trread(W112 + 56, 14, 46)
    a('s_waitcnt lgkmcnt(0)')
    stamp(9)

    def x1loads():
        for q in range(2):
            for h in range(2):
                a(f'buffer_load_dwordx4 {vr(12 + 8 * q + 4 * h, 4)}, v{V_MA}, {sr(SRD_WS, 4)}, s{24 + q} offen offset:{128 * h} sc1')
        a(f'buffer_load_dwordx3 v[28:30], v47, {sr(SRD_WS, 4)}, s26 offen sc1')
    poll8('L_xpoll', 'L_xgot', [12, 16, 20, 24], x1loads)
    a(f'v_bitop3_b32 v10, v10, v28, s{S_E} bitop3:0xf6')
    poll_end('L_xpoll', 'L_xgot')
    stamp(10)
    a('v_cndmask_b32 v28, 0, v29, s[22:23]\nv_cndmask_b32 v30, 0, v30, s[22:23]')
    a('v_permlane32_swap_b32 v28, v30\nv_add_f32 v28, v28, v30')
    a('v_mov_b32 v30, v28\nv_permlane16_swap_b32 v28, v30\nv_add_f32 v28, v28, v30')
    dpp('v_add_f32', 28, 28, 28, 'row_ror:8')
    a('v_mul_f32 v28, 0x3b124925, v28\nv_mov_b32 v30, v28\nv_permlane32_swap_b32 v28, v30')
    a('v_fma_f32 v30, -v28, v28, v30\nv_max_f32 v30, 0, v30')
    ln_scalars(28, 30, 31)
    ln_norm(12, 16, 28, 30)
    ln_mod(12, 16, F_C1, F_SH)
    write_act(12)
    a('s_waitcnt lgkmcnt(0)\ns_barrier')
    AB = [12 + 4 * s for s in range(8)] + [52 + 4 * s for s in range(6)]
    for s in range(14):
        a(f'ds_read_b128 {vr(AB[s], 4)}, v{V_AR} offset:{L_A + 512 * s}')
    for s in range(14):
        a(f's_waitcnt lgkmcnt({13 - s})')
        a(f'v_mfma_f32_16x16x32_bf16 v[76:79], {vr(W112 + 4 * s, 4)}, {vr(AB[s], 4)}, {"v[76:79]" if s else 0}')
        a(f'v_mfma_f32_16x16x32_bf16 v[80:83], {vr(W112 + 56 + 4 * s, 4)}, {vr(AB[s], 4)}, {"v[80:83]" if s else 0}')
    for k in range(4):
        rnd(76 + k, 76 + k)
    for k in range(4):
        a(f'v_mul_f32 v{12 + k}, s39, v{76 + k}')
    for k in range(4):
        a(f'v_exp_f32 v{12 + k}, v{12 + k}')
    for k in range(4):
        rnd(80 + k, 80 + k)
    for k in range(4):
        a(f'v_add_f32 v{12 + k}, 1.0, v{12 + k}')
    for k in range(4):
        a(f'v_rcp_f32 v{12 + k}, v{12 + k}')
    a('v_pk_mul_f32 v[12:13], v[12:13], v[76:77]\nv_pk_mul_f32 v[14:15], v[14:15], v[78:79]')
    for k in range(4):
        rnd(12 + k, 12 + k)
    a('v_pk_mul_f32 v[12:13], v[12:13], v[80:81]\nv_pk_mul_f32 v[14:15], v[14:15], v[82:83]')
    a('v_cvt_pk_bf16_f32 v12, v12, v13\nv_cvt_pk_bf16_f32 v13, v14, v15')
    a(f'ds_write_b64 v49, v[12:13] offset:{L_H}\ns_waitcnt lgkmcnt(0)\ns_barrier')
    a(f'ds_read_b128 v[12:15], v{V_AR} offset:{L_H}\nds_read_b128 v[16:19], v{V_AR} offset:{L_H + 512}\ns_waitcnt lgkmcnt(0)')
    for i in range(7):
        a(f'v_mfma_f32_16x16x32_bf16 {vr(52 + 4 * i, 4)}, {vr(W56 + 8 * i, 4)}, v[12:15], 0')
        a(f'v_mfma_f32_16x16x32_bf16 {vr(52 + 4 * i, 4)}, {vr(W56 + 8 * i + 4, 4)}, v[16:19], {vr(52 + 4 * i, 4)}')
    a(f's_mov_b64 exec, {MASK8}')
    for i in range(7):
        a(f'v_bfi_b32 v{52 + 4 * i}, s38, v50, v{52 + 4 * i}')
        a(f'buffer_store_dwordx4 {vr(52 + 4 * i, 4)}, v48, {sr(SRD_WS, 4)}, s{S_DST} offen sc1')
        if i < 6:
            a(f's_add_u32 s{S_DST}, s{S_DST}, 8192')
    a('s_mov_b64 exec, -1')
    stamp(11)

    a('L_exit:')
    if cfg['probe']:
        cls, k = cfg['probe'][0], int(cfg['probe'][1:])
        a(f's_waitcnt lgkmcnt(0)\ns_cmp_ge_u32 s{S_W}, 4\ns_cbranch_scc{1 if cls == "s" else 0} L_end')
        if cls == 's':
            a('s_barrier\ns_barrier')
        a(f's_cmp_eq_u32 s{S_ST0 + 2 * k}, 0\ns_cbranch_scc1 L_end\ns_mov_b32 s{S_CNT}, 0')
        a(f'L_pw:\ns_memrealtime s[30:31]\ns_waitcnt lgkmcnt(0)\ns_sub_u32 s30, s30, s{S_ST0 + 2 * k}\ns_cmp_ge_u32 s30, 6000\ns_cbranch_scc1 L_end')
        a(f's_add_u32 s{S_CNT}, s{S_CNT}, 1\ns_cmp_lt_u32 s{S_CNT}, 100000\ns_cbranch_scc1 L_pw\ns_branch L_end')
    if cfg['stamps']:
        a('s_waitcnt lgkmcnt(0)\ns_mov_b64 exec, 1')
        a(f's_lshl_b32 s30, s2, 3\ns_add_u32 s30, s30, s{S_W}\ns_lshl_b32 s30, s30, 6\ns_add_u32 s30, s30, {WS_STAMP}\nv_mov_b32 v0, s30')
        for q in range(3):
            for k in range(4):
                a(f'v_mov_b32 v{4 + k + 4 * q}, s{S_ST0 + 2 * (4 * q + k)}')
            a(f'global_store_dwordx4 v0, {vr(4 + 4 * q, 4)}, {sr(P_WS, 2)} offset:{16 * q}')
        a(f'v_mov_b32 v16, s{S_CNT}\nglobal_store_dword v0, v16, {sr(P_WS, 2)} offset:48')
    a('L_end:\ns_endpgm')
    a('.section .rodata,"a"\n.p2align 6')
    a(f'.amdhsa_kernel {NAME}_kernel')
    a('.amdhsa_next_free_vgpr 256\n.amdhsa_next_free_sgpr 102\n.amdhsa_accum_offset 256\n.amdhsa_group_segment_fixed_size 0')
    a('.amdhsa_kernarg_size 112\n.amdhsa_user_sgpr_count 2\n.amdhsa_user_sgpr_kernarg_segment_ptr 1\n.amdhsa_system_sgpr_workgroup_id_x 1')
    a('.amdhsa_float_denorm_mode_32 3\n.end_amdhsa_kernel')
    return head + a.text()


if __name__ == '__main__':
    kw = {}
    for x in sys.argv[2:]:
        k, v = x.split('=')
        kw[k] = int(v) if v.lstrip('-').isdigit() else v
    open(sys.argv[1], 'w').write(gen(**kw))
```

```python
import sys
from asmlib import Asm, vr, sr

NAME = 'adaLN_cond__sliding_block_cached__glu_gated_swiglu__decode'

WS_EPOCH = 0x0
WS_MOD = 0x1000
WS_Q = 0x20000
WS_ML = 0x40000
WS_CEN = 0x50000
WS_X1 = 0x48000
WS_OP = 0x80000
WS_PA = 0x100000
WS_PF = 0x180000
WS_STAMP = 0x200000
WS_SIZE = 0x400000

F_Q, F_SC, F_P, F_KT, F_VT, F_S1, F_S2, F_S3, F_S4, F_MT = 0, 4, 8, 16, 20, 24, 28, 32, 36, 40
L_ST = 0x100
L_Q, L_P, L_SC, L_A, L_H, L_W = 0x400, 0x800, 0x1000, 0x2000, 0x3C00, 0x4000
BLK = 1152
L_X = L_W + 56 * BLK
LDS_BYTES = L_X + 80 * 1024

S_W, S_H, S_B, S_D, S_R = 3, 4, 5, 6, 7
SRD_A, SRD_B, SRD_WS, SRD_C = 8, 12, 16, 20
S_E, S_C, S_CNT, S_JJ, S_E8 = 28, 29, 33, 34, 35
S_XO, S_FAST, P_DBG = 71, 75, 64
P_X, P_K, P_V, P_WQ, P_WO, P_W1, P_W3, P_W2, P_C, P_WM, P_OUT, P_WS = 40, 42, 44, 46, 48, 52, 54, 56, 58, 60, 62, 66
S_ST0 = 76
SP = 8
SPIN_CAP = 400000
LOG2E = 0x3FB8AA3B

DEF = dict(seg=((0, 7, 2, 14), (52, 7, 2, 12), (64, 7, 1, 12)), kmap='H', wbar=1, dF=63, ktrig=60, vtrig=63, vsync=42, stamps=0, pref=1, wfl='nt', probe='', prem=0, prio=2, dflag=4, NL=16, mtrig=20, abl=0, vall=1, xfl='', preq=0, fpre=4, nap=0, fast=1, w1early=0, pref2=1)
S_A, S_Bs, S_BASE, S_KB1, S_DST, S_ROLE = 68, 69, 70, 72, 73, 74


def gen(**kw):
    cfg = dict(DEF)
    cfg.update(kw)
    a = Asm()
    seg = cfg['seg']
    if isinstance(seg, str):
        seg = eval(seg)
    DV = seg[-1][1]
    KM = {'E': ([1, 2], [4, 8], [16, 32, 64, 128]), 'H': ([2, 1], [8, 16], [4, 32, 64, 128])}[cfg['kmap']]
    lin = lambda cols, x: sum(c for k, c in enumerate(cols) if x >> k & 1) << 12
    WFL = cfg['wfl']

    def stamp(k):
        if cfg['stamps']:
            a(f's_memrealtime {sr(S_ST0 + 2 * k, 2)}')

    def srd(d, p, size):
        a(f's_mov_b32 s{d}, s{p}\ns_mov_b32 s{d + 1}, s{p + 1}\ns_mov_b32 s{d + 2}, {size}\ns_mov_b32 s{d + 3}, 0x20000')

    def retry(lab):
        a(f's_add_u32 s{S_CNT}, s{S_CNT}, 1\ns_cmp_lt_u32 s{S_CNT}, {SPIN_CAP}\ns_cbranch_scc1 {lab}\ns_branch L_exit')

    def spin_lds(flag, n, t, two=False):
        top, done = a.lab('L_spin'), a.lab('L_got')
        a(f'{top}:\nv_mov_b32 v{t}, 0')
        if two:
            a(f'ds_read_b64 {vr(t, 2)}, v{t} offset:{flag}')
        else:
            a(f'ds_read_b32 v{t}, v{t} offset:{flag}')
        a(f's_waitcnt lgkmcnt(0)\nv_readfirstlane_b32 s31, v{t}\ns_cmp_ge_u32 s31, {n}\ns_cbranch_scc1 {done}')
        retry(top)
        a(f'{done}:')

    def spoll(addrs):
        top, done = a.lab('L_sp'), a.lab('L_spd')
        a(f'{top}:')
        for k, (sreg, imm) in enumerate(addrs):
            a(f's_load_dword s{SP + k}, {sr(P_WS, 2)}, s{sreg} offset:{imm} glc')
        a('s_waitcnt lgkmcnt(0)')
        a(f's_xor_b32 s{SP}, s{SP}, s{S_E}')
        for k in range(1, len(addrs)):
            a(f's_xor_b32 s{SP + k}, s{SP + k}, s{S_E}\ns_or_b32 s{SP}, s{SP}, s{SP + k}')
        a(f's_cbranch_scc0 {done}')
        retry(top)
        a(f'{done}:')

    PEND = (8, 10, 12, 14, 40, 42, 44, 46)

    def poll(name, loads, tag8, between=None):
        top, chk, done = f'L_{name}poll', f'L_{name}chk', f'L_{name}got'
        for r, ins in loads:
            a(ins)
        if between:
            between()
        a(f's_branch {chk}\n{top}:')
        if cfg['nap']:
            a(f's_sleep {cfg["nap"]}')
        for k, (r, ins) in enumerate(loads):
            if tag8:
                p = PEND[k]
                a(f's_quadmask_b64 {sr(p, 2)}, {sr(p, 2)}\ns_bitreplicate_b64_b32 {sr(p, 2)}, s{p}\ns_wqm_b32 s{p}, s{p}\ns_bitreplicate_b64_b32 exec, s{p}\n{ins}')
            else:
                a(f's_mov_b64 exec, {sr(PEND[k], 2)}\n{ins}')
        a(f's_mov_b64 exec, -1\ns_add_u32 s{S_CNT}, s{S_CNT}, 1\ns_cmp_lt_u32 s{S_CNT}, {SPIN_CAP}\ns_cbranch_scc0 L_exit')
        a(f'{chk}:\ns_waitcnt vmcnt(0)')
        for k, (r, ins) in enumerate(loads):
            if tag8:
                a(f'v_cmp_ne_u32_sdwa {sr(PEND[k], 2)}, v{r}, s{S_E8} src0_sel:BYTE_0 src1_sel:DWORD')
            else:
                a(f'v_cmp_ne_u32_e64 {sr(PEND[k], 2)}, s{S_E}, v{r}')
        a(f's_or_b64 vcc, {sr(PEND[0], 2)}, {sr(PEND[1], 2)}')
        for k in range(2, len(loads)):
            a(f's_or_b64 vcc, vcc, {sr(PEND[k], 2)}')
        a(f's_cbranch_scc1 {top}')
        if tag8:
            for r, ins in loads:
                a(f'v_xor_b32 v{r}, s{S_E8}, v{r}')

    def census(t):
        a(f's_lshl_b32 s30, s{S_H}, 8\ns_add_u32 s30, s30, {WS_CEN}\nv_and_b32 v{t}, 31, v0\nv_lshlrev_b32 v{t}, 2, v{t}')
        a(f'buffer_load_dword v{t}, v{t}, {sr(SRD_WS, 4)}, s30 offen sc1')

    def census_done(t):
        a(f'v_cmp_eq_u32 vcc, s{S_XO}, v{t}\ns_bcnt1_i32_b32 s{S_FAST}, vcc_lo')

    def group_store(ins, cond=None):
        slow, done = a.lab('L_st'), a.lab('L_std')
        a(cond or f's_cmp_eq_u32 s{S_FAST}, {32 if cfg["fast"] else 99}')
        a(f's_cbranch_scc0 {slow}\n{ins}\ns_branch {done}\n{slow}:\n{ins} sc1\n{done}:')

    def code_prefetch(end):
        if not cfg['pref2']:
            return
        here, skip = a.lab('L_pc'), a.lab('L_npc')
        a(f's_cmp_eq_u32 s{S_C}, 3\ns_cbranch_scc0 {skip}')
        a(f's_getpc_b64 s[30:31]\n{here}:\nv_lshlrev_b32 v12, 7, v0\nv_min_u32 v12, {end}-{here}, v12\nglobal_load_dword v13, v12, s[30:31]')
        a(f'{skip}:')

    def flag_add(flag, t, inc=1):
        a(f'v_mov_b32 v{t}, 0\nv_mov_b32 v{t + 1}, {inc}\ns_mov_b64 exec, 1\nds_add_u32 v{t}, v{t + 1} offset:{flag}\ns_mov_b64 exec, -1')

    def rnd(d, s):
        a(f'v_cvt_pk_bf16_f32 v{d}, 0, v{s}')

    def rows_allreduce(op, x, t):
        a(f'v_mov_b32 v{t}, v{x}\nv_permlane16_swap_b32 v{x}, v{t}\n{op} v{x}, v{x}, v{t}')
        a(f'v_mov_b32 v{t}, v{x}\nv_permlane32_swap_b32 v{x}, v{t}\n{op} v{x}, v{x}, v{t}')

    def dpp(op, d, s0, s1, ctl, rm=0xf, bm=0xf):
        a(f'{op}_dpp v{d}, v{s0}, v{s1} {ctl} row_mask:{rm:#x} bank_mask:{bm:#x}')

    hdr = open('cdna_kernels/' + NAME + '.s.ref').read().split('; Override launch')[0]
    head = hdr + f'; @launch grid=(256,1,1) block=(512,1,1) lds={LDS_BYTES}\n'
    a('.amdgcn_target "amdgcn-amd-amdhsa--gfx950"\n.text')
    a(f'.globl {NAME}_kernel\n.p2align 8\n.type {NAME}_kernel,@function\n{NAME}_kernel:')
    a('s_cmp_ge_u32 s2, 256\ns_cbranch_scc1 L_end')
    a(f'v_lshrrev_b32 v1, 6, v0\nv_and_b32 v0, 63, v0\nv_readfirstlane_b32 s{S_W}, v1')
    a(f's_cmp_eq_u32 s{S_W}, 7\ns_cbranch_scc0 L_ka')
    a('v_mov_b32 v4, 0\nv_lshlrev_b32 v5, 2, v0\nds_write_b32 v5, v4\ns_waitcnt lgkmcnt(0)')
    a('L_ka:')
    a('s_load_dwordx16 s[40:55], s[0:1], 0\ns_load_dwordx8 s[56:63], s[0:1], 64\ns_load_dwordx4 s[64:67], s[0:1], 96')
    if cfg['stamps']:
        for k in range(1, 12):
            a(f's_mov_b64 {sr(S_ST0 + 2 * k, 2)}, 0')
    stamp(0)
    a(f's_and_b32 s{S_H}, s2, 7\ns_lshr_b32 s{S_R}, s2, 3\ns_lshr_b32 s{S_B}, s2, 5\ns_and_b32 s{S_D}, s{S_R}, 3')
    a(f's_mov_b32 s{S_CNT}, 0\ns_lshl_b32 s{S_JJ}, s{S_H}, 2\ns_or_b32 s{S_JJ}, s{S_JJ}, s{S_D}\ns_and_b32 s{S_C}, s{S_W}, 3')
    a(f's_cmp_lt_u32 s{S_H}, 7\ns_cselect_b32 s{S_ROLE}, 3, 0\ns_cmp_eq_u32 s{S_B}, 7\ns_cselect_b32 s{S_ROLE}, s{S_ROLE}, 0')
    a(f's_lshl_b32 s30, s{S_H}, 3\ns_and_b32 s31, s{S_R}, 7\ns_or_b32 s30, s30, s31')
    a(f's_lshr_b32 s31, s2, 6\ns_cmp_eq_u32 s31, 1\ns_cselect_b32 s{S_ROLE}, 2, s{S_ROLE}')
    a(f's_cmp_lt_u32 s2, 42\ns_cselect_b32 s{S_ROLE}, 1, s{S_ROLE}\ns_cselect_b32 s30, s2, s30')
    a('v_lshrrev_b32 v1, 1, v0\nv_and_b32 v1, 7, v1')
    a('v_lshrrev_b32 v10, 4, v0\nv_and_b32 v11, 1, v0\nv_lshlrev_b32 v11, 4, v11\nv_lshl_or_b32 v2, v10, 5, v11')
    a('s_barrier')
    a(f's_cmp_ge_u32 s{S_W}, 4\ns_cbranch_scc1 L_chain')
    V_R8, V_NT, V_TR, V_AR, V_L16, V_XA, V_MA, V_DM = 1, 2, 3, 4, 5, 6, 7, 9

    def dma(srdn, nt, lds0, depth, bar=-1):
        a(f's_lshl_b32 s30, s{S_C}, 1\ns_mul_i32 s31, s30, {BLK}\ns_add_u32 m0, s31, {lds0}')
        a(f's_mul_i32 s30, s30, s{S_A}\ns_add_u32 s30, s30, s{S_BASE}\ns_add_u32 s31, s30, s{S_A}')
        for t in range(nt):
            for u in range(2):
                k = 2 * t + u
                if k >= depth:
                    a(f's_waitcnt vmcnt({depth - 1})')
                if k == bar:
                    a('s_barrier')
                a(f'buffer_load_dwordx4 v{V_DM}, {sr(srdn, 4)}, s{30 + u} offen {WFL} lds')
                if k < 2 * nt - 1:
                    a(f's_add_u32 m0, m0, {BLK if u == 0 else 7 * BLK}\ns_add_u32 s{30 + u}, s{30 + u}, s{S_Bs}')

    QA, QD, SC = 8, 24, 4
    RING = 32
    slot = lambda k: RING + 4 * k
    NL = cfg['NL']
    NSYNC = 56 + NL
    ACC = slot(0)
    kslot = lambda n: slot((n - NL) % 56) if n >= NL else slot(n % 8)
    vidx = lambda i: 8 + (56 - NL + i) % 48
    vslot = lambda i: slot(vidx(i))
    a(f's_movk_i32 s32, 896\ns_mov_b32 s{SRD_C + 2}, 1605632')
    a(f's_cmp_eq_u32 s{S_ROLE}, 1\ns_cselect_b32 s32, 5376, s32\ns_cselect_b32 s{SRD_C + 2}, 2408448, s{SRD_C + 2}')
    a(f's_cmp_eq_u32 s{S_ROLE}, 2\ns_cselect_b32 s32, 8192, s32\ns_cselect_b32 s{SRD_C + 2}, 3670016, s{SRD_C + 2}')
    a(f's_lshl_b32 s{S_A}, s32, 3\ns_lshl_b32 s{S_Bs}, s32, 6\ns_lshl_b32 s{S_BASE}, s30, 7\ns_mul_i32 s31, s{S_JJ}, 57344')
    a(f's_cmp_eq_u32 s{S_ROLE}, 3\ns_cselect_b32 s{S_Bs}, 128, s{S_Bs}\ns_cselect_b32 s{S_BASE}, s31, s{S_BASE}')
    a(f's_mov_b32 s{SRD_C + 3}, 0x20000')
    a(f'v_mad_u32_u24 v{V_DM}, v{V_R8}, s32, v{V_NT}')
    a('v_and_b32 v4, 7, v0\nv_lshrrev_b32 v5, 4, v0\nv_lshlrev_b32 v5, 4, v5\nv_lshl_or_b32 v1, v4, 9, v5')
    a('v_and_b32 v5, 8, v0\nv_lshl_or_b32 v1, v5, 3, v1')
    a('v_lshrrev_b32 v5, 3, v0\nv_lshlrev_b32 v4, 4, v4\nv_lshl_or_b32 v2, v5, 9, v4')
    a(f's_lshl_b32 s32, s{S_B}, 3\ns_or_b32 s32, s32, s{S_H}\ns_lshl_b32 s32, s32, 22\ns_add_u32 s32, s32, 0x300000')
    a(f's_mul_i32 s36, s{S_D}, {lin(KM[1], 1)}\ns_lshl_b32 s37, s{S_W}, 7\ns_add_u32 s37, s37, s36')
    a(f's_and_b32 s31, s{S_W}, 1\ns_mul_i32 s31, s31, {lin(KM[0], 1)}\ns_add_u32 s36, s36, s31')
    a(f's_lshr_b32 s31, s{S_W}, 1\ns_mul_i32 s31, s31, {lin(KM[0], 2)}\ns_add_u32 s36, s36, s31')
    a(f's_mov_b32 s{SRD_A + 2}, 0x100000\ns_mov_b32 s{SRD_A + 3}, 0x20000')
    a(f's_cmp_lg_u32 s{S_ROLE}, 0\ns_cselect_b64 vcc, -1, 0')
    a('s_waitcnt lgkmcnt(0)')
    a(f's_add_u32 s{SRD_A}, s{P_K}, s32\ns_addc_u32 s{SRD_A + 1}, s{P_K + 1}, 0')
    a('s_branch L_k0' if cfg['abl'] & 2 else 's_cbranch_vccz L_k0')
    a(f's_cmp_eq_u32 s{S_ROLE}, 1\ns_cselect_b64 {sr(SRD_C, 2)}, {sr(P_WM, 2)}, {sr(P_W2, 2)}')
    a(f's_cmp_eq_u32 s{S_ROLE}, 2\ns_cselect_b64 {sr(SRD_C, 2)}, {sr(P_WQ, 2)}, {sr(SRD_C, 2)}')
    dma(SRD_C, 7, L_W, 63)
    a('L_k0:')
    if NL:
        a(f's_mul_i32 s31, s{S_W}, {NL * 1024}\ns_add_u32 s{S_A}, s31, {L_X}')
    vdone = 0
    g0 = NL // 4
    korder = [g for g in (g0 + 2, g0, g0 + 1) if g < 16]
    rest = [g for g in range(g0, 16) if g not in korder]
    for p in range(0, g0, 2):
        korder += [('rd', p)] + rest[:1] + [g for g in (p, p + 1) if g < g0]
        rest = rest[1:]
    korder += rest
    kdone = set()
    qn = [0]

    def qk_post(gi, d):
        t, u = gi >> 2, gi & 3
        dpp('v_add_f32', SC + u, d + 1, d, 'row_ror:8', 1 << t, 0x3)
        dpp('v_add_f32', SC + u, d + 2, d + 3, 'row_ror:8', 1 << t, 0xc)

    def qk_some(landed, maxn):
        prev = None
        while korder and maxn:
            g = korder[0]
            if isinstance(g, tuple):
                for n in range(4 * g[1], min(4 * g[1] + 8, NL)):
                    a(f'ds_read_b128 {vr(kslot(n), 4)}, v3 offset:{1024 * n}')
                korder.pop(0)
                continue
            if 4 * g + 3 > landed:
                break
            korder.pop(0)
            maxn -= 1
            if g < g0 and g % 2 == 0:
                a('s_waitcnt lgkmcnt(0)')
            d = QD + 4 * (qn[0] & 1)
            qn[0] += 1
            for j in range(4):
                a(f'v_mfma_f32_16x16x32_bf16 {vr(d, 4)}, {vr(QA + 4 * j, 4)}, {vr(kslot(4 * g + j), 4)}, {vr(d, 4) if j else 0}')
            if prev:
                qk_post(*prev)
            prev = (g, d)
            kdone.add(g)
        if prev:
            qk_post(*prev)
            if len(kdone) == 16:
                a(f's_lshl_b32 s31, s{S_W}, 10\nv_lshl_add_u32 v3, v0, 4, s31\nds_write_b128 v3, {vr(SC, 4)} offset:{L_SC}\ns_waitcnt lgkmcnt(0)')
                flag_add(F_SC, 4)
                stamp(3)

    def perms(dst_of, e0, G, r):
        lo, hi = vslot(8 * G + e0) + r, vslot(8 * G + e0 + 1) + r
        a(f'v_perm_b32 v{dst_of(2 * r) + e0 // 2}, v{hi}, v{lo}, s38')
        a(f'v_perm_b32 v{dst_of(2 * r + 1) + e0 // 2}, v{hi}, v{lo}, s39')

    def pv_mfma(G, j, b):
        a(f'v_mfma_f32_16x16x32_bf16 {vr(ACC + 4 * j, 4)}, {vr(QD + 4 * (G & 1), 4)}, {vr(b, 4)}, {vr(ACC + 4 * j, 4) if G else 0}')

    def pv_group(G):
        a('s_waitcnt lgkmcnt(0)')
        a(f'ds_read_b128 {vr(QD + 4 * ((G + 1) & 1), 4)}, v3 offset:{L_P + 256 * (G + 1)}')
        tmp = lambda j: QA + 4 * (j & 3)
        for r in range(4):
            for e0 in (0, 2, 4, 6):
                perms(tmp, e0, G, r)
            if r:
                pv_mfma(G, 2 * r - 1, tmp(2 * r - 1))
            pv_mfma(G, 2 * r, tmp(2 * r))
        pv_mfma(G, 7, tmp(7))

    for n in range(128):
        isk = n < 64
        n0, d, lite, rmask = [x for x in seg if x[0] <= n][-1]
        if n == n0:
            a(f's_bitcmp1_b32 {rmask}, s{S_ROLE}\ns_cselect_b64 vcc, -1, 0')
        if n >= d:
            a(f's_waitcnt vmcnt({d - 1})')
        if lite and n >= d - lite:
            skip = a.lab('L_dp')
            a(f's_cbranch_vccnz {skip}\ns_waitcnt vmcnt({d - 1 - lite})\n{skip}:')
        landed = n - d
        if n == 120:
            a('s_setprio 3')
        if n == cfg['dflag']:
            a(f's_waitcnt vmcnt({n})')
            flag_add(F_S1, 4)
        if n == NSYNC:
            stamp(1)
            if not cfg['abl'] & 9:
                spin_lds(F_Q, 1, 4)
            stamp(2)
            a('v_lshrrev_b32 v4, 1, v0\nv_and_b32 v4, 1, v4\nv_and_b32 v5, 1, v0\nv_lshrrev_b32 v6, 4, v0\nv_lshlrev_b32 v6, 4, v6')
            a('v_lshl_or_b32 v6, v5, 6, v6\nv_lshl_or_b32 v3, v4, 9, v6')
            for j in range(4):
                a(f'ds_read_b128 {vr(QA + 4 * j, 4)}, v3 offset:{L_Q + 128 * j}')
            a(f'v_lshl_add_u32 v3, v0, 4, s{S_A}' if NL else '')
            a('s_waitcnt lgkmcnt(0)')
            qk_some(landed, 1 if NL >= 8 else 2)
        if isk:
            if n >= NSYNC:
                assert (n - 56) // 4 in kdone
            if n and n % 4 == 0:
                a(f's_add_u32 s36, s36, {lin(KM[2], n >> 2) - lin(KM[2], (n >> 2) - 1)}')
            if n < NL:
                a(f's_add_u32 m0, s{S_A}, {1024 * n - 128 * (n & 3)}')
                a(f'buffer_load_dwordx4 v1, {sr(SRD_A, 4)}, s36 offen offset:{128 * (n & 3)} nt lds')
            else:
                a(f'buffer_load_dwordx4 {vr(kslot(n), 4)}, v1, {sr(SRD_A, 4)}, s36 offen offset:{128 * (n & 3)} nt')
        else:
            i = n - 64
            if i < 48:
                kn = vidx(i) + NL
                assert kn >= 64 or kn // 4 in kdone, (i, kdone)
            else:
                assert vdone > (i - 48) // 8
            a(f's_add_u32 s30, s37, {lin(KM[2], i >> 2) + lin(KM[0], i & 3)}')
            a(f'buffer_load_dwordx4 {vr(vslot(i), 4)}, v2, {sr(SRD_B, 4)}, s30 offen nt')
        if n == 3:
            a(f's_add_u32 s{SRD_B}, s{P_V}, s32\ns_addc_u32 s{SRD_B + 1}, s{P_V + 1}, 0\ns_mov_b32 s{SRD_B + 2}, 0x100000\ns_mov_b32 s{SRD_B + 3}, 0x20000')
            srd(SRD_WS, P_WS, WS_SIZE)
            a('s_mov_b32 s38, 0x05040100\ns_mov_b32 s39, 0x07060302')
        if n == cfg['ktrig']:
            assert n < NSYNC
            flag_add(F_KT, 4)
        if n == cfg['mtrig']:
            flag_add(F_MT, 4)
        if n == 64 + cfg['vtrig']:
            flag_add(F_VT, 4)
        if n >= NSYNC and korder:
            qk_some(landed, 4)
        if n == 64 + cfg['vsync']:
            assert len(kdone) == 16
            stamp(4)
            if not cfg['abl'] & 9:
                spin_lds(F_P, 1, 4, two=True)
            stamp(5)
            a(f'v_readfirstlane_b32 s{S_E}, v5\ns_sub_u32 s{S_FAST}, s31, 1')
            a('v_lshrrev_b32 v4, 1, v0\nv_and_b32 v4, 1, v4\nv_and_b32 v5, 1, v0\nv_lshrrev_b32 v6, 4, v0\nv_lshlrev_b32 v6, 5, v6')
            a('v_lshl_or_b32 v6, v5, 4, v6\nv_lshl_or_b32 v3, v4, 7, v6')
            a(f'ds_read_b128 {vr(QD, 4)}, v3 offset:{L_P}')
        if n >= 64 + cfg['vsync'] and vdone < 7 and 64 + 8 * vdone + 7 <= landed:
            pv_group(vdone)
            vdone += 1
    assert vdone == 7, vdone
    a(f's_lshl_b32 s30, s{S_H}, 2\ns_add_u32 s30, s30, s{S_W}\ns_lshl_b32 s30, s30, 14\ns_lshl_b32 s31, s{S_D}, 12\ns_add_u32 s30, s30, s31')
    a(f's_lshl_b32 s31, s{S_B}, 9\ns_add_u32 s30, s30, s31\ns_add_u32 s30, s30, {WS_OP}')
    a('v_and_b32 v8, 7, v0\nv_lshlrev_b32 v8, 4, v8\nv_and_b32 v9, 8, v0\nv_lshl_or_b32 v8, v9, 5, v8\nv_and_b32 v9, 16, v0\nv_lshl_or_b32 v8, v9, 3, v8')
    a(f's_movk_i32 s31, 0xff\nv_mov_b32 v9, s{S_E}')
    big = lambda j: vslot(24 + j)
    for pr in range(4):
        if 6 - 2 * pr < DV:
            a(f's_waitcnt vmcnt({6 - 2 * pr})')
        if pr < 3:
            for r in range(4):
                perms(big, 2 * pr, 7, r)
    stamp(6)
    a('s_waitcnt lgkmcnt(0)')

    def pv_post(j):
        d = ACC + 4 * j
        dpp('v_add_f32', 4 + (j & 3), d + 1, d, 'row_ror:8', 1 << (j >> 2), 0x3)
        dpp('v_add_f32', 4 + (j & 3), d + 2, d + 3, 'row_ror:8', 1 << (j >> 2), 0xc)
    perms(big, 6, 7, 0)
    perms(big, 6, 7, 1)
    pv_mfma(7, 0, big(0))
    perms(big, 6, 7, 2)
    pv_mfma(7, 1, big(1))
    perms(big, 6, 7, 3)
    for j in range(2, 8):
        pv_mfma(7, j, big(j))
        if j >= 4:
            pv_post(j - 4)
    for j in range(4, 8):
        pv_post(j)
    a('v_bfi_b32 v4, s31, v9, v4')
    a('s_mov_b32 exec_hi, 0')
    if not cfg['abl'] & 256:
        group_store(f'buffer_store_dwordx4 v[4:7], v8, {sr(SRD_WS, 4)}, s30 offen')
    if cfg['wbar']:
        a('s_barrier')
    stamp(7)
    a('s_branch L_exit')

    W56, W112, T0 = 88, 144, 12
    MASK8 = 's[36:37]'

    def trread(dst, nops, vaddr):
        for s in range(nops):
            for rp in range(2):
                a(f'ds_read_b64_tr_b16 {vr(dst + 4 * s + 2 * rp, 2)}, v{vaddr} offset:{s * 4 * BLK + rp * 128}')

    a('L_chain:')
    if cfg['prio']:
        a(f's_setprio {cfg["prio"]}')
    if cfg['abl'] & 8:
        a('s_waitcnt lgkmcnt(0)')
        spin_lds(F_VT, 1, 12)
    if cfg['abl'] & 9:
        a('s_branch L_exit')
    a(f'v_lshlrev_b32 v{V_L16}, 4, v0')
    a(f'v_and_b32 v11, 7, v0\nv_lshrrev_b32 v12, 3, v0\nv_lshlrev_b32 v13, 4, v11')
    a(f'v_mul_u32_u24 v{V_XA}, 896, v11\nv_lshl_add_u32 v{V_XA}, v12, 4, v{V_XA}\nv_lshl_or_b32 v{V_MA}, v12, 8, v13')
    a(f'v_lshl_or_b32 v{V_AR}, v10, 7, v13')
    a(f's_add_u32 s{S_KB1}, s{S_C}, 4\ns_min_u32 s{S_KB1}, s{S_KB1}, 6')
    a(f's_mov_b32 s31, {WS_Q}\ns_cmp_eq_u32 s{S_ROLE}, 1\ns_cselect_b32 s31, {WS_MOD}, s31\ns_lshl_b32 s{S_DST}, s30, 11\ns_add_u32 s{S_DST}, s{S_DST}, s31')
    a(f's_lshl_b32 s31, s{S_C}, 9\ns_add_u32 s{S_DST}, s{S_DST}, s31')
    a(f's_lshl_b32 s30, s{S_C}, 7\ns_lshl_b32 s31, s{S_KB1}, 7\nv_mov_b32 v13, 0')
    a(f's_mov_b32 s{SRD_C + 2}, 7168\ns_mov_b32 s{SRD_C + 3}, 0x20000')
    a('s_waitcnt lgkmcnt(0)')
    srd(SRD_WS, P_WS, WS_SIZE)
    a(f's_cmp_eq_u32 s{S_ROLE}, 1\ns_cselect_b64 {sr(SRD_C, 2)}, {sr(P_C, 2)}, {sr(P_X, 2)}')
    a(f's_load_dword s{S_E}, {sr(P_WS, 2)}, 0')
    a(f's_sub_u32 s32, s{S_ROLE}, 1\ns_cmp_lt_u32 s32, 2\ns_cbranch_scc0 L_c0')
    a(f'buffer_load_dwordx4 v[228:231], v{V_XA}, {sr(SRD_C, 4)}, s30 offen {cfg["xfl"]}')
    a(f'buffer_load_dwordx4 v[232:235], v{V_XA}, {sr(SRD_C, 4)}, s31 offen {cfg["xfl"]}')
    a('L_c0:')
    if cfg['pref']:
        skip = a.lab('L_np')
        a(f's_cmp_eq_u32 s{S_R}, 6\ns_cbranch_scc0 {skip}')
        a('s_getpc_b64 s[24:25]\nL_pc0:')
        a(f's_sub_u32 s24, s24, L_pc0-{NAME}_kernel\ns_subb_u32 s25, s25, 0')
        a(f's_lshl_b32 s30, s{S_C}, 13\nv_lshl_add_u32 v12, v0, 7, s30\nv_min_u32 v12, L_end-{NAME}_kernel, v12')
        a('global_load_dword v14, v12, s[24:25]')
        a(f'{skip}:')
    a(f'v_mul_u32_u24 v{V_TR}, {BLK}, v10\nv_and_b32 v13, 15, v0\nv_lshl_add_u32 v{V_TR}, v13, 3, v{V_TR}')
    a(f's_lshl_b32 s26, s{S_C}, 8\ns_add_u32 s26, s26, {L_W}\nv_add_u32 v{V_TR}, s26, v{V_TR}')
    a('s_mov_b32 s36, 0x00ff00ff\ns_mov_b32 s37, 0x00ff00ff\nv_mov_b32 v85, 0')
    a('s_waitcnt vmcnt(0) lgkmcnt(0)')
    a(f's_add_u32 s{S_E}, s{S_E}, 1\ns_and_b32 s{S_E8}, s{S_E}, 0xff')
    a(f's_getreg_b32 s{S_XO}, hwreg(HW_REG_XCC_ID, 0, 3)\ns_lshl_b32 s30, s{S_E}, 3\ns_or_b32 s{S_XO}, s{S_XO}, s30')
    a(f's_cmp_eq_u32 s{S_C}, 2\ns_cbranch_scc0 L_c1')
    a(f's_lshl_b32 s30, s{S_H}, 8\ns_lshl_b32 s31, s{S_R}, 2\ns_add_u32 s30, s30, s31\ns_add_u32 s30, s30, {WS_CEN}')
    a(f'v_mov_b32 v12, 0\nv_mov_b32 v14, s{S_XO}\ns_mov_b64 exec, 1\nbuffer_store_dword v14, v12, {sr(SRD_WS, 4)}, s30 offen\ns_mov_b64 exec, -1')
    a('L_c1:')
    a(f's_cmp_eq_u32 s{S_ROLE}, 0\ns_cbranch_scc1 L_mid')
    a(f's_cmp_eq_u32 s{S_ROLE}, 3\ns_cbranch_scc1 L_gemm0')
    for k in range(8):
        a(f'v_lshlrev_b32 v{12 + 2 * k}, 16, v{228 + k}\nv_and_b32 v{13 + 2 * k}, 0xffff0000, v{228 + k}')
    a(f's_cmp_eq_u32 s{S_ROLE}, 2\ns_cbranch_scc1 L_actQ')
    a(f's_mov_b32 s26, {LOG2E | 0x80000000:#x}')
    for k in range(16):
        a(f'v_mul_f32 v{28 + k}, s26, v{12 + k}')
    for k in range(16):
        a(f'v_exp_f32 v{28 + k}, v{28 + k}')
    for k in range(16):
        a(f'v_add_f32 v{28 + k}, 1.0, v{28 + k}')
    a('s_mov_b32 s27, 0x7f7fffff')
    for k in range(16):
        a(f'v_min_f32 v{28 + k}, s27, v{28 + k}')
    for k in range(16):
        a(f'v_rcp_f32 v{44 + k}, v{28 + k}')
    for k in range(0, 16, 2):
        a(f'v_pk_mul_f32 {vr(60 + k, 2)}, {vr(12 + k, 2)}, {vr(44 + k, 2)}')
    for k in range(0, 16, 2):
        a(f'v_pk_fma_f32 {vr(12 + k, 2)}, {vr(60 + k, 2)}, {vr(28 + k, 2)}, {vr(12 + k, 2)} neg_lo:[1,0,0] neg_hi:[1,0,0]')
    for k in range(0, 16, 2):
        a(f'v_pk_fma_f32 {vr(12 + k, 2)}, {vr(12 + k, 2)}, {vr(44 + k, 2)}, {vr(60 + k, 2)}')
    a('s_branch L_actW')

    def ln_scalars(mean, var, t):
        rnd(mean, mean)
        rnd(var, var)
        a(f'v_add_f32 v{var}, 0x3727c5ac, v{var}')
        rnd(var, var)
        a(f'v_sqrt_f32 v{var}, v{var}')
        rnd(t, var)
        a(f'v_rcp_f32 v{var}, v{t}')

    def ln_norm(x, n, mean2, rs2, exact=None):
        for k in range(0, n, 2):
            a(f'v_pk_add_f32 {vr(x + k, 2)}, {vr(x + k, 2)}, {vr(mean2, 2)} op_sel_hi:[1,0] neg_lo:[0,1] neg_hi:[0,1]')
        for k in range(n):
            rnd(x + k, x + k)
        for k in range(0, n, 2):
            a(f'v_pk_mul_f32 {vr((exact or x) + k, 2)}, {vr(x + k, 2)}, {vr(rs2, 2)} op_sel_hi:[1,0]')
        if exact:
            for k in range(0, n, 2):
                a(f'v_pk_fma_f32 {vr(x + k, 2)}, {vr(exact + k, 2)}, {vr(rs2, 2)}, {vr(x + k, 2)} op_sel:[0,1,0] op_sel_hi:[1,1,1] neg_lo:[1,0,0] neg_hi:[1,0,0]')
            for k in range(0, n, 2):
                a(f'v_pk_fma_f32 {vr(x + k, 2)}, {vr(x + k, 2)}, {vr(rs2, 2)}, {vr(exact + k, 2)} op_sel_hi:[1,0,1]')
        for k in range(n):
            rnd(x + k, x + k)

    def ln_mod(x, n, c1, sh):
        for k in range(0, n, 2):
            a(f'v_pk_mul_f32 {vr(x + k, 2)}, {vr(x + k, 2)}, {vr(c1 + k, 2)}')
        for k in range(n):
            rnd(x + k, x + k)
        for k in range(0, n, 2):
            a(f'v_pk_add_f32 {vr(x + k, 2)}, {vr(x + k, 2)}, {vr(sh + k, 2)}')

    def mod_params(blk_shift, blk_scale, sh, c1, raw):
        for q, base in enumerate((blk_shift, blk_scale)):
            a(f's_lshl_b32 s{24 + 2 * q}, s{S_C}, 11\ns_add_u32 s{24 + 2 * q}, s{24 + 2 * q}, {WS_MOD + base * 2048}')
            a(f's_lshl_b32 s{25 + 2 * q}, s{S_KB1}, 11\ns_add_u32 s{25 + 2 * q}, s{25 + 2 * q}, {WS_MOD + base * 2048}')
        if cfg['prem']:
            spoll([(24 + q, 1920) for q in range(4)])
        poll(a.lab('m'), [(raw + 8 * q + 4 * h, f'buffer_load_dwordx3 {vr(raw + 8 * q + 4 * h, 3)}, v{V_MA}, {sr(SRD_WS, 4)}, s{24 + q} offen offset:{128 * h} sc1')
                          for q in range(4) for h in range(2)], False)
        for k in range(4):
            for dw in range(2):
                a(f'v_lshlrev_b32 v{sh + 4 * k + 2 * dw}, 16, v{raw + 4 * k + 1 + dw}\nv_and_b32 v{sh + 4 * k + 2 * dw + 1}, 0xffff0000, v{raw + 4 * k + 1 + dw}')
                a(f'v_lshlrev_b32 v{c1 + 4 * k + 2 * dw}, 16, v{raw + 16 + 4 * k + 1 + dw}\nv_and_b32 v{c1 + 4 * k + 2 * dw + 1}, 0xffff0000, v{raw + 16 + 4 * k + 1 + dw}')
        for k in range(16):
            a(f'v_add_f32 v{c1 + k}, 1.0, v{c1 + k}')
        for k in range(16):
            rnd(c1 + k, c1 + k)

    def write_act(x):
        for k in range(8):
            a(f'v_cvt_pk_bf16_f32 v{x + k}, v{x + 2 * k}, v{x + 2 * k + 1}')
        a(f's_lshl_b32 s30, s{S_C}, 10\ns_lshl_b32 s31, s{S_KB1}, 10\nv_add_u32 v10, s30, v{V_L16}\nv_add_u32 v11, s31, v{V_L16}')
        a(f'ds_write_b128 v10, {vr(x, 4)} offset:{L_A}\nds_write_b128 v11, {vr(x + 4, 4)} offset:{L_A}')

    def stats_setup():
        a(f'v_lshrrev_b32 v47, 5, v0\nv_and_b32 v45, 0x70, v{V_AR}\nv_lshl_or_b32 v47, v47, 7, v45\ns_lshl_b32 s30, s{S_C}, 2\nv_add_u32 v47, s30, v47')
        a(f's_cmp_eq_u32 s{S_C}, 3\ns_cselect_b32 s30, 0, 1.0\nv_mov_b32 v44, s30')

    def stats_local():
        for q in range(2):
            x, p = 12 + 8 * q, 28 + 6 * q
            a(f'v_pk_add_f32 {vr(p, 2)}, {vr(x, 2)}, {vr(x + 2, 2)}\nv_pk_mul_f32 {vr(p + 2, 2)}, {vr(x, 2)}, {vr(x, 2)}\nv_pk_add_f32 {vr(p + 4, 2)}, {vr(x + 4, 2)}, {vr(x + 6, 2)}')
        for k in (2, 4, 6):
            for q in range(2):
                x, p = 12 + 8 * q, 28 + 6 * q
                a(f'v_pk_fma_f32 {vr(p + 2, 2)}, {vr(x + k, 2)}, {vr(x + k, 2)}, {vr(p + 2, 2)}')
                if k == 2:
                    a(f'v_pk_add_f32 {vr(p, 2)}, {vr(p, 2)}, {vr(p + 4, 2)}')
        a('v_pk_fma_f32 v[28:29], v[34:35], v[44:45], v[28:29] op_sel_hi:[1,0,1]\nv_pk_fma_f32 v[30:31], v[36:37], v[44:45], v[30:31] op_sel_hi:[1,0,1]')
        a('v_add_f32 v28, v28, v29\nv_add_f32 v30, v30, v31')
        a('v_permlane32_swap_b32 v28, v30\nv_add_f32 v28, v28, v30')
        a('v_mov_b32 v30, v28\nv_permlane16_swap_b32 v28, v30\nv_add_f32 v28, v28, v30')
        dpp('v_add_f32', 28, 28, 28, 'row_ror:8')
        a(f'ds_write_b32 v47, v28 offset:{L_ST}\ns_waitcnt lgkmcnt(0)')

    def stats_final():
        a(f'ds_read_b128 v[28:31], v45 offset:{L_ST}\nds_read_b128 v[32:35], v45 offset:{L_ST + 128}\ns_waitcnt lgkmcnt(0)')
        a('v_pk_add_f32 v[28:29], v[28:29], v[30:31]\nv_pk_add_f32 v[32:33], v[32:33], v[34:35]')
        a('v_add_f32 v28, v28, v29\nv_add_f32 v30, v32, v33\nv_mul_f32 v28, 0x3b124925, v28\nv_mul_f32 v30, 0x3b124925, v30')
        a('v_fma_f32 v30, -v28, v28, v30\nv_max_f32 v30, 0, v30')

    a('L_actQ:')
    stats_setup()
    stats_local()
    flag_add(F_S3, 10)
    spin_lds(F_S3, 4, 10)
    stats_final()
    ln_scalars(28, 30, 31)
    ln_norm(12, 16, 28, 30, exact=44)
    spin_lds(F_MT, 1, 10)
    stamp(1)
    census(76)
    mod_params(0, 7, 28, 44, 144)
    census_done(76)
    stamp(2)
    ln_mod(12, 16, 44, 28)
    a('L_actW:')
    write_act(12)
    a('L_gemm0:')
    a('s_waitcnt lgkmcnt(0)')
    flag_add(F_S1, 10)
    spin_lds(F_S1, 8, 10)
    stamp(3)
    trread(W56, 14, V_TR)
    a(f's_cmp_eq_u32 s{S_ROLE}, 3\ns_cbranch_scc1 L_mid')
    for s in range(14):
        a(f'ds_read_b128 {vr(T0 + 4 * s, 4)}, v{V_AR} offset:{L_A + 512 * s}')
    a('s_waitcnt lgkmcnt(0)')
    for s in range(14):
        a(f'v_mfma_f32_16x16x32_bf16 v[68:71], {vr(W56 + 4 * s, 4)}, {vr(T0 + 4 * s, 4)}, {"v[68:71]" if s else 0}')
    a(f'v_mov_b32 v72, s{S_E}\nv_mov_b32 v75, s{S_E}')
    a('v_cvt_pk_bf16_f32 v73, v68, v69\nv_cvt_pk_bf16_f32 v74, v70, v71')
    a(f's_cmp_eq_u32 s{S_ROLE}, 2\ns_cbranch_scc1 L_pubQ')
    a(f's_mov_b64 exec, {MASK8}')
    a(f'buffer_store_dwordx4 v[72:75], v{V_AR}, {sr(SRD_WS, 4)}, s{S_DST} offen sc1')
    a('s_mov_b64 exec, -1\ns_branch L_pub')
    a('L_pubQ:')
    a(f'v_and_b32 v12, 7, v0\nv_lshrrev_b32 v13, 4, v0\nv_lshlrev_b32 v13, 3, v13\nv_lshl_or_b32 v12, v12, 7, v13\ns_lshl_b32 s30, s{S_C}, 5\ns_add_u32 s30, s30, {L_H}\nv_add_u32 v12, s30, v12')
    a('ds_write2_b32 v12, v73, v74 offset0:0 offset1:1\ns_waitcnt lgkmcnt(0)')
    flag_add(F_S4, 10)
    spin_lds(F_S4, 4, 10)
    a(f's_lshl_b32 s30, s{S_C}, 8\ns_add_u32 s30, s30, {L_H}\nv_lshl_add_u32 v12, v0, 3, s30\nds_read_b64 v[14:15], v12\ns_waitcnt lgkmcnt(0)')
    a('v_mov_b32 v73, v14\nv_mov_b32 v74, v15\ns_mov_b32 exec_hi, 0')
    group_store(f'buffer_store_dwordx4 v[72:75], v{V_L16}, {sr(SRD_WS, 4)}, s{S_DST} offen')
    a('s_mov_b64 exec, -1')
    a('L_pub:')
    stamp(4)

    a('L_mid:')
    a('s_waitcnt lgkmcnt(0)')
    flag_add(F_VT, 12, 16)
    a(f's_cmp_eq_u32 s{S_C}, 0\ns_cbranch_scc0 L_noq')
    spin_lds(F_KT, 1, 12)
    a(f's_lshl_b32 s30, s{S_H}, 14\ns_lshl_b32 s31, s{S_B}, 8\ns_add_u32 s30, s30, s31\ns_add_u32 s30, s30, {WS_Q}\ns_add_u32 s31, s30, 8192')
    a(f'v_lshrrev_b32 v12, 4, v0\nv_and_b32 v14, 0xf0, v{V_L16}\nv_lshl_or_b32 v14, v12, 11, v14\nv_lshlrev_b32 v15, 3, v0')
    if cfg['preq']:
        spoll([(30, 2048 * k) for k in range(8)])
    two = [(16 + 4 * k, f'buffer_load_dwordx3 {vr(16 + 4 * k, 3)}, v14, {sr(SRD_WS, 4)}, s{30 + k} offen sc1') for k in range(2)]
    poll('q', two, False)
    a(f'v_add_u32 v15, {L_Q}, v15')
    a('ds_write2_b32 v15, v17, v18 offset0:0 offset1:1\nds_write2_b32 v15, v21, v22 offset0:128 offset1:129\ns_waitcnt lgkmcnt(0)')
    flag_add(F_Q, 12)
    stamp(5)
    Z_GA, Z_GB, Z_X, Z_TAG, Z_OA = 80, 81, 82, 83, 85
    a(f's_lshr_b32 s26, s2, 6\ns_cmp_eq_u32 s26, 2\ns_cbranch_scc0 L_noq\ns_cmp_lt_u32 s{S_H}, 7\ns_cbranch_scc0 L_noq')
    a(f's_and_b32 s26, s{S_R}, 7')
    a(f's_lshl_b32 s30, s{S_H}, 11\ns_lshl_b32 s31, s26, 8\ns_add_u32 s30, s30, s31\ns_add_u32 s31, s30, {WS_MOD + 35 * 2048}\ns_add_u32 s30, s30, {WS_MOD + 14 * 2048}')
    a('v_and_b32 v14, 15, v0\nv_lshlrev_b32 v14, 4, v14')
    a(f'v_and_b32 v12, 7, v0\nv_mul_u32_u24 v12, 896, v12\nv_and_b32 v13, 8, v0\nv_add_u32 v12, v12, v13\nv_lshrrev_b32 v13, 4, v0\nv_lshl_add_u32 v12, v13, 1, v12')
    a(f's_lshl_b32 s27, s{S_H}, 7\ns_lshl_b32 s32, s26, 4\ns_add_u32 s27, s27, s32\nv_add_u32 v{Z_OA}, s27, v12')
    a(f'buffer_load_ushort v{Z_X}, v{Z_OA}, {sr(SRD_C, 4)}, 0 offen nt')
    poll('z', two, False)
    a('v_cmp_lt_u32 vcc, 31, v0\nv_cndmask_b32 v17, v17, v18, vcc\nv_cndmask_b32 v21, v21, v22, vcc')
    a('v_and_b32 v13, 16, v0\nv_lshrrev_b32 v17, v13, v17\nv_lshrrev_b32 v21, v13, v21')
    a(f'v_lshlrev_b32 v{Z_GA}, 16, v17\nv_lshlrev_b32 v{Z_GB}, 16, v21\nv_lshlrev_b32 v{Z_X}, 16, v{Z_X}')
    a(f'v_cmp_gt_u32 vcc, 16, v0\nv_mov_b32 v13, s{S_E8}\nv_cndmask_b32 v{Z_TAG}, 0, v13, vcc')
    a('L_noq:')
    F_SH, F_C1 = 52, 68
    a(f's_cmp_eq_u32 s{S_ROLE}, 3\ns_cbranch_scc0 L_nofp')
    spin_lds(F_Q, 1, 12)
    mod_params(21, 28, F_SH, F_C1, 144)
    a('L_nofp:')
    a(f's_cmp_eq_u32 s{S_C}, 1\ns_cbranch_scc0 L_nosm')
    a(f's_lshl_b32 s26, s{S_B}, 3\ns_or_b32 s26, s26, s{S_H}\ns_lshl_b32 s26, s26, 9\ns_add_u32 s26, s26, {WS_ML}\ns_lshl_b32 s27, s{S_D}, 7\ns_add_u32 s27, s27, s26')
    a('v_lshrrev_b32 v13, 4, v0\nv_lshlrev_b32 v49, 7, v13')
    a('v_and_b32 v50, 15, v0\nv_lshlrev_b32 v50, 4, v50\nv_lshl_or_b32 v50, v13, 9, v50')
    a('s_mov_b32 s32, 0x3db8aa3b')
    spin_lds(F_KT, 1, 12)
    census(48)
    spin_lds(F_SC, 4, 12)
    a('s_waitcnt vmcnt(0)')
    census_done(48)
    stamp(6)
    for w in range(4):
        a(f'ds_read_b128 {vr(12 + 4 * w, 4)}, v{V_L16} offset:{L_SC + 1024 * w}')
    a('s_waitcnt lgkmcnt(0)')
    for k in range(16):
        rnd(12 + k, 12 + k)
    a('v_max3_f32 v45, v12, v13, v14')
    for k in range(15, 27, 2):
        a(f'v_max3_f32 v45, v45, v{k}, v{k + 1}')
    a('v_max_f32 v45, v45, v27')

    def head_allreduce(op, x, t):
        dpp(op, x, x, x, 'quad_perm:[1,0,3,2]')
        dpp(op, x, x, x, 'quad_perm:[2,3,0,1]')
        dpp(op, x, x, x, 'row_half_mirror')
        rows_allreduce(op, x, t)

    def exps(m):
        for k in range(16):
            a(f'v_sub_f32 v{28 + k}, v{12 + k}, v{m}')
        for k in range(16):
            a(f'v_mul_f32 v{28 + k}, s32, v{28 + k}')
        for k in range(16):
            a(f'v_exp_f32 v{28 + k}, v{28 + k}')
    head_allreduce('v_max_f32', 45, 47)
    exps(45)
    for st in (8, 4, 2):
        for k in range(0, st, 2):
            a(f'v_pk_add_f32 {vr(28 + k, 2)}, {vr(28 + k, 2)}, {vr(28 + st + k, 2)}')
    a('v_add_f32 v46, v28, v29')
    head_allreduce('v_add_f32', 46, 47)
    a(f's_and_b32 s30, s{S_E}, 0xffff\ns_lshr_b32 s31, s{S_E}, 16\nv_or_b32 v28, s30, v45\nv_mov_b32 v29, v46\nv_mov_b32 v30, s31')
    a('v_mov_b32_dpp v31, v46 row_ror:8 row_mask:0xf bank_mask:0xf')
    dpp('v_or_b32', 30, 45, 30, 'row_ror:8')
    a('s_mov_b64 exec, 0xff')
    group_store(f'buffer_store_dwordx4 v[28:31], v{V_L16}, {sr(SRD_WS, 4)}, s27 offen')
    a('s_mov_b64 exec, -1')
    a('s_mov_b32 s30, 0x05040100')
    a('L_mlpoll:')
    a(f'buffer_load_dwordx4 v[32:35], v49, {sr(SRD_WS, 4)}, s26 offen sc1\ns_waitcnt vmcnt(0)')
    a(f'v_perm_b32 v36, v34, v32, s30\nv_cmp_ne_u32 vcc, s{S_E}, v36\ns_cbranch_vccz L_mlgot')
    retry('L_mlpoll')
    a('L_mlgot:')
    stamp(7)
    a(f'v_cndmask_b32 v29, v34, v32, {MASK8}\nv_cndmask_b32 v30, v35, v33, {MASK8}\nv_and_b32 v29, 0xffff0000, v29')
    a('v_mov_b32 v45, v29')
    rows_allreduce('v_max_f32', 45, 47)
    a('v_sub_f32 v29, v29, v45\nv_mul_f32 v29, s32, v29\nv_exp_f32 v29, v29\nv_mul_f32 v46, v29, v30')
    rows_allreduce('v_add_f32', 46, 47)
    a('v_rcp_f32 v46, v46')
    exps(45)
    for k in range(0, 16, 2):
        a(f'v_pk_mul_f32 {vr(28 + k, 2)}, {vr(28 + k, 2)}, v[46:47] op_sel_hi:[1,0]')
    for uh in range(2):
        for dd in range(4):
            u, x = 2 * uh + (dd >> 1), dd & 1
            a(f'v_cvt_pk_bf16_f32 v{12 + 4 * uh + dd}, v{28 + 4 * (2 * x) + u}, v{28 + 4 * (2 * x + 1) + u}')
    a(f'ds_write_b128 v50, v[12:15] offset:{L_P}\nds_write_b128 v50, v[16:19] offset:{L_P + 256}')
    a(f's_add_u32 s30, s{S_FAST}, 1\nv_mov_b32 v20, s30\nv_mov_b32 v21, s{S_E}\nv_mov_b32 v22, 0\ns_waitcnt lgkmcnt(0)\nds_write_b64 v22, v[20:21] offset:{F_P}')
    stamp(8)
    a('L_nosm:')

    if cfg['abl'] & 16:
        a('s_branch L_exit')
    a(f's_cmp_eq_u32 s{S_ROLE}, 3\ns_cbranch_scc1 L_ffn')
    if cfg['abl'] & 64:
        a('s_branch L_exit')
    a(f's_cmp_eq_u32 s{S_B}, 7\ns_cbranch_scc1 L_exit')
    srd(SRD_A, P_WO, 3670016)
    a(f's_movk_i32 s32, 896\ns_movk_i32 s{S_A}, 7168\ns_mov_b32 s{S_Bs}, 229376')
    a(f's_lshl_b32 s30, s{S_H}, 9\ns_lshl_b32 s31, s{S_D}, 6\ns_add_u32 s30, s30, s31\ns_mul_i32 s30, s30, 896\ns_lshl_b32 s31, s{S_B}, 7\ns_add_u32 s{S_BASE}, s30, s31')
    a(f'v_mad_u32_u24 v{V_DM}, v{V_R8}, s32, v{V_NT}')
    a(f's_lshl_b32 s24, s{S_JJ}, 14\ns_lshl_b32 s30, s{S_C}, 7\ns_add_u32 s24, s24, s30\ns_add_u32 s24, s24, {WS_OP}')
    a('s_add_u32 s25, s24, 4096\ns_add_u32 s26, s24, 8192\ns_add_u32 s27, s24, 12288')
    a('v_and_b32 v12, 7, v0\nv_lshrrev_b32 v13, 3, v0\nv_lshlrev_b32 v14, 4, v12\nv_lshl_or_b32 v40, v13, 9, v14')
    a('v_lshlrev_b32 v14, 4, v13\nv_lshl_or_b32 v41, v12, 7, v14')
    a(f's_lshr_b32 s30, s{S_C}, 1\ns_lshl_b32 s30, s30, 10\ns_and_b32 s31, s{S_C}, 1\ns_lshl_b32 s31, s31, 3\ns_add_u32 s30, s30, s31\nv_add_u32 v41, s30, v41')
    a(f'v_and_b32 v42, 0xff, v{V_AR}\nv_lshrrev_b32 v13, 5, v0\nv_lshl_or_b32 v42, v13, 13, v42')
    a(f's_lshl_b32 s{S_DST}, s{S_B}, 16\ns_lshl_b32 s30, s{S_JJ}, 8\ns_add_u32 s{S_DST}, s{S_DST}, s30\ns_lshl_b32 s30, s{S_C}, 14\ns_add_u32 s{S_DST}, s{S_DST}, s30')
    a(f's_add_u32 s{S_DST}, s{S_DST}, {WS_PA}\nv_mov_b32 v43, s{S_E}\ns_movk_i32 s38, 0xff')
    spin_lds(F_VT, 68 if cfg['vall'] else 65, 12)
    dma(SRD_A, 2, L_W, 63)
    code_prefetch('L_ffn')
    a('s_waitcnt vmcnt(0)')
    if cfg['wbar']:
        a('s_barrier')
    else:
        flag_add(F_S2, 12)
        spin_lds(F_S2, 4, 12)
        trread(W56, 4, V_TR)
    stamp(9)
    if cfg['abl'] & 32:
        a('s_branch L_exit')

    poll('w', [(12 + 4 * s, f'buffer_load_dwordx4 {vr(12 + 4 * s, 4)}, v40, {sr(SRD_WS, 4)}, s{24 + s} offen sc1') for s in range(4)], True,
         (lambda: trread(W56, 4, V_TR)) if cfg['wbar'] else None)
    a('v_pk_add_f32 v[12:13], v[12:13], v[16:17]\nv_pk_add_f32 v[20:21], v[20:21], v[24:25]')
    a('v_pk_add_f32 v[14:15], v[14:15], v[18:19]\nv_pk_add_f32 v[22:23], v[22:23], v[26:27]')
    a('v_pk_add_f32 v[12:13], v[12:13], v[20:21]\nv_pk_add_f32 v[14:15], v[14:15], v[22:23]')
    a('v_cvt_pk_bf16_f32 v12, v12, v13\nv_cvt_pk_bf16_f32 v13, v14, v15')
    a(f'ds_write_b64 v41, v[12:13] offset:{L_A}\ns_waitcnt lgkmcnt(0)\ns_barrier')
    for s in range(4):
        a(f'ds_read_b128 {vr(12 + 4 * s, 4)}, v{V_AR} offset:{L_A + 512 * s}')
    for s in range(4):
        a(f's_waitcnt lgkmcnt({3 - s})')
        a(f'v_mfma_f32_16x16x32_bf16 v[28:31], {vr(W56 + 4 * s, 4)}, {vr(12 + 4 * s, 4)}, {"v[28:31]" if s else 0}')
    a(f's_mov_b64 exec, {MASK8}')
    a('v_bfi_b32 v28, s38, v43, v28')
    a(f'buffer_store_dwordx4 v[28:31], v42, {sr(SRD_WS, 4)}, s{S_DST} offen sc1')
    a('s_mov_b64 exec, -1')
    stamp(10)
    if cfg['abl'] & 128:
        a('s_branch L_exit')
    a(f's_cmp_eq_u32 s{S_C}, 0\ns_cbranch_scc0 L_exit')
    a(f's_lshr_b32 s26, s2, 6\ns_cmp_eq_u32 s26, 2\ns_cbranch_scc0 L_exit\ns_cmp_lt_u32 s{S_H}, 7\ns_cbranch_scc0 L_exit')
    a(f's_and_b32 s26, s{S_R}, 7\ns_lshl_b32 s30, s{S_H}, 3\ns_or_b32 s26, s26, s30\ns_lshl_b32 s30, s26, 13')
    a(f's_add_u32 s24, s30, {WS_PA}\ns_add_u32 s25, s24, 4096')
    a(f's_lshl_b32 s32, s26, 8\ns_add_u32 s32, s32, {WS_X1}')
    srd(SRD_C, P_OUT, 7168)
    a(f'v_mov_b32 v44, s{S_E}\nv_mov_b32 v47, 0')

    def gather(name, n):
        poll(name, [(12 + 4 * u, f'buffer_load_dwordx4 {vr(12 + 4 * u, 4)}, v{V_L16}, {sr(SRD_WS, 4)}, s{24 + (u >> 2)} offen offset:{1024 * (u & 3)} sc1')
                    for u in range(n)], True)
        for st in (4, 2, 1):
            for u in range(st):
                if u + st < n:
                    for h in (0, 2):
                        a(f'v_pk_add_f32 {vr(12 + 4 * u + h, 2)}, {vr(12 + 4 * u + h, 2)}, {vr(12 + 4 * (u + st) + h, 2)}')
        a('v_permlane32_swap_b32 v12, v14\nv_permlane32_swap_b32 v13, v15\nv_pk_add_f32 v[12:13], v[12:13], v[14:15]')
        a('v_permlane16_swap_b32 v12, v13\nv_add_f32 v12, v12, v13')

    gather('a', 8)
    rnd(12, 12)
    a(f'v_mul_f32 v12, v{Z_GA}, v12')
    rnd(12, 12)
    a(f'v_add_f32 v12, v{Z_X}, v12')
    rnd(Z_X, 12)
    a(f'v_or_b32 v48, v{Z_TAG}, v{Z_X}\nv_mov_b32 v49, v{Z_X}\nv_permlane16_swap_b32 v48, v49')
    a('v_mov_b32 v50, v48\nv_mov_b32 v51, v49\nv_permlane32_swap_b32 v48, v50\nv_permlane32_swap_b32 v49, v51')
    a(f's_mov_b64 exec, 0xffff\nbuffer_store_dwordx4 v[48:51], v{V_L16}, {sr(SRD_WS, 4)}, s32 offen sc1\ns_mov_b64 exec, -1')
    stamp(1)
    a(f's_add_u32 s24, s30, {WS_PF}\ns_add_u32 s25, s24, 4096')
    gather('f', 7)
    rnd(12, 12)
    a(f'v_mul_f32 v12, v{Z_GB}, v12')
    rnd(12, 12)
    a(f'v_add_f32 v12, v{Z_X}, v12\nv_cvt_pk_bf16_f32 v12, v12, v12')
    a(f'buffer_store_short v12, v{Z_OA}, {sr(SRD_C, 4)}, 0 offen')
    stamp(2)
    a('s_cmp_eq_u32 s26, 0\ns_cbranch_scc0 L_exit')
    a(f's_mov_b64 exec, 1\nbuffer_store_dword v44, v47, {sr(SRD_WS, 4)}, 0 offen sc1\ns_mov_b64 exec, -1')
    a('s_branch L_exit')

    a('L_ffn:')
    if cfg['abl'] & 128:
        a('s_branch L_exit')
    srd(SRD_A, P_W1, 1605632)
    srd(SRD_B, P_W3, 1605632)
    a(f's_movk_i32 s32, 3584\ns_movk_i32 s{S_A}, 28672\ns_mov_b32 s{S_Bs}, 229376\ns_lshl_b32 s{S_BASE}, s{S_JJ}, 7')
    a(f'v_mad_u32_u24 v{V_DM}, v{V_R8}, s32, v{V_NT}')
    a(f'v_add_u32 v46, {56 * BLK}, v{V_TR}')
    a(f's_lshl_b32 s24, s{S_C}, 11\ns_add_u32 s24, s24, {WS_X1}\ns_lshl_b32 s25, s{S_KB1}, 11\ns_add_u32 s25, s25, {WS_X1}')
    a(f'v_and_b32 v48, 0xff, v{V_AR}\nv_lshrrev_b32 v13, 5, v0\nv_lshl_or_b32 v48, v13, 13, v48')
    stats_setup()
    a('v_and_b32 v12, 7, v0\nv_lshrrev_b32 v13, 4, v0')
    a(f's_lshl_b32 s{S_DST}, s{S_JJ}, 8\ns_lshl_b32 s30, s{S_C}, 14\ns_add_u32 s{S_DST}, s{S_DST}, s30\ns_add_u32 s{S_DST}, s{S_DST}, {WS_PF}')
    a('v_lshrrev_b32 v14, 1, v13\nv_lshlrev_b32 v14, 7, v14\nv_lshl_or_b32 v14, v12, 4, v14\nv_and_b32 v13, 1, v13\nv_lshl_or_b32 v14, v13, 3, v14')
    a(f's_lshl_b32 s30, s{S_C}, 8\nv_add_u32 v49, s30, v14')
    a(f'v_mov_b32 v50, s{S_E}\ns_movk_i32 s38, 0xff\ns_mov_b32 s39, {LOG2E | 0x80000000:#x}')
    if cfg['w1early']:
        spin_lds(F_VT, 64, 12)
        dma(SRD_A, 7, L_W, cfg['w1early'])
        spin_lds(F_VT, 68 if cfg['vall'] else 65, 12)
        dma(SRD_B, 7, L_W + 56 * BLK, cfg['dF'], bar=cfg['fpre'])
    else:
        spin_lds(F_VT, 68 if cfg['vall'] else 65, 12)
        dma(SRD_A, 7, L_W, cfg['dF'], bar=cfg['fpre'])
        dma(SRD_B, 7, L_W + 56 * BLK, cfg['dF'])
    code_prefetch('L_exit')
    a('s_waitcnt vmcnt(0)')
    flag_add(F_S2, 12)
    spin_lds(F_S2, 4, 12)
    trread(W112, 14, V_TR)
    trread(W112 + 56, 14, 46)
    a('s_waitcnt lgkmcnt(0)')
    stamp(9)
    if cfg['abl'] & 32:
        a('s_branch L_exit')

    poll('x', [(12 + 8 * q + 4 * h, f'buffer_load_dwordx4 {vr(12 + 8 * q + 4 * h, 4)}, v{V_MA}, {sr(SRD_WS, 4)}, s{24 + q} offen offset:{128 * h} sc1')
               for q in range(2) for h in range(2)], True)
    stamp(10)
    stats_local()
    a('s_barrier')
    stats_final()
    ln_scalars(28, 30, 31)
    ln_norm(12, 16, 28, 30)
    ln_mod(12, 16, F_C1, F_SH)
    write_act(12)
    a('s_waitcnt lgkmcnt(0)\ns_barrier')
    AB = [12 + 4 * s for s in range(8)] + [52 + 4 * s for s in range(6)]
    for s in range(14):
        a(f'ds_read_b128 {vr(AB[s], 4)}, v{V_AR} offset:{L_A + 512 * s}')
    for s in range(14):
        a(f's_waitcnt lgkmcnt({13 - s})')
        a(f'v_mfma_f32_16x16x32_bf16 v[76:79], {vr(W112 + 4 * s, 4)}, {vr(AB[s], 4)}, {"v[76:79]" if s else 0}')
        a(f'v_mfma_f32_16x16x32_bf16 v[80:83], {vr(W112 + 56 + 4 * s, 4)}, {vr(AB[s], 4)}, {"v[80:83]" if s else 0}')
    for k in range(4):
        rnd(76 + k, 76 + k)
    for k in range(4):
        a(f'v_mul_f32 v{12 + k}, s39, v{76 + k}')
    for k in range(4):
        a(f'v_exp_f32 v{12 + k}, v{12 + k}')
    for k in range(4):
        rnd(80 + k, 80 + k)
    for k in range(4):
        a(f'v_add_f32 v{12 + k}, 1.0, v{12 + k}')
    for k in range(4):
        a(f'v_rcp_f32 v{12 + k}, v{12 + k}')
    a('v_pk_mul_f32 v[12:13], v[12:13], v[76:77]\nv_pk_mul_f32 v[14:15], v[14:15], v[78:79]')
    for k in range(4):
        rnd(12 + k, 12 + k)
    a('v_pk_mul_f32 v[12:13], v[12:13], v[80:81]\nv_pk_mul_f32 v[14:15], v[14:15], v[82:83]')
    a('v_cvt_pk_bf16_f32 v12, v12, v13\nv_cvt_pk_bf16_f32 v13, v14, v15')
    a(f'ds_write_b64 v49, v[12:13] offset:{L_H}\ns_waitcnt lgkmcnt(0)\ns_barrier')
    a(f'ds_read_b128 v[12:15], v{V_AR} offset:{L_H}\nds_read_b128 v[16:19], v{V_AR} offset:{L_H + 512}\ns_waitcnt lgkmcnt(0)')
    for i in range(7):
        a(f'v_mfma_f32_16x16x32_bf16 {vr(52 + 4 * i, 4)}, {vr(W56 + 8 * i, 4)}, v[12:15], 0')
        a(f'v_mfma_f32_16x16x32_bf16 {vr(52 + 4 * i, 4)}, {vr(W56 + 8 * i + 4, 4)}, v[16:19], {vr(52 + 4 * i, 4)}')
    a(f's_mov_b64 exec, {MASK8}')
    for i in range(7):
        a(f'v_bfi_b32 v{52 + 4 * i}, s38, v50, v{52 + 4 * i}')
        a(f'buffer_store_dwordx4 {vr(52 + 4 * i, 4)}, v48, {sr(SRD_WS, 4)}, s{S_DST} offen sc1')
        if i < 6:
            a(f's_add_u32 s{S_DST}, s{S_DST}, 0x10000')
    a('s_mov_b64 exec, -1')
    stamp(11)

    a('L_exit:')
    if cfg['probe']:
        cls, k = cfg['probe'][0], int(cfg['probe'][1:])
        a(f's_waitcnt lgkmcnt(0)\ns_cmp_ge_u32 s{S_W}, 4\ns_cbranch_scc{1 if cls == "s" else 0} L_end')
        if cls == 's':
            a('s_barrier\ns_barrier\ns_barrier')
        a(f's_cmp_eq_u32 s{S_ST0 + 2 * k}, 0\ns_cbranch_scc1 L_end\ns_mov_b32 s{S_CNT}, 0')
        a(f'L_pw:\ns_memrealtime s[30:31]\ns_waitcnt lgkmcnt(0)\ns_sub_u32 s30, s30, s{S_ST0 + 2 * k}\ns_cmp_ge_u32 s30, 6000\ns_cbranch_scc1 L_end')
        a(f's_add_u32 s{S_CNT}, s{S_CNT}, 1\ns_cmp_lt_u32 s{S_CNT}, 100000\ns_cbranch_scc1 L_pw\ns_branch L_end')
    if cfg['stamps']:
        a('s_waitcnt lgkmcnt(0)\ns_mov_b64 exec, 1')
        a(f's_lshl_b32 s30, s2, 3\ns_add_u32 s30, s30, s{S_W}\ns_lshl_b32 s30, s30, 6\ns_add_u32 s30, s30, {WS_STAMP}\nv_mov_b32 v0, s30')
        for q in range(3):
            for k in range(4):
                a(f'v_mov_b32 v{4 + k + 4 * q}, s{S_ST0 + 2 * (4 * q + k)}')
            a(f'global_store_dwordx4 v0, {vr(4 + 4 * q, 4)}, {sr(P_WS, 2)} offset:{16 * q}')
        a(f'v_mov_b32 v16, s{S_CNT}\nglobal_store_dword v0, v16, {sr(P_WS, 2)} offset:48')
    a('L_end:\ns_endpgm')
    a('.section .rodata,"a"\n.p2align 6')
    a(f'.amdhsa_kernel {NAME}_kernel')
    a('.amdhsa_next_free_vgpr 256\n.amdhsa_next_free_sgpr 102\n.amdhsa_accum_offset 256\n.amdhsa_group_segment_fixed_size 0')
    a('.amdhsa_kernarg_size 112\n.amdhsa_user_sgpr_count 2\n.amdhsa_user_sgpr_kernarg_segment_ptr 1\n.amdhsa_system_sgpr_workgroup_id_x 1')
    a('.amdhsa_float_denorm_mode_32 3\n.end_amdhsa_kernel')
    if cfg['abl'] & 4:
        k = a.lines.index('L_chain:')
        a.lines = [l for i, l in enumerate(a.lines) if i > k or not l.startswith(('v_mfma', 'v_perm', 'v_add_f32_dpp', 'ds_read_b128'))]
    return head + a.text()


if __name__ == '__main__':
    kw = {}
    for x in sys.argv[2:]:
        k, v = x.split('=')
        kw[k] = int(v) if v.lstrip('-').isdigit() else v
    open(sys.argv[1], 'w').write(gen(**kw))
```

```python
import sys
from asmlib import Asm, vr, sr

NAME = 'adaLN_cond__sliding_block_cached__glu_gated_swiglu__decode'

WS_EPOCH = 0x0
WS_MOD = 0x1000
WS_Q = 0x20000
WS_ML = 0x40000
WS_CEN = 0x50000
WS_PL = 0x280000
WS_X1 = 0x60000
WS_OP = 0x80000
WS_PA = 0x100000
WS_PF = 0x180000
WS_STAMP = 0x200000
WS_SIZE = 0x400000

F_Q, F_SC, F_P, F_KT, F_VT, F_S1, F_S2, F_S3, F_S4, F_MT = 0, 4, 8, 16, 20, 24, 28, 32, 36, 40
L_ST, L_ST2 = 0x100, 0x200
L_Q, L_P, L_SC, L_A, L_H, L_W = 0x400, 0x800, 0x1000, 0x2000, 0x3C00, 0x4000
BLK = 1152
BLS = 1088
L_X = L_W + 56 * BLK
L_PAR = L_X + 64 * 1024
LDS_BYTES = L_X + 80 * 1024

S_W, S_H, S_B, S_D, S_R = 3, 4, 5, 6, 7
SRD_A, SRD_B, SRD_WS, SRD_C = 8, 12, 16, 20
S_E, S_C, S_CNT, S_JJ, S_E8 = 28, 29, 33, 34, 35
S_XO, S_FAST, P_DBG = 71, 75, 64
P_X, P_K, P_V, P_WQ, P_WO, P_W1, P_W3, P_W2, P_C, P_WM, P_OUT, P_WS = 40, 42, 44, 46, 48, 52, 54, 56, 58, 60, 62, 66
S_ST0 = 76
SP = 8
SPIN_CAP = 400000
LOG2E = 0x3FB8AA3B

DEF = dict(seg=((0, 7, 2, 14), (52, 7, 2, 12), (64, 7, 1, 12)), ktrig=60, vtrig=63, vsync=42, stamps=0, pref=1, probe='',
           prio=2, dflag=6, NL=16, mtrig=20, abl=0, fpre=4, fast=1, pref2=1, dbar=8, repz=1, pal=1, skip=1)
S_A, S_Bs, S_BASE, S_KB1, S_DST, S_ROLE = 68, 69, 70, 72, 73, 74


def gen(**kw):
    cfg = dict(DEF)
    cfg.update(kw)
    a = Asm()
    seg = cfg['seg']
    if isinstance(seg, str):
        seg = eval(seg)
    DV = seg[-1][1]
    KM = ([2, 1], [8, 16], [4, 32, 64, 128])
    lin = lambda cols, x: sum(c for k, c in enumerate(cols) if x >> k & 1) << 12
    WFL = 'nt'

    def stamp(k):
        if cfg['stamps']:
            a(f's_memrealtime {sr(S_ST0 + 2 * k, 2)}')

    def srd(d, p, size):
        a(f's_mov_b32 s{d}, s{p}\ns_mov_b32 s{d + 1}, s{p + 1}\ns_mov_b32 s{d + 2}, {size}\ns_mov_b32 s{d + 3}, 0x20000')

    def retry(lab):
        a(f's_add_u32 s{S_CNT}, s{S_CNT}, 1\ns_cmp_lt_u32 s{S_CNT}, {SPIN_CAP}\ns_cbranch_scc1 {lab}\ns_branch L_exit')

    def spin_lds(flag, n, t, two=False):
        top, done = a.lab('L_spin'), a.lab('L_got')
        a(f'{top}:\nv_mov_b32 v{t}, 0')
        if two:
            a(f'ds_read_b64 {vr(t, 2)}, v{t} offset:{flag}')
        else:
            a(f'ds_read_b32 v{t}, v{t} offset:{flag}')
        a(f's_waitcnt lgkmcnt(0)\nv_readfirstlane_b32 s31, v{t}\ns_cmp_ge_u32 s31, {n}\ns_cbranch_scc1 {done}')
        retry(top)
        a(f'{done}:')

    PEND = (8, 10, 12, 14, 42, 44, 46, 50)

    def poll(name, loads, tag8, between=None):
        top, chk, done = f'L_{name}poll', f'L_{name}chk', f'L_{name}got'
        for r, ins in loads:
            a(ins)
        if between:
            between()
        a(f's_branch {chk}\n{top}:')
        for k, (r, ins) in enumerate(loads):
            p = PEND[k]
            nx = a.lab('L_nx')
            a(f's_quadmask_b64 {sr(p, 2)}, {sr(p, 2)}')
            if cfg['skip'] and len(loads) > 2:
                a(f's_cbranch_scc0 {nx}')
            a(f's_bitreplicate_b64_b32 {sr(p, 2)}, s{p}\ns_wqm_b32 s{p}, s{p}\ns_bitreplicate_b64_b32 exec, s{p}\n{ins}\n{nx}:')
        a(f's_mov_b64 exec, -1\ns_add_u32 s{S_CNT}, s{S_CNT}, 1\ns_cmp_lt_u32 s{S_CNT}, {SPIN_CAP}\ns_cbranch_scc0 L_exit')
        a(f'{chk}:\ns_waitcnt vmcnt(0)')
        for k, (r, ins) in enumerate(loads):
            if tag8:
                a(f'v_cmp_ne_u32_sdwa {sr(PEND[k], 2)}, v{r}, s{S_E8} src0_sel:BYTE_0 src1_sel:DWORD')
            else:
                a(f'v_cmp_ne_u32_e64 {sr(PEND[k], 2)}, s{S_E}, v{r}')
        a(f's_or_b64 vcc, {sr(PEND[0], 2)}, {sr(PEND[1], 2)}')
        for k in range(2, len(loads)):
            a(f's_or_b64 vcc, vcc, {sr(PEND[k], 2)}')
        a(f's_cbranch_scc1 {top}')
        if tag8:
            for r, ins in loads:
                a(f'v_xor_b32 v{r}, s{S_E8}, v{r}')

    def census(t):
        a(f's_lshl_b32 s30, s{S_H}, 8\ns_add_u32 s30, s30, {WS_CEN}\nv_and_b32 v{t}, 31, v0\nv_lshlrev_b32 v{t}, 2, v{t}')
        a(f'buffer_load_dword v{t}, v{t}, {sr(SRD_WS, 4)}, s30 offen sc1')

    def census_done(t):
        a(f'v_cmp_eq_u32 vcc, s{S_XO}, v{t}\ns_bcnt1_i32_b32 s{S_FAST}, vcc_lo')

    def group_store(ins, cond=None):
        slow, done = a.lab('L_st'), a.lab('L_std')
        a(cond or f's_cmp_eq_u32 s{S_FAST}, {32 if cfg["fast"] else 99}')
        a(f's_cbranch_scc0 {slow}\n{ins}\ns_branch {done}\n{slow}:\n{ins} sc1\n{done}:')

    def code_prefetch(end):
        if not cfg['pref2']:
            return
        here, skip = a.lab('L_pc'), a.lab('L_npc')
        a(f's_cmp_eq_u32 s{S_C}, 3\ns_cbranch_scc0 {skip}')
        a(f's_getpc_b64 s[30:31]\n{here}:\nv_lshlrev_b32 v12, 7, v0\nv_min_u32 v12, {end}-{here}, v12\nglobal_load_dword v13, v12, s[30:31]')
        a(f'{skip}:')

    def flag_add(flag, t, inc=1):
        a(f'v_mov_b32 v{t}, 0\nv_mov_b32 v{t + 1}, {inc}\ns_mov_b64 exec, 1\nds_add_u32 v{t}, v{t + 1} offset:{flag}\ns_mov_b64 exec, -1')

    def rnd(d, s):
        a(f'v_cvt_pk_bf16_f32 v{d}, 0, v{s}')

    def rows_allreduce(op, x, t):
        a(f'v_mov_b32 v{t}, v{x}\nv_permlane16_swap_b32 v{x}, v{t}\n{op} v{x}, v{x}, v{t}')
        a(f'v_mov_b32 v{t}, v{x}\nv_permlane32_swap_b32 v{x}, v{t}\n{op} v{x}, v{x}, v{t}')

    def dpp(op, d, s0, s1, ctl, rm=0xf, bm=0xf):
        a(f'{op}_dpp v{d}, v{s0}, v{s1} {ctl} row_mask:{rm:#x} bank_mask:{bm:#x}')

    hdr = open('cdna_kernels/' + NAME + '.s.ref').read().split('; Override launch')[0]
    head = hdr + f'; @launch grid=(256,1,1) block=(512,1,1) lds={LDS_BYTES}\n'
    a('.amdgcn_target "amdgcn-amd-amdhsa--gfx950"\n.text')
    a(f'.globl {NAME}_kernel\n.p2align 8\n.type {NAME}_kernel,@function\n{NAME}_kernel:')
    a('s_load_dwordx16 s[40:55], s[0:1], 0\ns_load_dwordx8 s[56:63], s[0:1], 64\ns_load_dwordx4 s[64:67], s[0:1], 96')
    stamp(0)
    a(f'v_lshrrev_b32 v1, 6, v0\ns_lshr_b32 s{S_B}, s2, 5\ns_cmp_ge_u32 s{S_B}, 8\ns_cbranch_scc1 L_end')
    a(f'v_readfirstlane_b32 s{S_W}, v1\nv_and_b32 v0, 63, v0')
    a(f's_and_b32 s{S_H}, s2, 7\ns_lshr_b32 s{S_R}, s2, 3\ns_and_b32 s{S_D}, s{S_R}, 3')
    a(f's_lshl_b32 s30, s{S_B}, 1\ns_lshr_b32 s{S_ROLE}, 0xc0a0, s30\ns_and_b32 s{S_ROLE}, s{S_ROLE}, 3')
    a(f's_and_b32 s30, s{S_B}, s{S_H}\ns_cmp_eq_u32 s30, 7\ns_cselect_b32 s{S_ROLE}, 0, s{S_ROLE}')
    a(f's_cmp_lt_u32 s2, 42\ns_cselect_b32 s{S_ROLE}, 1, s{S_ROLE}')
    a(f's_cmp_ge_u32 s{S_W}, 4\ns_cbranch_scc1 L_chain')

    def common():
        if cfg['stamps']:
            for k in range(1, 12):
                if k != 9:
                    a(f's_mov_b64 {sr(S_ST0 + 2 * k, 2)}, 0')
        a(f's_mov_b32 s{S_CNT}, 0')

    def decode(vrow, vnt):
        a(f's_lshl2_add_u32 s{S_JJ}, s{S_H}, s{S_D}\ns_and_b32 s{S_C}, s{S_W}, 3')
        a(f's_and_b32 s31, s{S_R}, 7\ns_lshl3_add_u32 s30, s{S_H}, s31\ns_cmp_lt_u32 s2, 42\ns_cselect_b32 s30, s2, s30')
        a(f'v_bfe_u32 v{vrow}, v0, 1, 3')
        a(f'v_lshrrev_b32 v10, 4, v0\nv_and_b32 v11, 1, v0\nv_lshlrev_b32 v11, 4, v11\nv_lshl_or_b32 v{vnt}, v10, 5, v11')

    V_R8, V_NT, V_TR, V_AR, V_L16, V_XA, V_MA, V_DM = 1, 2, 3, 4, 5, 6, 7, 9

    def dma(srdn, nt, lds0, bar=-1, BLK=BLK):
        a(f's_lshl_b32 s30, s{S_C}, 1\ns_mul_i32 s31, s30, {BLK}\ns_add_u32 m0, s31, {lds0}')
        a(f's_mul_i32 s30, s30, s{S_A}\ns_add_u32 s30, s30, s{S_BASE}\ns_add_u32 s31, s30, s{S_A}')
        for t in range(nt):
            for u in range(2):
                k = 2 * t + u
                if k == bar:
                    a('s_barrier')
                a(f'buffer_load_dwordx4 v{V_DM}, {sr(srdn, 4)}, s{30 + u} offen {WFL} lds')
                if k < 2 * nt - 1:
                    a(f's_addk_i32 m0, {BLK if u == 0 else 7 * BLK}\ns_add_u32 s{30 + u}, s{30 + u}, s{S_Bs}')

    QA, QD, SC = 8, 24, 4
    RING = 32
    slot = lambda k: RING + 4 * k
    NL = cfg['NL']
    NSYNC = 56 + NL
    ACC = slot(0)
    parked = lambda n: 4 <= n < 4 + NL
    kslot = lambda n: slot((n - 4) % 8) if parked(n) else slot(n if n < 4 else n - NL)
    vidx = lambda i: 8 + (56 - NL + i) % 48
    vslot = lambda i: slot(vidx(i))
    S_LX = 27
    assert 8 <= NL <= 16
    a('v_and_b32 v4, 7, v0\nv_and_b32 v5, 48, v0\nv_lshl_or_b32 v1, v4, 9, v5\nv_and_b32 v5, 8, v0\nv_lshl_or_b32 v1, v5, 3, v1')
    a(f's_lshl3_add_u32 s32, s{S_B}, s{S_H}\ns_lshl2_add_u32 s32, s32, 3\ns_lshl_b32 s32, s32, 20')
    a(f's_lshl_b32 s37, s{S_D}, 15\ns_brev_b32 s31, s{S_W}\ns_lshr_b32 s31, s31, 18\ns_or_b32 s36, s37, s31')
    a(f's_mov_b32 s{SRD_A + 2}, 0x100000\ns_mov_b32 s{SRD_A + 3}, 0x20000')
    a(f's_cmp_lg_u32 s{S_ROLE}, 0\ns_cselect_b64 vcc, -1, 0')
    a('s_cbranch_scc1 L_role\nL_k0:')
    a('s_waitcnt lgkmcnt(0)')
    a(f's_add_u32 s{SRD_A}, s{P_K}, s32\ns_addc_u32 s{SRD_A + 1}, s{P_K + 1}, 0')
    stamp(9)

    def stream_setup():
        a('s_branch L_k4\nL_role:')
        decode(6, 7)
        a(f's_movk_i32 s26, 896\ns_mov_b32 s{SRD_C + 2}, 1605632\ns_mul_i32 s31, s{S_JJ}, 448\ns_waitcnt lgkmcnt(0)')
        a(f's_cmp_eq_u32 s{S_ROLE}, 1\ns_cmovk_i32 s26, 5376\ns_cmov_b32 s{SRD_C + 2}, 2408448\ns_cselect_b64 {sr(SRD_C, 2)}, {sr(P_WM, 2)}, {sr(P_W2, 2)}')
        a(f's_cmp_eq_u32 s{S_ROLE}, 2\ns_cmovk_i32 s26, 8192\ns_cmov_b32 s{SRD_C + 2}, 3670016\ns_cselect_b64 {sr(SRD_C, 2)}, {sr(P_WQ, 2)}, {sr(SRD_C, 2)}')
        a(f's_lshl_b32 s{S_A}, s26, 3\ns_lshl_b32 s{S_Bs}, s26, 6')
        a(f's_cmp_eq_u32 s{S_ROLE}, 3\ns_cmovk_i32 s{S_Bs}, 128\ns_cselect_b32 s30, s31, s30\ns_lshl_b32 s{S_BASE}, s30, 7')
        a(f's_mov_b32 s{SRD_C + 3}, 0x20000')
        a(f'v_mad_u32_u24 v{V_DM}, v6, s26, v7')
        if cfg['abl'] & 2:
            a('s_barrier')
        else:
            dma(SRD_C, 7, L_W, bar=cfg['dbar'])
        a('s_branch L_k0\nL_k4:')
        common()
        a(f's_lshl_b32 s{S_LX}, s{S_W}, 14\ns_add_u32 s{S_LX}, s{S_LX}, {L_X}')

    vdone = 0
    g0 = NL // 4
    regg = [0] + list(range(g0 + 1, 16))
    korder = [regg[2], regg[0], regg[1]]
    rest = regg[3:]
    for p in range(1, g0 + 1, 2):
        korder += [('rd', p)] + rest[:1] + [g for g in (p, p + 1) if g <= g0]
        rest = rest[1:]
    korder += rest
    kdone = set()
    qn = [0]

    def qk_post(gi, d):
        t, u = gi >> 2, gi & 3
        dpp('v_add_f32', SC + u, d + 1, d, 'row_ror:8', 1 << t, 0x3)
        dpp('v_add_f32', SC + u, d + 2, d + 3, 'row_ror:8', 1 << t, 0xc)

    def qk_some(landed, maxn):
        prev = None
        while korder and maxn:
            g = korder[0]
            if isinstance(g, tuple):
                for n in range(4 * g[1], min(4 * g[1] + 8, NL + 4)):
                    a(f'ds_read_b128 {vr(kslot(n), 4)}, v3 offset:{1024 * (n - 4)}')
                korder.pop(0)
                continue
            if 4 * g + 3 > landed:
                break
            korder.pop(0)
            maxn -= 1
            if parked(4 * g) and g % 2 == 1:
                a('s_waitcnt lgkmcnt(0)')
            d = QD + 4 * (qn[0] & 1)
            qn[0] += 1
            for j in range(4):
                a(f'v_mfma_f32_16x16x32_bf16 {vr(d, 4)}, {vr(QA + 4 * j, 4)}, {vr(kslot(4 * g + j), 4)}, {vr(d, 4) if j else 0}')
            if prev:
                qk_post(*prev)
            prev = (g, d)
            kdone.add(g)
        if prev:
            qk_post(*prev)
            if len(kdone) == 16:
                a(f's_lshl_b32 s31, s{S_W}, 10\nv_lshl_add_u32 v3, v0, 4, s31\nds_write_b128 v3, {vr(SC, 4)} offset:{L_SC}\ns_waitcnt lgkmcnt(0)')
                flag_add(F_SC, 4)
                stamp(3)

    def perms(dst_of, e0, G, r):
        lo, hi = vslot(8 * G + e0) + r, vslot(8 * G + e0 + 1) + r
        a(f'v_perm_b32 v{dst_of(2 * r) + e0 // 2}, v{hi}, v{lo}, s38')
        a(f'v_perm_b32 v{dst_of(2 * r + 1) + e0 // 2}, v{hi}, v{lo}, s39')

    def pv_mfma(G, j, b):
        a(f'v_mfma_f32_16x16x32_bf16 {vr(ACC + 4 * j, 4)}, {vr(QD + 4 * (G & 1), 4)}, {vr(b, 4)}, {vr(ACC + 4 * j, 4) if G else 0}')

    def pv_group(G):
        a('s_waitcnt lgkmcnt(0)')
        a(f'ds_read_b128 {vr(QD + 4 * ((G + 1) & 1), 4)}, v3 offset:{L_P + 256 * (G + 1)}')
        tmp = lambda j: QA + 4 * (j & 3)
        for r in range(4):
            for e0 in (0, 2, 4, 6):
                perms(tmp, e0, G, r)
            if r:
                pv_mfma(G, 2 * r - 1, tmp(2 * r - 1))
            pv_mfma(G, 2 * r, tmp(2 * r))
        pv_mfma(G, 7, tmp(7))

    for n in range(128):
        isk = n < 64
        n0, d, lite, rmask = [x for x in seg if x[0] <= n][-1]
        if n == 4:
            stream_setup()
        if n == n0 and n:
            a(f's_bitcmp1_b32 {rmask}, s{S_ROLE}\ns_cselect_b64 vcc, -1, 0')
        if n == 5:
            a('s_cbranch_vccnz L_nb\ns_barrier\nL_nb:')
        if n >= d:
            a(f's_waitcnt vmcnt({d - 1})')
        if lite and n >= d - lite:
            skip = a.lab('L_dp')
            a(f's_cbranch_vccnz {skip}\ns_waitcnt vmcnt({d - 1 - lite})\n{skip}:')
        landed = n - d
        if n == d - lite:
            stamp(10)
        if n == 2 * (d - lite):
            stamp(11)
        if n == 120:
            a('s_setprio 3')
        if n == cfg['dflag']:
            assert seg[0][3] == 14 and n >= 4
            skip = a.lab('L_df')
            a(f's_cbranch_vccz {skip}\ns_waitcnt vmcnt({cfg["dflag"]})')
            flag_add(F_S1, 4)
            a(f'{skip}:')
        if n == NSYNC:
            stamp(1)
            if not cfg['abl'] & 9:
                spin_lds(F_Q, 1, 4)
            stamp(2)
            a('v_lshrrev_b32 v4, 1, v0\nv_and_b32 v4, 1, v4\nv_and_b32 v5, 1, v0\nv_lshrrev_b32 v6, 4, v0\nv_lshlrev_b32 v6, 4, v6')
            a('v_lshl_or_b32 v6, v5, 6, v6\nv_lshl_or_b32 v3, v4, 9, v6')
            for j in range(4):
                a(f'ds_read_b128 {vr(QA + 4 * j, 4)}, v3 offset:{L_Q + 128 * j}')
            a(f'v_lshl_add_u32 v3, v0, 4, s{S_LX}')
            a('s_waitcnt lgkmcnt(0)')
            qk_some(landed, 1 if NL >= 8 else 2)
        if isk:
            if n >= NSYNC:
                assert (n - 56) // 4 in kdone
            if n and n % 4 == 0:
                a(f's_add_u32 s36, s36, {lin(KM[2], n >> 2) - lin(KM[2], (n >> 2) - 1)}')
            if parked(n):
                a(f's_add_u32 m0, s{S_LX}, {1024 * (n - 4) - 128 * (n & 3)}')
                a(f'buffer_load_dwordx4 v1, {sr(SRD_A, 4)}, s36 offen offset:{128 * (n & 3)} nt lds')
            else:
                a(f'buffer_load_dwordx4 {vr(kslot(n), 4)}, v1, {sr(SRD_A, 4)}, s36 offen offset:{128 * (n & 3)} nt')
        else:
            i = n - 64
            if i < 48:
                kn = vidx(i) + NL
                assert kn >= 64 or kn // 4 in kdone, (i, kdone)
            else:
                assert vdone > (i - 48) // 8
            a(f's_add_u32 s30, s37, {lin(KM[2], i >> 2) + lin(KM[0], i & 3)}')
            a(f'buffer_load_dwordx4 {vr(vslot(i), 4)}, v2, {sr(SRD_B, 4)}, s30 offen nt')
        if n == 8:
            a(f'v_and_b32 v4, 7, v0\nv_lshrrev_b32 v5, 3, v0\nv_lshlrev_b32 v4, 4, v4\nv_lshl_or_b32 v2, v5, 9, v4')
            a(f's_lshl_b32 s31, s{S_W}, 7\ns_or_b32 s37, s37, s31')
            a(f's_add_u32 s{SRD_B}, s{P_V}, s32\ns_addc_u32 s{SRD_B + 1}, s{P_V + 1}, 0\ns_mov_b32 s{SRD_B + 2}, 0x100000\ns_mov_b32 s{SRD_B + 3}, 0x20000')
            srd(SRD_WS, P_WS, WS_SIZE)
            a('s_mov_b32 s38, 0x05040100\ns_mov_b32 s39, 0x07060302')
        if n == cfg['ktrig']:
            assert n < NSYNC
            flag_add(F_KT, 4)
        if n == cfg['mtrig']:
            flag_add(F_MT, 4)
        if n == 64 + cfg['vtrig']:
            flag_add(F_VT, 4)
        if n >= NSYNC and korder:
            qk_some(landed, 4)
        if n == 64 + cfg['vsync']:
            assert len(kdone) == 16
            stamp(4)
            if not cfg['abl'] & 9:
                spin_lds(F_P, 1, 4, two=True)
            stamp(5)
            a(f'v_readfirstlane_b32 s{S_E}, v5\ns_sub_u32 s{S_FAST}, s31, 1')
            a('v_lshrrev_b32 v4, 1, v0\nv_and_b32 v4, 1, v4\nv_and_b32 v5, 1, v0\nv_lshrrev_b32 v6, 4, v0\nv_lshlrev_b32 v6, 5, v6')
            a('v_lshl_or_b32 v6, v5, 4, v6\nv_lshl_or_b32 v3, v4, 7, v6')
            a(f'ds_read_b128 {vr(QD, 4)}, v3 offset:{L_P}')
        if n >= 64 + cfg['vsync'] and vdone < 7 and 64 + 8 * vdone + 7 <= landed:
            pv_group(vdone)
            vdone += 1
    assert vdone == 7, vdone
    a(f's_lshl_b32 s30, s{S_H}, 2\ns_add_u32 s30, s30, s{S_W}\ns_lshl_b32 s30, s30, 14\ns_lshl_b32 s31, s{S_D}, 12\ns_add_u32 s30, s30, s31')
    a(f's_lshl_b32 s31, s{S_B}, 9\ns_add_u32 s30, s30, s31\ns_add_u32 s30, s30, {WS_OP}')
    a('v_and_b32 v8, 7, v0\nv_lshlrev_b32 v8, 4, v8\nv_and_b32 v9, 8, v0\nv_lshl_or_b32 v8, v9, 5, v8\nv_and_b32 v9, 16, v0\nv_lshl_or_b32 v8, v9, 3, v8')
    a(f's_movk_i32 s31, 0xff\nv_mov_b32 v9, s{S_E}')
    big = lambda j: vslot(24 + j)
    for pr in range(4):
        if 6 - 2 * pr < DV:
            a(f's_waitcnt vmcnt({6 - 2 * pr})')
        if pr < 3:
            for r in range(4):
                perms(big, 2 * pr, 7, r)
    stamp(6)
    a('s_waitcnt lgkmcnt(0)')

    def pv_post(j):
        d = ACC + 4 * j
        dpp('v_add_f32', 4 + (j & 3), d + 1, d, 'row_ror:8', 1 << (j >> 2), 0x3)
        dpp('v_add_f32', 4 + (j & 3), d + 2, d + 3, 'row_ror:8', 1 << (j >> 2), 0xc)
    perms(big, 6, 7, 0)
    perms(big, 6, 7, 1)
    pv_mfma(7, 0, big(0))
    perms(big, 6, 7, 2)
    pv_mfma(7, 1, big(1))
    perms(big, 6, 7, 3)
    for j in range(2, 8):
        pv_mfma(7, j, big(j))
        if j >= 4:
            pv_post(j - 4)
    for j in range(4, 8):
        pv_post(j)
    a('v_bfi_b32 v4, s31, v9, v4')
    a('s_mov_b32 exec_hi, 0')
    if not cfg['abl'] & 256:
        group_store(f'buffer_store_dwordx4 v[4:7], v8, {sr(SRD_WS, 4)}, s30 offen')
    a('s_barrier')
    stamp(7)
    a(f's_cmp_lt_u32 s{S_W}, 3\ns_cselect_b32 s30, s{S_ROLE}, 0\ns_cmp_eq_u32 s30, 3\ns_cbranch_scc1 L_fhelp')
    a('s_barrier\ns_branch L_exit')

    W56, W112, T0 = 88, 144, 12
    MASK8 = 's[36:37]'

    def trread(dst, nops, vaddr):
        for s in range(nops):
            for rp in range(2):
                a(f'ds_read_b64_tr_b16 {vr(dst + 4 * s + 2 * rp, 2)}, v{vaddr} offset:{s * 4 * BLK + rp * 128}')

    a('L_chain:')
    if cfg['prio']:
        a(f's_setprio {cfg["prio"]}')
    a('v_mov_b32 v4, 0\nv_mov_b32 v5, 0\nv_mov_b32 v6, 0\nv_mov_b32 v7, 0\nv_lshlrev_b32 v8, 4, v0\nds_write_b128 v8, v[4:7]')
    common()
    if cfg['stamps']:
        a(f's_mov_b64 {sr(S_ST0 + 18, 2)}, 0')
    decode(V_R8, V_NT)
    a(f'v_lshlrev_b32 v{V_L16}, 4, v0')
    a(f'v_and_b32 v11, 7, v0\nv_lshrrev_b32 v12, 3, v0\nv_lshlrev_b32 v13, 4, v11')
    a(f'v_mul_u32_u24 v{V_XA}, 896, v11\nv_lshl_add_u32 v{V_XA}, v12, 4, v{V_XA}\nv_lshl_or_b32 v{V_MA}, v12, 8, v13')
    a(f'v_lshl_or_b32 v{V_AR}, v10, 7, v13')
    a(f's_add_u32 s{S_KB1}, s{S_C}, 4\ns_min_u32 s{S_KB1}, s{S_KB1}, 6')
    a(f's_mov_b32 s31, {WS_Q}\ns_cmp_eq_u32 s{S_ROLE}, 1\ns_cselect_b32 s31, {WS_MOD}, s31\ns_lshl_b32 s{S_DST}, s30, 11\ns_add_u32 s{S_DST}, s{S_DST}, s31')
    a(f's_lshl_b32 s31, s{S_C}, 9\ns_add_u32 s{S_DST}, s{S_DST}, s31')
    a(f's_lshl_b32 s30, s{S_C}, 7\ns_lshl_b32 s31, s{S_KB1}, 7\nv_mov_b32 v13, 0')
    a(f's_mov_b32 s{SRD_C + 2}, 7168\ns_mov_b32 s{SRD_C + 3}, 0x20000')
    a('s_waitcnt lgkmcnt(0)\ns_barrier')
    if cfg['abl'] & 1:
        a('s_branch L_exit')
    srd(SRD_WS, P_WS, WS_SIZE)
    a(f's_cmp_eq_u32 s{S_ROLE}, 1\ns_cselect_b64 {sr(SRD_C, 2)}, {sr(P_C, 2)}, {sr(P_X, 2)}')
    a(f's_load_dword s{S_E}, {sr(P_WS, 2)}, 0')
    a(f's_sub_u32 s32, s{S_ROLE}, 1\ns_cmp_lt_u32 s32, 2\ns_cbranch_scc0 L_c0')
    a(f'buffer_load_dwordx4 v[228:231], v{V_XA}, {sr(SRD_C, 4)}, s30 offen')
    a(f'buffer_load_dwordx4 v[232:235], v{V_XA}, {sr(SRD_C, 4)}, s31 offen')
    a('L_c0:')
    if cfg['pref']:
        skip = a.lab('L_np')
        a(f's_cmp_eq_u32 s{S_R}, 6\ns_cbranch_scc0 {skip}')
        a('s_getpc_b64 s[24:25]\nL_pc0:')
        a(f's_sub_u32 s24, s24, L_pc0-{NAME}_kernel\ns_subb_u32 s25, s25, 0')
        a(f's_lshl_b32 s30, s{S_C}, 13\nv_lshl_add_u32 v12, v0, 7, s30\nv_min_u32 v12, L_end-{NAME}_kernel, v12')
        a('global_load_dword v14, v12, s[24:25]')
        a(f'{skip}:')
    a(f'v_mul_u32_u24 v{V_TR}, {BLK}, v10\nv_and_b32 v13, 15, v0\nv_lshl_add_u32 v{V_TR}, v13, 3, v{V_TR}')
    a(f's_lshl_b32 s26, s{S_C}, 8\ns_add_u32 s26, s26, {L_W}\nv_add_u32 v{V_TR}, s26, v{V_TR}')
    a('s_mov_b32 s36, 0x00ff00ff\ns_mov_b32 s37, 0x00ff00ff\nv_mov_b32 v85, 0')
    a('s_waitcnt vmcnt(0) lgkmcnt(0)')
    a(f's_add_u32 s{S_E}, s{S_E}, 1\ns_and_b32 s{S_E8}, s{S_E}, 0xff')
    a(f's_getreg_b32 s{S_XO}, hwreg(HW_REG_XCC_ID, 0, 3)\ns_lshl_b32 s{S_XO}, s{S_XO}, 29\ns_and_b32 s30, s{S_E}, 0x1fffffff\ns_or_b32 s{S_XO}, s{S_XO}, s30')
    a(f's_cmp_eq_u32 s{S_C}, 1\ns_cbranch_scc0 L_c1')
    a(f's_lshl_b32 s30, s{S_H}, 8\ns_lshl_b32 s31, s{S_R}, 2\ns_add_u32 s30, s30, s31\ns_add_u32 s30, s30, {WS_CEN}')
    a(f'v_mov_b32 v12, 0\nv_mov_b32 v14, s{S_XO}\ns_mov_b64 exec, 1\nbuffer_store_dword v14, v12, {sr(SRD_WS, 4)}, s30 offen\ns_mov_b64 exec, -1')
    a('L_c1:')
    a(f's_cmp_eq_u32 s{S_ROLE}, 0\ns_cbranch_scc1 L_mid')
    a(f's_cmp_eq_u32 s{S_ROLE}, 3\ns_cbranch_scc1 L_gemm0')
    for k in range(8):
        a(f'v_lshlrev_b32 v{12 + 2 * k}, 16, v{228 + k}\nv_and_b32 v{13 + 2 * k}, 0xffff0000, v{228 + k}')
    a(f's_cmp_eq_u32 s{S_ROLE}, 2\ns_cbranch_scc1 L_actQ')
    a(f's_mov_b32 s26, {LOG2E | 0x80000000:#x}')
    for k in range(16):
        a(f'v_mul_f32 v{28 + k}, s26, v{12 + k}')
    for k in range(16):
        a(f'v_exp_f32 v{28 + k}, v{28 + k}')
    for k in range(16):
        a(f'v_add_f32 v{28 + k}, 1.0, v{28 + k}')
    a('s_mov_b32 s27, 0x7f7fffff')
    for k in range(16):
        a(f'v_min_f32 v{28 + k}, s27, v{28 + k}')
    for k in range(16):
        a(f'v_rcp_f32 v{44 + k}, v{28 + k}')
    for k in range(0, 16, 2):
        a(f'v_pk_mul_f32 {vr(60 + k, 2)}, {vr(12 + k, 2)}, {vr(44 + k, 2)}')
    for k in range(0, 16, 2):
        a(f'v_pk_fma_f32 {vr(12 + k, 2)}, {vr(60 + k, 2)}, {vr(28 + k, 2)}, {vr(12 + k, 2)} neg_lo:[1,0,0] neg_hi:[1,0,0]')
    for k in range(0, 16, 2):
        a(f'v_pk_fma_f32 {vr(12 + k, 2)}, {vr(12 + k, 2)}, {vr(44 + k, 2)}, {vr(60 + k, 2)}')
    a('s_branch L_actW')

    def ln_scalars(mean, var, t):
        rnd(mean, mean)
        rnd(var, var)
        a(f'v_add_f32 v{var}, 0x3727c5ac, v{var}')
        rnd(var, var)
        a(f'v_sqrt_f32 v{var}, v{var}')
        rnd(t, var)
        a(f'v_rcp_f32 v{var}, v{t}')

    def ln_norm(x, n, mean2, rs2, exact=None):
        for k in range(0, n, 2):
            a(f'v_pk_add_f32 {vr(x + k, 2)}, {vr(x + k, 2)}, {vr(mean2, 2)} op_sel_hi:[1,0] neg_lo:[0,1] neg_hi:[0,1]')
        for k in range(n):
            rnd(x + k, x + k)
        for k in range(0, n, 2):
            a(f'v_pk_mul_f32 {vr((exact or x) + k, 2)}, {vr(x + k, 2)}, {vr(rs2, 2)} op_sel_hi:[1,0]')
        if exact:
            for k in range(0, n, 2):
                a(f'v_pk_fma_f32 {vr(x + k, 2)}, {vr(exact + k, 2)}, {vr(rs2, 2)}, {vr(x + k, 2)} op_sel:[0,1,0] op_sel_hi:[1,1,1] neg_lo:[1,0,0] neg_hi:[1,0,0]')
            for k in range(0, n, 2):
                a(f'v_pk_fma_f32 {vr(x + k, 2)}, {vr(x + k, 2)}, {vr(rs2, 2)}, {vr(exact + k, 2)} op_sel_hi:[1,0,1]')
        for k in range(n):
            rnd(x + k, x + k)

    def ln_mod(x, n, c1, sh):
        for k in range(0, n, 2):
            a(f'v_pk_mul_f32 {vr(x + k, 2)}, {vr(x + k, 2)}, {vr(c1 + k, 2)}')
        for k in range(n):
            rnd(x + k, x + k)
        for k in range(0, n, 2):
            a(f'v_pk_add_f32 {vr(x + k, 2)}, {vr(x + k, 2)}, {vr(sh + k, 2)}')

    def mod_params(blk_shift, blk_scale, sh, c1, raw):
        for q, base in enumerate((blk_shift, blk_scale)):
            a(f's_lshl_b32 s{24 + 2 * q}, s{S_C}, 11\ns_add_u32 s{24 + 2 * q}, s{24 + 2 * q}, {WS_MOD + base * 2048}')
            a(f's_lshl_b32 s{25 + 2 * q}, s{S_KB1}, 11\ns_add_u32 s{25 + 2 * q}, s{25 + 2 * q}, {WS_MOD + base * 2048}')
        poll(a.lab('m'), [(raw + 8 * q + 4 * h, f'buffer_load_dwordx3 {vr(raw + 8 * q + 4 * h, 3)}, v{V_MA}, {sr(SRD_WS, 4)}, s{24 + q} offen offset:{128 * h} sc1')
                          for q in range(4) for h in range(2)], False)
        for k in range(4):
            for dw in range(2):
                a(f'v_lshlrev_b32 v{sh + 4 * k + 2 * dw}, 16, v{raw + 4 * k + 1 + dw}\nv_and_b32 v{sh + 4 * k + 2 * dw + 1}, 0xffff0000, v{raw + 4 * k + 1 + dw}')
                a(f'v_lshlrev_b32 v{c1 + 4 * k + 2 * dw}, 16, v{raw + 16 + 4 * k + 1 + dw}\nv_and_b32 v{c1 + 4 * k + 2 * dw + 1}, 0xffff0000, v{raw + 16 + 4 * k + 1 + dw}')
        for k in range(16):
            a(f'v_add_f32 v{c1 + k}, 1.0, v{c1 + k}')
        for k in range(16):
            rnd(c1 + k, c1 + k)

    def write_act(x):
        for k in range(8):
            a(f'v_cvt_pk_bf16_f32 v{x + k}, v{x + 2 * k}, v{x + 2 * k + 1}')
        a(f's_lshl_b32 s30, s{S_C}, 10\ns_lshl_b32 s31, s{S_KB1}, 10\nv_add_u32 v10, s30, v{V_L16}\nv_add_u32 v11, s31, v{V_L16}')
        a(f'ds_write_b128 v10, {vr(x, 4)} offset:{L_A}\nds_write_b128 v11, {vr(x + 4, 4)} offset:{L_A}')

    def stats_setup():
        a(f'v_lshrrev_b32 v47, 5, v0\nv_and_b32 v45, 0x70, v{V_AR}\nv_lshl_or_b32 v47, v47, 7, v45\ns_lshl_b32 s30, s{S_C}, 2\nv_add_u32 v47, s30, v47')
        a(f's_cmp_eq_u32 s{S_C}, 3\ns_cselect_b32 s30, 0, 1.0\nv_mov_b32 v44, s30')

    def stats_local():
        for q in range(2):
            x, p = 12 + 8 * q, 28 + 6 * q
            a(f'v_pk_add_f32 {vr(p, 2)}, {vr(x, 2)}, {vr(x + 2, 2)}\nv_pk_mul_f32 {vr(p + 2, 2)}, {vr(x, 2)}, {vr(x, 2)}\nv_pk_add_f32 {vr(p + 4, 2)}, {vr(x + 4, 2)}, {vr(x + 6, 2)}')
        for k in (2, 4, 6):
            for q in range(2):
                x, p = 12 + 8 * q, 28 + 6 * q
                a(f'v_pk_fma_f32 {vr(p + 2, 2)}, {vr(x + k, 2)}, {vr(x + k, 2)}, {vr(p + 2, 2)}')
                if k == 2:
                    a(f'v_pk_add_f32 {vr(p, 2)}, {vr(p, 2)}, {vr(p + 4, 2)}')
        a('v_pk_fma_f32 v[28:29], v[34:35], v[44:45], v[28:29] op_sel_hi:[1,0,1]\nv_pk_fma_f32 v[30:31], v[36:37], v[44:45], v[30:31] op_sel_hi:[1,0,1]')
        a('v_add_f32 v28, v28, v29\nv_add_f32 v30, v30, v31')
        a('v_permlane32_swap_b32 v28, v30\nv_add_f32 v28, v28, v30')
        a('v_mov_b32 v30, v28\nv_permlane16_swap_b32 v28, v30\nv_add_f32 v28, v28, v30')
        dpp('v_add_f32', 28, 28, 28, 'row_ror:8')
        a(f'ds_write_b32 v47, v28 offset:{L_ST}\ns_waitcnt lgkmcnt(0)')

    def stats_final():
        a(f'ds_read_b128 v[28:31], v45 offset:{L_ST}\nds_read_b128 v[32:35], v45 offset:{L_ST + 128}\ns_waitcnt lgkmcnt(0)')
        a('v_pk_add_f32 v[28:29], v[28:29], v[30:31]\nv_pk_add_f32 v[32:33], v[32:33], v[34:35]')
        a('v_add_f32 v28, v28, v29\nv_add_f32 v30, v32, v33\nv_mul_f32 v28, 0x3b124925, v28\nv_mul_f32 v30, 0x3b124925, v30')
        a('v_fma_f32 v30, -v28, v28, v30\nv_max_f32 v30, 0, v30')

    a('L_actQ:')
    stats_setup()
    stats_local()
    flag_add(F_S3, 10)
    spin_lds(F_S3, 4, 10)
    stats_final()
    ln_scalars(28, 30, 31)
    ln_norm(12, 16, 28, 30, exact=44)
    spin_lds(F_MT, 1, 10)
    stamp(1)
    census(76)
    mod_params(0, 7, 28, 44, 144)
    census_done(76)
    stamp(2)
    ln_mod(12, 16, 44, 28)
    a('L_actW:')
    write_act(12)
    a('L_gemm0:')
    a('s_waitcnt lgkmcnt(0)')
    flag_add(F_S1, 10)
    spin_lds(F_S1, 8, 10)
    stamp(3)
    trread(W56, 14, V_TR)
    a(f's_cmp_eq_u32 s{S_ROLE}, 3\ns_cbranch_scc1 L_mid')
    for s in range(14):
        a(f'ds_read_b128 {vr(T0 + 4 * s, 4)}, v{V_AR} offset:{L_A + 512 * s}')
    a('s_waitcnt lgkmcnt(0)')
    for s in range(14):
        a(f'v_mfma_f32_16x16x32_bf16 v[68:71], {vr(W56 + 4 * s, 4)}, {vr(T0 + 4 * s, 4)}, {"v[68:71]" if s else 0}')
    a(f'v_mov_b32 v72, s{S_E}\nv_mov_b32 v75, s{S_E}')
    a('v_cvt_pk_bf16_f32 v73, v68, v69\nv_cvt_pk_bf16_f32 v74, v70, v71')
    a(f's_cmp_eq_u32 s{S_ROLE}, 2\ns_cbranch_scc1 L_pubQ')
    a(f's_mov_b64 exec, {MASK8}')
    a(f'buffer_store_dwordx4 v[72:75], v{V_AR}, {sr(SRD_WS, 4)}, s{S_DST} offen sc1')
    a('s_mov_b64 exec, -1\ns_branch L_pub')
    a('L_pubQ:')
    a(f'v_and_b32 v12, 7, v0\nv_lshrrev_b32 v13, 4, v0\nv_lshlrev_b32 v13, 3, v13\nv_lshl_or_b32 v12, v12, 7, v13\ns_lshl_b32 s30, s{S_C}, 5\ns_add_u32 s30, s30, {L_H}\nv_add_u32 v12, s30, v12')
    a('ds_write2_b32 v12, v73, v74 offset0:0 offset1:1\ns_waitcnt lgkmcnt(0)')
    flag_add(F_S4, 10)
    spin_lds(F_S4, 4, 10)
    a(f's_lshl_b32 s30, s{S_C}, 8\ns_add_u32 s30, s30, {L_H}\nv_lshl_add_u32 v12, v0, 3, s30\nds_read_b64 v[14:15], v12\ns_waitcnt lgkmcnt(0)')
    a('v_mov_b32 v73, v14\nv_mov_b32 v74, v15\ns_mov_b32 exec_hi, 0')
    group_store(f'buffer_store_dwordx4 v[72:75], v{V_L16}, {sr(SRD_WS, 4)}, s{S_DST} offen')
    a('s_mov_b64 exec, -1')
    a('L_pub:')
    stamp(4)

    a('L_mid:')
    a('s_waitcnt lgkmcnt(0)')
    flag_add(F_VT, 12, 16)
    a(f's_cmp_eq_u32 s{S_C}, 0\ns_cbranch_scc0 L_noq')
    spin_lds(F_KT, 1, 12)
    a(f's_lshl_b32 s30, s{S_H}, 14\ns_lshl_b32 s31, s{S_B}, 8\ns_add_u32 s30, s30, s31\ns_add_u32 s30, s30, {WS_Q}\ns_add_u32 s31, s30, 8192')
    a(f'v_lshrrev_b32 v12, 4, v0\nv_and_b32 v14, 0xf0, v{V_L16}\nv_lshl_or_b32 v14, v12, 11, v14\nv_lshlrev_b32 v15, 3, v0')
    two = [(16 + 4 * k, f'buffer_load_dwordx3 {vr(16 + 4 * k, 3)}, v14, {sr(SRD_WS, 4)}, s{30 + k} offen sc1') for k in range(2)]
    poll('q', two, False)
    a(f'v_add_u32 v15, {L_Q}, v15')
    a('ds_write2_b32 v15, v17, v18 offset0:0 offset1:1\nds_write2_b32 v15, v21, v22 offset0:128 offset1:129\ns_waitcnt lgkmcnt(0)')
    flag_add(F_Q, 12)
    stamp(5)
    a('L_noq:')
    Z_GA, Z_GB, Z_X, Z_TAG, Z_OA = 80, 81, 82, 83, 85
    S_Z = 39

    def zrole(out):
        a(f's_cmp_lt_u32 s{S_H}, 7\ns_cbranch_scc0 {out}\ns_cmp_ge_u32 s{S_C}, 2\ns_cbranch_scc0 {out}')
        a(f's_lshl1_add_u32 s{S_Z}, s{S_R}, s{S_C}\ns_sub_u32 s{S_Z}, s{S_Z}, 2')
        if not cfg['repz']:
            a(f's_cmp_eq_u32 s{S_B}, s{S_H}\ns_cbranch_scc0 {out}')
    a(f's_cmp_lt_u32 s{S_B}, 7\ns_cbranch_scc0 L_noz')
    zrole('L_noz')
    spin_lds(F_Q, 1, 12)
    a(f's_mov_b64 {sr(SRD_C, 2)}, {sr(P_X, 2)}')
    a(f's_lshl_b32 s30, s{S_Z}, 8\ns_add_u32 s31, s30, {WS_MOD + 35 * 2048}\ns_add_u32 s30, s30, {WS_MOD + 14 * 2048}')
    a('v_and_b32 v14, 15, v0\nv_lshlrev_b32 v14, 4, v14')
    a(f'v_and_b32 v12, 7, v0\nv_mul_u32_u24 v12, 896, v12\nv_and_b32 v13, 8, v0\nv_add_u32 v12, v12, v13\nv_lshrrev_b32 v13, 4, v0\nv_lshl_add_u32 v12, v13, 1, v12')
    a(f's_lshl_b32 s27, s{S_Z}, 4\nv_add_u32 v{Z_OA}, s27, v12')
    a(f'buffer_load_ushort v{Z_X}, v{Z_OA}, {sr(SRD_C, 4)}, 0 offen')
    poll('z', two, False)
    a('v_cmp_lt_u32 vcc, 31, v0\nv_cndmask_b32 v17, v17, v18, vcc\nv_cndmask_b32 v21, v21, v22, vcc')
    a('v_and_b32 v13, 16, v0\nv_lshrrev_b32 v17, v13, v17\nv_lshrrev_b32 v21, v13, v21')
    a(f'v_lshlrev_b32 v{Z_GA}, 16, v17\nv_lshlrev_b32 v{Z_GB}, 16, v21\nv_lshlrev_b32 v{Z_X}, 16, v{Z_X}')
    a(f'v_cmp_gt_u32 vcc, 16, v0\nv_mov_b32 v13, s{S_E8}\nv_cndmask_b32 v{Z_TAG}, 0, v13, vcc')
    a('L_noz:')
    F_SH, F_C1 = 52, 68
    a(f's_cmp_eq_u32 s{S_ROLE}, 3\ns_cbranch_scc0 L_nofp')
    spin_lds(F_Q, 1, 12)
    mod_params(21, 28, F_SH, F_C1, 144)
    a(f's_lshl_b32 s30, s{S_C}, 12\ns_add_u32 s30, s30, {L_PAR}\nv_add_u32 v12, s30, v{V_L16}')
    for k, r in enumerate((F_SH + 8, F_SH + 12, F_C1 + 8, F_C1 + 12)):
        a(f'ds_write_b128 v12, {vr(r, 4)} offset:{1024 * k}')
    a('L_nofp:')
    a(f's_cmp_eq_u32 s{S_C}, 1\ns_cbranch_scc0 L_nosm')
    a(f's_lshl_b32 s26, s{S_B}, 3\ns_or_b32 s26, s26, s{S_H}\ns_lshl_b32 s26, s26, 9\ns_add_u32 s26, s26, {WS_ML}\ns_lshl_b32 s27, s{S_D}, 7\ns_add_u32 s27, s27, s26')
    a('v_lshrrev_b32 v13, 4, v0')
    a(f'v_mov_b32 v49, v{V_AR}')
    a('v_and_b32 v50, 15, v0\nv_lshlrev_b32 v50, 4, v50\nv_lshl_or_b32 v50, v13, 9, v50')
    a('s_mov_b32 s32, 0x3db8aa3b')
    spin_lds(F_KT, 1, 12)
    census(48)
    spin_lds(F_SC, 4, 12)
    a('s_waitcnt vmcnt(0)')
    census_done(48)
    stamp(6)
    for w in range(4):
        a(f'ds_read_b128 {vr(12 + 4 * w, 4)}, v{V_L16} offset:{L_SC + 1024 * w}')
    a('s_waitcnt lgkmcnt(0)')
    for k in range(16):
        rnd(12 + k, 12 + k)
    a('v_max3_f32 v45, v12, v13, v14')
    for k in range(15, 27, 2):
        a(f'v_max3_f32 v45, v45, v{k}, v{k + 1}')
    a('v_max_f32 v45, v45, v27')

    def head_allreduce(op, x, t):
        dpp(op, x, x, x, 'quad_perm:[1,0,3,2]')
        dpp(op, x, x, x, 'quad_perm:[2,3,0,1]')
        dpp(op, x, x, x, 'row_half_mirror')
        rows_allreduce(op, x, t)

    def exps(m):
        for k in range(16):
            a(f'v_sub_f32 v{28 + k}, v{12 + k}, v{m}')
        for k in range(16):
            a(f'v_mul_f32 v{28 + k}, s32, v{28 + k}')
        for k in range(16):
            a(f'v_exp_f32 v{28 + k}, v{28 + k}')
    head_allreduce('v_max_f32', 45, 47)
    exps(45)
    for st in (8, 4, 2):
        for k in range(0, st, 2):
            a(f'v_pk_add_f32 {vr(28 + k, 2)}, {vr(28 + k, 2)}, {vr(28 + st + k, 2)}')
    a('v_add_f32 v46, v28, v29')
    head_allreduce('v_add_f32', 46, 47)
    a(f's_and_b32 s30, s{S_E}, 0xffff\ns_lshr_b32 s31, s{S_E}, 16\nv_or_b32 v28, s30, v45\nv_mov_b32 v29, v46\nv_mov_b32 v30, s31')
    a('v_mov_b32_dpp v31, v46 row_ror:8 row_mask:0xf bank_mask:0xf')
    dpp('v_or_b32', 30, 45, 30, 'row_ror:8')
    a('s_mov_b64 exec, 0xff')
    group_store(f'buffer_store_dwordx4 v[28:31], v{V_L16}, {sr(SRD_WS, 4)}, s27 offen')
    a('s_mov_b64 exec, -1')
    a('s_mov_b32 s30, 0x05040100')
    a('L_mlpoll:')
    a(f'buffer_load_dwordx4 v[32:35], v49, {sr(SRD_WS, 4)}, s26 offen sc1\ns_waitcnt vmcnt(0)')
    a(f'v_perm_b32 v36, v34, v32, s30\nv_cmp_ne_u32 vcc, s{S_E}, v36\ns_cbranch_vccz L_mlgot')
    retry('L_mlpoll')
    a('L_mlgot:')
    stamp(7)
    a(f'v_cndmask_b32 v29, v34, v32, {MASK8}\nv_cndmask_b32 v30, v35, v33, {MASK8}\nv_and_b32 v29, 0xffff0000, v29')
    a('v_mov_b32 v45, v29')
    rows_allreduce('v_max_f32', 45, 47)
    a('v_sub_f32 v29, v29, v45\nv_mul_f32 v29, s32, v29\nv_exp_f32 v29, v29\nv_mul_f32 v46, v29, v30')
    rows_allreduce('v_add_f32', 46, 47)
    a('v_rcp_f32 v46, v46')
    exps(45)
    for k in range(0, 16, 2):
        a(f'v_pk_mul_f32 {vr(28 + k, 2)}, {vr(28 + k, 2)}, v[46:47] op_sel_hi:[1,0]')
    for uh in range(2):
        for dd in range(4):
            u, x = 2 * uh + (dd >> 1), dd & 1
            a(f'v_cvt_pk_bf16_f32 v{12 + 4 * uh + dd}, v{28 + 4 * (2 * x) + u}, v{28 + 4 * (2 * x + 1) + u}')
    a(f'ds_write_b128 v50, v[12:15] offset:{L_P}\nds_write_b128 v50, v[16:19] offset:{L_P + 256}')
    a(f's_add_u32 s30, s{S_FAST}, 1\nv_mov_b32 v20, s30\nv_mov_b32 v21, s{S_E}\nv_mov_b32 v22, 0\ns_waitcnt lgkmcnt(0)\nds_write_b64 v22, v[20:21] offset:{F_P}')
    stamp(8)
    a('L_nosm:')

    if cfg['abl'] & 16:
        a('s_branch L_exit')
    a(f's_cmp_eq_u32 s{S_ROLE}, 3\ns_cbranch_scc1 L_ffn')
    if cfg['abl'] & 64:
        a('s_branch L_exit')
    a(f's_cmp_eq_u32 s{S_B}, 7\ns_cbranch_scc1 L_exit')
    srd(SRD_A, P_WO, 3670016)
    a(f's_movk_i32 s32, 896\ns_movk_i32 s{S_A}, 7168\ns_mov_b32 s{S_Bs}, 229376')
    a(f's_lshl_b32 s30, s{S_H}, 9\ns_lshl_b32 s31, s{S_D}, 6\ns_add_u32 s30, s30, s31\ns_mul_i32 s30, s30, 896\ns_lshl_b32 s31, s{S_B}, 7\ns_add_u32 s{S_BASE}, s30, s31')
    a(f'v_mad_u32_u24 v{V_DM}, v{V_R8}, s32, v{V_NT}')
    a(f's_lshl_b32 s24, s{S_JJ}, 14\ns_lshl_b32 s30, s{S_C}, 7\ns_add_u32 s24, s24, s30\ns_add_u32 s24, s24, {WS_OP}')
    a('s_add_u32 s25, s24, 4096\ns_add_u32 s26, s24, 8192\ns_add_u32 s27, s24, 12288')
    a('v_and_b32 v12, 7, v0\nv_lshrrev_b32 v13, 3, v0\nv_lshlrev_b32 v14, 4, v12\nv_lshl_or_b32 v40, v13, 9, v14')
    a('v_lshlrev_b32 v14, 4, v13\nv_lshl_or_b32 v41, v12, 7, v14')
    a(f's_lshr_b32 s30, s{S_C}, 1\ns_lshl_b32 s30, s30, 10\ns_and_b32 s31, s{S_C}, 1\ns_lshl_b32 s31, s31, 3\ns_add_u32 s30, s30, s31\nv_add_u32 v41, s30, v41')
    a(f'v_and_b32 v14, 0xff, v{V_AR}\nv_and_b32 v13, 8, v0\nv_lshl_or_b32 v14, v13, 27, v14')
    a('v_lshrrev_b32 v13, 5, v0\nv_lshl_or_b32 v42, v13, 13, v14\nv_lshl_or_b32 v44, v13, 10, v14')
    a(f's_mul_i32 s23, s{S_H}, 56\ns_lshl3_add_u32 s23, s{S_B}, s23\ns_lshl1_add_u32 s23, s{S_C}, s23\ns_lshl2_add_u32 s23, s23, s{S_D}\ns_lshl_b32 s23, s23, 8\ns_add_u32 s23, s23, {WS_PL}')
    a(f's_lshl_b32 s{S_DST}, s{S_B}, 16\ns_lshl_b32 s30, s{S_JJ}, 8\ns_add_u32 s{S_DST}, s{S_DST}, s30\ns_lshl_b32 s30, s{S_C}, 14\ns_add_u32 s{S_DST}, s{S_DST}, s30')
    a(f's_add_u32 s{S_DST}, s{S_DST}, {WS_PA}\nv_mov_b32 v43, s{S_E}\ns_movk_i32 s38, 0xff')
    spin_lds(F_VT, 68, 12)
    dma(SRD_A, 2, L_W)
    code_prefetch('L_ffn')
    a(f'v_mov_b32 v12, 0\nds_read_b32 v12, v12 offset:{F_P}\ns_waitcnt lgkmcnt(0)\nv_readfirstlane_b32 s{S_FAST}, v12\ns_sub_u32 s{S_FAST}, s{S_FAST}, 1')
    a('s_waitcnt vmcnt(0)\ns_barrier')
    stamp(9)
    if cfg['abl'] & 32:
        a('s_branch L_exit')

    poll('w', [(12 + 4 * s, f'buffer_load_dwordx4 {vr(12 + 4 * s, 4)}, v40, {sr(SRD_WS, 4)}, s{24 + s} offen sc1') for s in range(4)], True,
         lambda: trread(W56, 4, V_TR))
    a('v_pk_add_f32 v[12:13], v[12:13], v[16:17]\nv_pk_add_f32 v[20:21], v[20:21], v[24:25]')
    a('v_pk_add_f32 v[14:15], v[14:15], v[18:19]\nv_pk_add_f32 v[22:23], v[22:23], v[26:27]')
    a('v_pk_add_f32 v[12:13], v[12:13], v[20:21]\nv_pk_add_f32 v[14:15], v[14:15], v[22:23]')
    a('v_cvt_pk_bf16_f32 v12, v12, v13\nv_cvt_pk_bf16_f32 v13, v14, v15')
    a(f'ds_write_b64 v41, v[12:13] offset:{L_A}\ns_waitcnt lgkmcnt(0)\ns_barrier')
    for s in range(4):
        a(f'ds_read_b128 {vr(12 + 4 * s, 4)}, v{V_AR} offset:{L_A + 512 * s}')
    for s in range(4):
        a(f's_waitcnt lgkmcnt({3 - s})')
        a(f'v_mfma_f32_16x16x32_bf16 v[28:31], {vr(W56 + 4 * s, 4)}, {vr(12 + 4 * s, 4)}, {"v[28:31]" if s else 0}')
    a('v_bfi_b32 v28, s38, v43, v28')
    a(f'buffer_store_dwordx4 v[28:31], v42, {sr(SRD_WS, 4)}, s{S_DST} offen sc1')
    if cfg['pal']:
        group_store(f'buffer_store_dwordx4 v[28:31], v44, {sr(SRD_WS, 4)}, s23 offen')
    stamp(10)
    if cfg['abl'] & 128:
        a('s_branch L_exit')
    zrole('L_exit')
    ZO = (20, 21, 22, 23, 24, 25, 26, 27)
    a(f's_lshl_b32 s30, s{S_Z}, 13\ns_add_u32 s{ZO[0]}, s30, {WS_PA}')
    for u in range(1, 8):
        a(f's_add_u32 s{ZO[u]}, s{ZO[0]}, {1024 * u}')
    if cfg['pal']:
        a(f's_mul_i32 s31, s{S_H}, 56\ns_add_u32 s31, s31, s{S_Z}\ns_lshl_b32 s31, s31, 10\ns_add_u32 s31, s31, {WS_PL}')
        a(f's_mov_b32 m0, s{S_H}\ns_nop 0\ns_movreld_b32 s{ZO[0]}, s31')
    a(f's_lshl_b32 s32, s{S_Z}, 8\ns_add_u32 s32, s32, {WS_X1}')
    if cfg['repz']:
        a(f's_lshl_b32 s31, s{S_H}, 14\ns_add_u32 s32, s32, s31')

    def gather(name, n, off):
        poll(name, [(12 + 4 * u, f'buffer_load_dwordx4 {vr(12 + 4 * u, 4)}, v{V_L16}, {sr(SRD_WS, 4)}, ' + off(u) + ' sc1')
                    for u in range(n)], True)
        for st in (4, 2, 1):
            for u in range(st):
                if u + st < n:
                    for h in (0, 2):
                        a(f'v_pk_add_f32 {vr(12 + 4 * u + h, 2)}, {vr(12 + 4 * u + h, 2)}, {vr(12 + 4 * (u + st) + h, 2)}')
        a('v_permlane32_swap_b32 v12, v14\nv_permlane32_swap_b32 v13, v15\nv_pk_add_f32 v[12:13], v[12:13], v[14:15]')
        a('v_permlane16_swap_b32 v12, v13\nv_add_f32 v12, v12, v13')

    gather('a', 8, lambda u: f's{ZO[u]} offen')
    rnd(12, 12)
    a(f'v_mul_f32 v12, v{Z_GA}, v12')
    rnd(12, 12)
    a(f'v_add_f32 v12, v{Z_X}, v12')
    rnd(Z_X, 12)
    a(f'v_or_b32 v48, v{Z_TAG}, v{Z_X}\nv_mov_b32 v49, v{Z_X}\nv_permlane16_swap_b32 v48, v49')
    a('v_mov_b32 v50, v48\nv_mov_b32 v51, v49\nv_permlane32_swap_b32 v48, v50\nv_permlane32_swap_b32 v49, v51')
    a('s_mov_b64 exec, 0xffff')
    if cfg['repz']:
        group_store(f'buffer_store_dwordx4 v[48:51], v{V_L16}, {sr(SRD_WS, 4)}, s32 offen')
    else:
        a(f'buffer_store_dwordx4 v[48:51], v{V_L16}, {sr(SRD_WS, 4)}, s32 offen sc1')
    a('s_mov_b64 exec, -1')
    stamp(1)
    a(f's_cmp_eq_u32 s{S_B}, s{S_H}\ns_cbranch_scc0 L_exit')
    srd(SRD_C, P_OUT, 7168)
    a(f'v_mov_b32 v44, s{S_E}\nv_mov_b32 v47, 0')
    a(f's_add_u32 s24, s30, {WS_PF}\ns_add_u32 s25, s24, 4096')
    gather('f', 7, lambda u: f's{24 + (u >> 2)} offen offset:{1024 * (u & 3)}')
    rnd(12, 12)
    a(f'v_mul_f32 v12, v{Z_GB}, v12')
    rnd(12, 12)
    a(f'v_add_f32 v12, v{Z_X}, v12\nv_cvt_pk_bf16_f32 v12, v12, v12')
    a(f'buffer_store_short v12, v{Z_OA}, {sr(SRD_C, 4)}, 0 offen')
    stamp(2)
    a(f's_cmp_eq_u32 s{S_Z}, 0\ns_cbranch_scc0 L_exit')
    a(f's_mov_b64 exec, 1\nbuffer_store_dword v44, v47, {sr(SRD_WS, 4)}, 0 offen sc1\ns_mov_b64 exec, -1')
    a('s_branch L_exit')

    a('L_ffn:')
    if cfg['abl'] & 128:
        a('s_branch L_exit')
    srd(SRD_A, P_W1, 1605632)
    srd(SRD_B, P_W3, 1605632)
    a(f's_movk_i32 s32, 3584\ns_movk_i32 s{S_A}, 28672\ns_mov_b32 s{S_Bs}, 229376\ns_lshl_b32 s{S_BASE}, s{S_JJ}, 7')
    a(f'v_mad_u32_u24 v{V_DM}, v{V_R8}, s32, v{V_NT}')
    a(f'v_lshrrev_b32 v12, 5, v0\nv_bfe_u32 v13, v0, 3, 1\nv_lshl_or_b32 v12, v12, 1, v13\nv_mul_u32_u24 v12, {BLS}, v12')
    a('v_and_b32 v13, 16, v0\nv_lshl_add_u32 v12, v13, 3, v12\nv_and_b32 v13, 7, v0\nv_lshl_add_u32 v12, v13, 3, v12')
    a(f's_lshl_b32 s30, s{S_C}, 8\ns_add_u32 s30, s30, {L_W}\nv_add_u32 v{V_TR}, s30, v12\nv_add_u32 v46, {56 * BLK}, v{V_TR}')
    a(f'v_and_b32 v14, 0xff, v{V_AR}\nv_and_b32 v13, 8, v0\nv_lshl_or_b32 v14, v13, 27, v14\nv_lshrrev_b32 v13, 5, v0\nv_lshl_or_b32 v48, v13, 13, v14')
    a(f's_lshl_b32 s{S_DST}, s{S_JJ}, 8\ns_lshl_b32 s30, s{S_C}, 14\ns_add_u32 s{S_DST}, s{S_DST}, s30\ns_add_u32 s{S_DST}, s{S_DST}, {WS_PF}')
    a('v_and_b32 v12, 7, v0\nv_lshlrev_b32 v12, 1, v12\nv_and_b32 v13, 8, v0\nv_lshl_or_b32 v12, v13, 4, v12\nv_and_b32 v13, 16, v0\nv_lshl_or_b32 v12, v13, 2, v12')
    a(f'v_and_b32 v13, 32, v0\nv_or_b32 v12, v12, v13\ns_lshl_b32 s30, s{S_C}, 8\nv_add_u32 v49, s30, v12')
    a(f'v_mov_b32 v50, s{S_E}\ns_movk_i32 s38, 0xff\ns_mov_b32 s39, {LOG2E | 0x80000000:#x}')
    a(f'v_mov_b32 v12, 0x4444\nv_mov_b32 v13, 0xeeee\nv_cndmask_b32 v51, v13, v12, {MASK8}')
    for k in range(8):
        a(f'v_mov_b32 v{76 + k}, 0')
    spin_lds(F_VT, 68, 12)
    dma(SRD_A, 7, L_W, bar=cfg['fpre'], BLK=BLS)
    dma(SRD_B, 7, L_W + 56 * BLK, BLK=BLS)
    code_prefetch('L_exit')
    a('s_waitcnt vmcnt(0)')
    flag_add(F_S2, 12)
    spin_lds(F_S2, 4, 12)
    for m, va in enumerate((V_TR, 46)):
        for kb in range(7):
            for rp in range(4):
                a(f'ds_read_b64_tr_b16 {vr(W112 + 56 * m + 8 * kb + 2 * rp, 2)}, v{va} offset:{(8 * kb + 4 * (rp >> 1)) * BLS + (rp & 1) * 64}')
    a(f's_mov_b32 s{S_KB1}, s{S_C}\ns_branch L_ln')
    a('L_fhelp:')
    a(f's_mov_b64 exec, -1\ns_add_u32 s{S_KB1}, s{S_W}, 4\ns_and_b32 s{S_E8}, s{S_E}, 0xff')
    a(f'v_lshlrev_b32 v{V_L16}, 4, v0\nv_lshrrev_b32 v12, 3, v0\nv_and_b32 v13, 0x70, v{V_L16}\nv_lshl_or_b32 v{V_MA}, v12, 8, v13')
    spin_lds(F_S2, 4, 12)
    a(f's_lshl_b32 s30, s{S_W}, 12\ns_add_u32 s30, s30, {L_PAR}\nv_add_u32 v12, s30, v{V_L16}')
    for k, r in enumerate((F_SH, F_SH + 4, F_C1, F_C1 + 4)):
        a(f'ds_read_b128 {vr(r, 4)}, v12 offset:{1024 * k}')
    a('L_ln:')
    a(f's_lshl_b32 s24, s{S_KB1}, 11\ns_add_u32 s24, s24, {WS_X1}')
    if cfg['repz']:
        a(f's_lshl_b32 s31, s{S_H}, 14\ns_add_u32 s24, s24, s31')
    a(f'v_and_b32 v12, 7, v0\nv_and_b32 v13, 32, v0\nv_lshlrev_b32 v13, 3, v13\nv_lshl_or_b32 v45, v12, 5, v13\ns_lshl_b32 s30, s{S_KB1}, 2\nv_add_u32 v47, s30, v45')
    a(f's_lshl_b32 s30, s{S_KB1}, 10\nv_add_u32 v44, s30, v{V_L16}')
    a('s_waitcnt lgkmcnt(0)')
    stamp(9)
    if cfg['abl'] & 32:
        a('s_branch L_exit')
    poll('x', [(12 + 4 * h, f'buffer_load_dwordx4 {vr(12 + 4 * h, 4)}, v{V_MA}, {sr(SRD_WS, 4)}, s24 offen offset:{128 * h} sc1') for h in range(2)], True)
    stamp(10)
    a('v_pk_mul_f32 v[30:31], v[14:15], v[14:15]\nv_pk_add_f32 v[28:29], v[14:15], v[18:19]\nv_pk_mul_f32 v[34:35], v[12:13], v[12:13]\nv_pk_add_f32 v[32:33], v[12:13], v[16:17]')
    a('v_pk_fma_f32 v[30:31], v[18:19], v[18:19], v[30:31]\nv_pk_fma_f32 v[34:35], v[16:17], v[16:17], v[34:35]')
    a('v_pk_add_f32 v[28:29], v[28:29], v[32:33]\nv_pk_add_f32 v[30:31], v[30:31], v[34:35]')
    a('v_add_f32 v28, v28, v29\nv_add_f32 v30, v30, v31')
    a('v_permlane32_swap_b32 v28, v30\nv_add_f32 v28, v28, v30')
    a('v_mov_b32 v30, v28\nv_permlane16_swap_b32 v28, v30\nv_add_f32 v28, v28, v30')
    dpp('v_add_f32', 28, 28, 28, 'row_ror:8')
    a(f'ds_write_b32 v47, v28 offset:{L_ST2}\ns_waitcnt lgkmcnt(0)\ns_barrier')
    a(f'ds_read_b128 v[28:31], v45 offset:{L_ST2}\nds_read_b128 v[32:35], v45 offset:{L_ST2 + 16}\ns_waitcnt lgkmcnt(0)')
    a('v_pk_add_f32 v[28:29], v[28:29], v[30:31]\nv_pk_add_f32 v[32:33], v[32:33], v[34:35]\nv_pk_add_f32 v[28:29], v[28:29], v[32:33]')
    a('v_add_f32 v29, v28, v29\nv_mul_f32 v28, 0x3b124925, v29\nv_mul_f32 v30, 0x3b124925, v29\nv_permlane32_swap_b32 v28, v30')
    a('v_fma_f32 v30, -v28, v28, v30')
    rnd(28, 28)
    a('v_max_f32 v30, 0, v30')
    sub = [f'v_pk_add_f32 {vr(12 + k, 2)}, {vr(12 + k, 2)}, v[28:29] op_sel_hi:[1,0] neg_lo:[0,1] neg_hi:[0,1]' for k in range(0, 8, 2)]
    sub += [f'v_cvt_pk_bf16_f32 v{12 + k}, 0, v{12 + k}' for k in range(8)]
    chain = ['v_cvt_pk_bf16_f32 v30, 0, v30', 'v_add_f32 v30, 0x3727c5ac, v30', 'v_cvt_pk_bf16_f32 v30, 0, v30', 'v_sqrt_f32 v30, v30',
             'v_cvt_pk_bf16_f32 v30, 0, v30', 'v_rcp_f32 v30, v30']
    for k in range(6):
        a(chain[k])
        a(sub[2 * k])
        a(sub[2 * k + 1])
    for k in range(0, 8, 2):
        a(f'v_pk_mul_f32 {vr(12 + k, 2)}, {vr(12 + k, 2)}, v[30:31] op_sel_hi:[1,0]')
    for k in range(8):
        rnd(12 + k, 12 + k)
    ln_mod(12, 8, F_C1, F_SH)
    for k in range(4):
        a(f'v_cvt_pk_bf16_f32 v{12 + k}, v{12 + 2 * k}, v{13 + 2 * k}')
    a(f'ds_write_b128 v44, v[12:15] offset:{L_A}\ns_cmp_lt_u32 s{S_W}, 4\ns_waitcnt lgkmcnt(0)\ns_barrier\ns_cbranch_scc1 L_exit')
    for kb in range(7):
        a(f'ds_read_b128 {vr(12 + 4 * kb, 4)}, v{V_L16} offset:{L_A + 1024 * kb}')
    for kb in range(7):
        a(f's_waitcnt lgkmcnt({6 - kb})')
        a(f'v_smfmac_f32_16x16x64_bf16 v[76:79], {vr(12 + 4 * kb, 4)}, {vr(W112 + 8 * kb, 8)}, v51')
        a(f'v_smfmac_f32_16x16x64_bf16 v[80:83], {vr(12 + 4 * kb, 4)}, {vr(W112 + 56 + 8 * kb, 8)}, v51')
    a('v_permlane32_swap_b32 v76, v78\nv_permlane32_swap_b32 v77, v79\nv_pk_add_f32 v[76:77], v[76:77], v[78:79]')
    a('v_permlane32_swap_b32 v80, v82')
    rnd(76, 76)
    rnd(77, 77)
    a('v_mul_f32 v12, s39, v76\nv_mul_f32 v13, s39, v77\nv_exp_f32 v12, v12\nv_exp_f32 v13, v13')
    a('v_permlane32_swap_b32 v81, v83')
    a('v_add_f32 v12, 1.0, v12\nv_add_f32 v13, 1.0, v13\nv_rcp_f32 v12, v12\nv_rcp_f32 v13, v13')
    a('v_pk_add_f32 v[80:81], v[80:81], v[82:83]')
    a('v_mul_f32 v12, v12, v76\nv_mul_f32 v13, v13, v77')
    for r in (80, 81, 12, 13):
        rnd(r, r)
    a('v_mul_f32 v12, v12, v80\nv_mul_f32 v13, v13, v81\nv_cvt_pk_bf16_f32 v12, v12, v13')
    a(f'ds_write_b16 v49, v12 offset:{L_H}\nds_write_b16_d16_hi v49, v12 offset:{L_H + 16}\ns_waitcnt lgkmcnt(0)\ns_barrier')
    a(f'ds_read_b128 v[12:15], v{V_AR} offset:{L_H}\nds_read_b128 v[16:19], v{V_AR} offset:{L_H + 512}\ns_waitcnt lgkmcnt(0)')

    def f2store(i):
        a(f'v_bfi_b32 v{52 + 4 * i}, s38, v50, v{52 + 4 * i}')
        a(f'buffer_store_dwordx4 {vr(52 + 4 * i, 4)}, v48, {sr(SRD_WS, 4)}, s{S_DST} offen sc1')
        if i < 6:
            a(f's_add_u32 s{S_DST}, s{S_DST}, 0x10000')
    for i in range(7):
        a(f'v_mfma_f32_16x16x32_bf16 {vr(52 + 4 * i, 4)}, {vr(W56 + 8 * i, 4)}, v[12:15], 0')
        a(f'v_mfma_f32_16x16x32_bf16 {vr(52 + 4 * i, 4)}, {vr(W56 + 8 * i + 4, 4)}, v[16:19], {vr(52 + 4 * i, 4)}')
        if i >= 2:
            f2store(i - 2)
    f2store(5)
    f2store(6)
    stamp(11)

    a('L_exit:')
    if cfg['probe']:
        cls, k = cfg['probe'][0], int(cfg['probe'][1:])
        a(f's_waitcnt lgkmcnt(0)\ns_cmp_ge_u32 s{S_W}, 4\ns_cbranch_scc{1 if cls == "s" else 0} L_end')
        if cls == 's':
            a('s_barrier\ns_barrier')
        a(f's_cmp_eq_u32 s{S_ST0 + 2 * k}, 0\ns_cbranch_scc1 L_end\ns_mov_b32 s{S_CNT}, 0')
        a(f'L_pw:\ns_memrealtime s[30:31]\ns_waitcnt lgkmcnt(0)\ns_sub_u32 s30, s30, s{S_ST0 + 2 * k}\ns_cmp_ge_u32 s30, 6000\ns_cbranch_scc1 L_end')
        a(f's_add_u32 s{S_CNT}, s{S_CNT}, 1\ns_cmp_lt_u32 s{S_CNT}, 100000\ns_cbranch_scc1 L_pw\ns_branch L_end')
    if cfg['stamps']:
        a('s_waitcnt lgkmcnt(0)\ns_mov_b64 exec, 1')
        a(f's_lshl_b32 s30, s2, 3\ns_add_u32 s30, s30, s{S_W}\ns_lshl_b32 s30, s30, 6\ns_add_u32 s30, s30, {WS_STAMP}\nv_mov_b32 v0, s30')
        for q in range(3):
            for k in range(4):
                a(f'v_mov_b32 v{4 + k + 4 * q}, s{S_ST0 + 2 * (4 * q + k)}')
            a(f'global_store_dwordx4 v0, {vr(4 + 4 * q, 4)}, {sr(P_WS, 2)} offset:{16 * q}')
        a(f'v_mov_b32 v16, s{S_CNT}\nglobal_store_dword v0, v16, {sr(P_WS, 2)} offset:48')
    a('L_end:\ns_endpgm')
    a('.section .rodata,"a"\n.p2align 6')
    a(f'.amdhsa_kernel {NAME}_kernel')
    a('.amdhsa_next_free_vgpr 256\n.amdhsa_next_free_sgpr 102\n.amdhsa_accum_offset 256\n.amdhsa_group_segment_fixed_size 0')
    a('.amdhsa_kernarg_size 112\n.amdhsa_user_sgpr_count 2\n.amdhsa_user_sgpr_kernarg_segment_ptr 1\n.amdhsa_system_sgpr_workgroup_id_x 1')
    a('.amdhsa_float_denorm_mode_32 3\n.end_amdhsa_kernel')
    if cfg['abl'] & 4:
        k = a.lines.index('L_chain:')
        a.lines = [l for i, l in enumerate(a.lines) if i > k or not l.startswith(('v_mfma', 'v_perm', 'v_add_f32_dpp', 'ds_read_b128'))]
    return head + a.text()


if __name__ == '__main__':
    kw = {}
    for x in sys.argv[2:]:
        k, v = x.split('=')
        kw[k] = int(v) if v.lstrip('-').isdigit() else v
    open(sys.argv[1], 'w').write(gen(**kw))
```

```python
import sys
from asmlib import Asm, vr, sr

NAME = 'adaLN_cond__sliding_block_cached__glu_gated_swiglu__decode'

WS_EPOCH = 0x0
WS_MOD = 0x1000
WS_Q = 0x20000
WS_ML = 0x40000
WS_CEN = 0x50000
WS_PL = 0x280000
WS_X1 = 0x60000
WS_OP = 0x80000
WS_PA = 0x100000
WS_PF = 0x180000
WS_STAMP = 0x200000
WS_SIZE = 0x400000

F_Q, F_SC, F_P, F_KT, F_VT, F_S1, F_S2, F_S3, F_S4, F_MT = 0, 4, 8, 16, 20, 24, 28, 32, 36, 40
L_ST, L_ST2 = 0x100, 0x200
L_Q, L_P, L_SC, L_A, L_H, L_W = 0x400, 0x800, 0x1000, 0x2000, 0x3C00, 0x4000
BLK = 1152
BLS = 1088
L_X = L_W + 56 * BLK
L_PAR = L_X + 64 * 1024
LDS_BYTES = L_X + 80 * 1024

S_W, S_H, S_B, S_D, S_R = 3, 4, 5, 6, 7
SRD_A, SRD_B, SRD_WS, SRD_C = 8, 12, 16, 20
S_E, S_C, S_CNT, S_JJ, S_E8 = 28, 29, 33, 34, 35
S_XO, S_FAST, P_DBG = 71, 75, 64
P_X, P_K, P_V, P_WQ, P_WO, P_W1, P_W3, P_W2, P_C, P_WM, P_OUT, P_WS = 40, 42, 44, 46, 48, 52, 54, 56, 58, 60, 62, 66
S_ST0 = 76
SP = 8
SPIN_CAP = 400000
LOG2E = 0x3FB8AA3B

DEF = dict(seg=((0, 7, 2, 14), (52, 7, 2, 12), (64, 7, 1, 12)), ktrig=60, vtrig=63, vsync=42, stamps=0, pref=1, probe='',
           prio=2, dflag=6, NL=16, mtrig=20, abl=0, fpre=4, fast=1, pref2=1, dbar=8, repz=1, pal=1, skip=1)
S_A, S_Bs, S_BASE, S_KB1, S_DST, S_ROLE = 68, 69, 70, 72, 73, 74


def gen(**kw):
    cfg = dict(DEF)
    cfg.update(kw)
    a = Asm()
    seg = cfg['seg']
    if isinstance(seg, str):
        seg = eval(seg)
    DV = seg[-1][1]
    KM = ([2, 1], [8, 16], [4, 32, 64, 128])
    lin = lambda cols, x: sum(c for k, c in enumerate(cols) if x >> k & 1) << 12
    WFL = 'nt'

    def stamp(k):
        if cfg['stamps']:
            a(f's_memrealtime {sr(S_ST0 + 2 * k, 2)}')

    def srd(d, p, size):
        a(f's_mov_b32 s{d}, s{p}\ns_mov_b32 s{d + 1}, s{p + 1}\ns_mov_b32 s{d + 2}, {size}\ns_mov_b32 s{d + 3}, 0x20000')

    def retry(lab):
        a(f's_add_u32 s{S_CNT}, s{S_CNT}, 1\ns_cmp_lt_u32 s{S_CNT}, {SPIN_CAP}\ns_cbranch_scc1 {lab}\ns_branch L_exit')

    def spin_lds(flag, n, t, two=False):
        top, done = a.lab('L_spin'), a.lab('L_got')
        a(f'{top}:\nv_mov_b32 v{t}, 0')
        if two:
            a(f'ds_read_b64 {vr(t, 2)}, v{t} offset:{flag}')
        else:
            a(f'ds_read_b32 v{t}, v{t} offset:{flag}')
        a(f's_waitcnt lgkmcnt(0)\nv_readfirstlane_b32 s31, v{t}\ns_cmp_ge_u32 s31, {n}\ns_cbranch_scc1 {done}')
        retry(top)
        a(f'{done}:')

    PEND = (8, 10, 12, 14, 42, 44, 46, 50)

    def poll(name, loads, tag8, between=None):
        top, chk, done = f'L_{name}poll', f'L_{name}chk', f'L_{name}got'
        for r, ins in loads:
            a(ins)
        if between:
            between()
        a(f's_branch {chk}\n{top}:')
        for k, (r, ins) in enumerate(loads):
            p = PEND[k]
            nx = a.lab('L_nx')
            a(f's_quadmask_b64 {sr(p, 2)}, {sr(p, 2)}')
            if cfg['skip'] and len(loads) > 2:
                a(f's_cbranch_scc0 {nx}')
            a(f's_bitreplicate_b64_b32 {sr(p, 2)}, s{p}\ns_wqm_b32 s{p}, s{p}\ns_bitreplicate_b64_b32 exec, s{p}\n{ins}\n{nx}:')
        a(f's_mov_b64 exec, -1\ns_add_u32 s{S_CNT}, s{S_CNT}, 1\ns_cmp_lt_u32 s{S_CNT}, {SPIN_CAP}\ns_cbranch_scc0 L_exit')
        a(f'{chk}:\ns_waitcnt vmcnt(0)')
        for k, (r, ins) in enumerate(loads):
            if tag8:
                a(f'v_cmp_ne_u32_sdwa {sr(PEND[k], 2)}, v{r}, s{S_E8} src0_sel:BYTE_0 src1_sel:DWORD')
            else:
                a(f'v_cmp_ne_u32_e64 {sr(PEND[k], 2)}, s{S_E}, v{r}')
        a(f's_or_b64 vcc, {sr(PEND[0], 2)}, {sr(PEND[1], 2)}')
        for k in range(2, len(loads)):
            a(f's_or_b64 vcc, vcc, {sr(PEND[k], 2)}')
        a(f's_cbranch_scc1 {top}')
        if tag8:
            for r, ins in loads:
                a(f'v_xor_b32 v{r}, s{S_E8}, v{r}')

    def census(t):
        a(f's_lshl_b32 s30, s{S_H}, 8\ns_add_u32 s30, s30, {WS_CEN}\nv_and_b32 v{t}, 31, v0\nv_lshlrev_b32 v{t}, 2, v{t}')
        a(f'buffer_load_dword v{t}, v{t}, {sr(SRD_WS, 4)}, s30 offen sc1')

    def census_done(t):
        a(f'v_cmp_eq_u32 vcc, s{S_XO}, v{t}\ns_bcnt1_i32_b32 s{S_FAST}, vcc_lo')

    def group_store(ins, cond=None):
        slow, done = a.lab('L_st'), a.lab('L_std')
        a(cond or f's_cmp_eq_u32 s{S_FAST}, {32 if cfg["fast"] else 99}')
        a(f's_cbranch_scc0 {slow}\n{ins}\ns_branch {done}\n{slow}:\n{ins} sc1\n{done}:')

    def code_prefetch(end):
        if not cfg['pref2']:
            return
        here, skip = a.lab('L_pc'), a.lab('L_npc')
        a(f's_cmp_eq_u32 s{S_C}, 3\ns_cbranch_scc0 {skip}')
        a(f's_getpc_b64 s[30:31]\n{here}:\nv_lshlrev_b32 v12, 7, v0\nv_min_u32 v12, {end}-{here}, v12\nglobal_load_dword v13, v12, s[30:31]')
        a(f'{skip}:')

    def flag_add(flag, t, inc=1):
        a(f'v_mov_b32 v{t}, 0\nv_mov_b32 v{t + 1}, {inc}\ns_mov_b64 exec, 1\nds_add_u32 v{t}, v{t + 1} offset:{flag}\ns_mov_b64 exec, -1')

    def rnd(d, s):
        a(f'v_cvt_pk_bf16_f32 v{d}, 0, v{s}')

    def rows_allreduce(op, x, t):
        a(f'v_mov_b32 v{t}, v{x}\nv_permlane16_swap_b32 v{x}, v{t}\n{op} v{x}, v{x}, v{t}')
        a(f'v_mov_b32 v{t}, v{x}\nv_permlane32_swap_b32 v{x}, v{t}\n{op} v{x}, v{x}, v{t}')

    def dpp(op, d, s0, s1, ctl, rm=0xf, bm=0xf):
        a(f'{op}_dpp v{d}, v{s0}, v{s1} {ctl} row_mask:{rm:#x} bank_mask:{bm:#x}')

    hdr = open('cdna_kernels/' + NAME + '.s.ref').read().split('; Override launch')[0]
    head = hdr + f'; @launch grid=(256,1,1) block=(512,1,1) lds={LDS_BYTES}\n'
    a('.amdgcn_target "amdgcn-amd-amdhsa--gfx950"\n.text')
    a(f'.globl {NAME}_kernel\n.p2align 8\n.type {NAME}_kernel,@function\n{NAME}_kernel:')
    a('s_load_dwordx16 s[40:55], s[0:1], 0\ns_load_dwordx8 s[56:63], s[0:1], 64\ns_load_dwordx4 s[64:67], s[0:1], 96')
    stamp(0)
    a(f'v_lshrrev_b32 v1, 6, v0\ns_lshr_b32 s{S_B}, s2, 5\ns_cmp_ge_u32 s{S_B}, 8\ns_cbranch_scc1 L_end')
    a(f'v_readfirstlane_b32 s{S_W}, v1\nv_and_b32 v0, 63, v0')
    a(f's_and_b32 s{S_H}, s2, 7\ns_lshr_b32 s{S_R}, s2, 3\ns_and_b32 s{S_D}, s{S_R}, 3')
    a(f's_lshl_b32 s30, s{S_B}, 1\ns_lshr_b32 s{S_ROLE}, 0xc0a0, s30\ns_and_b32 s{S_ROLE}, s{S_ROLE}, 3')
    a(f's_and_b32 s30, s{S_B}, s{S_H}\ns_cmp_eq_u32 s30, 7\ns_cselect_b32 s{S_ROLE}, 0, s{S_ROLE}')
    a(f's_cmp_lt_u32 s2, 42\ns_cselect_b32 s{S_ROLE}, 1, s{S_ROLE}')
    a(f's_cmp_ge_u32 s{S_W}, 4\ns_cbranch_scc1 L_chain')

    def common():
        if cfg['stamps']:
            for k in range(1, 12):
                if k != 9:
                    a(f's_mov_b64 {sr(S_ST0 + 2 * k, 2)}, 0')
        a(f's_mov_b32 s{S_CNT}, 0')

    def decode(vrow, vnt):
        a(f's_lshl2_add_u32 s{S_JJ}, s{S_H}, s{S_D}\ns_and_b32 s{S_C}, s{S_W}, 3')
        a(f's_and_b32 s31, s{S_R}, 7\ns_lshl3_add_u32 s30, s{S_H}, s31\ns_cmp_lt_u32 s2, 42\ns_cselect_b32 s30, s2, s30')
        a(f'v_bfe_u32 v{vrow}, v0, 1, 3')
        a(f'v_lshrrev_b32 v10, 4, v0\nv_and_b32 v11, 1, v0\nv_lshlrev_b32 v11, 4, v11\nv_lshl_or_b32 v{vnt}, v10, 5, v11')

    V_R8, V_NT, V_TR, V_AR, V_L16, V_XA, V_MA, V_DM = 1, 2, 3, 4, 5, 6, 7, 9

    def dma(srdn, nt, lds0, bar=-1, BLK=BLK):
        a(f's_lshl_b32 s30, s{S_C}, 1\ns_mul_i32 s31, s30, {BLK}\ns_add_u32 m0, s31, {lds0}')
        a(f's_mul_i32 s30, s30, s{S_A}\ns_add_u32 s30, s30, s{S_BASE}\ns_add_u32 s31, s30, s{S_A}')
        for t in range(nt):
            for u in range(2):
                k = 2 * t + u
                if k == bar:
                    a('s_barrier')
                a(f'buffer_load_dwordx4 v{V_DM}, {sr(srdn, 4)}, s{30 + u} offen {WFL} lds')
                if k < 2 * nt - 1:
                    a(f's_addk_i32 m0, {BLK if u == 0 else 7 * BLK}\ns_add_u32 s{30 + u}, s{30 + u}, s{S_Bs}')

    QA, QD, SC = 8, 24, 4
    RING = 32
    slot = lambda k: RING + 4 * k
    NL = cfg['NL']
    NSYNC = 56 + NL
    ACC = slot(0)
    parked = lambda n: 4 <= n < 4 + NL
    kslot = lambda n: slot((n - 4) % 8) if parked(n) else slot(n if n < 4 else n - NL)
    vidx = lambda i: 8 + (56 - NL + i) % 48
    vslot = lambda i: slot(vidx(i))
    S_LX = 27
    assert 8 <= NL <= 16
    a('v_and_b32 v4, 7, v0\nv_and_b32 v5, 48, v0\nv_lshl_or_b32 v1, v4, 9, v5\nv_and_b32 v5, 8, v0\nv_lshl_or_b32 v1, v5, 3, v1')
    a(f's_lshl3_add_u32 s32, s{S_B}, s{S_H}\ns_lshl2_add_u32 s32, s32, 3\ns_lshl_b32 s32, s32, 20')
    a(f's_lshl_b32 s37, s{S_D}, 15\ns_brev_b32 s31, s{S_W}\ns_lshr_b32 s31, s31, 18\ns_or_b32 s36, s37, s31')
    a(f's_mov_b32 s{SRD_A + 2}, 0x100000\ns_mov_b32 s{SRD_A + 3}, 0x20000')
    a(f's_cmp_lg_u32 s{S_ROLE}, 0\ns_cselect_b64 vcc, -1, 0')
    a('s_cbranch_scc1 L_role\nL_k0:')
    a('s_waitcnt lgkmcnt(0)')
    a(f's_add_u32 s{SRD_A}, s{P_K}, s32\ns_addc_u32 s{SRD_A + 1}, s{P_K + 1}, 0')
    stamp(9)

    def stream_setup():
        a('s_branch L_k4\nL_role:')
        decode(6, 7)
        a(f's_movk_i32 s26, 896\ns_mov_b32 s{SRD_C + 2}, 1605632\ns_mul_i32 s31, s{S_JJ}, 448\ns_waitcnt lgkmcnt(0)')
        a(f's_cmp_eq_u32 s{S_ROLE}, 1\ns_cmovk_i32 s26, 5376\ns_cmov_b32 s{SRD_C + 2}, 2408448\ns_cselect_b64 {sr(SRD_C, 2)}, {sr(P_WM, 2)}, {sr(P_W2, 2)}')
        a(f's_cmp_eq_u32 s{S_ROLE}, 2\ns_cmovk_i32 s26, 8192\ns_cmov_b32 s{SRD_C + 2}, 3670016\ns_cselect_b64 {sr(SRD_C, 2)}, {sr(P_WQ, 2)}, {sr(SRD_C, 2)}')
        a(f's_lshl_b32 s{S_A}, s26, 3\ns_lshl_b32 s{S_Bs}, s26, 6')
        a(f's_cmp_eq_u32 s{S_ROLE}, 3\ns_cmovk_i32 s{S_Bs}, 128\ns_cselect_b32 s30, s31, s30\ns_lshl_b32 s{S_BASE}, s30, 7')
        a(f's_mov_b32 s{SRD_C + 3}, 0x20000')
        a(f'v_mad_u32_u24 v{V_DM}, v6, s26, v7')
        if cfg['abl'] & 2:
            a('s_barrier')
        else:
            dma(SRD_C, 7, L_W, bar=cfg['dbar'])
        a('s_branch L_k0\nL_k4:')
        common()
        a(f's_lshl_b32 s{S_LX}, s{S_W}, 14\ns_add_u32 s{S_LX}, s{S_LX}, {L_X}')

    vdone = 0
    g0 = NL // 4
    regg = [0] + list(range(g0 + 1, 16))
    korder = [regg[2], regg[0], regg[1]]
    rest = regg[3:]
    for p in range(1, g0 + 1, 2):
        korder += [('rd', p)] + rest[:1] + [g for g in (p, p + 1) if g <= g0]
        rest = rest[1:]
    korder += rest
    kdone = set()
    qn = [0]

    def qk_post(gi, d):
        t, u = gi >> 2, gi & 3
        dpp('v_add_f32', SC + u, d + 1, d, 'row_ror:8', 1 << t, 0x3)
        dpp('v_add_f32', SC + u, d + 2, d + 3, 'row_ror:8', 1 << t, 0xc)

    def qk_some(landed, maxn):
        prev = None
        while korder and maxn:
            g = korder[0]
            if isinstance(g, tuple):
                for n in range(4 * g[1], min(4 * g[1] + 8, NL + 4)):
                    a(f'ds_read_b128 {vr(kslot(n), 4)}, v3 offset:{1024 * (n - 4)}')
                korder.pop(0)
                continue
            if 4 * g + 3 > landed:
                break
            korder.pop(0)
            maxn -= 1
            if parked(4 * g) and g % 2 == 1:
                a('s_waitcnt lgkmcnt(0)')
            d = QD + 4 * (qn[0] & 1)
            qn[0] += 1
            for j in range(4):
                a(f'v_mfma_f32_16x16x32_bf16 {vr(d, 4)}, {vr(QA + 4 * j, 4)}, {vr(kslot(4 * g + j), 4)}, {vr(d, 4) if j else 0}')
            if prev:
                qk_post(*prev)
            prev = (g, d)
            kdone.add(g)
        if prev:
            qk_post(*prev)
            if len(kdone) == 16:
                a(f's_lshl_b32 s31, s{S_W}, 10\nv_lshl_add_u32 v3, v0, 4, s31\nds_write_b128 v3, {vr(SC, 4)} offset:{L_SC}\ns_waitcnt lgkmcnt(0)')
                flag_add(F_SC, 4)
                stamp(3)

    def perms(dst_of, e0, G, r):
        lo, hi = vslot(8 * G + e0) + r, vslot(8 * G + e0 + 1) + r
        a(f'v_perm_b32 v{dst_of(2 * r) + e0 // 2}, v{hi}, v{lo}, s38')
        a(f'v_perm_b32 v{dst_of(2 * r + 1) + e0 // 2}, v{hi}, v{lo}, s39')

    def pv_mfma(G, j, b):
        a(f'v_mfma_f32_16x16x32_bf16 {vr(ACC + 4 * j, 4)}, {vr(QD + 4 * (G & 1), 4)}, {vr(b, 4)}, {vr(ACC + 4 * j, 4) if G else 0}')

    def pv_group(G):
        a('s_waitcnt lgkmcnt(0)')
        a(f'ds_read_b128 {vr(QD + 4 * ((G + 1) & 1), 4)}, v3 offset:{L_P + 256 * (G + 1)}')
        tmp = lambda j: QA + 4 * (j & 3)
        for r in range(4):
            for e0 in (0, 2, 4, 6):
                perms(tmp, e0, G, r)
            if r:
                pv_mfma(G, 2 * r - 1, tmp(2 * r - 1))
            pv_mfma(G, 2 * r, tmp(2 * r))
        pv_mfma(G, 7, tmp(7))

    for n in range(128):
        isk = n < 64
        n0, d, lite, rmask = [x for x in seg if x[0] <= n][-1]
        if n == 4:
            stream_setup()
        if n == n0 and n:
            a(f's_bitcmp1_b32 {rmask}, s{S_ROLE}\ns_cselect_b64 vcc, -1, 0')
        if n == 5:
            a('s_cbranch_vccnz L_nb\ns_barrier\nL_nb:')
        if n >= d:
            a(f's_waitcnt vmcnt({d - 1})')
        if lite and n >= d - lite:
            skip = a.lab('L_dp')
            a(f's_cbranch_vccnz {skip}\ns_waitcnt vmcnt({d - 1 - lite})\n{skip}:')
        landed = n - d
        if n == d - lite:
            stamp(10)
        if n == 2 * (d - lite):
            stamp(11)
        if n == 120:
            a('s_setprio 3')
        if n == cfg['dflag']:
            assert seg[0][3] == 14 and n >= 4
            skip = a.lab('L_df')
            a(f's_cbranch_vccz {skip}\ns_waitcnt vmcnt({cfg["dflag"]})')
            flag_add(F_S1, 4)
            a(f'{skip}:')
        if n == NSYNC:
            stamp(1)
            if not cfg['abl'] & 9:
                spin_lds(F_Q, 1, 4)
            stamp(2)
            a('v_lshrrev_b32 v4, 1, v0\nv_and_b32 v4, 1, v4\nv_and_b32 v5, 1, v0\nv_lshrrev_b32 v6, 4, v0\nv_lshlrev_b32 v6, 4, v6')
            a('v_lshl_or_b32 v6, v5, 6, v6\nv_lshl_or_b32 v3, v4, 9, v6')
            for j in range(4):
                a(f'ds_read_b128 {vr(QA + 4 * j, 4)}, v3 offset:{L_Q + 128 * j}')
            a(f'v_lshl_add_u32 v3, v0, 4, s{S_LX}')
            a('s_waitcnt lgkmcnt(0)')
            qk_some(landed, 1 if NL >= 8 else 2)
        if isk:
            if n >= NSYNC:
                assert (n - 56) // 4 in kdone
            if n and n % 4 == 0:
                a(f's_add_u32 s36, s36, {lin(KM[2], n >> 2) - lin(KM[2], (n >> 2) - 1)}')
            if parked(n):
                a(f's_add_u32 m0, s{S_LX}, {1024 * (n - 4) - 128 * (n & 3)}')
                a(f'buffer_load_dwordx4 v1, {sr(SRD_A, 4)}, s36 offen offset:{128 * (n & 3)} nt lds')
            else:
                a(f'buffer_load_dwordx4 {vr(kslot(n), 4)}, v1, {sr(SRD_A, 4)}, s36 offen offset:{128 * (n & 3)} nt')
        else:
            i = n - 64
            if i < 48:
                kn = vidx(i) + NL
                assert kn >= 64 or kn // 4 in kdone, (i, kdone)
            else:
                assert vdone > (i - 48) // 8
            a(f's_add_u32 s30, s37, {lin(KM[2], i >> 2) + lin(KM[0], i & 3)}')
            a(f'buffer_load_dwordx4 {vr(vslot(i), 4)}, v2, {sr(SRD_B, 4)}, s30 offen nt')
        if n == 8:
            a(f'v_and_b32 v4, 7, v0\nv_lshrrev_b32 v5, 3, v0\nv_lshlrev_b32 v4, 4, v4\nv_lshl_or_b32 v2, v5, 9, v4')
            a(f's_lshl_b32 s31, s{S_W}, 7\ns_or_b32 s37, s37, s31')
            a(f's_add_u32 s{SRD_B}, s{P_V}, s32\ns_addc_u32 s{SRD_B + 1}, s{P_V + 1}, 0\ns_mov_b32 s{SRD_B + 2}, 0x100000\ns_mov_b32 s{SRD_B + 3}, 0x20000')
            srd(SRD_WS, P_WS, WS_SIZE)
            a('s_mov_b32 s38, 0x05040100\ns_mov_b32 s39, 0x07060302')
        if n == cfg['ktrig']:
            assert n < NSYNC
            flag_add(F_KT, 4)
        if n == cfg['mtrig']:
            flag_add(F_MT, 4)
        if n == 64 + cfg['vtrig']:
            flag_add(F_VT, 4)
        if n >= NSYNC and korder:
            qk_some(landed, 4)
        if n == 64 + cfg['vsync']:
            assert len(kdone) == 16
            stamp(4)
            if not cfg['abl'] & 9:
                spin_lds(F_P, 1, 4, two=True)
            stamp(5)
            a(f'v_readfirstlane_b32 s{S_E}, v5\ns_sub_u32 s{S_FAST}, s31, 1')
            a('v_lshrrev_b32 v4, 1, v0\nv_and_b32 v4, 1, v4\nv_and_b32 v5, 1, v0\nv_lshrrev_b32 v6, 4, v0\nv_lshlrev_b32 v6, 5, v6')
            a('v_lshl_or_b32 v6, v5, 4, v6\nv_lshl_or_b32 v3, v4, 7, v6')
            a(f'ds_read_b128 {vr(QD, 4)}, v3 offset:{L_P}')
        if n >= 64 + cfg['vsync'] and vdone < 7 and 64 + 8 * vdone + 7 <= landed:
            pv_group(vdone)
            vdone += 1
    assert vdone == 7, vdone
    a(f's_lshl_b32 s30, s{S_H}, 2\ns_add_u32 s30, s30, s{S_W}\ns_lshl_b32 s30, s30, 14\ns_lshl_b32 s31, s{S_D}, 12\ns_add_u32 s30, s30, s31')
    a(f's_lshl_b32 s31, s{S_B}, 9\ns_add_u32 s30, s30, s31\ns_add_u32 s30, s30, {WS_OP}')
    a('v_and_b32 v8, 7, v0\nv_lshlrev_b32 v8, 4, v8\nv_and_b32 v9, 8, v0\nv_lshl_or_b32 v8, v9, 5, v8\nv_and_b32 v9, 16, v0\nv_lshl_or_b32 v8, v9, 3, v8')
    a(f's_movk_i32 s31, 0xff\nv_mov_b32 v9, s{S_E}')
    big = lambda j: vslot(24 + j)
    for pr in range(4):
        if 6 - 2 * pr < DV:
            a(f's_waitcnt vmcnt({6 - 2 * pr})')
        if pr < 3:
            for r in range(4):
                perms(big, 2 * pr, 7, r)
    stamp(6)
    a('s_waitcnt lgkmcnt(0)')

    def pv_post(j):
        d = ACC + 4 * j
        dpp('v_add_f32', 4 + (j & 3), d + 1, d, 'row_ror:8', 1 << (j >> 2), 0x3)
        dpp('v_add_f32', 4 + (j & 3), d + 2, d + 3, 'row_ror:8', 1 << (j >> 2), 0xc)
    perms(big, 6, 7, 0)
    perms(big, 6, 7, 1)
    pv_mfma(7, 0, big(0))
    perms(big, 6, 7, 2)
    pv_mfma(7, 1, big(1))
    perms(big, 6, 7, 3)
    for j in range(2, 8):
        pv_mfma(7, j, big(j))
        if j >= 4:
            pv_post(j - 4)
    for j in range(4, 8):
        pv_post(j)
    a('v_bfi_b32 v4, s31, v9, v4')
    a('s_mov_b32 exec_hi, 0')
    if not cfg['abl'] & 256:
        group_store(f'buffer_store_dwordx4 v[4:7], v8, {sr(SRD_WS, 4)}, s30 offen')
    a('s_barrier')
    stamp(7)
    a(f's_cmp_lt_u32 s{S_W}, 3\ns_cselect_b32 s30, s{S_ROLE}, 0\ns_cmp_eq_u32 s30, 3\ns_cbranch_scc1 L_fhelp')
    a('s_barrier\ns_branch L_exit')

    W56, W112, T0 = 88, 144, 12
    MASK8 = 's[36:37]'

    def trread(dst, nops, vaddr):
        for s in range(nops):
            for rp in range(2):
                a(f'ds_read_b64_tr_b16 {vr(dst + 4 * s + 2 * rp, 2)}, v{vaddr} offset:{s * 4 * BLK + rp * 128}')

    a('L_chain:')
    if cfg['prio']:
        a(f's_setprio {cfg["prio"]}')
    a('v_mov_b32 v4, 0\nv_mov_b32 v5, 0\nv_mov_b32 v6, 0\nv_mov_b32 v7, 0\nv_lshlrev_b32 v8, 4, v0\nds_write_b128 v8, v[4:7]')
    common()
    if cfg['stamps']:
        a(f's_mov_b64 {sr(S_ST0 + 18, 2)}, 0')
    decode(V_R8, V_NT)
    a(f'v_lshlrev_b32 v{V_L16}, 4, v0')
    a(f'v_and_b32 v11, 7, v0\nv_lshrrev_b32 v12, 3, v0\nv_lshlrev_b32 v13, 4, v11')
    a(f'v_mul_u32_u24 v{V_XA}, 896, v11\nv_lshl_add_u32 v{V_XA}, v12, 4, v{V_XA}\nv_lshl_or_b32 v{V_MA}, v12, 8, v13')
    a(f'v_lshl_or_b32 v{V_AR}, v10, 7, v13')
    a(f's_add_u32 s{S_KB1}, s{S_C}, 4\ns_min_u32 s{S_KB1}, s{S_KB1}, 6')
    a(f's_mov_b32 s31, {WS_Q}\ns_cmp_eq_u32 s{S_ROLE}, 1\ns_cselect_b32 s31, {WS_MOD}, s31\ns_lshl_b32 s{S_DST}, s30, 11\ns_add_u32 s{S_DST}, s{S_DST}, s31')
    a(f's_lshl_b32 s31, s{S_C}, 9\ns_add_u32 s{S_DST}, s{S_DST}, s31')
    a(f's_lshl_b32 s30, s{S_C}, 7\ns_lshl_b32 s31, s{S_KB1}, 7\nv_mov_b32 v13, 0')
    a(f's_mov_b32 s{SRD_C + 2}, 7168\ns_mov_b32 s{SRD_C + 3}, 0x20000')
    a('s_waitcnt lgkmcnt(0)\ns_barrier')
    if cfg['abl'] & 1:
        a('s_branch L_exit')
    srd(SRD_WS, P_WS, WS_SIZE)
    a(f's_cmp_eq_u32 s{S_ROLE}, 1\ns_cselect_b64 {sr(SRD_C, 2)}, {sr(P_C, 2)}, {sr(P_X, 2)}')
    a(f's_load_dword s{S_E}, {sr(P_WS, 2)}, 0')
    a(f's_sub_u32 s32, s{S_ROLE}, 1\ns_cmp_lt_u32 s32, 2\ns_cbranch_scc0 L_c0')
    a(f'buffer_load_dwordx4 v[228:231], v{V_XA}, {sr(SRD_C, 4)}, s30 offen')
    a(f'buffer_load_dwordx4 v[232:235], v{V_XA}, {sr(SRD_C, 4)}, s31 offen')
    a('L_c0:')
    if cfg['pref']:
        skip = a.lab('L_np')
        a(f's_cmp_eq_u32 s{S_R}, 6\ns_cbranch_scc0 {skip}')
        a('s_getpc_b64 s[24:25]\nL_pc0:')
        a(f's_sub_u32 s24, s24, L_pc0-{NAME}_kernel\ns_subb_u32 s25, s25, 0')
        a(f's_lshl_b32 s30, s{S_C}, 13\nv_lshl_add_u32 v12, v0, 7, s30\nv_min_u32 v12, L_end-{NAME}_kernel, v12')
        a('global_load_dword v14, v12, s[24:25]')
        a(f'{skip}:')
    a(f'v_mul_u32_u24 v{V_TR}, {BLK}, v10\nv_and_b32 v13, 15, v0\nv_lshl_add_u32 v{V_TR}, v13, 3, v{V_TR}')
    a(f's_lshl_b32 s26, s{S_C}, 8\ns_add_u32 s26, s26, {L_W}\nv_add_u32 v{V_TR}, s26, v{V_TR}')
    a('s_mov_b32 s36, 0x00ff00ff\ns_mov_b32 s37, 0x00ff00ff\nv_mov_b32 v85, 0')
    a('s_waitcnt vmcnt(0) lgkmcnt(0)')
    a(f's_add_u32 s{S_E}, s{S_E}, 1\ns_and_b32 s{S_E8}, s{S_E}, 0xff')
    a(f's_getreg_b32 s{S_XO}, hwreg(HW_REG_XCC_ID, 0, 3)\ns_lshl_b32 s{S_XO}, s{S_XO}, 29\ns_and_b32 s30, s{S_E}, 0x1fffffff\ns_or_b32 s{S_XO}, s{S_XO}, s30')
    a(f's_cmp_eq_u32 s{S_C}, 1\ns_cbranch_scc0 L_c1')
    a(f's_lshl_b32 s30, s{S_H}, 8\ns_lshl_b32 s31, s{S_R}, 2\ns_add_u32 s30, s30, s31\ns_add_u32 s30, s30, {WS_CEN}')
    a(f'v_mov_b32 v12, 0\nv_mov_b32 v14, s{S_XO}\ns_mov_b64 exec, 1\nbuffer_store_dword v14, v12, {sr(SRD_WS, 4)}, s30 offen\ns_mov_b64 exec, -1')
    a('L_c1:')
    a(f's_cmp_eq_u32 s{S_ROLE}, 0\ns_cbranch_scc1 L_mid')
    a(f's_cmp_eq_u32 s{S_ROLE}, 3\ns_cbranch_scc1 L_gemm0')
    for k in range(8):
        a(f'v_lshlrev_b32 v{12 + 2 * k}, 16, v{228 + k}\nv_and_b32 v{13 + 2 * k}, 0xffff0000, v{228 + k}')
    a(f's_cmp_eq_u32 s{S_ROLE}, 2\ns_cbranch_scc1 L_actQ')
    a(f's_mov_b32 s26, {LOG2E | 0x80000000:#x}')
    for k in range(16):
        a(f'v_mul_f32 v{28 + k}, s26, v{12 + k}')
    for k in range(16):
        a(f'v_exp_f32 v{28 + k}, v{28 + k}')
    for k in range(16):
        a(f'v_add_f32 v{28 + k}, 1.0, v{28 + k}')
    a('s_mov_b32 s27, 0x7f7fffff')
    for k in range(16):
        a(f'v_min_f32 v{28 + k}, s27, v{28 + k}')
    for k in range(16):
        a(f'v_rcp_f32 v{44 + k}, v{28 + k}')
    for k in range(0, 16, 2):
        a(f'v_pk_mul_f32 {vr(60 + k, 2)}, {vr(12 + k, 2)}, {vr(44 + k, 2)}')
    for k in range(0, 16, 2):
        a(f'v_pk_fma_f32 {vr(12 + k, 2)}, {vr(60 + k, 2)}, {vr(28 + k, 2)}, {vr(12 + k, 2)} neg_lo:[1,0,0] neg_hi:[1,0,0]')
    for k in range(0, 16, 2):
        a(f'v_pk_fma_f32 {vr(12 + k, 2)}, {vr(12 + k, 2)}, {vr(44 + k, 2)}, {vr(60 + k, 2)}')
    a('s_branch L_actW')

    def ln_scalars(mean, var, t):
        rnd(mean, mean)
        rnd(var, var)
        a(f'v_add_f32 v{var}, 0x3727c5ac, v{var}')
        rnd(var, var)
        a(f'v_sqrt_f32 v{var}, v{var}')
        rnd(t, var)
        a(f'v_rcp_f32 v{var}, v{t}')

    def ln_norm(x, n, mean2, rs2, exact=None):
        for k in range(0, n, 2):
            a(f'v_pk_add_f32 {vr(x + k, 2)}, {vr(x + k, 2)}, {vr(mean2, 2)} op_sel_hi:[1,0] neg_lo:[0,1] neg_hi:[0,1]')
        for k in range(n):
            rnd(x + k, x + k)
        for k in range(0, n, 2):
            a(f'v_pk_mul_f32 {vr((exact or x) + k, 2)}, {vr(x + k, 2)}, {vr(rs2, 2)} op_sel_hi:[1,0]')
        if exact:
            for k in range(0, n, 2):
                a(f'v_pk_fma_f32 {vr(x + k, 2)}, {vr(exact + k, 2)}, {vr(rs2, 2)}, {vr(x + k, 2)} op_sel:[0,1,0] op_sel_hi:[1,1,1] neg_lo:[1,0,0] neg_hi:[1,0,0]')
            for k in range(0, n, 2):
                a(f'v_pk_fma_f32 {vr(x + k, 2)}, {vr(x + k, 2)}, {vr(rs2, 2)}, {vr(exact + k, 2)} op_sel_hi:[1,0,1]')
        for k in range(n):
            rnd(x + k, x + k)

    def ln_mod(x, n, c1, sh):
        for k in range(0, n, 2):
            a(f'v_pk_mul_f32 {vr(x + k, 2)}, {vr(x + k, 2)}, {vr(c1 + k, 2)}')
        for k in range(n):
            rnd(x + k, x + k)
        for k in range(0, n, 2):
            a(f'v_pk_add_f32 {vr(x + k, 2)}, {vr(x + k, 2)}, {vr(sh + k, 2)}')

    def mod_params(blk_shift, blk_scale, sh, c1, raw):
        for q, base in enumerate((blk_shift, blk_scale)):
            a(f's_lshl_b32 s{24 + 2 * q}, s{S_C}, 11\ns_add_u32 s{24 + 2 * q}, s{24 + 2 * q}, {WS_MOD + base * 2048}')
            a(f's_lshl_b32 s{25 + 2 * q}, s{S_KB1}, 11\ns_add_u32 s{25 + 2 * q}, s{25 + 2 * q}, {WS_MOD + base * 2048}')
        poll(a.lab('m'), [(raw + 8 * q + 4 * h, f'buffer_load_dwordx3 {vr(raw + 8 * q + 4 * h, 3)}, v{V_MA}, {sr(SRD_WS, 4)}, s{24 + q} offen offset:{128 * h} sc1')
                          for q in range(4) for h in range(2)], False)
        for k in range(4):
            for dw in range(2):
                a(f'v_lshlrev_b32 v{sh + 4 * k + 2 * dw}, 16, v{raw + 4 * k + 1 + dw}\nv_and_b32 v{sh + 4 * k + 2 * dw + 1}, 0xffff0000, v{raw + 4 * k + 1 + dw}')
                a(f'v_lshlrev_b32 v{c1 + 4 * k + 2 * dw}, 16, v{raw + 16 + 4 * k + 1 + dw}\nv_and_b32 v{c1 + 4 * k + 2 * dw + 1}, 0xffff0000, v{raw + 16 + 4 * k + 1 + dw}')
        for k in range(16):
            a(f'v_add_f32 v{c1 + k}, 1.0, v{c1 + k}')
        for k in range(16):
            rnd(c1 + k, c1 + k)

    def write_act(x):
        for k in range(8):
            a(f'v_cvt_pk_bf16_f32 v{x + k}, v{x + 2 * k}, v{x + 2 * k + 1}')
        a(f's_lshl_b32 s30, s{S_C}, 10\ns_lshl_b32 s31, s{S_KB1}, 10\nv_add_u32 v10, s30, v{V_L16}\nv_add_u32 v11, s31, v{V_L16}')
        a(f'ds_write_b128 v10, {vr(x, 4)} offset:{L_A}\nds_write_b128 v11, {vr(x + 4, 4)} offset:{L_A}')

    def stats_setup():
        a(f'v_lshrrev_b32 v47, 5, v0\nv_and_b32 v45, 0x70, v{V_AR}\nv_lshl_or_b32 v47, v47, 7, v45\ns_lshl_b32 s30, s{S_C}, 2\nv_add_u32 v47, s30, v47')
        a(f's_cmp_eq_u32 s{S_C}, 3\ns_cselect_b32 s30, 0, 1.0\nv_mov_b32 v44, s30')

    def stats_local():
        for q in range(2):
            x, p = 12 + 8 * q, 28 + 6 * q
            a(f'v_pk_add_f32 {vr(p, 2)}, {vr(x, 2)}, {vr(x + 2, 2)}\nv_pk_mul_f32 {vr(p + 2, 2)}, {vr(x, 2)}, {vr(x, 2)}\nv_pk_add_f32 {vr(p + 4, 2)}, {vr(x + 4, 2)}, {vr(x + 6, 2)}')
        for k in (2, 4, 6):
            for q in range(2):
                x, p = 12 + 8 * q, 28 + 6 * q
                a(f'v_pk_fma_f32 {vr(p + 2, 2)}, {vr(x + k, 2)}, {vr(x + k, 2)}, {vr(p + 2, 2)}')
                if k == 2:
                    a(f'v_pk_add_f32 {vr(p, 2)}, {vr(p, 2)}, {vr(p + 4, 2)}')
        a('v_pk_fma_f32 v[28:29], v[34:35], v[44:45], v[28:29] op_sel_hi:[1,0,1]\nv_pk_fma_f32 v[30:31], v[36:37], v[44:45], v[30:31] op_sel_hi:[1,0,1]')
        a('v_add_f32 v28, v28, v29\nv_add_f32 v30, v30, v31')
        a('v_permlane32_swap_b32 v28, v30\nv_add_f32 v28, v28, v30')
        a('v_mov_b32 v30, v28\nv_permlane16_swap_b32 v28, v30\nv_add_f32 v28, v28, v30')
        dpp('v_add_f32', 28, 28, 28, 'row_ror:8')
        a(f'ds_write_b32 v47, v28 offset:{L_ST}\ns_waitcnt lgkmcnt(0)')

    def stats_final():
        a(f'ds_read_b128 v[28:31], v45 offset:{L_ST}\nds_read_b128 v[32:35], v45 offset:{L_ST + 128}\ns_waitcnt lgkmcnt(0)')
        a('v_pk_add_f32 v[28:29], v[28:29], v[30:31]\nv_pk_add_f32 v[32:33], v[32:33], v[34:35]')
        a('v_add_f32 v28, v28, v29\nv_add_f32 v30, v32, v33\nv_mul_f32 v28, 0x3b124925, v28\nv_mul_f32 v30, 0x3b124925, v30')
        a('v_fma_f32 v30, -v28, v28, v30\nv_max_f32 v30, 0, v30')

    a('L_actQ:')
    stats_setup()
    stats_local()
    flag_add(F_S3, 10)
    spin_lds(F_S3, 4, 10)
    stats_final()
    ln_scalars(28, 30, 31)
    ln_norm(12, 16, 28, 30, exact=44)
    spin_lds(F_MT, 1, 10)
    stamp(1)
    census(76)
    mod_params(0, 7, 28, 44, 144)
    census_done(76)
    stamp(2)
    ln_mod(12, 16, 44, 28)
    a('L_actW:')
    write_act(12)
    a('L_gemm0:')
    a('s_waitcnt lgkmcnt(0)')
    flag_add(F_S1, 10)
    spin_lds(F_S1, 8, 10)
    stamp(3)
    trread(W56, 14, V_TR)
    a(f's_cmp_eq_u32 s{S_ROLE}, 3\ns_cbranch_scc1 L_mid')
    for s in range(14):
        a(f'ds_read_b128 {vr(T0 + 4 * s, 4)}, v{V_AR} offset:{L_A + 512 * s}')
    a('s_waitcnt lgkmcnt(0)')
    for s in range(14):
        a(f'v_mfma_f32_16x16x32_bf16 v[68:71], {vr(W56 + 4 * s, 4)}, {vr(T0 + 4 * s, 4)}, {"v[68:71]" if s else 0}')
    a(f'v_mov_b32 v72, s{S_E}\nv_mov_b32 v75, s{S_E}')
    a('v_cvt_pk_bf16_f32 v73, v68, v69\nv_cvt_pk_bf16_f32 v74, v70, v71')
    a(f's_cmp_eq_u32 s{S_ROLE}, 2\ns_cbranch_scc1 L_pubQ')
    a(f's_mov_b64 exec, {MASK8}')
    a(f'buffer_store_dwordx4 v[72:75], v{V_AR}, {sr(SRD_WS, 4)}, s{S_DST} offen sc1')
    a('s_mov_b64 exec, -1\ns_branch L_pub')
    a('L_pubQ:')
    a(f'v_and_b32 v12, 7, v0\nv_lshrrev_b32 v13, 4, v0\nv_lshlrev_b32 v13, 3, v13\nv_lshl_or_b32 v12, v12, 7, v13\ns_lshl_b32 s30, s{S_C}, 5\ns_add_u32 s30, s30, {L_H}\nv_add_u32 v12, s30, v12')
    a('ds_write2_b32 v12, v73, v74 offset0:0 offset1:1\ns_waitcnt lgkmcnt(0)')
    flag_add(F_S4, 10)
    spin_lds(F_S4, 4, 10)
    a(f's_lshl_b32 s30, s{S_C}, 8\ns_add_u32 s30, s30, {L_H}\nv_lshl_add_u32 v12, v0, 3, s30\nds_read_b64 v[14:15], v12\ns_waitcnt lgkmcnt(0)')
    a('v_mov_b32 v73, v14\nv_mov_b32 v74, v15\ns_mov_b32 exec_hi, 0')
    group_store(f'buffer_store_dwordx4 v[72:75], v{V_L16}, {sr(SRD_WS, 4)}, s{S_DST} offen')
    a('s_mov_b64 exec, -1')
    a('L_pub:')
    stamp(4)

    a('L_mid:')
    a('s_waitcnt lgkmcnt(0)')
    flag_add(F_VT, 12, 16)
    a(f's_cmp_eq_u32 s{S_C}, 0\ns_cbranch_scc0 L_noq')
    spin_lds(F_KT, 1, 12)
    a(f's_lshl_b32 s30, s{S_H}, 14\ns_lshl_b32 s31, s{S_B}, 8\ns_add_u32 s30, s30, s31\ns_add_u32 s30, s30, {WS_Q}\ns_add_u32 s31, s30, 8192')
    a(f'v_lshrrev_b32 v12, 4, v0\nv_and_b32 v14, 0xf0, v{V_L16}\nv_lshl_or_b32 v14, v12, 11, v14\nv_lshlrev_b32 v15, 3, v0')
    two = [(16 + 4 * k, f'buffer_load_dwordx3 {vr(16 + 4 * k, 3)}, v14, {sr(SRD_WS, 4)}, s{30 + k} offen sc1') for k in range(2)]
    poll('q', two, False)
    a(f'v_add_u32 v15, {L_Q}, v15')
    a('ds_write2_b32 v15, v17, v18 offset0:0 offset1:1\nds_write2_b32 v15, v21, v22 offset0:128 offset1:129\ns_waitcnt lgkmcnt(0)')
    flag_add(F_Q, 12)
    stamp(5)
    a('L_noq:')
    Z_GA, Z_GB, Z_X, Z_TAG, Z_OA = 80, 81, 82, 83, 85
    S_Z = 39

    def zrole(out):
        a(f's_cmp_lt_u32 s{S_H}, 7\ns_cbranch_scc0 {out}\ns_cmp_ge_u32 s{S_C}, 2\ns_cbranch_scc0 {out}')
        a(f's_lshl1_add_u32 s{S_Z}, s{S_R}, s{S_C}\ns_sub_u32 s{S_Z}, s{S_Z}, 2')
        if not cfg['repz']:
            a(f's_cmp_eq_u32 s{S_B}, s{S_H}\ns_cbranch_scc0 {out}')
    a(f's_cmp_lt_u32 s{S_B}, 7\ns_cbranch_scc0 L_noz')
    zrole('L_noz')
    spin_lds(F_Q, 1, 12)
    a(f's_mov_b64 {sr(SRD_C, 2)}, {sr(P_X, 2)}')
    a(f's_lshl_b32 s30, s{S_Z}, 8\ns_add_u32 s31, s30, {WS_MOD + 35 * 2048}\ns_add_u32 s30, s30, {WS_MOD + 14 * 2048}')
    a('v_and_b32 v14, 15, v0\nv_lshlrev_b32 v14, 4, v14')
    a(f'v_and_b32 v12, 7, v0\nv_mul_u32_u24 v12, 896, v12\nv_and_b32 v13, 8, v0\nv_add_u32 v12, v12, v13\nv_lshrrev_b32 v13, 4, v0\nv_lshl_add_u32 v12, v13, 1, v12')
    a(f's_lshl_b32 s27, s{S_Z}, 4\nv_add_u32 v{Z_OA}, s27, v12')
    a(f'buffer_load_ushort v{Z_X}, v{Z_OA}, {sr(SRD_C, 4)}, 0 offen')
    poll('z', two, False)
    a('v_cmp_lt_u32 vcc, 31, v0\nv_cndmask_b32 v17, v17, v18, vcc\nv_cndmask_b32 v21, v21, v22, vcc')
    a('v_and_b32 v13, 16, v0\nv_lshrrev_b32 v17, v13, v17\nv_lshrrev_b32 v21, v13, v21')
    a(f'v_lshlrev_b32 v{Z_GA}, 16, v17\nv_lshlrev_b32 v{Z_GB}, 16, v21\nv_lshlrev_b32 v{Z_X}, 16, v{Z_X}')
    a(f'v_cmp_gt_u32 vcc, 16, v0\nv_mov_b32 v13, s{S_E8}\nv_cndmask_b32 v{Z_TAG}, 0, v13, vcc')
    a('L_noz:')
    F_SH, F_C1 = 52, 68
    a(f's_cmp_eq_u32 s{S_ROLE}, 3\ns_cbranch_scc0 L_nofp')
    spin_lds(F_Q, 1, 12)
    mod_params(21, 28, F_SH, F_C1, 144)
    a(f's_lshl_b32 s30, s{S_C}, 12\ns_add_u32 s30, s30, {L_PAR}\nv_add_u32 v12, s30, v{V_L16}')
    for k, r in enumerate((F_SH + 8, F_SH + 12, F_C1 + 8, F_C1 + 12)):
        a(f'ds_write_b128 v12, {vr(r, 4)} offset:{1024 * k}')
    a('L_nofp:')
    a(f's_cmp_eq_u32 s{S_C}, 1\ns_cbranch_scc0 L_nosm')
    a(f's_lshl_b32 s26, s{S_B}, 3\ns_or_b32 s26, s26, s{S_H}\ns_lshl_b32 s26, s26, 9\ns_add_u32 s26, s26, {WS_ML}\ns_lshl_b32 s27, s{S_D}, 7\ns_add_u32 s27, s27, s26')
    a('v_lshrrev_b32 v13, 4, v0')
    a(f'v_mov_b32 v49, v{V_AR}')
    a('v_and_b32 v50, 15, v0\nv_lshlrev_b32 v50, 4, v50\nv_lshl_or_b32 v50, v13, 9, v50')
    a('s_mov_b32 s32, 0x3db8aa3b')
    spin_lds(F_KT, 1, 12)
    census(48)
    spin_lds(F_SC, 4, 12)
    a('s_waitcnt vmcnt(0)')
    census_done(48)
    stamp(6)
    for w in range(4):
        a(f'ds_read_b128 {vr(12 + 4 * w, 4)}, v{V_L16} offset:{L_SC + 1024 * w}')
    a('s_waitcnt lgkmcnt(0)')
    for k in range(16):
        rnd(12 + k, 12 + k)
    a('v_max3_f32 v45, v12, v13, v14')
    for k in range(15, 27, 2):
        a(f'v_max3_f32 v45, v45, v{k}, v{k + 1}')
    a('v_max_f32 v45, v45, v27')

    def head_allreduce(op, x, t):
        dpp(op, x, x, x, 'quad_perm:[1,0,3,2]')
        dpp(op, x, x, x, 'quad_perm:[2,3,0,1]')
        dpp(op, x, x, x, 'row_half_mirror')
        rows_allreduce(op, x, t)

    def exps(m):
        for k in range(16):
            a(f'v_sub_f32 v{28 + k}, v{12 + k}, v{m}')
        for k in range(16):
            a(f'v_mul_f32 v{28 + k}, s32, v{28 + k}')
        for k in range(16):
            a(f'v_exp_f32 v{28 + k}, v{28 + k}')
    head_allreduce('v_max_f32', 45, 47)
    exps(45)
    for st in (8, 4, 2):
        for k in range(0, st, 2):
            a(f'v_pk_add_f32 {vr(28 + k, 2)}, {vr(28 + k, 2)}, {vr(28 + st + k, 2)}')
    a('v_add_f32 v46, v28, v29')
    head_allreduce('v_add_f32', 46, 47)
    a(f's_and_b32 s30, s{S_E}, 0xffff\ns_lshr_b32 s31, s{S_E}, 16\nv_or_b32 v28, s30, v45\nv_mov_b32 v29, v46\nv_mov_b32 v30, s31')
    a('v_mov_b32_dpp v31, v46 row_ror:8 row_mask:0xf bank_mask:0xf')
    dpp('v_or_b32', 30, 45, 30, 'row_ror:8')
    a('s_mov_b64 exec, 0xff')
    group_store(f'buffer_store_dwordx4 v[28:31], v{V_L16}, {sr(SRD_WS, 4)}, s27 offen')
    a('s_mov_b64 exec, -1')
    a('s_mov_b32 s30, 0x05040100')
    a('L_mlpoll:')
    a(f'buffer_load_dwordx4 v[32:35], v49, {sr(SRD_WS, 4)}, s26 offen sc1\ns_waitcnt vmcnt(0)')
    a(f'v_perm_b32 v36, v34, v32, s30\nv_cmp_ne_u32 vcc, s{S_E}, v36\ns_cbranch_vccz L_mlgot')
    retry('L_mlpoll')
    a('L_mlgot:')
    stamp(7)
    a(f'v_cndmask_b32 v29, v34, v32, {MASK8}\nv_cndmask_b32 v30, v35, v33, {MASK8}\nv_and_b32 v29, 0xffff0000, v29')
    a('v_mov_b32 v45, v29')
    rows_allreduce('v_max_f32', 45, 47)
    a('v_sub_f32 v29, v29, v45\nv_mul_f32 v29, s32, v29\nv_exp_f32 v29, v29\nv_mul_f32 v46, v29, v30')
    rows_allreduce('v_add_f32', 46, 47)
    a('v_rcp_f32 v46, v46')
    exps(45)
    for k in range(0, 16, 2):
        a(f'v_pk_mul_f32 {vr(28 + k, 2)}, {vr(28 + k, 2)}, v[46:47] op_sel_hi:[1,0]')
    for uh in range(2):
        for dd in range(4):
            u, x = 2 * uh + (dd >> 1), dd & 1
            a(f'v_cvt_pk_bf16_f32 v{12 + 4 * uh + dd}, v{28 + 4 * (2 * x) + u}, v{28 + 4 * (2 * x + 1) + u}')
    a(f'ds_write_b128 v50, v[12:15] offset:{L_P}\nds_write_b128 v50, v[16:19] offset:{L_P + 256}')
    a(f's_add_u32 s30, s{S_FAST}, 1\nv_mov_b32 v20, s30\nv_mov_b32 v21, s{S_E}\nv_mov_b32 v22, 0\ns_waitcnt lgkmcnt(0)\nds_write_b64 v22, v[20:21] offset:{F_P}')
    stamp(8)
    a('L_nosm:')

    if cfg['abl'] & 16:
        a('s_branch L_exit')
    a(f's_cmp_eq_u32 s{S_ROLE}, 3\ns_cbranch_scc1 L_ffn')
    if cfg['abl'] & 64:
        a('s_branch L_exit')
    a(f's_cmp_eq_u32 s{S_B}, 7\ns_cbranch_scc1 L_exit')
    srd(SRD_A, P_WO, 3670016)
    a(f's_movk_i32 s32, 896\ns_movk_i32 s{S_A}, 7168\ns_mov_b32 s{S_Bs}, 229376')
    a(f's_lshl_b32 s30, s{S_H}, 9\ns_lshl_b32 s31, s{S_D}, 6\ns_add_u32 s30, s30, s31\ns_mul_i32 s30, s30, 896\ns_lshl_b32 s31, s{S_B}, 7\ns_add_u32 s{S_BASE}, s30, s31')
    a(f'v_mad_u32_u24 v{V_DM}, v{V_R8}, s32, v{V_NT}')
    a(f's_lshl_b32 s24, s{S_JJ}, 14\ns_lshl_b32 s30, s{S_C}, 7\ns_add_u32 s24, s24, s30\ns_add_u32 s24, s24, {WS_OP}')
    a('s_add_u32 s25, s24, 4096\ns_add_u32 s26, s24, 8192\ns_add_u32 s27, s24, 12288')
    a('v_and_b32 v12, 7, v0\nv_lshrrev_b32 v13, 3, v0\nv_lshlrev_b32 v14, 4, v12\nv_lshl_or_b32 v40, v13, 9, v14')
    a('v_lshlrev_b32 v14, 4, v13\nv_lshl_or_b32 v41, v12, 7, v14')
    a(f's_lshr_b32 s30, s{S_C}, 1\ns_lshl_b32 s30, s30, 10\ns_and_b32 s31, s{S_C}, 1\ns_lshl_b32 s31, s31, 3\ns_add_u32 s30, s30, s31\nv_add_u32 v41, s30, v41')
    a(f'v_and_b32 v14, 0xff, v{V_AR}\nv_and_b32 v13, 8, v0\nv_lshl_or_b32 v14, v13, 27, v14')
    a('v_lshrrev_b32 v13, 5, v0\nv_lshl_or_b32 v42, v13, 13, v14\nv_lshl_or_b32 v44, v13, 10, v14')
    a(f's_mul_i32 s23, s{S_H}, 56\ns_lshl3_add_u32 s23, s{S_B}, s23\ns_lshl1_add_u32 s23, s{S_C}, s23\ns_lshl2_add_u32 s23, s23, s{S_D}\ns_lshl_b32 s23, s23, 8\ns_add_u32 s23, s23, {WS_PL}')
    a(f's_lshl_b32 s{S_DST}, s{S_B}, 16\ns_lshl_b32 s30, s{S_JJ}, 8\ns_add_u32 s{S_DST}, s{S_DST}, s30\ns_lshl_b32 s30, s{S_C}, 14\ns_add_u32 s{S_DST}, s{S_DST}, s30')
    a(f's_add_u32 s{S_DST}, s{S_DST}, {WS_PA}\nv_mov_b32 v43, s{S_E}\ns_movk_i32 s38, 0xff')
    spin_lds(F_VT, 68, 12)
    dma(SRD_A, 2, L_W)
    code_prefetch('L_ffn')
    a(f'v_mov_b32 v12, 0\nds_read_b32 v12, v12 offset:{F_P}\ns_waitcnt lgkmcnt(0)\nv_readfirstlane_b32 s{S_FAST}, v12\ns_sub_u32 s{S_FAST}, s{S_FAST}, 1')
    a('s_waitcnt vmcnt(0)\ns_barrier')
    stamp(9)
    if cfg['abl'] & 32:
        a('s_branch L_exit')

    poll('w', [(12 + 4 * s, f'buffer_load_dwordx4 {vr(12 + 4 * s, 4)}, v40, {sr(SRD_WS, 4)}, s{24 + s} offen sc1') for s in range(4)], True,
         lambda: trread(W56, 4, V_TR))
    a('v_pk_add_f32 v[12:13], v[12:13], v[16:17]\nv_pk_add_f32 v[20:21], v[20:21], v[24:25]')
    a('v_pk_add_f32 v[14:15], v[14:15], v[18:19]\nv_pk_add_f32 v[22:23], v[22:23], v[26:27]')
    a('v_pk_add_f32 v[12:13], v[12:13], v[20:21]\nv_pk_add_f32 v[14:15], v[14:15], v[22:23]')
    a('v_cvt_pk_bf16_f32 v12, v12, v13\nv_cvt_pk_bf16_f32 v13, v14, v15')
    a(f'ds_write_b64 v41, v[12:13] offset:{L_A}\ns_waitcnt lgkmcnt(0)\ns_barrier')
    for s in range(4):
        a(f'ds_read_b128 {vr(12 + 4 * s, 4)}, v{V_AR} offset:{L_A + 512 * s}')
    for s in range(4):
        a(f's_waitcnt lgkmcnt({3 - s})')
        a(f'v_mfma_f32_16x16x32_bf16 v[28:31], {vr(W56 + 4 * s, 4)}, {vr(12 + 4 * s, 4)}, {"v[28:31]" if s else 0}')
    a('v_bfi_b32 v28, s38, v43, v28')
    a(f'buffer_store_dwordx4 v[28:31], v42, {sr(SRD_WS, 4)}, s{S_DST} offen sc1')
    if cfg['pal']:
        group_store(f'buffer_store_dwordx4 v[28:31], v44, {sr(SRD_WS, 4)}, s23 offen')
    stamp(10)
    if cfg['abl'] & 128:
        a('s_branch L_exit')
    zrole('L_exit')
    ZO = (20, 21, 22, 23, 24, 25, 26, 27)
    a(f's_lshl_b32 s30, s{S_Z}, 13\ns_add_u32 s{ZO[0]}, s30, {WS_PA}')
    for u in range(1, 8):
        a(f's_add_u32 s{ZO[u]}, s{ZO[0]}, {1024 * u}')
    if cfg['pal']:
        a(f's_mul_i32 s31, s{S_H}, 56\ns_add_u32 s31, s31, s{S_Z}\ns_lshl_b32 s31, s31, 10\ns_add_u32 s31, s31, {WS_PL}')
        a(f's_mov_b32 m0, s{S_H}\ns_nop 0\ns_movreld_b32 s{ZO[0]}, s31')
    a(f's_lshl_b32 s32, s{S_Z}, 8\ns_add_u32 s32, s32, {WS_X1}')
    if cfg['repz']:
        a(f's_lshl_b32 s31, s{S_H}, 14\ns_add_u32 s32, s32, s31')

    def gather(name, n, off):
        poll(name, [(12 + 4 * u, f'buffer_load_dwordx4 {vr(12 + 4 * u, 4)}, v{V_L16}, {sr(SRD_WS, 4)}, ' + off(u) + ' sc1')
                    for u in range(n)], True)
        for st in (4, 2, 1):
            for u in range(st):
                if u + st < n:
                    for h in (0, 2):
                        a(f'v_pk_add_f32 {vr(12 + 4 * u + h, 2)}, {vr(12 + 4 * u + h, 2)}, {vr(12 + 4 * (u + st) + h, 2)}')
        a('v_permlane32_swap_b32 v12, v14\nv_permlane32_swap_b32 v13, v15\nv_pk_add_f32 v[12:13], v[12:13], v[14:15]')
        a('v_permlane16_swap_b32 v12, v13\nv_add_f32 v12, v12, v13')

    gather('a', 8, lambda u: f's{ZO[u]} offen')
    rnd(12, 12)
    a(f'v_mul_f32 v12, v{Z_GA}, v12')
    rnd(12, 12)
    a(f'v_add_f32 v12, v{Z_X}, v12')
    rnd(Z_X, 12)
    a(f'v_or_b32 v48, v{Z_TAG}, v{Z_X}\nv_mov_b32 v49, v{Z_X}\nv_permlane16_swap_b32 v48, v49')
    a('v_mov_b32 v50, v48\nv_mov_b32 v51, v49\nv_permlane32_swap_b32 v48, v50\nv_permlane32_swap_b32 v49, v51')
    a('s_mov_b64 exec, 0xffff')
    if cfg['repz']:
        group_store(f'buffer_store_dwordx4 v[48:51], v{V_L16}, {sr(SRD_WS, 4)}, s32 offen')
    else:
        a(f'buffer_store_dwordx4 v[48:51], v{V_L16}, {sr(SRD_WS, 4)}, s32 offen sc1')
    a('s_mov_b64 exec, -1')
    stamp(1)
    a(f's_cmp_eq_u32 s{S_B}, s{S_H}\ns_cbranch_scc0 L_exit')
    srd(SRD_C, P_OUT, 7168)
    a(f'v_mov_b32 v44, s{S_E}\nv_mov_b32 v47, 0')
    a(f's_add_u32 s24, s30, {WS_PF}\ns_add_u32 s25, s24, 4096')
    gather('f', 7, lambda u: f's{24 + (u >> 2)} offen offset:{1024 * (u & 3)}')
    rnd(12, 12)
    a(f'v_mul_f32 v12, v{Z_GB}, v12')
    rnd(12, 12)
    a(f'v_add_f32 v12, v{Z_X}, v12\nv_cvt_pk_bf16_f32 v12, v12, v12')
    a(f'buffer_store_short v12, v{Z_OA}, {sr(SRD_C, 4)}, 0 offen')
    stamp(2)
    a(f's_cmp_eq_u32 s{S_Z}, 0\ns_cbranch_scc0 L_exit')
    a(f's_mov_b64 exec, 1\nbuffer_store_dword v44, v47, {sr(SRD_WS, 4)}, 0 offen sc1\ns_mov_b64 exec, -1')
    a('s_branch L_exit')

    a('L_ffn:')
    if cfg['abl'] & 128:
        a('s_branch L_exit')
    srd(SRD_A, P_W1, 1605632)
    srd(SRD_B, P_W3, 1605632)
    a(f's_movk_i32 s32, 3584\ns_movk_i32 s{S_A}, 28672\ns_mov_b32 s{S_Bs}, 229376\ns_lshl_b32 s{S_BASE}, s{S_JJ}, 7')
    a(f'v_mad_u32_u24 v{V_DM}, v{V_R8}, s32, v{V_NT}')
    a(f'v_lshrrev_b32 v12, 5, v0\nv_bfe_u32 v13, v0, 3, 1\nv_lshl_or_b32 v12, v12, 1, v13\nv_mul_u32_u24 v12, {BLS}, v12')
    a('v_and_b32 v13, 16, v0\nv_lshl_add_u32 v12, v13, 3, v12\nv_and_b32 v13, 7, v0\nv_lshl_add_u32 v12, v13, 3, v12')
    a(f's_lshl_b32 s30, s{S_C}, 8\ns_add_u32 s30, s30, {L_W}\nv_add_u32 v{V_TR}, s30, v12\nv_add_u32 v46, {56 * BLK}, v{V_TR}')
    a(f'v_and_b32 v14, 0xff, v{V_AR}\nv_and_b32 v13, 8, v0\nv_lshl_or_b32 v14, v13, 27, v14\nv_lshrrev_b32 v13, 5, v0\nv_lshl_or_b32 v48, v13, 13, v14')
    a(f's_lshl_b32 s{S_DST}, s{S_JJ}, 8\ns_lshl_b32 s30, s{S_C}, 14\ns_add_u32 s{S_DST}, s{S_DST}, s30\ns_add_u32 s{S_DST}, s{S_DST}, {WS_PF}')
    a('v_and_b32 v12, 7, v0\nv_lshlrev_b32 v12, 1, v12\nv_and_b32 v13, 8, v0\nv_lshl_or_b32 v12, v13, 4, v12\nv_and_b32 v13, 16, v0\nv_lshl_or_b32 v12, v13, 2, v12')
    a(f'v_and_b32 v13, 32, v0\nv_or_b32 v12, v12, v13\ns_lshl_b32 s30, s{S_C}, 8\nv_add_u32 v49, s30, v12')
    a(f'v_mov_b32 v50, s{S_E}\ns_movk_i32 s38, 0xff\ns_mov_b32 s39, {LOG2E | 0x80000000:#x}')
    a(f'v_mov_b32 v12, 0x4444\nv_mov_b32 v13, 0xeeee\nv_cndmask_b32 v51, v13, v12, {MASK8}')
    for k in range(8):
        a(f'v_mov_b32 v{76 + k}, 0')
    spin_lds(F_VT, 68, 12)
    dma(SRD_A, 7, L_W, bar=cfg['fpre'], BLK=BLS)
    dma(SRD_B, 7, L_W + 56 * BLK, BLK=BLS)
    code_prefetch('L_exit')
    a('s_waitcnt vmcnt(0)')
    flag_add(F_S2, 12)
    spin_lds(F_S2, 4, 12)
    for m, va in enumerate((V_TR, 46)):
        for kb in range(7):
            for rp in range(4):
                a(f'ds_read_b64_tr_b16 {vr(W112 + 56 * m + 8 * kb + 2 * rp, 2)}, v{va} offset:{(8 * kb + 4 * (rp >> 1)) * BLS + (rp & 1) * 64}')
    a(f's_mov_b32 s{S_KB1}, s{S_C}\ns_branch L_ln')
    a('L_fhelp:')
    a(f's_mov_b64 exec, -1\ns_add_u32 s{S_KB1}, s{S_W}, 4\ns_and_b32 s{S_E8}, s{S_E}, 0xff')
    a(f'v_lshlrev_b32 v{V_L16}, 4, v0\nv_lshrrev_b32 v12, 3, v0\nv_and_b32 v13, 0x70, v{V_L16}\nv_lshl_or_b32 v{V_MA}, v12, 8, v13')
    spin_lds(F_S2, 4, 12)
    a(f's_lshl_b32 s30, s{S_W}, 12\ns_add_u32 s30, s30, {L_PAR}\nv_add_u32 v12, s30, v{V_L16}')
    for k, r in enumerate((F_SH, F_SH + 4, F_C1, F_C1 + 4)):
        a(f'ds_read_b128 {vr(r, 4)}, v12 offset:{1024 * k}')
    a('L_ln:')
    a(f's_lshl_b32 s24, s{S_KB1}, 11\ns_add_u32 s24, s24, {WS_X1}')
    if cfg['repz']:
        a(f's_lshl_b32 s31, s{S_H}, 14\ns_add_u32 s24, s24, s31')
    a(f'v_and_b32 v12, 7, v0\nv_and_b32 v13, 32, v0\nv_lshlrev_b32 v13, 3, v13\nv_lshl_or_b32 v45, v12, 5, v13\ns_lshl_b32 s30, s{S_KB1}, 2\nv_add_u32 v47, s30, v45')
    a(f's_lshl_b32 s30, s{S_KB1}, 10\nv_add_u32 v44, s30, v{V_L16}')
    a('s_waitcnt lgkmcnt(0)')
    stamp(9)
    if cfg['abl'] & 32:
        a('s_branch L_exit')
    poll('x', [(12 + 4 * h, f'buffer_load_dwordx4 {vr(12 + 4 * h, 4)}, v{V_MA}, {sr(SRD_WS, 4)}, s24 offen offset:{128 * h} sc1') for h in range(2)], True)
    stamp(10)
    a('v_pk_mul_f32 v[30:31], v[14:15], v[14:15]\nv_pk_add_f32 v[28:29], v[14:15], v[18:19]\nv_pk_mul_f32 v[34:35], v[12:13], v[12:13]\nv_pk_add_f32 v[32:33], v[12:13], v[16:17]')
    a('v_pk_fma_f32 v[30:31], v[18:19], v[18:19], v[30:31]\nv_pk_fma_f32 v[34:35], v[16:17], v[16:17], v[34:35]')
    a('v_pk_add_f32 v[28:29], v[28:29], v[32:33]\nv_pk_add_f32 v[30:31], v[30:31], v[34:35]')
    a('v_add_f32 v28, v28, v29\nv_add_f32 v30, v30, v31')
    a('v_permlane32_swap_b32 v28, v30\nv_add_f32 v28, v28, v30')
    a('v_mov_b32 v30, v28\nv_permlane16_swap_b32 v28, v30\nv_add_f32 v28, v28, v30')
    dpp('v_add_f32', 28, 28, 28, 'row_ror:8')
    a(f'ds_write_b32 v47, v28 offset:{L_ST2}\ns_waitcnt lgkmcnt(0)\ns_barrier')
    a(f'ds_read_b128 v[28:31], v45 offset:{L_ST2}\nds_read_b128 v[32:35], v45 offset:{L_ST2 + 16}\ns_waitcnt lgkmcnt(0)')
    a('v_pk_add_f32 v[28:29], v[28:29], v[30:31]\nv_pk_add_f32 v[32:33], v[32:33], v[34:35]\nv_pk_add_f32 v[28:29], v[28:29], v[32:33]')
    a('v_add_f32 v29, v28, v29\nv_mul_f32 v28, 0x3b124925, v29\nv_mul_f32 v30, 0x3b124925, v29\nv_permlane32_swap_b32 v28, v30')
    a('v_fma_f32 v30, -v28, v28, v30')
    rnd(28, 28)
    a('v_max_f32 v30, 0, v30')
    sub = [f'v_pk_add_f32 {vr(12 + k, 2)}, {vr(12 + k, 2)}, v[28:29] op_sel_hi:[1,0] neg_lo:[0,1] neg_hi:[0,1]' for k in range(0, 8, 2)]
    sub += [f'v_cvt_pk_bf16_f32 v{12 + k}, 0, v{12 + k}' for k in range(8)]
    chain = ['v_cvt_pk_bf16_f32 v30, 0, v30', 'v_add_f32 v30, 0x3727c5ac, v30', 'v_cvt_pk_bf16_f32 v30, 0, v30', 'v_sqrt_f32 v30, v30',
             'v_cvt_pk_bf16_f32 v30, 0, v30', 'v_rcp_f32 v30, v30']
    for k in range(6):
        a(chain[k])
        a(sub[2 * k])
        a(sub[2 * k + 1])
    for k in range(0, 8, 2):
        a(f'v_pk_mul_f32 {vr(12 + k, 2)}, {vr(12 + k, 2)}, v[30:31] op_sel_hi:[1,0]')
    for k in range(8):
        rnd(12 + k, 12 + k)
    ln_mod(12, 8, F_C1, F_SH)
    for k in range(4):
        a(f'v_cvt_pk_bf16_f32 v{12 + k}, v{12 + 2 * k}, v{13 + 2 * k}')
    a(f'ds_write_b128 v44, v[12:15] offset:{L_A}\ns_cmp_lt_u32 s{S_W}, 4\ns_waitcnt lgkmcnt(0)\ns_barrier\ns_cbranch_scc1 L_exit')
    for kb in range(7):
        a(f'ds_read_b128 {vr(12 + 4 * kb, 4)}, v{V_L16} offset:{L_A + 1024 * kb}')
    for kb in range(7):
        a(f's_waitcnt lgkmcnt({6 - kb})')
        a(f'v_smfmac_f32_16x16x64_bf16 v[76:79], {vr(12 + 4 * kb, 4)}, {vr(W112 + 8 * kb, 8)}, v51')
        a(f'v_smfmac_f32_16x16x64_bf16 v[80:83], {vr(12 + 4 * kb, 4)}, {vr(W112 + 56 + 8 * kb, 8)}, v51')
    a('v_permlane32_swap_b32 v76, v78\nv_permlane32_swap_b32 v77, v79\nv_pk_add_f32 v[76:77], v[76:77], v[78:79]')
    a('v_permlane32_swap_b32 v80, v82')
    rnd(76, 76)
    rnd(77, 77)
    a('v_mul_f32 v12, s39, v76\nv_mul_f32 v13, s39, v77\nv_exp_f32 v12, v12\nv_exp_f32 v13, v13')
    a('v_permlane32_swap_b32 v81, v83')
    a('v_add_f32 v12, 1.0, v12\nv_add_f32 v13, 1.0, v13\nv_rcp_f32 v12, v12\nv_rcp_f32 v13, v13')
    a('v_pk_add_f32 v[80:81], v[80:81], v[82:83]')
    a('v_mul_f32 v12, v12, v76\nv_mul_f32 v13, v13, v77')
    for r in (80, 81, 12, 13):
        rnd(r, r)
    a('v_mul_f32 v12, v12, v80\nv_mul_f32 v13, v13, v81\nv_cvt_pk_bf16_f32 v12, v12, v13')
    a(f'ds_write_b16 v49, v12 offset:{L_H}\nds_write_b16_d16_hi v49, v12 offset:{L_H + 16}\ns_waitcnt lgkmcnt(0)\ns_barrier')
    a(f'ds_read_b128 v[12:15], v{V_AR} offset:{L_H}\nds_read_b128 v[16:19], v{V_AR} offset:{L_H + 512}\ns_waitcnt lgkmcnt(0)')

    def f2store(i):
        a(f'v_bfi_b32 v{52 + 4 * i}, s38, v50, v{52 + 4 * i}')
        a(f'buffer_store_dwordx4 {vr(52 + 4 * i, 4)}, v48, {sr(SRD_WS, 4)}, s{S_DST} offen sc1')
        if i < 6:
            a(f's_add_u32 s{S_DST}, s{S_DST}, 0x10000')
    for i in range(7):
        a(f'v_mfma_f32_16x16x32_bf16 {vr(52 + 4 * i, 4)}, {vr(W56 + 8 * i, 4)}, v[12:15], 0')
        a(f'v_mfma_f32_16x16x32_bf16 {vr(52 + 4 * i, 4)}, {vr(W56 + 8 * i + 4, 4)}, v[16:19], {vr(52 + 4 * i, 4)}')
        if i >= 2:
            f2store(i - 2)
    f2store(5)
    f2store(6)
    stamp(11)

    a('L_exit:')
    if cfg['probe']:
        pr = cfg['probe'].split('_')
        cls, k = pr[0][0], int(pr[0][1:])
        a(f's_waitcnt lgkmcnt(0)\ns_cmp_ge_u32 s{S_W}, 4\ns_cbranch_scc{1 if cls == "s" else 0} L_end')
        if cls == 's':
            a('s_barrier\ns_barrier')
        for f in pr[1:]:
            if f[0] == 'r':
                a(f's_cmp_eq_u32 s{S_ROLE}, {f[1:]}\ns_cbranch_scc0 L_end')
            else:
                a(f's_bitcmp1_b32 {f[1:]}, s{S_H}\ns_cbranch_scc0 L_end')
        a(f's_cmp_eq_u32 s{S_ST0 + 2 * k}, 0\ns_cbranch_scc1 L_end\ns_mov_b32 s{S_CNT}, 0')
        a(f'L_pw:\ns_memrealtime s[30:31]\ns_waitcnt lgkmcnt(0)\ns_sub_u32 s30, s30, s{S_ST0 + 2 * k}\ns_cmp_ge_u32 s30, 6000\ns_cbranch_scc1 L_end')
        a(f's_add_u32 s{S_CNT}, s{S_CNT}, 1\ns_cmp_lt_u32 s{S_CNT}, 100000\ns_cbranch_scc1 L_pw\ns_branch L_end')
    if cfg['stamps']:
        a('s_waitcnt lgkmcnt(0)\ns_mov_b64 exec, 1')
        a(f's_lshl_b32 s30, s2, 3\ns_add_u32 s30, s30, s{S_W}\ns_lshl_b32 s30, s30, 6\ns_add_u32 s30, s30, {WS_STAMP}\nv_mov_b32 v0, s30')
        for q in range(3):
            for k in range(4):
                a(f'v_mov_b32 v{4 + k + 4 * q}, s{S_ST0 + 2 * (4 * q + k)}')
            a(f'global_store_dwordx4 v0, {vr(4 + 4 * q, 4)}, {sr(P_WS, 2)} offset:{16 * q}')
        a(f'v_mov_b32 v16, s{S_CNT}\nglobal_store_dword v0, v16, {sr(P_WS, 2)} offset:48')
    a('L_end:\ns_endpgm')
    a('.section .rodata,"a"\n.p2align 6')
    a(f'.amdhsa_kernel {NAME}_kernel')
    a('.amdhsa_next_free_vgpr 256\n.amdhsa_next_free_sgpr 102\n.amdhsa_accum_offset 256\n.amdhsa_group_segment_fixed_size 0')
    a('.amdhsa_kernarg_size 112\n.amdhsa_user_sgpr_count 2\n.amdhsa_user_sgpr_kernarg_segment_ptr 1\n.amdhsa_system_sgpr_workgroup_id_x 1')
    a('.amdhsa_float_denorm_mode_32 3\n.end_amdhsa_kernel')
    if cfg['abl'] & 4:
        k = a.lines.index('L_chain:')
        a.lines = [l for i, l in enumerate(a.lines) if i > k or not l.startswith(('v_mfma', 'v_perm', 'v_add_f32_dpp', 'ds_read_b128'))]
    return head + a.text()


if __name__ == '__main__':
    kw = {}
    for x in sys.argv[2:]:
        k, v = x.split('=')
        kw[k] = int(v) if v.lstrip('-').isdigit() else v
    open(sys.argv[1], 'w').write(gen(**kw))
```

```python
import sys
from asmlib import Asm, vr, sr

NAME = 'adaLN_cond__sliding_block_cached__glu_gated_swiglu__decode'

WS_EPOCH = 0x0
WS_MOD = 0x1000
WS_Q = 0x300000
WS_ML = 0x40000
WS_CEN = 0x50000
WS_PL = 0x280000
WS_X1 = 0x60000
WS_OP = 0x80000
WS_PA = 0x100000
WS_PF = 0x180000
WS_STAMP = 0x200000
WS_SIZE = 0x400000

F_Q, F_SC, F_P, F_KT, F_VT, F_S1, F_S2, F_S3, F_S4, F_MT = 0, 4, 8, 16, 20, 24, 28, 32, 36, 40
L_ST, L_ST2 = 0x100, 0x200
L_Q, L_P, L_SC, L_A, L_H, L_W = 0x400, 0x800, 0x1000, 0x2000, 0x3C00, 0x4000
BLK = 1152
BLS = 1088
L_X = L_W + 56 * BLK
L_PAR = L_X + 64 * 1024
LDS_BYTES = L_X + 80 * 1024

S_W, S_H, S_B, S_D, S_R = 3, 4, 5, 6, 7
SRD_A, SRD_B, SRD_WS, SRD_C = 8, 12, 16, 20
S_E, S_C, S_CNT, S_JJ, S_E8 = 28, 29, 33, 34, 35
S_XO, S_FAST, P_DBG = 71, 75, 64
P_X, P_K, P_V, P_WQ, P_WO, P_W1, P_W3, P_W2, P_C, P_WM, P_OUT, P_WS = 40, 42, 44, 46, 48, 52, 54, 56, 58, 60, 62, 66
S_ST0 = 76
SP = 8
SPIN_CAP = 400000
LOG2E = 0x3FB8AA3B

DEF = dict(seg=((0, 7, 2, 14), (36, 7, 1, 10), (60, 8, 2, 8)), ktrig=60, vtrig=63, vsync=42, stamps=0, pref=1, probe='',
           prio=2, dflag=6, NL=16, mtrig=30, abl=0, fpre=4, fast=1, pref2=1, dbar=8, repz=1, pal=1, skip=1)
S_A, S_Bs, S_BASE, S_KB1, S_DST, S_ROLE = 68, 69, 70, 72, 73, 74


def gen(**kw):
    cfg = dict(DEF)
    cfg.update(kw)
    a = Asm()
    seg = cfg['seg']
    if isinstance(seg, str):
        seg = eval(seg)
    DV = seg[-1][1]
    KM = ([2, 1], [8, 16], [4, 32, 64, 128])
    lin = lambda cols, x: sum(c for k, c in enumerate(cols) if x >> k & 1) << 12
    WFL = 'nt'

    def stamp(k):
        if cfg['stamps']:
            a(f's_memrealtime {sr(S_ST0 + 2 * k, 2)}')

    def srd(d, p, size):
        a(f's_mov_b32 s{d}, s{p}\ns_mov_b32 s{d + 1}, s{p + 1}\ns_mov_b32 s{d + 2}, {size}\ns_mov_b32 s{d + 3}, 0x20000')

    def retry(lab):
        a(f's_add_u32 s{S_CNT}, s{S_CNT}, 1\ns_cmp_lt_u32 s{S_CNT}, {SPIN_CAP}\ns_cbranch_scc1 {lab}\ns_branch L_exit')

    def spin_lds(flag, n, t, two=False):
        top, done = a.lab('L_spin'), a.lab('L_got')
        a(f'{top}:\nv_mov_b32 v{t}, 0')
        if two:
            a(f'ds_read_b64 {vr(t, 2)}, v{t} offset:{flag}')
        else:
            a(f'ds_read_b32 v{t}, v{t} offset:{flag}')
        a(f's_waitcnt lgkmcnt(0)\nv_readfirstlane_b32 s31, v{t}\ns_cmp_ge_u32 s31, {n}\ns_cbranch_scc1 {done}')
        retry(top)
        a(f'{done}:')

    PEND = (8, 10, 12, 14, 42, 44, 46, 50)

    def poll(name, loads, tag8, between=None):
        top, chk, done = f'L_{name}poll', f'L_{name}chk', f'L_{name}got'
        for r, ins in loads:
            a(ins)
        if between:
            between()
        a(f's_branch {chk}\n{top}:')
        for k, (r, ins) in enumerate(loads):
            p = PEND[k]
            nx = a.lab('L_nx')
            a(f's_quadmask_b64 {sr(p, 2)}, {sr(p, 2)}')
            if cfg['skip'] and len(loads) > 2:
                a(f's_cbranch_scc0 {nx}')
            a(f's_bitreplicate_b64_b32 {sr(p, 2)}, s{p}\ns_wqm_b32 s{p}, s{p}\ns_bitreplicate_b64_b32 exec, s{p}\n{ins}\n{nx}:')
        a(f's_mov_b64 exec, -1\ns_add_u32 s{S_CNT}, s{S_CNT}, 1\ns_cmp_lt_u32 s{S_CNT}, {SPIN_CAP}\ns_cbranch_scc0 L_exit')
        a(f'{chk}:\ns_waitcnt vmcnt(0)')
        for k, (r, ins) in enumerate(loads):
            if tag8 == 2:
                a(f'v_xor_b32 v10, s56, v{r}')
                for j in range(1, 4):
                    a(f'v_bitop3_b32 v10, v10, v{r + j}, s{56 + j} bitop3:0xf6')
                a(f'v_and_b32 v10, 3, v10\nv_cmp_ne_u32_e64 {sr(PEND[k], 2)}, 0, v10')
            elif tag8:
                a(f'v_cmp_ne_u32_sdwa {sr(PEND[k], 2)}, v{r}, s{S_E8} src0_sel:BYTE_0 src1_sel:DWORD')
            else:
                a(f'v_cmp_ne_u32_e64 {sr(PEND[k], 2)}, s{S_E}, v{r}')
        a(f's_or_b64 vcc, {sr(PEND[0], 2)}, {sr(PEND[1], 2)}')
        for k in range(2, len(loads)):
            a(f's_or_b64 vcc, vcc, {sr(PEND[k], 2)}')
        a(f's_cbranch_scc1 {top}')
        if tag8 == 2:
            for r, ins in loads:
                for j in range(4):
                    a(f'v_and_b32 v{r + j}, -4, v{r + j}')
        elif tag8:
            for r, ins in loads:
                a(f'v_xor_b32 v{r}, s{S_E8}, v{r}')

    def census(t):
        a(f's_lshl_b32 s30, s{S_H}, 8\ns_add_u32 s30, s30, {WS_CEN}\nv_and_b32 v{t}, 31, v0\nv_lshlrev_b32 v{t}, 2, v{t}')
        a(f'buffer_load_dword v{t}, v{t}, {sr(SRD_WS, 4)}, s30 offen sc1')

    def census_done(t):
        a(f'v_cmp_eq_u32 vcc, s{S_XO}, v{t}\ns_bcnt1_i32_b32 s{S_FAST}, vcc_lo')

    def group_store(ins, cond=None):
        slow, done = a.lab('L_st'), a.lab('L_std')
        a(cond or f's_cmp_eq_u32 s{S_FAST}, {32 if cfg["fast"] else 99}')
        a(f's_cbranch_scc0 {slow}\n{ins}\ns_branch {done}\n{slow}:\n{ins} sc1\n{done}:')

    def code_prefetch(end):
        if not cfg['pref2']:
            return
        here, skip = a.lab('L_pc'), a.lab('L_npc')
        a(f's_cmp_eq_u32 s{S_C}, 3\ns_cbranch_scc0 {skip}')
        a(f's_getpc_b64 s[30:31]\n{here}:\nv_lshlrev_b32 v12, 7, v0\nv_min_u32 v12, {end}-{here}, v12\nglobal_load_dword v13, v12, s[30:31]')
        a(f'{skip}:')

    def flag_add(flag, t, inc=1):
        a(f'v_mov_b32 v{t}, 0\nv_mov_b32 v{t + 1}, {inc}\ns_mov_b64 exec, 1\nds_add_u32 v{t}, v{t + 1} offset:{flag}\ns_mov_b64 exec, -1')

    def rnd(d, s):
        a(f'v_cvt_pk_bf16_f32 v{d}, 0, v{s}')

    def rows_allreduce(op, x, t):
        a(f'v_mov_b32 v{t}, v{x}\nv_permlane16_swap_b32 v{x}, v{t}\n{op} v{x}, v{x}, v{t}')
        a(f'v_mov_b32 v{t}, v{x}\nv_permlane32_swap_b32 v{x}, v{t}\n{op} v{x}, v{x}, v{t}')

    def dpp(op, d, s0, s1, ctl, rm=0xf, bm=0xf):
        a(f'{op}_dpp v{d}, v{s0}, v{s1} {ctl} row_mask:{rm:#x} bank_mask:{bm:#x}')

    hdr = open('cdna_kernels/' + NAME + '.s.ref').read().split('; Override launch')[0]
    head = hdr + f'; @launch grid=(256,1,1) block=(512,1,1) lds={LDS_BYTES}\n'
    a('.amdgcn_target "amdgcn-amd-amdhsa--gfx950"\n.text')
    a(f'.globl {NAME}_kernel\n.p2align 8\n.type {NAME}_kernel,@function\n{NAME}_kernel:')
    a('s_load_dwordx16 s[40:55], s[0:1], 0\ns_load_dwordx8 s[56:63], s[0:1], 64\ns_load_dwordx4 s[64:67], s[0:1], 96')
    stamp(0)
    a(f'v_lshrrev_b32 v1, 6, v0\ns_lshr_b32 s{S_B}, s2, 5\ns_cmp_ge_u32 s{S_B}, 8\ns_cbranch_scc1 L_end')
    a(f'v_readfirstlane_b32 s{S_W}, v1\nv_and_b32 v0, 63, v0')
    a(f's_and_b32 s{S_H}, s2, 7\ns_lshr_b32 s{S_R}, s2, 3\ns_and_b32 s{S_D}, s{S_R}, 3')
    a(f's_lshl_b32 s30, s{S_B}, 1\ns_lshr_b32 s{S_ROLE}, 0xcaa0, s30\ns_and_b32 s{S_ROLE}, s{S_ROLE}, 3')
    a(f's_and_b32 s30, s{S_B}, s{S_H}\ns_cmp_eq_u32 s30, 7\ns_cselect_b32 s{S_ROLE}, 0, s{S_ROLE}')
    a(f's_cmp_lt_u32 s2, 42\ns_cselect_b32 s{S_ROLE}, 1, s{S_ROLE}')
    a(f's_cmp_ge_u32 s{S_W}, 4\ns_cbranch_scc1 L_chain')

    def common():
        if cfg['stamps']:
            for k in range(1, 12):
                if k != 9:
                    a(f's_mov_b64 {sr(S_ST0 + 2 * k, 2)}, 0')
        a(f's_mov_b32 s{S_CNT}, 0')

    def decode(vrow, vnt):
        a(f's_lshl2_add_u32 s{S_JJ}, s{S_H}, s{S_D}\ns_and_b32 s{S_C}, s{S_W}, 3')
        a(f's_and_b32 s31, s{S_R}, 7\ns_lshl3_add_u32 s30, s{S_H}, s31\ns_cmp_lt_u32 s2, 42\ns_cselect_b32 s30, s2, s30')
        a(f'v_bfe_u32 v{vrow}, v0, 1, 3')
        a(f'v_lshrrev_b32 v10, 4, v0\nv_and_b32 v11, 1, v0\nv_lshlrev_b32 v11, 4, v11\nv_lshl_or_b32 v{vnt}, v10, 5, v11')

    V_R8, V_NT, V_TR, V_AR, V_L16, V_XA, V_MA, V_DM = 1, 2, 3, 4, 5, 6, 7, 9

    def dma(srdn, nt, lds0, bar=-1, BLK=BLK, qout=None):
        a(f's_lshl_b32 s30, s{S_C}, 1\ns_mul_i32 s31, s30, {BLK}\ns_add_u32 m0, s31, {lds0}')
        a(f's_mul_i32 s30, s30, s{S_A}\ns_add_u32 s30, s30, s{S_BASE}\ns_add_u32 s31, s30, s{S_A}')
        for t in range(nt):
            for u in range(2):
                k = 2 * t + u
                if k == bar:
                    a('s_barrier')
                if k == 8 and qout:
                    a(f's_cmp_eq_u32 s{S_ROLE}, 2\ns_cbranch_scc1 {qout}')
                a(f'buffer_load_dwordx4 v{V_DM}, {sr(srdn, 4)}, s{30 + u} offen {WFL} lds')
                if k < 2 * nt - 1:
                    a(f's_addk_i32 m0, {BLK if u == 0 else 7 * BLK}\ns_add_u32 s{30 + u}, s{30 + u}, s{S_Bs}')

    QA, QD, SC = 8, 24, 4
    RING = 32
    slot = lambda k: RING + 4 * k
    NL = cfg['NL']
    NSYNC = 56 + NL
    ACC = slot(0)
    parked = lambda n: 4 <= n < 4 + NL
    kslot = lambda n: slot((n - 4) % 8) if parked(n) else slot(n if n < 4 else n - NL)
    vidx = lambda i: 8 + (56 - NL + i) % 48
    vslot = lambda i: slot(vidx(i))
    S_LX = 27
    assert 8 <= NL <= 16
    a('v_and_b32 v4, 7, v0\nv_and_b32 v5, 48, v0\nv_lshl_or_b32 v1, v4, 9, v5\nv_and_b32 v5, 8, v0\nv_lshl_or_b32 v1, v5, 3, v1')
    a(f's_lshl3_add_u32 s32, s{S_B}, s{S_H}\ns_lshl2_add_u32 s32, s32, 3\ns_lshl_b32 s32, s32, 20')
    a(f's_lshl_b32 s37, s{S_D}, 15\ns_brev_b32 s31, s{S_W}\ns_lshr_b32 s31, s31, 18\ns_or_b32 s36, s37, s31')
    a(f's_mov_b32 s{SRD_A + 2}, 0x100000\ns_mov_b32 s{SRD_A + 3}, 0x20000')
    a(f's_cmp_lg_u32 s{S_ROLE}, 0\ns_cselect_b64 vcc, -1, 0')
    a('s_cbranch_scc1 L_role\nL_k0:')
    a('s_waitcnt lgkmcnt(0)')
    a(f's_add_u32 s{SRD_A}, s{P_K}, s32\ns_addc_u32 s{SRD_A + 1}, s{P_K + 1}, 0')
    stamp(9)

    def stream_setup():
        a('s_branch L_k4\nL_role:')
        decode(6, 7)
        a(f's_movk_i32 s26, 896\ns_mov_b32 s{SRD_C + 2}, 1605632\ns_and_b32 s31, s{S_B}, 4\ns_lshl_b32 s31, s31, 12\ns_add_u32 s30, s30, s31\ns_mul_i32 s31, s{S_JJ}, 448\ns_waitcnt lgkmcnt(0)')
        a(f's_cmp_eq_u32 s{S_ROLE}, 1\ns_cmovk_i32 s26, 5376\ns_cmov_b32 s{SRD_C + 2}, 2408448\ns_cselect_b64 {sr(SRD_C, 2)}, {sr(P_WM, 2)}, {sr(P_W2, 2)}')
        a(f's_cmp_eq_u32 s{S_ROLE}, 2\ns_cmovk_i32 s26, 8192\ns_cmov_b32 s{SRD_C + 2}, 3670016\ns_cselect_b64 {sr(SRD_C, 2)}, {sr(P_WQ, 2)}, {sr(SRD_C, 2)}')
        a(f's_lshl_b32 s{S_A}, s26, 3\ns_lshl_b32 s{S_Bs}, s26, 6')
        a(f's_cmp_eq_u32 s{S_ROLE}, 3\ns_cmovk_i32 s{S_Bs}, 128\ns_cselect_b32 s30, s31, s30\ns_lshl_b32 s{S_BASE}, s30, 7')
        a(f's_mov_b32 s{SRD_C + 3}, 0x20000')
        a(f'v_mad_u32_u24 v{V_DM}, v6, s26, v7')
        if cfg['abl'] & 2:
            a('s_barrier')
        else:
            dma(SRD_C, 7, L_W, bar=cfg['dbar'], qout='L_k0')
        a('s_branch L_k0\nL_k4:')
        common()
        a(f's_lshl_b32 s{S_LX}, s{S_W}, 14\ns_add_u32 s{S_LX}, s{S_LX}, {L_X}')

    vdone = 0
    g0 = NL // 4
    regg = [0] + list(range(g0 + 1, 16))
    korder = [regg[2], regg[0], regg[1]]
    rest = regg[3:]
    for p in range(1, g0 + 1, 2):
        korder += [('rd', p)] + rest[:1] + [g for g in (p, p + 1) if g <= g0]
        rest = rest[1:]
    korder += rest
    kdone = set()
    qn = [0]

    def qk_post(gi, d):
        t, u = gi >> 2, gi & 3
        dpp('v_add_f32', SC + u, d + 1, d, 'row_ror:8', 1 << t, 0x3)
        dpp('v_add_f32', SC + u, d + 2, d + 3, 'row_ror:8', 1 << t, 0xc)

    def qk_some(landed, maxn):
        prev = None
        while korder and maxn:
            g = korder[0]
            if isinstance(g, tuple):
                for n in range(4 * g[1], min(4 * g[1] + 8, NL + 4)):
                    a(f'ds_read_b128 {vr(kslot(n), 4)}, v3 offset:{1024 * (n - 4)}')
                korder.pop(0)
                continue
            if 4 * g + 3 > landed:
                break
            korder.pop(0)
            maxn -= 1
            if parked(4 * g) and g % 2 == 1:
                a('s_waitcnt lgkmcnt(0)')
            d = QD + 4 * (qn[0] & 1)
            qn[0] += 1
            for j in range(4):
                a(f'v_mfma_f32_16x16x32_bf16 {vr(d, 4)}, {vr(QA + 4 * j, 4)}, {vr(kslot(4 * g + j), 4)}, {vr(d, 4) if j else 0}')
            if prev:
                qk_post(*prev)
            prev = (g, d)
            kdone.add(g)
        if prev:
            qk_post(*prev)
            if len(kdone) == 16:
                a(f's_lshl_b32 s31, s{S_W}, 10\nv_lshl_add_u32 v3, v0, 4, s31\nds_write_b128 v3, {vr(SC, 4)} offset:{L_SC}\ns_waitcnt lgkmcnt(0)')
                flag_add(F_SC, 4)
                stamp(3)

    def perms(dst_of, e0, G, r):
        lo, hi = vslot(8 * G + e0) + r, vslot(8 * G + e0 + 1) + r
        a(f'v_perm_b32 v{dst_of(2 * r) + e0 // 2}, v{hi}, v{lo}, s38')
        a(f'v_perm_b32 v{dst_of(2 * r + 1) + e0 // 2}, v{hi}, v{lo}, s39')

    def pv_mfma(G, j, b):
        a(f'v_mfma_f32_16x16x32_bf16 {vr(ACC + 4 * j, 4)}, {vr(QD + 4 * (G & 1), 4)}, {vr(b, 4)}, {vr(ACC + 4 * j, 4) if G else 0}')

    def pv_group(G):
        a('s_waitcnt lgkmcnt(0)')
        a(f'ds_read_b128 {vr(QD + 4 * ((G + 1) & 1), 4)}, v3 offset:{L_P + 256 * (G + 1)}')
        tmp = lambda j: QA + 4 * (j & 3)
        for r in range(4):
            for e0 in (0, 2, 4, 6):
                perms(tmp, e0, G, r)
            if r:
                pv_mfma(G, 2 * r - 1, tmp(2 * r - 1))
            pv_mfma(G, 2 * r, tmp(2 * r))
        pv_mfma(G, 7, tmp(7))

    for n in range(128):
        isk = n < 64
        n0, d, lite, rmask = [x for x in seg if x[0] <= n][-1]
        if n == 4:
            stream_setup()
        if n == n0 and n:
            a(f's_bitcmp1_b32 {rmask}, s{S_ROLE}\ns_cselect_b64 vcc, -1, 0')
        if n == 5:
            a('s_cbranch_vccnz L_nb\ns_barrier\nL_nb:')
        if n >= d:
            a(f's_waitcnt vmcnt({d - 1})')
        if lite and n >= d - lite:
            skip = a.lab('L_dp')
            a(f's_cbranch_vccnz {skip}\ns_waitcnt vmcnt({d - 1 - lite})\n{skip}:')
        landed = n - d
        if n == d - lite:
            stamp(10)
        if n == 2 * (d - lite):
            stamp(11)
        if n == 120:
            a('s_setprio 3')
        if n == cfg['dflag']:
            assert seg[0][3] == 14 and n >= 4
            skip = a.lab('L_df')
            a(f's_cbranch_vccz {skip}\ns_waitcnt vmcnt({cfg["dflag"]})')
            flag_add(F_S1, 4)
            a(f'{skip}:')
        if n == NSYNC:
            stamp(1)
            if not cfg['abl'] & 9:
                spin_lds(F_Q, 1, 4)
            stamp(2)
            a('v_lshrrev_b32 v4, 1, v0\nv_and_b32 v4, 1, v4\nv_and_b32 v5, 1, v0\nv_lshrrev_b32 v6, 4, v0\nv_lshlrev_b32 v6, 4, v6')
            a('v_lshl_or_b32 v6, v5, 6, v6\nv_lshl_or_b32 v3, v4, 9, v6')
            for j in range(4):
                a(f'ds_read_b128 {vr(QA + 4 * j, 4)}, v3 offset:{L_Q + 128 * j}')
            a(f'v_lshl_add_u32 v3, v0, 4, s{S_LX}')
            a('s_waitcnt lgkmcnt(0)')
            qk_some(landed, 1 if NL >= 8 else 2)
        if isk:
            if n >= NSYNC:
                assert (n - 56) // 4 in kdone
            if n and n % 4 == 0:
                a(f's_add_u32 s36, s36, {lin(KM[2], n >> 2) - lin(KM[2], (n >> 2) - 1)}')
            if parked(n):
                a(f's_add_u32 m0, s{S_LX}, {1024 * (n - 4) - 128 * (n & 3)}')
                a(f'buffer_load_dwordx4 v1, {sr(SRD_A, 4)}, s36 offen offset:{128 * (n & 3)} nt lds')
            else:
                a(f'buffer_load_dwordx4 {vr(kslot(n), 4)}, v1, {sr(SRD_A, 4)}, s36 offen offset:{128 * (n & 3)} nt')
        else:
            i = n - 64
            if i < 48:
                kn = vidx(i) + NL
                assert kn >= 64 or kn // 4 in kdone, (i, kdone)
            else:
                assert vdone > (i - 48) // 8
            a(f's_add_u32 s30, s37, {lin(KM[2], i >> 2) + lin(KM[0], i & 3)}')
            a(f'buffer_load_dwordx4 {vr(vslot(i), 4)}, v2, {sr(SRD_B, 4)}, s30 offen nt')
        if n == 8:
            a(f'v_and_b32 v4, 7, v0\nv_lshrrev_b32 v5, 3, v0\nv_lshlrev_b32 v4, 4, v4\nv_lshl_or_b32 v2, v5, 9, v4')
            a(f's_lshl_b32 s31, s{S_W}, 7\ns_or_b32 s37, s37, s31')
            a(f's_add_u32 s{SRD_B}, s{P_V}, s32\ns_addc_u32 s{SRD_B + 1}, s{P_V + 1}, 0\ns_mov_b32 s{SRD_B + 2}, 0x100000\ns_mov_b32 s{SRD_B + 3}, 0x20000')
            srd(SRD_WS, P_WS, WS_SIZE)
            a('s_mov_b32 s38, 0x05040100\ns_mov_b32 s39, 0x07060302')
        if n == cfg['ktrig']:
            assert n < NSYNC
            flag_add(F_KT, 4)
        if n == cfg['mtrig']:
            flag_add(F_MT, 4)
        if n == 64 + cfg['vtrig']:
            flag_add(F_VT, 4)
        if n >= NSYNC and korder:
            qk_some(landed, 4)
        if n == 64 + cfg['vsync']:
            assert len(kdone) == 16
            stamp(4)
            if not cfg['abl'] & 9:
                spin_lds(F_P, 1, 4, two=True)
            stamp(5)
            a(f'v_readfirstlane_b32 s{S_E}, v5\ns_sub_u32 s{S_FAST}, s31, 1')
            a('v_lshrrev_b32 v4, 1, v0\nv_and_b32 v4, 1, v4\nv_and_b32 v5, 1, v0\nv_lshrrev_b32 v6, 4, v0\nv_lshlrev_b32 v6, 5, v6')
            a('v_lshl_or_b32 v6, v5, 4, v6\nv_lshl_or_b32 v3, v4, 7, v6')
            a(f'ds_read_b128 {vr(QD, 4)}, v3 offset:{L_P}')
        if n >= 64 + cfg['vsync'] and vdone < 7 and 64 + 8 * vdone + 7 <= landed:
            pv_group(vdone)
            vdone += 1
    assert vdone == 7, vdone
    a(f's_lshl_b32 s30, s{S_H}, 2\ns_add_u32 s30, s30, s{S_W}\ns_lshl_b32 s30, s30, 14\ns_lshl_b32 s31, s{S_D}, 12\ns_add_u32 s30, s30, s31')
    a(f's_lshl_b32 s31, s{S_B}, 9\ns_add_u32 s30, s30, s31\ns_add_u32 s30, s30, {WS_OP}')
    a('v_and_b32 v8, 7, v0\nv_lshlrev_b32 v8, 4, v8\nv_and_b32 v9, 8, v0\nv_lshl_or_b32 v8, v9, 5, v8\nv_and_b32 v9, 16, v0\nv_lshl_or_b32 v8, v9, 3, v8')
    a(f's_movk_i32 s31, 0xff\nv_mov_b32 v9, s{S_E}')
    big = lambda j: vslot(24 + j)
    for pr in range(4):
        if 6 - 2 * pr < DV:
            a(f's_waitcnt vmcnt({6 - 2 * pr})')
        if pr < 3:
            for r in range(4):
                perms(big, 2 * pr, 7, r)
    stamp(6)
    a('s_waitcnt lgkmcnt(0)')

    def pv_post(j):
        d = ACC + 4 * j
        dpp('v_add_f32', 4 + (j & 3), d + 1, d, 'row_ror:8', 1 << (j >> 2), 0x3)
        dpp('v_add_f32', 4 + (j & 3), d + 2, d + 3, 'row_ror:8', 1 << (j >> 2), 0xc)
    perms(big, 6, 7, 0)
    perms(big, 6, 7, 1)
    pv_mfma(7, 0, big(0))
    perms(big, 6, 7, 2)
    pv_mfma(7, 1, big(1))
    perms(big, 6, 7, 3)
    for j in range(2, 8):
        pv_mfma(7, j, big(j))
        if j >= 4:
            pv_post(j - 4)
    for j in range(4, 8):
        pv_post(j)
    a('v_bfi_b32 v4, s31, v9, v4')
    a('s_mov_b32 exec_hi, 0')
    if not cfg['abl'] & 256:
        group_store(f'buffer_store_dwordx4 v[4:7], v8, {sr(SRD_WS, 4)}, s30 offen')
    a('s_barrier')
    stamp(7)
    a(f's_cmp_lt_u32 s{S_W}, 3\ns_cselect_b32 s30, s{S_ROLE}, 0\ns_cmp_eq_u32 s30, 3\ns_cbranch_scc1 L_fhelp')
    a('s_barrier\ns_branch L_exit')

    W56, W112, T0 = 88, 144, 12
    MASK8 = 's[36:37]'

    def trread(dst, nops, vaddr):
        for s in range(nops):
            for rp in range(2):
                a(f'ds_read_b64_tr_b16 {vr(dst + 4 * s + 2 * rp, 2)}, v{vaddr} offset:{s * 4 * BLK + rp * 128}')

    a('L_chain:')
    if cfg['prio']:
        a(f's_setprio {cfg["prio"]}')
    a('v_mov_b32 v4, 0\nv_mov_b32 v5, 0\nv_mov_b32 v6, 0\nv_mov_b32 v7, 0\nv_lshlrev_b32 v8, 4, v0\nds_write_b128 v8, v[4:7]')
    common()
    if cfg['stamps']:
        a(f's_mov_b64 {sr(S_ST0 + 18, 2)}, 0')
    decode(V_R8, V_NT)
    a(f'v_lshlrev_b32 v{V_L16}, 4, v0')
    a(f'v_and_b32 v11, 7, v0\nv_lshrrev_b32 v12, 3, v0\nv_lshlrev_b32 v13, 4, v11')
    a(f'v_mul_u32_u24 v{V_XA}, 896, v11\nv_lshl_add_u32 v{V_XA}, v12, 4, v{V_XA}\nv_lshl_or_b32 v{V_MA}, v12, 8, v13')
    a(f'v_lshl_or_b32 v{V_AR}, v10, 7, v13')
    a(f's_add_u32 s{S_KB1}, s{S_C}, 4\ns_min_u32 s{S_KB1}, s{S_KB1}, 6')
    a(f's_and_b32 s31, s{S_B}, 4\ns_lshl_b32 s31, s31, 15\ns_add_u32 s31, s31, {WS_Q}\ns_cmp_eq_u32 s{S_ROLE}, 1\ns_cselect_b32 s31, {WS_MOD}, s31\ns_lshl_b32 s{S_DST}, s30, 11\ns_add_u32 s{S_DST}, s{S_DST}, s31')
    a(f's_lshl_b32 s31, s{S_C}, 9\ns_add_u32 s{S_DST}, s{S_DST}, s31')
    a(f's_lshl_b32 s30, s{S_C}, 7\ns_lshl_b32 s31, s{S_KB1}, 7\nv_mov_b32 v13, 0')
    a(f's_mov_b32 s{SRD_C + 2}, 7168\ns_mov_b32 s{SRD_C + 3}, 0x20000')
    a('s_waitcnt lgkmcnt(0)\ns_barrier')
    if cfg['abl'] & 1:
        a('s_branch L_exit')
    srd(SRD_WS, P_WS, WS_SIZE)
    a(f's_cmp_eq_u32 s{S_ROLE}, 1\ns_cselect_b64 {sr(SRD_C, 2)}, {sr(P_C, 2)}, {sr(P_X, 2)}')
    a(f's_load_dword s{S_E}, {sr(P_WS, 2)}, 0')
    a(f's_sub_u32 s32, s{S_ROLE}, 1\ns_cmp_lt_u32 s32, 2\ns_cbranch_scc0 L_c0')
    a(f'buffer_load_dwordx4 v[228:231], v{V_XA}, {sr(SRD_C, 4)}, s30 offen')
    a(f'buffer_load_dwordx4 v[232:235], v{V_XA}, {sr(SRD_C, 4)}, s31 offen')
    a('L_c0:')
    if cfg['pref']:
        skip = a.lab('L_np')
        a(f's_cmp_eq_u32 s{S_R}, 6\ns_cbranch_scc0 {skip}')
        a('s_getpc_b64 s[24:25]\nL_pc0:')
        a(f's_sub_u32 s24, s24, L_pc0-{NAME}_kernel\ns_subb_u32 s25, s25, 0')
        a(f's_lshl_b32 s30, s{S_C}, 13\nv_lshl_add_u32 v12, v0, 7, s30\nv_min_u32 v12, L_end-{NAME}_kernel, v12')
        a('global_load_dword v14, v12, s[24:25]')
        a(f'{skip}:')
    a(f'v_mul_u32_u24 v{V_TR}, {BLK}, v10\nv_and_b32 v13, 15, v0\nv_lshl_add_u32 v{V_TR}, v13, 3, v{V_TR}')
    a(f's_lshl_b32 s26, s{S_C}, 8\ns_add_u32 s26, s26, {L_W}\nv_add_u32 v{V_TR}, s26, v{V_TR}')
    a('s_mov_b32 s36, 0x00ff00ff\ns_mov_b32 s37, 0x00ff00ff\nv_mov_b32 v85, 0')
    a('s_waitcnt vmcnt(0) lgkmcnt(0)')
    a(f's_add_u32 s{S_E}, s{S_E}, 1\ns_and_b32 s{S_E8}, s{S_E}, 0xff')
    a(f's_mov_b32 s56, s{S_E}\ns_lshr_b32 s57, s{S_E}, 2\ns_lshr_b32 s58, s{S_E}, 4\ns_lshr_b32 s59, s{S_E}, 6')
    a(f's_getreg_b32 s{S_XO}, hwreg(HW_REG_XCC_ID, 0, 3)\ns_lshl_b32 s{S_XO}, s{S_XO}, 29\ns_and_b32 s30, s{S_E}, 0x1fffffff\ns_or_b32 s{S_XO}, s{S_XO}, s30')
    a(f's_cmp_eq_u32 s{S_C}, 1\ns_cbranch_scc0 L_c1')
    a(f's_lshl_b32 s30, s{S_H}, 8\ns_lshl_b32 s31, s{S_R}, 2\ns_add_u32 s30, s30, s31\ns_add_u32 s30, s30, {WS_CEN}')
    a(f'v_mov_b32 v12, 0\nv_mov_b32 v14, s{S_XO}\ns_mov_b64 exec, 1\nbuffer_store_dword v14, v12, {sr(SRD_WS, 4)}, s30 offen\ns_mov_b64 exec, -1')
    a('L_c1:')
    a(f's_cmp_eq_u32 s{S_ROLE}, 0\ns_cbranch_scc1 L_mid')
    a(f's_cmp_eq_u32 s{S_ROLE}, 3\ns_cbranch_scc1 L_gemm0')
    for k in range(8):
        a(f'v_lshlrev_b32 v{12 + 2 * k}, 16, v{228 + k}\nv_and_b32 v{13 + 2 * k}, 0xffff0000, v{228 + k}')
    a(f's_cmp_eq_u32 s{S_ROLE}, 2\ns_cbranch_scc1 L_actQ')
    a(f's_mov_b32 s26, {LOG2E | 0x80000000:#x}')
    for k in range(16):
        a(f'v_mul_f32 v{28 + k}, s26, v{12 + k}')
    for k in range(16):
        a(f'v_exp_f32 v{28 + k}, v{28 + k}')
    for k in range(16):
        a(f'v_add_f32 v{28 + k}, 1.0, v{28 + k}')
    a('s_mov_b32 s27, 0x7f7fffff')
    for k in range(16):
        a(f'v_min_f32 v{28 + k}, s27, v{28 + k}')
    for k in range(16):
        a(f'v_rcp_f32 v{44 + k}, v{28 + k}')
    for k in range(0, 16, 2):
        a(f'v_pk_mul_f32 {vr(60 + k, 2)}, {vr(12 + k, 2)}, {vr(44 + k, 2)}')
    for k in range(0, 16, 2):
        a(f'v_pk_fma_f32 {vr(12 + k, 2)}, {vr(60 + k, 2)}, {vr(28 + k, 2)}, {vr(12 + k, 2)} neg_lo:[1,0,0] neg_hi:[1,0,0]')
    for k in range(0, 16, 2):
        a(f'v_pk_fma_f32 {vr(12 + k, 2)}, {vr(12 + k, 2)}, {vr(44 + k, 2)}, {vr(60 + k, 2)}')
    a('s_branch L_actW')

    def ln_scalars(mean, var, t):
        rnd(mean, mean)
        rnd(var, var)
        a(f'v_add_f32 v{var}, 0x3727c5ac, v{var}')
        rnd(var, var)
        a(f'v_sqrt_f32 v{var}, v{var}')
        rnd(t, var)
        a(f'v_rcp_f32 v{var}, v{t}')

    def ln_norm(x, n, mean2, rs2, exact=None):
        for k in range(0, n, 2):
            a(f'v_pk_add_f32 {vr(x + k, 2)}, {vr(x + k, 2)}, {vr(mean2, 2)} op_sel_hi:[1,0] neg_lo:[0,1] neg_hi:[0,1]')
        for k in range(n):
            rnd(x + k, x + k)
        for k in range(0, n, 2):
            a(f'v_pk_mul_f32 {vr((exact or x) + k, 2)}, {vr(x + k, 2)}, {vr(rs2, 2)} op_sel_hi:[1,0]')
        if exact:
            for k in range(0, n, 2):
                a(f'v_pk_fma_f32 {vr(x + k, 2)}, {vr(exact + k, 2)}, {vr(rs2, 2)}, {vr(x + k, 2)} op_sel:[0,1,0] op_sel_hi:[1,1,1] neg_lo:[1,0,0] neg_hi:[1,0,0]')
            for k in range(0, n, 2):
                a(f'v_pk_fma_f32 {vr(x + k, 2)}, {vr(x + k, 2)}, {vr(rs2, 2)}, {vr(exact + k, 2)} op_sel_hi:[1,0,1]')
        for k in range(n):
            rnd(x + k, x + k)

    def ln_mod(x, n, c1, sh):
        for k in range(0, n, 2):
            a(f'v_pk_mul_f32 {vr(x + k, 2)}, {vr(x + k, 2)}, {vr(c1 + k, 2)}')
        for k in range(n):
            rnd(x + k, x + k)
        for k in range(0, n, 2):
            a(f'v_pk_add_f32 {vr(x + k, 2)}, {vr(x + k, 2)}, {vr(sh + k, 2)}')

    def mod_params(blk_shift, blk_scale, sh, c1, raw, kbs):
        nb = len(kbs)
        for q, base in enumerate((blk_shift, blk_scale)):
            for j, kb in enumerate(kbs):
                a(f's_lshl_b32 s{24 + nb * q + j}, s{kb}, 11\ns_add_u32 s{24 + nb * q + j}, s{24 + nb * q + j}, {WS_MOD + base * 2048}')
        poll(a.lab('m'), [(raw + 8 * q + 4 * h, f'buffer_load_dwordx3 {vr(raw + 8 * q + 4 * h, 3)}, v{V_MA}, {sr(SRD_WS, 4)}, s{24 + q} offen offset:{128 * h} sc1')
                          for q in range(2 * nb) for h in range(2)], False)
        for k in range(2 * nb):
            for dw in range(2):
                a(f'v_lshlrev_b32 v{sh + 4 * k + 2 * dw}, 16, v{raw + 4 * k + 1 + dw}\nv_and_b32 v{sh + 4 * k + 2 * dw + 1}, 0xffff0000, v{raw + 4 * k + 1 + dw}')
                a(f'v_lshlrev_b32 v{c1 + 4 * k + 2 * dw}, 16, v{raw + 8 * nb + 4 * k + 1 + dw}\nv_and_b32 v{c1 + 4 * k + 2 * dw + 1}, 0xffff0000, v{raw + 8 * nb + 4 * k + 1 + dw}')
        for k in range(8 * nb):
            a(f'v_add_f32 v{c1 + k}, 1.0, v{c1 + k}')
        for k in range(8 * nb):
            rnd(c1 + k, c1 + k)

    def write_act(x):
        for k in range(8):
            a(f'v_cvt_pk_bf16_f32 v{x + k}, v{x + 2 * k}, v{x + 2 * k + 1}')
        a(f's_lshl_b32 s30, s{S_C}, 10\ns_lshl_b32 s31, s{S_KB1}, 10\nv_add_u32 v10, s30, v{V_L16}\nv_add_u32 v11, s31, v{V_L16}')
        a(f'ds_write_b128 v10, {vr(x, 4)} offset:{L_A}\nds_write_b128 v11, {vr(x + 4, 4)} offset:{L_A}')

    def stats_setup():
        a(f'v_lshrrev_b32 v47, 5, v0\nv_and_b32 v45, 0x70, v{V_AR}\nv_lshl_or_b32 v47, v47, 7, v45\ns_lshl_b32 s30, s{S_C}, 2\nv_add_u32 v47, s30, v47')
        a(f's_cmp_eq_u32 s{S_C}, 3\ns_cselect_b32 s30, 0, 1.0\nv_mov_b32 v44, s30')

    def stats_local():
        for q in range(2):
            x, p = 12 + 8 * q, 28 + 6 * q
            a(f'v_pk_add_f32 {vr(p, 2)}, {vr(x, 2)}, {vr(x + 2, 2)}\nv_pk_mul_f32 {vr(p + 2, 2)}, {vr(x, 2)}, {vr(x, 2)}\nv_pk_add_f32 {vr(p + 4, 2)}, {vr(x + 4, 2)}, {vr(x + 6, 2)}')
        for k in (2, 4, 6):
            for q in range(2):
                x, p = 12 + 8 * q, 28 + 6 * q
                a(f'v_pk_fma_f32 {vr(p + 2, 2)}, {vr(x + k, 2)}, {vr(x + k, 2)}, {vr(p + 2, 2)}')
                if k == 2:
                    a(f'v_pk_add_f32 {vr(p, 2)}, {vr(p, 2)}, {vr(p + 4, 2)}')
        a('v_pk_fma_f32 v[28:29], v[34:35], v[44:45], v[28:29] op_sel_hi:[1,0,1]\nv_pk_fma_f32 v[30:31], v[36:37], v[44:45], v[30:31] op_sel_hi:[1,0,1]')
        a('v_add_f32 v28, v28, v29\nv_add_f32 v30, v30, v31')
        a('v_permlane32_swap_b32 v28, v30\nv_add_f32 v28, v28, v30')
        a('v_mov_b32 v30, v28\nv_permlane16_swap_b32 v28, v30\nv_add_f32 v28, v28, v30')
        dpp('v_add_f32', 28, 28, 28, 'row_ror:8')
        a(f'ds_write_b32 v47, v28 offset:{L_ST}\ns_waitcnt lgkmcnt(0)')

    def stats_final():
        a(f'ds_read_b128 v[28:31], v45 offset:{L_ST}\nds_read_b128 v[32:35], v45 offset:{L_ST + 128}\ns_waitcnt lgkmcnt(0)')
        a('v_pk_add_f32 v[28:29], v[28:29], v[30:31]\nv_pk_add_f32 v[32:33], v[32:33], v[34:35]')
        a('v_add_f32 v28, v28, v29\nv_add_f32 v30, v32, v33\nv_mul_f32 v28, 0x3b124925, v28\nv_mul_f32 v30, 0x3b124925, v30')
        a('v_fma_f32 v30, -v28, v28, v30\nv_max_f32 v30, 0, v30')

    a('L_actQ:')
    stats_setup()
    stats_local()
    flag_add(F_S3, 10)
    spin_lds(F_S3, 4, 10)
    stats_final()
    ln_scalars(28, 30, 31)
    a(f's_cmp_lt_u32 s{S_B}, 4\ns_cselect_b32 s{S_KB1}, s{S_C}, s{S_KB1}\ns_cbranch_scc1 L_qh0')
    for k in range(8):
        a(f'v_mov_b32 v{12 + k}, v{20 + k}')
    a('L_qh0:')
    ln_norm(12, 8, 28, 30, exact=44)
    spin_lds(F_MT, 1, 10)
    stamp(1)
    census(76)
    mod_params(0, 7, 28, 44, 144, (S_KB1,))
    census_done(76)
    stamp(2)
    ln_mod(12, 8, 44, 28)
    for k in range(4):
        a(f'v_cvt_pk_bf16_f32 v{12 + k}, v{12 + 2 * k}, v{13 + 2 * k}')
    a(f's_lshl_b32 s30, s{S_C}, 10\nv_add_u32 v10, s30, v{V_L16}\nds_write_b128 v10, v[12:15] offset:{L_A}\ns_waitcnt lgkmcnt(0)')
    flag_add(F_S1, 10)
    spin_lds(F_S1, 8, 10)
    stamp(3)

    def gemm(n):
        for s in range(n):
            a(f'ds_read_b128 {vr(T0 + 4 * s, 4)}, v{V_AR} offset:{L_A + 512 * s}')
        a('s_waitcnt lgkmcnt(0)')
        for s in range(n):
            a(f'v_mfma_f32_16x16x32_bf16 v[68:71], {vr(W56 + 4 * s, 4)}, {vr(T0 + 4 * s, 4)}, {"v[68:71]" if s else 0}')
    trread(W56, 8, V_TR)
    gemm(8)
    a(f'v_and_b32 v12, 7, v0\nv_and_b32 v13, 48, v0\nv_lshl_or_b32 v12, v12, 8, v13\ns_lshl_b32 s30, s{S_C}, 6\nv_add_u32 v12, s30, v12')
    for j in range(4):
        a(f'v_bfi_b32 v{68 + j}, 3, s{56 + j}, v{68 + j}')
    a(f'ds_write_b128 v12, v[68:71] offset:{L_A + 4096}\ns_waitcnt lgkmcnt(0)')
    flag_add(F_S4, 10)
    spin_lds(F_S4, 4, 10)
    a(f's_lshl_b32 s30, s{S_C}, 9\nv_add_u32 v12, s30, v{V_L16}\nds_read_b128 v[72:75], v12 offset:{L_A + 4096}\ns_waitcnt lgkmcnt(0)\ns_mov_b32 exec_hi, 0')
    group_store(f'buffer_store_dwordx4 v[72:75], v{V_L16}, {sr(SRD_WS, 4)}, s{S_DST} offen')
    a('s_mov_b64 exec, -1\ns_branch L_pub')

    a('L_actW:')
    write_act(12)
    a('L_gemm0:')
    a('s_waitcnt lgkmcnt(0)')
    flag_add(F_S1, 10)
    spin_lds(F_S1, 8, 10)
    stamp(3)
    trread(W56, 14, V_TR)
    a(f's_cmp_eq_u32 s{S_ROLE}, 3\ns_cbranch_scc1 L_mid')
    gemm(14)
    a(f'v_mov_b32 v72, s{S_E}\nv_mov_b32 v75, s{S_E}')
    a('v_cvt_pk_bf16_f32 v73, v68, v69\nv_cvt_pk_bf16_f32 v74, v70, v71')
    a(f's_mov_b64 exec, {MASK8}')
    a(f'buffer_store_dwordx4 v[72:75], v{V_AR}, {sr(SRD_WS, 4)}, s{S_DST} offen sc1')
    a('s_mov_b64 exec, -1')
    a('L_pub:')
    stamp(4)

    a('L_mid:')
    a('s_waitcnt lgkmcnt(0)')
    flag_add(F_VT, 12, 16)
    a(f's_cmp_eq_u32 s{S_C}, 0\ns_cbranch_scc0 L_noq')
    spin_lds(F_KT, 1, 12)
    a(f's_lshl_b32 s30, s{S_H}, 14\ns_lshl_b32 s31, s{S_B}, 8\ns_add_u32 s30, s30, s31\ns_add_u32 s30, s30, {WS_Q}\ns_add_u32 s31, s30, 8192')
    a(f'v_lshrrev_b32 v12, 4, v0\nv_and_b32 v14, 0xf0, v{V_L16}\nv_lshl_or_b32 v14, v12, 11, v14\nv_lshlrev_b32 v15, 3, v0')
    two = [(16 + 4 * k, f'buffer_load_dwordx3 {vr(16 + 4 * k, 3)}, v14, {sr(SRD_WS, 4)}, s{30 + k} offen sc1') for k in range(2)]
    a('s_add_u32 s24, s30, 0x20000\ns_add_u32 s25, s31, 0x20000')
    poll('q', [(16 + 4 * k, f'buffer_load_dwordx4 {vr(16 + 4 * k, 4)}, v14, {sr(SRD_WS, 4)}, s{(30, 31, 24, 25)[k]} offen sc1') for k in range(4)], 2)
    for k in range(0, 8, 2):
        a(f'v_pk_add_f32 {vr(16 + k, 2)}, {vr(16 + k, 2)}, {vr(24 + k, 2)}')
    for k in range(4):
        a(f'v_cvt_pk_bf16_f32 v{16 + k}, v{16 + 2 * k}, v{17 + 2 * k}')
    a(f'ds_write_b64 v15, v[16:17] offset:{L_Q}\nds_write_b64 v15, v[18:19] offset:{L_Q + 512}\ns_waitcnt lgkmcnt(0)')
    flag_add(F_Q, 12)
    stamp(5)
    a('L_noq:')
    Z_GA, Z_GB, Z_X, Z_TAG, Z_OA = 80, 81, 82, 83, 85
    S_Z = 39

    def zrole(out):
        a(f's_cmp_lt_u32 s{S_H}, 7\ns_cbranch_scc0 {out}\ns_cmp_ge_u32 s{S_C}, 2\ns_cbranch_scc0 {out}')
        a(f's_lshl1_add_u32 s{S_Z}, s{S_R}, s{S_C}\ns_sub_u32 s{S_Z}, s{S_Z}, 2')
        if not cfg['repz']:
            a(f's_cmp_eq_u32 s{S_B}, s{S_H}\ns_cbranch_scc0 {out}')
    a(f's_cmp_lt_u32 s{S_B}, 7\ns_cbranch_scc0 L_noz')
    zrole('L_noz')
    spin_lds(F_Q, 1, 12)
    a(f's_mov_b64 {sr(SRD_C, 2)}, {sr(P_X, 2)}')
    a(f's_lshl_b32 s30, s{S_Z}, 8\ns_add_u32 s31, s30, {WS_MOD + 35 * 2048}\ns_add_u32 s30, s30, {WS_MOD + 14 * 2048}')
    a('v_and_b32 v14, 15, v0\nv_lshlrev_b32 v14, 4, v14')
    a(f'v_and_b32 v12, 7, v0\nv_mul_u32_u24 v12, 896, v12\nv_and_b32 v13, 8, v0\nv_add_u32 v12, v12, v13\nv_lshrrev_b32 v13, 4, v0\nv_lshl_add_u32 v12, v13, 1, v12')
    a(f's_lshl_b32 s27, s{S_Z}, 4\nv_add_u32 v{Z_OA}, s27, v12')
    a(f'buffer_load_ushort v{Z_X}, v{Z_OA}, {sr(SRD_C, 4)}, 0 offen')
    poll('z', two, False)
    a('v_cmp_lt_u32 vcc, 31, v0\nv_cndmask_b32 v17, v17, v18, vcc\nv_cndmask_b32 v21, v21, v22, vcc')
    a('v_and_b32 v13, 16, v0\nv_lshrrev_b32 v17, v13, v17\nv_lshrrev_b32 v21, v13, v21')
    a(f'v_lshlrev_b32 v{Z_GA}, 16, v17\nv_lshlrev_b32 v{Z_GB}, 16, v21\nv_lshlrev_b32 v{Z_X}, 16, v{Z_X}')
    a(f'v_cmp_gt_u32 vcc, 16, v0\nv_mov_b32 v13, s{S_E8}\nv_cndmask_b32 v{Z_TAG}, 0, v13, vcc')
    a('L_noz:')
    F_SH, F_C1 = 52, 68
    a(f's_cmp_eq_u32 s{S_ROLE}, 3\ns_cbranch_scc0 L_nofp')
    spin_lds(F_Q, 1, 12)
    mod_params(21, 28, F_SH, F_C1, 144, (S_C, S_KB1))
    a(f's_lshl_b32 s30, s{S_C}, 12\ns_add_u32 s30, s30, {L_PAR}\nv_add_u32 v12, s30, v{V_L16}')
    for k, r in enumerate((F_SH + 8, F_SH + 12, F_C1 + 8, F_C1 + 12)):
        a(f'ds_write_b128 v12, {vr(r, 4)} offset:{1024 * k}')
    a('L_nofp:')
    a(f's_cmp_eq_u32 s{S_C}, 1\ns_cbranch_scc0 L_nosm')
    a(f's_lshl_b32 s26, s{S_B}, 3\ns_or_b32 s26, s26, s{S_H}\ns_lshl_b32 s26, s26, 9\ns_add_u32 s26, s26, {WS_ML}\ns_lshl_b32 s27, s{S_D}, 7\ns_add_u32 s27, s27, s26')
    a('v_lshrrev_b32 v13, 4, v0')
    a(f'v_mov_b32 v49, v{V_AR}')
    a('v_and_b32 v50, 15, v0\nv_lshlrev_b32 v50, 4, v50\nv_lshl_or_b32 v50, v13, 9, v50')
    a('s_mov_b32 s32, 0x3db8aa3b')
    spin_lds(F_KT, 1, 12)
    census(48)
    spin_lds(F_SC, 4, 12)
    a('s_waitcnt vmcnt(0)')
    census_done(48)
    stamp(6)
    for w in range(4):
        a(f'ds_read_b128 {vr(12 + 4 * w, 4)}, v{V_L16} offset:{L_SC + 1024 * w}')
    a('s_waitcnt lgkmcnt(0)')
    for k in range(16):
        rnd(12 + k, 12 + k)
    a('v_max3_f32 v45, v12, v13, v14')
    for k in range(15, 27, 2):
        a(f'v_max3_f32 v45, v45, v{k}, v{k + 1}')
    a('v_max_f32 v45, v45, v27')

    def head_allreduce(op, x, t):
        dpp(op, x, x, x, 'quad_perm:[1,0,3,2]')
        dpp(op, x, x, x, 'quad_perm:[2,3,0,1]')
        dpp(op, x, x, x, 'row_half_mirror')
        rows_allreduce(op, x, t)

    def exps(m):
        for k in range(16):
            a(f'v_sub_f32 v{28 + k}, v{12 + k}, v{m}')
        for k in range(16):
            a(f'v_mul_f32 v{28 + k}, s32, v{28 + k}')
        for k in range(16):
            a(f'v_exp_f32 v{28 + k}, v{28 + k}')
    head_allreduce('v_max_f32', 45, 47)
    exps(45)
    for st in (8, 4, 2):
        for k in range(0, st, 2):
            a(f'v_pk_add_f32 {vr(28 + k, 2)}, {vr(28 + k, 2)}, {vr(28 + st + k, 2)}')
    a('v_add_f32 v46, v28, v29')
    head_allreduce('v_add_f32', 46, 47)
    a(f's_and_b32 s30, s{S_E}, 0xffff\ns_lshr_b32 s31, s{S_E}, 16\nv_or_b32 v28, s30, v45\nv_mov_b32 v29, v46\nv_mov_b32 v30, s31')
    a('v_mov_b32_dpp v31, v46 row_ror:8 row_mask:0xf bank_mask:0xf')
    dpp('v_or_b32', 30, 45, 30, 'row_ror:8')
    a('s_mov_b64 exec, 0xff')
    group_store(f'buffer_store_dwordx4 v[28:31], v{V_L16}, {sr(SRD_WS, 4)}, s27 offen')
    a('s_mov_b64 exec, -1')
    a('s_mov_b32 s30, 0x05040100')
    a('L_mlpoll:')
    a(f'buffer_load_dwordx4 v[32:35], v49, {sr(SRD_WS, 4)}, s26 offen sc1\ns_waitcnt vmcnt(0)')
    a(f'v_perm_b32 v36, v34, v32, s30\nv_cmp_ne_u32 vcc, s{S_E}, v36\ns_cbranch_vccz L_mlgot')
    retry('L_mlpoll')
    a('L_mlgot:')
    stamp(7)
    a(f'v_cndmask_b32 v29, v34, v32, {MASK8}\nv_cndmask_b32 v30, v35, v33, {MASK8}\nv_and_b32 v29, 0xffff0000, v29')
    a('v_mov_b32 v45, v29')
    rows_allreduce('v_max_f32', 45, 47)
    a('v_sub_f32 v29, v29, v45\nv_mul_f32 v29, s32, v29\nv_exp_f32 v29, v29\nv_mul_f32 v46, v29, v30')
    rows_allreduce('v_add_f32', 46, 47)
    a('v_rcp_f32 v46, v46')
    exps(45)
    for k in range(0, 16, 2):
        a(f'v_pk_mul_f32 {vr(28 + k, 2)}, {vr(28 + k, 2)}, v[46:47] op_sel_hi:[1,0]')
    for uh in range(2):
        for dd in range(4):
            u, x = 2 * uh + (dd >> 1), dd & 1
            a(f'v_cvt_pk_bf16_f32 v{12 + 4 * uh + dd}, v{28 + 4 * (2 * x) + u}, v{28 + 4 * (2 * x + 1) + u}')
    a(f'ds_write_b128 v50, v[12:15] offset:{L_P}\nds_write_b128 v50, v[16:19] offset:{L_P + 256}')
    a(f's_add_u32 s30, s{S_FAST}, 1\nv_mov_b32 v20, s30\nv_mov_b32 v21, s{S_E}\nv_mov_b32 v22, 0\ns_waitcnt lgkmcnt(0)\nds_write_b64 v22, v[20:21] offset:{F_P}')
    stamp(8)
    a('L_nosm:')

    if cfg['abl'] & 16:
        a('s_branch L_exit')
    a(f's_cmp_eq_u32 s{S_ROLE}, 3\ns_cbranch_scc1 L_ffn')
    if cfg['abl'] & 64:
        a('s_branch L_exit')
    a(f's_cmp_eq_u32 s{S_B}, 7\ns_cbranch_scc1 L_exit')
    srd(SRD_A, P_WO, 3670016)
    a(f's_movk_i32 s32, 896\ns_movk_i32 s{S_A}, 7168\ns_mov_b32 s{S_Bs}, 229376')
    a(f's_lshl_b32 s30, s{S_H}, 9\ns_lshl_b32 s31, s{S_D}, 6\ns_add_u32 s30, s30, s31\ns_mul_i32 s30, s30, 896\ns_lshl_b32 s31, s{S_B}, 7\ns_add_u32 s{S_BASE}, s30, s31')
    a(f'v_mad_u32_u24 v{V_DM}, v{V_R8}, s32, v{V_NT}')
    a(f's_lshl_b32 s24, s{S_JJ}, 14\ns_lshl_b32 s30, s{S_C}, 7\ns_add_u32 s24, s24, s30\ns_add_u32 s24, s24, {WS_OP}')
    a('s_add_u32 s25, s24, 4096\ns_add_u32 s26, s24, 8192\ns_add_u32 s27, s24, 12288')
    a('v_and_b32 v12, 7, v0\nv_lshrrev_b32 v13, 3, v0\nv_lshlrev_b32 v14, 4, v12\nv_lshl_or_b32 v40, v13, 9, v14')
    a('v_lshlrev_b32 v14, 4, v13\nv_lshl_or_b32 v41, v12, 7, v14')
    a(f's_lshr_b32 s30, s{S_C}, 1\ns_lshl_b32 s30, s30, 10\ns_and_b32 s31, s{S_C}, 1\ns_lshl_b32 s31, s31, 3\ns_add_u32 s30, s30, s31\nv_add_u32 v41, s30, v41')
    a(f'v_and_b32 v14, 0xff, v{V_AR}\nv_and_b32 v13, 8, v0\nv_lshl_or_b32 v14, v13, 27, v14')
    a('v_lshrrev_b32 v13, 5, v0\nv_lshl_or_b32 v42, v13, 13, v14\nv_lshl_or_b32 v44, v13, 10, v14')
    a(f's_mul_i32 s23, s{S_H}, 56\ns_lshl3_add_u32 s23, s{S_B}, s23\ns_lshl1_add_u32 s23, s{S_C}, s23\ns_lshl2_add_u32 s23, s23, s{S_D}\ns_lshl_b32 s23, s23, 8\ns_add_u32 s23, s23, {WS_PL}')
    a(f's_lshl_b32 s{S_DST}, s{S_B}, 16\ns_lshl_b32 s30, s{S_JJ}, 8\ns_add_u32 s{S_DST}, s{S_DST}, s30\ns_lshl_b32 s30, s{S_C}, 14\ns_add_u32 s{S_DST}, s{S_DST}, s30')
    a(f's_add_u32 s{S_DST}, s{S_DST}, {WS_PA}\nv_mov_b32 v43, s{S_E}\ns_movk_i32 s38, 0xff')
    spin_lds(F_VT, 68, 12)
    dma(SRD_A, 2, L_W)
    code_prefetch('L_ffn')
    a(f'v_mov_b32 v12, 0\nds_read_b32 v12, v12 offset:{F_P}\ns_waitcnt lgkmcnt(0)\nv_readfirstlane_b32 s{S_FAST}, v12\ns_sub_u32 s{S_FAST}, s{S_FAST}, 1')
    a('s_waitcnt vmcnt(0)\ns_barrier')
    stamp(9)
    if cfg['abl'] & 32:
        a('s_branch L_exit')

    poll('w', [(12 + 4 * s, f'buffer_load_dwordx4 {vr(12 + 4 * s, 4)}, v40, {sr(SRD_WS, 4)}, s{24 + s} offen sc1') for s in range(4)], True,
         lambda: trread(W56, 4, V_TR))
    a('v_pk_add_f32 v[12:13], v[12:13], v[16:17]\nv_pk_add_f32 v[20:21], v[20:21], v[24:25]')
    a('v_pk_add_f32 v[14:15], v[14:15], v[18:19]\nv_pk_add_f32 v[22:23], v[22:23], v[26:27]')
    a('v_pk_add_f32 v[12:13], v[12:13], v[20:21]\nv_pk_add_f32 v[14:15], v[14:15], v[22:23]')
    a('v_cvt_pk_bf16_f32 v12, v12, v13\nv_cvt_pk_bf16_f32 v13, v14, v15')
    a(f'ds_write_b64 v41, v[12:13] offset:{L_A}\ns_waitcnt lgkmcnt(0)\ns_barrier')
    for s in range(4):
        a(f'ds_read_b128 {vr(12 + 4 * s, 4)}, v{V_AR} offset:{L_A + 512 * s}')
    for s in range(4):
        a(f's_waitcnt lgkmcnt({3 - s})')
        a(f'v_mfma_f32_16x16x32_bf16 v[28:31], {vr(W56 + 4 * s, 4)}, {vr(12 + 4 * s, 4)}, {"v[28:31]" if s else 0}')
    a('v_bfi_b32 v28, s38, v43, v28')
    a(f'buffer_store_dwordx4 v[28:31], v42, {sr(SRD_WS, 4)}, s{S_DST} offen sc1')
    if cfg['pal']:
        group_store(f'buffer_store_dwordx4 v[28:31], v44, {sr(SRD_WS, 4)}, s23 offen')
    stamp(10)
    if cfg['abl'] & 128:
        a('s_branch L_exit')
    zrole('L_exit')
    ZO = (20, 21, 22, 23, 24, 25, 26, 27)
    a(f's_lshl_b32 s30, s{S_Z}, 13\ns_add_u32 s{ZO[0]}, s30, {WS_PA}')
    for u in range(1, 8):
        a(f's_add_u32 s{ZO[u]}, s{ZO[0]}, {1024 * u}')
    if cfg['pal']:
        a(f's_mul_i32 s31, s{S_H}, 56\ns_add_u32 s31, s31, s{S_Z}\ns_lshl_b32 s31, s31, 10\ns_add_u32 s31, s31, {WS_PL}')
        a(f's_mov_b32 m0, s{S_H}\ns_nop 0\ns_movreld_b32 s{ZO[0]}, s31')
    a(f's_lshl_b32 s32, s{S_Z}, 8\ns_add_u32 s32, s32, {WS_X1}')
    if cfg['repz']:
        a(f's_lshl_b32 s31, s{S_H}, 14\ns_add_u32 s32, s32, s31')

    def gather(name, n, off):
        poll(name, [(12 + 4 * u, f'buffer_load_dwordx4 {vr(12 + 4 * u, 4)}, v{V_L16}, {sr(SRD_WS, 4)}, ' + off(u) + ' sc1')
                    for u in range(n)], True)
        for st in (4, 2, 1):
            for u in range(st):
                if u + st < n:
                    for h in (0, 2):
                        a(f'v_pk_add_f32 {vr(12 + 4 * u + h, 2)}, {vr(12 + 4 * u + h, 2)}, {vr(12 + 4 * (u + st) + h, 2)}')
        a('v_permlane32_swap_b32 v12, v14\nv_permlane32_swap_b32 v13, v15\nv_pk_add_f32 v[12:13], v[12:13], v[14:15]')
        a('v_permlane16_swap_b32 v12, v13\nv_add_f32 v12, v12, v13')

    gather('a', 8, lambda u: f's{ZO[u]} offen')
    rnd(12, 12)
    a(f'v_mul_f32 v12, v{Z_GA}, v12')
    rnd(12, 12)
    a(f'v_add_f32 v12, v{Z_X}, v12')
    rnd(Z_X, 12)
    a(f'v_or_b32 v48, v{Z_TAG}, v{Z_X}\nv_mov_b32 v49, v{Z_X}\nv_permlane16_swap_b32 v48, v49')
    a('v_mov_b32 v50, v48\nv_mov_b32 v51, v49\nv_permlane32_swap_b32 v48, v50\nv_permlane32_swap_b32 v49, v51')
    a('s_mov_b64 exec, 0xffff')
    if cfg['repz']:
        group_store(f'buffer_store_dwordx4 v[48:51], v{V_L16}, {sr(SRD_WS, 4)}, s32 offen')
    else:
        a(f'buffer_store_dwordx4 v[48:51], v{V_L16}, {sr(SRD_WS, 4)}, s32 offen sc1')
    a('s_mov_b64 exec, -1')
    stamp(1)
    a(f's_cmp_eq_u32 s{S_B}, s{S_H}\ns_cbranch_scc0 L_exit')
    srd(SRD_C, P_OUT, 7168)
    a(f'v_mov_b32 v44, s{S_E}\nv_mov_b32 v47, 0')
    a(f's_add_u32 s24, s30, {WS_PF}\ns_add_u32 s25, s24, 4096')
    gather('f', 7, lambda u: f's{24 + (u >> 2)} offen offset:{1024 * (u & 3)}')
    rnd(12, 12)
    a(f'v_mul_f32 v12, v{Z_GB}, v12')
    rnd(12, 12)
    a(f'v_add_f32 v12, v{Z_X}, v12\nv_cvt_pk_bf16_f32 v12, v12, v12')
    a(f'buffer_store_short v12, v{Z_OA}, {sr(SRD_C, 4)}, 0 offen')
    stamp(2)
    a(f's_cmp_eq_u32 s{S_Z}, 0\ns_cbranch_scc0 L_exit')
    a(f's_mov_b64 exec, 1\nbuffer_store_dword v44, v47, {sr(SRD_WS, 4)}, 0 offen sc1\ns_mov_b64 exec, -1')
    a('s_branch L_exit')

    a('L_ffn:')
    if cfg['abl'] & 128:
        a('s_branch L_exit')
    srd(SRD_A, P_W1, 1605632)
    srd(SRD_B, P_W3, 1605632)
    a(f's_movk_i32 s32, 3584\ns_movk_i32 s{S_A}, 28672\ns_mov_b32 s{S_Bs}, 229376\ns_lshl_b32 s{S_BASE}, s{S_JJ}, 7')
    a(f'v_mad_u32_u24 v{V_DM}, v{V_R8}, s32, v{V_NT}')
    a(f'v_lshrrev_b32 v12, 5, v0\nv_bfe_u32 v13, v0, 3, 1\nv_lshl_or_b32 v12, v12, 1, v13\nv_mul_u32_u24 v12, {BLS}, v12')
    a('v_and_b32 v13, 16, v0\nv_lshl_add_u32 v12, v13, 3, v12\nv_and_b32 v13, 7, v0\nv_lshl_add_u32 v12, v13, 3, v12')
    a(f's_lshl_b32 s30, s{S_C}, 8\ns_add_u32 s30, s30, {L_W}\nv_add_u32 v{V_TR}, s30, v12\nv_add_u32 v46, {56 * BLK}, v{V_TR}')
    a(f'v_and_b32 v14, 0xff, v{V_AR}\nv_and_b32 v13, 8, v0\nv_lshl_or_b32 v14, v13, 27, v14\nv_lshrrev_b32 v13, 5, v0\nv_lshl_or_b32 v48, v13, 13, v14')
    a(f's_lshl_b32 s{S_DST}, s{S_JJ}, 8\ns_lshl_b32 s30, s{S_C}, 14\ns_add_u32 s{S_DST}, s{S_DST}, s30\ns_add_u32 s{S_DST}, s{S_DST}, {WS_PF}')
    a('v_and_b32 v12, 7, v0\nv_lshlrev_b32 v12, 1, v12\nv_and_b32 v13, 8, v0\nv_lshl_or_b32 v12, v13, 4, v12\nv_and_b32 v13, 16, v0\nv_lshl_or_b32 v12, v13, 2, v12')
    a(f'v_and_b32 v13, 32, v0\nv_or_b32 v12, v12, v13\ns_lshl_b32 s30, s{S_C}, 8\nv_add_u32 v49, s30, v12')
    a(f'v_mov_b32 v50, s{S_E}\ns_movk_i32 s38, 0xff\ns_mov_b32 s39, {LOG2E | 0x80000000:#x}')
    a(f'v_mov_b32 v12, 0x4444\nv_mov_b32 v13, 0xeeee\nv_cndmask_b32 v51, v13, v12, {MASK8}')
    for k in range(8):
        a(f'v_mov_b32 v{76 + k}, 0')
    spin_lds(F_VT, 68, 12)
    dma(SRD_A, 7, L_W, bar=cfg['fpre'], BLK=BLS)
    dma(SRD_B, 7, L_W + 56 * BLK, BLK=BLS)
    code_prefetch('L_exit')
    a('s_waitcnt vmcnt(0)')
    flag_add(F_S2, 12)
    spin_lds(F_S2, 4, 12)
    for m, va in enumerate((V_TR, 46)):
        for kb in range(7):
            for rp in range(4):
                a(f'ds_read_b64_tr_b16 {vr(W112 + 56 * m + 8 * kb + 2 * rp, 2)}, v{va} offset:{(8 * kb + 4 * (rp >> 1)) * BLS + (rp & 1) * 64}')
    a(f's_mov_b32 s{S_KB1}, s{S_C}\ns_branch L_ln')
    a('L_fhelp:')
    a(f's_mov_b64 exec, -1\ns_add_u32 s{S_KB1}, s{S_W}, 4\ns_and_b32 s{S_E8}, s{S_E}, 0xff')
    a(f'v_lshlrev_b32 v{V_L16}, 4, v0\nv_lshrrev_b32 v12, 3, v0\nv_and_b32 v13, 0x70, v{V_L16}\nv_lshl_or_b32 v{V_MA}, v12, 8, v13')
    spin_lds(F_S2, 4, 12)
    a(f's_lshl_b32 s30, s{S_W}, 12\ns_add_u32 s30, s30, {L_PAR}\nv_add_u32 v12, s30, v{V_L16}')
    for k, r in enumerate((F_SH, F_SH + 4, F_C1, F_C1 + 4)):
        a(f'ds_read_b128 {vr(r, 4)}, v12 offset:{1024 * k}')
    a('L_ln:')
    a(f's_lshl_b32 s24, s{S_KB1}, 11\ns_add_u32 s24, s24, {WS_X1}')
    if cfg['repz']:
        a(f's_lshl_b32 s31, s{S_H}, 14\ns_add_u32 s24, s24, s31')
    a(f'v_and_b32 v12, 7, v0\nv_and_b32 v13, 32, v0\nv_lshlrev_b32 v13, 3, v13\nv_lshl_or_b32 v45, v12, 5, v13\ns_lshl_b32 s30, s{S_KB1}, 2\nv_add_u32 v47, s30, v45')
    a(f's_lshl_b32 s30, s{S_KB1}, 10\nv_add_u32 v44, s30, v{V_L16}')
    a('s_waitcnt lgkmcnt(0)')
    stamp(9)
    if cfg['abl'] & 32:
        a('s_branch L_exit')
    poll('x', [(12 + 4 * h, f'buffer_load_dwordx4 {vr(12 + 4 * h, 4)}, v{V_MA}, {sr(SRD_WS, 4)}, s24 offen offset:{128 * h} sc1') for h in range(2)], True)
    stamp(10)
    a('v_pk_mul_f32 v[30:31], v[14:15], v[14:15]\nv_pk_add_f32 v[28:29], v[14:15], v[18:19]\nv_pk_mul_f32 v[34:35], v[12:13], v[12:13]\nv_pk_add_f32 v[32:33], v[12:13], v[16:17]')
    a('v_pk_fma_f32 v[30:31], v[18:19], v[18:19], v[30:31]\nv_pk_fma_f32 v[34:35], v[16:17], v[16:17], v[34:35]')
    a('v_pk_add_f32 v[28:29], v[28:29], v[32:33]\nv_pk_add_f32 v[30:31], v[30:31], v[34:35]')
    a('v_add_f32 v28, v28, v29\nv_add_f32 v30, v30, v31')
    a('v_permlane32_swap_b32 v28, v30\nv_add_f32 v28, v28, v30')
    a('v_mov_b32 v30, v28\nv_permlane16_swap_b32 v28, v30\nv_add_f32 v28, v28, v30')
    dpp('v_add_f32', 28, 28, 28, 'row_ror:8')
    a(f'ds_write_b32 v47, v28 offset:{L_ST2}\ns_waitcnt lgkmcnt(0)\ns_barrier')
    a(f'ds_read_b128 v[28:31], v45 offset:{L_ST2}\nds_read_b128 v[32:35], v45 offset:{L_ST2 + 16}\ns_waitcnt lgkmcnt(0)')
    a('v_pk_add_f32 v[28:29], v[28:29], v[30:31]\nv_pk_add_f32 v[32:33], v[32:33], v[34:35]\nv_pk_add_f32 v[28:29], v[28:29], v[32:33]')
    a('v_add_f32 v29, v28, v29\nv_mul_f32 v28, 0x3b124925, v29\nv_mul_f32 v30, 0x3b124925, v29\nv_permlane32_swap_b32 v28, v30')
    a('v_fma_f32 v30, -v28, v28, v30')
    rnd(28, 28)
    a('v_max_f32 v30, 0, v30')
    sub = [f'v_pk_add_f32 {vr(12 + k, 2)}, {vr(12 + k, 2)}, v[28:29] op_sel_hi:[1,0] neg_lo:[0,1] neg_hi:[0,1]' for k in range(0, 8, 2)]
    sub += [f'v_cvt_pk_bf16_f32 v{12 + k}, 0, v{12 + k}' for k in range(8)]
    chain = ['v_cvt_pk_bf16_f32 v30, 0, v30', 'v_add_f32 v30, 0x3727c5ac, v30', 'v_cvt_pk_bf16_f32 v30, 0, v30', 'v_sqrt_f32 v30, v30',
             'v_cvt_pk_bf16_f32 v30, 0, v30', 'v_rcp_f32 v30, v30']
    for k in range(6):
        a(chain[k])
        a(sub[2 * k])
        a(sub[2 * k + 1])
    for k in range(0, 8, 2):
        a(f'v_pk_mul_f32 {vr(12 + k, 2)}, {vr(12 + k, 2)}, v[30:31] op_sel_hi:[1,0]')
    for k in range(8):
        rnd(12 + k, 12 + k)
    ln_mod(12, 8, F_C1, F_SH)
    for k in range(4):
        a(f'v_cvt_pk_bf16_f32 v{12 + k}, v{12 + 2 * k}, v{13 + 2 * k}')
    a(f'ds_write_b128 v44, v[12:15] offset:{L_A}\ns_cmp_lt_u32 s{S_W}, 4\ns_waitcnt lgkmcnt(0)\ns_barrier\ns_cbranch_scc1 L_exit')
    for kb in range(7):
        a(f'ds_read_b128 {vr(12 + 4 * kb, 4)}, v{V_L16} offset:{L_A + 1024 * kb}')
    for kb in range(7):
        a(f's_waitcnt lgkmcnt({6 - kb})')
        a(f'v_smfmac_f32_16x16x64_bf16 v[76:79], {vr(12 + 4 * kb, 4)}, {vr(W112 + 8 * kb, 8)}, v51')
        a(f'v_smfmac_f32_16x16x64_bf16 v[80:83], {vr(12 + 4 * kb, 4)}, {vr(W112 + 56 + 8 * kb, 8)}, v51')
    a('v_permlane32_swap_b32 v76, v78\nv_permlane32_swap_b32 v77, v79\nv_pk_add_f32 v[76:77], v[76:77], v[78:79]')
    a('v_permlane32_swap_b32 v80, v82')
    rnd(76, 76)
    rnd(77, 77)
    a('v_mul_f32 v12, s39, v76\nv_mul_f32 v13, s39, v77\nv_exp_f32 v12, v12\nv_exp_f32 v13, v13')
    a('v_permlane32_swap_b32 v81, v83')
    a('v_add_f32 v12, 1.0, v12\nv_add_f32 v13, 1.0, v13\nv_rcp_f32 v12, v12\nv_rcp_f32 v13, v13')
    a('v_pk_add_f32 v[80:81], v[80:81], v[82:83]')
    a('v_mul_f32 v12, v12, v76\nv_mul_f32 v13, v13, v77')
    for r in (80, 81, 12, 13):
        rnd(r, r)
    a('v_mul_f32 v12, v12, v80\nv_mul_f32 v13, v13, v81\nv_cvt_pk_bf16_f32 v12, v12, v13')
    a(f'ds_write_b16 v49, v12 offset:{L_H}\nds_write_b16_d16_hi v49, v12 offset:{L_H + 16}\ns_waitcnt lgkmcnt(0)\ns_barrier')
    a(f'ds_read_b128 v[12:15], v{V_AR} offset:{L_H}\nds_read_b128 v[16:19], v{V_AR} offset:{L_H + 512}\ns_waitcnt lgkmcnt(0)')

    def f2store(i):
        a(f'v_bfi_b32 v{52 + 4 * i}, s38, v50, v{52 + 4 * i}')
        a(f'buffer_store_dwordx4 {vr(52 + 4 * i, 4)}, v48, {sr(SRD_WS, 4)}, s{S_DST} offen sc1')
        if i < 6:
            a(f's_add_u32 s{S_DST}, s{S_DST}, 0x10000')
    for i in range(7):
        a(f'v_mfma_f32_16x16x32_bf16 {vr(52 + 4 * i, 4)}, {vr(W56 + 8 * i, 4)}, v[12:15], 0')
        a(f'v_mfma_f32_16x16x32_bf16 {vr(52 + 4 * i, 4)}, {vr(W56 + 8 * i + 4, 4)}, v[16:19], {vr(52 + 4 * i, 4)}')
        if i >= 2:
            f2store(i - 2)
    f2store(5)
    f2store(6)
    stamp(11)

    a('L_exit:')
    if cfg['probe']:
        pr = cfg['probe'].split('_')
        cls, k = pr[0][0], int(pr[0][1:])
        a(f's_waitcnt lgkmcnt(0)\ns_cmp_ge_u32 s{S_W}, 4\ns_cbranch_scc{1 if cls == "s" else 0} L_end')
        if cls == 's':
            a('s_barrier\ns_barrier')
        for f in pr[1:]:
            if f[0] == 'r':
                a(f's_cmp_eq_u32 s{S_ROLE}, {f[1:]}\ns_cbranch_scc0 L_end')
            else:
                a(f's_bitcmp1_b32 {f[1:]}, s{S_H}\ns_cbranch_scc0 L_end')
        a(f's_cmp_eq_u32 s{S_ST0 + 2 * k}, 0\ns_cbranch_scc1 L_end\ns_mov_b32 s{S_CNT}, 0')
        a(f'L_pw:\ns_memrealtime s[30:31]\ns_waitcnt lgkmcnt(0)\ns_sub_u32 s30, s30, s{S_ST0 + 2 * k}\ns_cmp_ge_u32 s30, 6000\ns_cbranch_scc1 L_end')
        a(f's_add_u32 s{S_CNT}, s{S_CNT}, 1\ns_cmp_lt_u32 s{S_CNT}, 100000\ns_cbranch_scc1 L_pw\ns_branch L_end')
    if cfg['stamps']:
        a('s_waitcnt lgkmcnt(0)\ns_mov_b64 exec, 1')
        a(f's_lshl_b32 s30, s2, 3\ns_add_u32 s30, s30, s{S_W}\ns_lshl_b32 s30, s30, 6\ns_add_u32 s30, s30, {WS_STAMP}\nv_mov_b32 v0, s30')
        for q in range(3):
            for k in range(4):
                a(f'v_mov_b32 v{4 + k + 4 * q}, s{S_ST0 + 2 * (4 * q + k)}')
            a(f'global_store_dwordx4 v0, {vr(4 + 4 * q, 4)}, {sr(P_WS, 2)} offset:{16 * q}')
        a(f'v_mov_b32 v16, s{S_CNT}\nglobal_store_dword v0, v16, {sr(P_WS, 2)} offset:48')
    a('L_end:\ns_endpgm')
    a('.section .rodata,"a"\n.p2align 6')
    a(f'.amdhsa_kernel {NAME}_kernel')
    a('.amdhsa_next_free_vgpr 256\n.amdhsa_next_free_sgpr 102\n.amdhsa_accum_offset 256\n.amdhsa_group_segment_fixed_size 0')
    a('.amdhsa_kernarg_size 112\n.amdhsa_user_sgpr_count 2\n.amdhsa_user_sgpr_kernarg_segment_ptr 1\n.amdhsa_system_sgpr_workgroup_id_x 1')
    a('.amdhsa_float_denorm_mode_32 3\n.end_amdhsa_kernel')
    if cfg['abl'] & 4:
        k = a.lines.index('L_chain:')
        a.lines = [l for i, l in enumerate(a.lines) if i > k or not l.startswith(('v_mfma', 'v_perm', 'v_add_f32_dpp', 'ds_read_b128'))]
    return head + a.text()


if __name__ == '__main__':
    kw = {}
    for x in sys.argv[2:]:
        k, v = x.split('=')
        kw[k] = int(v) if v.lstrip('-').isdigit() else v
    open(sys.argv[1], 'w').write(gen(**kw))
```

```python
import sys
from asmlib import Asm, vr, sr

NAME = 'adaLN_cond__sliding_block_cached__glu_gated_swiglu__decode'

WS_EPOCH = 0x0
WS_MOD = 0x1000
WS_Q = 0x300000
WS_ML = 0x40000
WS_CEN = 0x50000
WS_PL = 0x280000
WS_X1 = 0x60000
WS_OP = 0x80000
WS_PA = 0x100000
WS_PF = 0x180000
WS_STAMP = 0x200000
WS_SIZE = 0x400000

F_Q, F_SC, F_P, F_KT, F_VT, F_S1, F_S2, F_S3, F_S4, F_MT = 0, 4, 8, 16, 20, 24, 28, 32, 36, 40
L_ST, L_ST2 = 0x100, 0x200
L_Q, L_P, L_SC, L_A, L_H, L_W = 0x400, 0x800, 0x1000, 0x2000, 0x3C00, 0x4000
BLK = 1152
BLS = 1088
L_X = L_W + 56 * BLK
L_PAR = L_X + 64 * 1024
LDS_BYTES = L_X + 80 * 1024

S_W, S_H, S_B, S_D, S_R = 3, 4, 5, 6, 7
SRD_A, SRD_B, SRD_WS, SRD_C = 8, 12, 16, 20
S_E, S_C, S_CNT, S_JJ, S_E8 = 28, 29, 33, 34, 35
S_XO, S_FAST, P_DBG = 71, 75, 64
P_X, P_K, P_V, P_WQ, P_WO, P_W1, P_W3, P_W2, P_C, P_WM, P_OUT, P_WS = 40, 42, 44, 46, 48, 52, 54, 56, 58, 60, 62, 66
S_ST0 = 76
SP = 8
SPIN_CAP = 400000
LOG2E = 0x3FB8AA3B

DEF = dict(seg=((0, 8, 3, 14), (32, 8, 2, 10), (48, 8, 2, 8)), ktrig=60, wb=2, dry=1, lnx=1, touch=0, vsync=42, stamps=0, pref=1, probe='',
           prio=2, dflag=6, NL=16, mtrig=30, abl=0, fast=1, pref2=0, dbar=8, repz=1, pal=1, skip=1)
S_A, S_Bs, S_BASE, S_KB1, S_DST, S_ROLE = 68, 69, 70, 72, 73, 74


def gen(**kw):
    cfg = dict(DEF)
    cfg.update(kw)
    a = Asm()
    seg = cfg['seg']
    if isinstance(seg, str):
        seg = eval(seg)
    DV = seg[-1][1]
    KM = ([2, 1], [8, 16], [4, 32, 64, 128])
    lin = lambda cols, x: sum(c for k, c in enumerate(cols) if x >> k & 1) << 12
    WFL = 'nt'

    def stamp(k):
        if cfg['stamps']:
            a(f's_memrealtime {sr(S_ST0 + 2 * k, 2)}')

    def srd(d, p, size):
        a(f's_mov_b32 s{d}, s{p}\ns_mov_b32 s{d + 1}, s{p + 1}\ns_mov_b32 s{d + 2}, {size}\ns_mov_b32 s{d + 3}, 0x20000')

    def retry(lab):
        a(f's_add_u32 s{S_CNT}, s{S_CNT}, 1\ns_cmp_lt_u32 s{S_CNT}, {SPIN_CAP}\ns_cbranch_scc1 {lab}\ns_branch L_exit')

    def spin_lds(flag, n, t, two=False):
        top, done = a.lab('L_spin'), a.lab('L_got')
        a(f'{top}:\nv_mov_b32 v{t}, 0')
        if two:
            a(f'ds_read_b64 {vr(t, 2)}, v{t} offset:{flag}')
        else:
            a(f'ds_read_b32 v{t}, v{t} offset:{flag}')
        a(f's_waitcnt lgkmcnt(0)\nv_readfirstlane_b32 s31, v{t}\ns_cmp_ge_u32 s31, {n}\ns_cbranch_scc1 {done}')
        retry(top)
        a(f'{done}:')

    PEND = (8, 10, 12, 14, 42, 44, 46, 50)

    def poll(name, loads, tag8, between=None):
        top, chk, done = f'L_{name}poll', f'L_{name}chk', f'L_{name}got'
        for r, ins in loads:
            a(ins)
        if between:
            between()
        a(f's_branch {chk}\n{top}:')
        for k, (r, ins) in enumerate(loads):
            p = PEND[k]
            nx = a.lab('L_nx')
            a(f's_quadmask_b64 {sr(p, 2)}, {sr(p, 2)}')
            if cfg['skip'] and len(loads) > 2:
                a(f's_cbranch_scc0 {nx}')
            a(f's_bitreplicate_b64_b32 {sr(p, 2)}, s{p}\ns_wqm_b32 s{p}, s{p}\ns_bitreplicate_b64_b32 exec, s{p}\n{ins}\n{nx}:')
        a(f's_mov_b64 exec, -1\ns_add_u32 s{S_CNT}, s{S_CNT}, 1\ns_cmp_lt_u32 s{S_CNT}, {SPIN_CAP}\ns_cbranch_scc0 L_exit')
        a(f'{chk}:\ns_waitcnt vmcnt(0)')
        for k, (r, ins) in enumerate(loads):
            if tag8 == 2:
                a(f'v_xor_b32 v10, s56, v{r}')
                for j in range(1, 4):
                    a(f'v_bitop3_b32 v10, v10, v{r + j}, s{56 + j} bitop3:0xf6')
                a(f'v_and_b32 v10, 3, v10\nv_cmp_ne_u32_e64 {sr(PEND[k], 2)}, 0, v10')
            elif tag8:
                a(f'v_cmp_ne_u32_sdwa {sr(PEND[k], 2)}, v{r}, s{S_E8} src0_sel:BYTE_0 src1_sel:DWORD')
            else:
                a(f'v_cmp_ne_u32_e64 {sr(PEND[k], 2)}, s{S_E}, v{r}')
        a(f's_or_b64 vcc, {sr(PEND[0], 2)}, {sr(PEND[1], 2)}')
        for k in range(2, len(loads)):
            a(f's_or_b64 vcc, vcc, {sr(PEND[k], 2)}')
        a(f's_cbranch_scc1 {top}')
        if tag8 == 2:
            for r, ins in loads:
                for j in range(4):
                    a(f'v_and_b32 v{r + j}, -4, v{r + j}')
        elif tag8:
            for r, ins in loads:
                a(f'v_xor_b32 v{r}, s{S_E8}, v{r}')

    def census(t):
        a(f's_lshl_b32 s30, s{S_H}, 8\ns_add_u32 s30, s30, {WS_CEN}\nv_and_b32 v{t}, 31, v0\nv_lshlrev_b32 v{t}, 2, v{t}')
        a(f'buffer_load_dword v{t}, v{t}, {sr(SRD_WS, 4)}, s30 offen sc1')

    def census_done(t):
        a(f'v_cmp_eq_u32 vcc, s{S_XO}, v{t}\ns_bcnt1_i32_b32 s{S_FAST}, vcc_lo')

    def group_store(ins, cond=None):
        slow, done = a.lab('L_st'), a.lab('L_std')
        a(cond or f's_cmp_eq_u32 s{S_FAST}, {32 if cfg["fast"] else 99}')
        a(f's_cbranch_scc0 {slow}\n{ins}\ns_branch {done}\n{slow}:\n{ins} sc1\n{done}:')

    def code_prefetch(end):
        if not cfg['pref2']:
            return
        here, skip = a.lab('L_pc'), a.lab('L_npc')
        a(f's_cmp_eq_u32 s{S_C}, 3\ns_cbranch_scc0 {skip}')
        a(f's_getpc_b64 s[30:31]\n{here}:\nv_lshlrev_b32 v12, 7, v0\nv_min_u32 v12, {end}-{here}, v12\nglobal_load_dword v13, v12, s[30:31]')
        a(f'{skip}:')

    def bar(wait=''):
        skip = a.lab('L_nb')
        if cfg['dry']:
            a(f's_cmp_eq_u32 s{SRD_WS + 2}, 0\n{wait}\ns_cbranch_scc1 {skip}\ns_barrier\n{skip}:')
        else:
            a(f'{wait}\ns_barrier')

    def flag_add(flag, t, inc=1):
        a(f'v_mov_b32 v{t}, 0\nv_mov_b32 v{t + 1}, {inc}\ns_mov_b64 exec, 1\nds_add_u32 v{t}, v{t + 1} offset:{flag}\ns_mov_b64 exec, -1')

    def rnd(d, s):
        a(f'v_cvt_pk_bf16_f32 v{d}, 0, v{s}')

    def rows_allreduce(op, x, t):
        a(f'v_mov_b32 v{t}, v{x}\nv_permlane16_swap_b32 v{x}, v{t}\n{op} v{x}, v{x}, v{t}')
        a(f'v_mov_b32 v{t}, v{x}\nv_permlane32_swap_b32 v{x}, v{t}\n{op} v{x}, v{x}, v{t}')

    def dpp(op, d, s0, s1, ctl, rm=0xf, bm=0xf):
        a(f'{op}_dpp v{d}, v{s0}, v{s1} {ctl} row_mask:{rm:#x} bank_mask:{bm:#x}')

    hdr = open('cdna_kernels/' + NAME + '.s.ref').read().split('; Override launch')[0]
    head = hdr + f'; @launch grid=(256,1,1) block=(512,1,1) lds={LDS_BYTES}\n'
    a('.amdgcn_target "amdgcn-amd-amdhsa--gfx950"\n.text')
    a(f'.globl {NAME}_kernel\n.p2align 8\n.type {NAME}_kernel,@function\n{NAME}_kernel:')
    a('s_load_dwordx16 s[40:55], s[0:1], 0\ns_load_dwordx8 s[56:63], s[0:1], 64\ns_load_dwordx4 s[64:67], s[0:1], 96')
    stamp(0)
    a(f'v_lshrrev_b32 v1, 6, v0\ns_lshr_b32 s{S_B}, s2, 5\ns_cmp_ge_u32 s{S_B}, 8\ns_cbranch_scc1 L_end')
    a(f'v_readfirstlane_b32 s{S_W}, v1\nv_and_b32 v0, 63, v0')
    a(f's_and_b32 s{S_H}, s2, 7\ns_lshr_b32 s{S_R}, s2, 3\ns_and_b32 s{S_D}, s{S_R}, 3')
    a(f's_lshl_b32 s30, s{S_B}, 1\ns_lshr_b32 s{S_ROLE}, 0xcaa0, s30\ns_and_b32 s{S_ROLE}, s{S_ROLE}, 3')
    a(f's_and_b32 s30, s{S_B}, s{S_H}\ns_cmp_eq_u32 s30, 7\ns_cselect_b32 s{S_ROLE}, 0, s{S_ROLE}')
    a(f's_cmp_lt_u32 s2, 42\ns_cselect_b32 s{S_ROLE}, 1, s{S_ROLE}')
    a(f's_cmp_ge_u32 s{S_W}, 4\ns_cbranch_scc1 L_chain')

    def common():
        if cfg['stamps']:
            for k in range(1, 12):
                if k != 9:
                    a(f's_mov_b64 {sr(S_ST0 + 2 * k, 2)}, 0')
        a(f's_mov_b32 s{S_CNT}, 0')

    def decode(vrow, vnt):
        a(f's_lshl2_add_u32 s{S_JJ}, s{S_H}, s{S_D}\ns_and_b32 s{S_C}, s{S_W}, 3')
        a(f's_and_b32 s31, s{S_R}, 7\ns_lshl3_add_u32 s30, s{S_H}, s31\ns_cmp_lt_u32 s2, 42\ns_cselect_b32 s30, s2, s30')
        a(f'v_bfe_u32 v{vrow}, v0, 1, 3')
        a(f'v_lshrrev_b32 v10, 4, v0\nv_and_b32 v11, 1, v0\nv_lshlrev_b32 v11, 4, v11\nv_lshl_or_b32 v{vnt}, v10, 5, v11')

    V_R8, V_NT, V_TR, V_AR, V_L16, V_XA, V_MA, V_DM = 1, 2, 3, 4, 5, 6, 7, 9

    def dma(srdn, nt, lds0, bar=-1, BLK=BLK, qout=None):
        a(f's_lshl_b32 s30, s{S_C}, 1\ns_mul_i32 s31, s30, {BLK}\ns_add_u32 m0, s31, {lds0}')
        a(f's_mul_i32 s30, s30, s{S_A}\ns_add_u32 s30, s30, s{S_BASE}\ns_add_u32 s31, s30, s{S_A}')
        for t in range(nt):
            for u in range(2):
                k = 2 * t + u
                if k == bar:
                    a('s_barrier')
                if k == 8 and qout:
                    a(f's_cmp_eq_u32 s{S_ROLE}, 2\ns_cbranch_scc1 {qout}')
                a(f'buffer_load_dwordx4 v{V_DM}, {sr(srdn, 4)}, s{30 + u} offen {WFL} lds')
                if k < 2 * nt - 1:
                    a(f's_addk_i32 m0, {BLK if u == 0 else 7 * BLK}\ns_add_u32 s{30 + u}, s{30 + u}, s{S_Bs}')

    QA, QD, SC = 8, 24, 4
    RING = 32
    slot = lambda k: RING + 4 * k
    NL = cfg['NL']
    NSYNC = 56 + NL
    ACC = slot(0)
    parked = lambda n: 4 <= n < 4 + NL
    kslot = lambda n: slot((n - 4) % 8) if parked(n) else slot(n if n < 4 else n - NL)
    vidx = lambda i: 8 + (56 - NL + i) % 48
    vslot = lambda i: slot(vidx(i))
    S_LX = 27
    assert 8 <= NL <= 16
    a('v_and_b32 v4, 7, v0\nv_and_b32 v5, 48, v0\nv_lshl_or_b32 v1, v4, 9, v5\nv_and_b32 v5, 8, v0\nv_lshl_or_b32 v1, v5, 3, v1')
    a(f's_lshl3_add_u32 s32, s{S_B}, s{S_H}\ns_lshl2_add_u32 s32, s32, 3\ns_lshl_b32 s32, s32, 20')
    a(f's_lshl_b32 s37, s{S_D}, 15\ns_brev_b32 s31, s{S_W}\ns_lshr_b32 s31, s31, 18\ns_or_b32 s36, s37, s31')
    a(f's_mov_b32 s{SRD_A + 2}, 0x100000\ns_mov_b32 s{SRD_A + 3}, 0x20000')
    a(f's_cmp_lg_u32 s{S_ROLE}, 0\ns_cselect_b64 vcc, -1, 0')
    a('s_cbranch_scc1 L_role\nL_k0:')
    a('s_waitcnt lgkmcnt(0)')
    a(f's_add_u32 s{SRD_A}, s{P_K}, s32\ns_addc_u32 s{SRD_A + 1}, s{P_K + 1}, 0')
    stamp(9)

    def stream_setup():
        a('s_branch L_k4\nL_role:')
        decode(6, 7)
        a(f's_movk_i32 s26, 896\ns_mov_b32 s{SRD_C + 2}, 1605632\ns_and_b32 s31, s{S_B}, 4\ns_lshl_b32 s31, s31, 12\ns_add_u32 s30, s30, s31\ns_mul_i32 s31, s{S_JJ}, 448\ns_waitcnt lgkmcnt(0)')
        a(f's_cmp_eq_u32 s{S_ROLE}, 1\ns_cmovk_i32 s26, 5376\ns_cmov_b32 s{SRD_C + 2}, 2408448\ns_cselect_b64 {sr(SRD_C, 2)}, {sr(P_WM, 2)}, {sr(P_W2, 2)}')
        a(f's_cmp_eq_u32 s{S_ROLE}, 2\ns_cmovk_i32 s26, 8192\ns_cmov_b32 s{SRD_C + 2}, 3670016\ns_cselect_b64 {sr(SRD_C, 2)}, {sr(P_WQ, 2)}, {sr(SRD_C, 2)}')
        a(f's_lshl_b32 s{S_A}, s26, 3\ns_lshl_b32 s{S_Bs}, s26, 6')
        a(f's_cmp_eq_u32 s{S_ROLE}, 3\ns_cmovk_i32 s{S_Bs}, 128\ns_cselect_b32 s30, s31, s30\ns_lshl_b32 s{S_BASE}, s30, 7')
        a(f's_mov_b32 s{SRD_C + 3}, 0x20000')
        a(f'v_mad_u32_u24 v{V_DM}, v6, s26, v7')
        if cfg['abl'] & 2:
            a('s_barrier')
        else:
            dma(SRD_C, 7, L_W, bar=cfg['dbar'], qout='L_k0')
        a('s_branch L_k0\nL_k4:')
        common()
        a(f's_lshl_b32 s{S_LX}, s{S_W}, 14\ns_add_u32 s{S_LX}, s{S_LX}, {L_X}')

    vdone = 0
    g0 = NL // 4
    regg = [0] + list(range(g0 + 1, 16))
    korder = [regg[2], regg[0], regg[1]]
    rest = regg[3:]
    for p in range(1, g0 + 1, 2):
        korder += [('rd', p)] + rest[:1] + [g for g in (p, p + 1) if g <= g0]
        rest = rest[1:]
    korder += rest
    kdone = set()
    qn = [0]

    def qk_post(gi, d):
        t, u = gi >> 2, gi & 3
        dpp('v_add_f32', SC + u, d + 1, d, 'row_ror:8', 1 << t, 0x3)
        dpp('v_add_f32', SC + u, d + 2, d + 3, 'row_ror:8', 1 << t, 0xc)

    def qk_some(landed, maxn):
        prev = None
        while korder and maxn:
            g = korder[0]
            if isinstance(g, tuple):
                for n in range(4 * g[1], min(4 * g[1] + 8, NL + 4)):
                    a(f'ds_read_b128 {vr(kslot(n), 4)}, v3 offset:{1024 * (n - 4)}')
                korder.pop(0)
                continue
            if 4 * g + 3 > landed:
                break
            korder.pop(0)
            maxn -= 1
            if parked(4 * g) and g % 2 == 1:
                a('s_waitcnt lgkmcnt(0)')
            d = QD + 4 * (qn[0] & 1)
            qn[0] += 1
            for j in range(4):
                a(f'v_mfma_f32_16x16x32_bf16 {vr(d, 4)}, {vr(QA + 4 * j, 4)}, {vr(kslot(4 * g + j), 4)}, {vr(d, 4) if j else 0}')
            if prev:
                qk_post(*prev)
            prev = (g, d)
            kdone.add(g)
        if prev:
            qk_post(*prev)
            if len(kdone) == 16:
                a(f's_lshl_b32 s31, s{S_W}, 10\nv_lshl_add_u32 v3, v0, 4, s31\nds_write_b128 v3, {vr(SC, 4)} offset:{L_SC}\ns_waitcnt lgkmcnt(0)')
                flag_add(F_SC, 4)
                stamp(3)

    def perms(dst_of, e0, G, r):
        lo, hi = vslot(8 * G + e0) + r, vslot(8 * G + e0 + 1) + r
        a(f'v_perm_b32 v{dst_of(2 * r) + e0 // 2}, v{hi}, v{lo}, s38')
        a(f'v_perm_b32 v{dst_of(2 * r + 1) + e0 // 2}, v{hi}, v{lo}, s39')

    def pv_mfma(G, j, b):
        a(f'v_mfma_f32_16x16x32_bf16 {vr(ACC + 4 * j, 4)}, {vr(QD + 4 * (G & 1), 4)}, {vr(b, 4)}, {vr(ACC + 4 * j, 4) if G else 0}')

    def pv_group(G):
        a('s_waitcnt lgkmcnt(0)')
        a(f'ds_read_b128 {vr(QD + 4 * ((G + 1) & 1), 4)}, v3 offset:{L_P + 256 * (G + 1)}')
        tmp = lambda j: QA + 4 * (j & 3)
        for r in range(4):
            for e0 in (0, 2, 4, 6):
                perms(tmp, e0, G, r)
            if r:
                pv_mfma(G, 2 * r - 1, tmp(2 * r - 1))
            pv_mfma(G, 2 * r, tmp(2 * r))
        pv_mfma(G, 7, tmp(7))

    for n in range(128):
        isk = n < 64
        n0, d, lite, rmask = [x for x in seg if x[0] <= n][-1]
        if n == 4:
            stream_setup()
        if n == n0 and n:
            a(f's_bitcmp1_b32 {rmask}, s{S_ROLE}\ns_cselect_b64 vcc, -1, 0')
        if n == 5:
            a('s_cbranch_vccnz L_nb\ns_barrier\nL_nb:')
        if n >= d:
            a(f's_waitcnt vmcnt({d - 1})')
        if lite and n >= d - lite:
            skip = a.lab('L_dp')
            a(f's_cbranch_vccnz {skip}\ns_waitcnt vmcnt({d - 1 - lite})\n{skip}:')
        landed = n - d
        if n == d - lite:
            stamp(10)
        if n == 2 * (d - lite):
            stamp(11)
        if n == 120:
            a('s_setprio 3')
        if n == cfg['dflag']:
            assert seg[0][3] == 14 and n >= 4
            skip = a.lab('L_df')
            a(f's_cbranch_vccz {skip}\ns_waitcnt vmcnt({cfg["dflag"]})')
            flag_add(F_S1, 4)
            a(f'{skip}:')
        if n == NSYNC:
            stamp(1)
            if not cfg['abl'] & 9:
                spin_lds(F_Q, 1, 4)
            stamp(2)
            a('v_lshrrev_b32 v4, 1, v0\nv_and_b32 v4, 1, v4\nv_and_b32 v5, 1, v0\nv_lshrrev_b32 v6, 4, v0\nv_lshlrev_b32 v6, 4, v6')
            a('v_lshl_or_b32 v6, v5, 6, v6\nv_lshl_or_b32 v3, v4, 9, v6')
            for j in range(4):
                a(f'ds_read_b128 {vr(QA + 4 * j, 4)}, v3 offset:{L_Q + 128 * j}')
            a(f'v_lshl_add_u32 v3, v0, 4, s{S_LX}')
            a('s_waitcnt lgkmcnt(0)')
            qk_some(landed, 1 if NL >= 8 else 2)
        if isk:
            if n >= NSYNC:
                assert (n - 56) // 4 in kdone
            if n and n % 4 == 0:
                a(f's_add_u32 s36, s36, {lin(KM[2], n >> 2) - lin(KM[2], (n >> 2) - 1)}')
            if parked(n):
                a(f's_add_u32 m0, s{S_LX}, {1024 * (n - 4) - 128 * (n & 3)}')
                a(f'buffer_load_dwordx4 v1, {sr(SRD_A, 4)}, s36 offen offset:{128 * (n & 3)} nt lds')
            else:
                a(f'buffer_load_dwordx4 {vr(kslot(n), 4)}, v1, {sr(SRD_A, 4)}, s36 offen offset:{128 * (n & 3)} nt')
        else:
            i = n - 64
            if i < 48:
                kn = vidx(i) + NL
                assert kn >= 64 or kn // 4 in kdone, (i, kdone)
            else:
                assert vdone > (i - 48) // 8
            a(f's_add_u32 s30, s37, {lin(KM[2], i >> 2) + lin(KM[0], i & 3)}')
            a(f'buffer_load_dwordx4 {vr(vslot(i), 4)}, v2, {sr(SRD_B, 4)}, s30 offen nt')
        if n == 8:
            a(f'v_and_b32 v4, 7, v0\nv_lshrrev_b32 v5, 3, v0\nv_lshlrev_b32 v4, 4, v4\nv_lshl_or_b32 v2, v5, 9, v4')
            a(f's_lshl_b32 s31, s{S_W}, 7\ns_or_b32 s37, s37, s31')
            a(f's_add_u32 s{SRD_B}, s{P_V}, s32\ns_addc_u32 s{SRD_B + 1}, s{P_V + 1}, 0\ns_mov_b32 s{SRD_B + 2}, 0x100000\ns_mov_b32 s{SRD_B + 3}, 0x20000')
            srd(SRD_WS, P_WS, WS_SIZE)
            a('s_mov_b32 s38, 0x05040100\ns_mov_b32 s39, 0x07060302')
        if n == cfg['ktrig']:
            assert n < NSYNC
            flag_add(F_KT, 4)
        if n == cfg['mtrig']:
            flag_add(F_MT, 4)
        if n == 112:
            a(f's_lshl3_add_u32 s30, s{S_H}, s{S_D}\ns_mul_i32 s30, s30, 448\ns_add_u32 s30, s30, s{S_B}\ns_lshl2_add_u32 s31, s{S_H}, s{S_D}')
            a(f's_movk_i32 s26, 896\ns_movk_i32 s25, {BLK}\ns_mov_b32 s{SRD_C + 2}, 3670016\ns_mov_b32 s{SRD_C + 3}, 0x20000')
            a(f's_cmp_eq_u32 s{S_ROLE}, 3\ns_cmovk_i32 s26, 3584\ns_cmovk_i32 s25, {BLS}\ns_cmov_b32 s{SRD_C + 2}, 1605632')
            a(f's_cselect_b64 {sr(SRD_C, 2)}, {sr(P_W1, 2)}, {sr(P_WO, 2)}\ns_cselect_b32 s30, s31, s30\ns_lshl_b32 s30, s30, 7')
            a(f's_lshl_b32 s31, s{S_W}, 4\ns_mul_i32 s31, s31, s26\ns_add_u32 s{S_A}, s30, s31\ns_lshl3_add_u32 s{S_Bs}, s26, s{S_A}')
            a(f's_add_u32 s{S_BASE}, s{S_A}, 229376\ns_add_u32 s{S_XO}, s{S_Bs}, 229376')
            a(f's_lshl_b32 s31, s{S_W}, 1\ns_mul_i32 s31, s31, s25\ns_add_u32 m0, s31, {L_W}\ns_mul_i32 s24, s25, 7')
            a('v_bfe_u32 v4, v0, 1, 3\nv_and_b32 v5, 48, v0\nv_and_b32 v6, 1, v0\nv_lshlrev_b32 v5, 1, v5\nv_lshl_or_b32 v5, v6, 4, v5\nv_mad_u32_u24 v1, v4, s26, v5')
        if n == 127:
            for k, so in enumerate((S_A, S_Bs, S_BASE, S_XO)):
                a(f'buffer_load_dwordx4 v1, {sr(SRD_C, 4)}, s{so} offen nt lds')
                if k < 3:
                    a(f's_add_u32 m0, m0, s{24 if k == 1 else 25}')
        if n >= NSYNC and korder:
            qk_some(landed, 4)
        if n == 64 + cfg['vsync']:
            assert len(kdone) == 16
            stamp(4)
            if not cfg['abl'] & 9:
                spin_lds(F_P, 1, 4, two=True)
            stamp(5)
            a(f'v_readfirstlane_b32 s{S_E}, v5\ns_sub_u32 s{S_FAST}, s31, 1')
            a('v_lshrrev_b32 v4, 1, v0\nv_and_b32 v4, 1, v4\nv_and_b32 v5, 1, v0\nv_lshrrev_b32 v6, 4, v0\nv_lshlrev_b32 v6, 5, v6')
            a('v_lshl_or_b32 v6, v5, 4, v6\nv_lshl_or_b32 v3, v4, 7, v6')
            a(f'ds_read_b128 {vr(QD, 4)}, v3 offset:{L_P}')
        if n >= 64 + cfg['vsync'] and vdone < 7 and 64 + 8 * vdone + 7 <= landed:
            pv_group(vdone)
            vdone += 1
    assert vdone == 7, vdone
    a(f's_lshl_b32 s30, s{S_H}, 2\ns_add_u32 s30, s30, s{S_W}\ns_lshl_b32 s30, s30, 14\ns_lshl_b32 s31, s{S_D}, 12\ns_add_u32 s30, s30, s31')
    a(f's_lshl_b32 s31, s{S_B}, 9\ns_add_u32 s30, s30, s31\ns_add_u32 s30, s30, {WS_OP}')
    a('v_and_b32 v8, 7, v0\nv_lshlrev_b32 v8, 4, v8\nv_and_b32 v9, 8, v0\nv_lshl_or_b32 v8, v9, 5, v8\nv_and_b32 v9, 16, v0\nv_lshl_or_b32 v8, v9, 3, v8')
    a(f's_movk_i32 s31, 0xff\nv_mov_b32 v9, s{S_E}')
    big = lambda j: vslot(24 + j)
    for pr in range(4):
        if 6 - 2 * pr < DV:
            a(f's_waitcnt vmcnt({10 - 2 * pr})')
        if pr < 3:
            for r in range(4):
                perms(big, 2 * pr, 7, r)
    stamp(6)
    a('s_waitcnt lgkmcnt(0)')

    def pv_post(j):
        d = ACC + 4 * j
        dpp('v_add_f32', 4 + (j & 3), d + 1, d, 'row_ror:8', 1 << (j >> 2), 0x3)
        dpp('v_add_f32', 4 + (j & 3), d + 2, d + 3, 'row_ror:8', 1 << (j >> 2), 0xc)
    perms(big, 6, 7, 0)
    perms(big, 6, 7, 1)
    pv_mfma(7, 0, big(0))
    perms(big, 6, 7, 2)
    pv_mfma(7, 1, big(1))
    perms(big, 6, 7, 3)
    for j in range(2, 8):
        pv_mfma(7, j, big(j))
        if j >= 4:
            pv_post(j - 4)
    for j in range(4, 8):
        pv_post(j)
    a('v_bfi_b32 v4, s31, v9, v4')
    a('s_mov_b32 exec_hi, 0')
    if not cfg['abl'] & 256:
        group_store(f'buffer_store_dwordx4 v[4:7], v8, {sr(SRD_WS, 4)}, s30 offen')
    a(f's_cmp_eq_u32 s{S_ROLE}, 3\ns_cbranch_scc1 L_fs')
    a('s_waitcnt vmcnt(1)\ns_barrier')
    stamp(7)
    a('s_barrier\ns_branch L_exit')
    a('L_fs:\ns_barrier\ns_mov_b64 exec, -1')
    stamp(7)
    a('s_waitcnt vmcnt(0)')
    flag_add(F_S2, 12)
    a(f's_cmp_lt_u32 s{S_W}, 3\ns_cbranch_scc1 L_fhelp')
    a('s_branch L_exit')

    W56, W112, T0 = 88, 144, 12
    MASK8 = 's[36:37]'

    def trread(dst, nops, vaddr):
        for s in range(nops):
            for rp in range(2):
                a(f'ds_read_b64_tr_b16 {vr(dst + 4 * s + 2 * rp, 2)}, v{vaddr} offset:{s * 4 * BLK + rp * 128}')

    a('L_chain:')
    if cfg['prio']:
        a(f's_setprio {cfg["prio"]}')
    a('v_mov_b32 v4, 0\nv_mov_b32 v5, 0\nv_mov_b32 v6, 0\nv_mov_b32 v7, 0\nv_lshlrev_b32 v8, 4, v0\nds_write_b128 v8, v[4:7]')
    common()
    if cfg['stamps']:
        a(f's_mov_b64 {sr(S_ST0 + 18, 2)}, 0')
    decode(V_R8, V_NT)
    a(f'v_lshlrev_b32 v{V_L16}, 4, v0')
    a(f'v_and_b32 v11, 7, v0\nv_lshrrev_b32 v12, 3, v0\nv_lshlrev_b32 v13, 4, v11')
    a(f'v_mul_u32_u24 v{V_XA}, 896, v11\nv_lshl_add_u32 v{V_XA}, v12, 4, v{V_XA}\nv_lshl_or_b32 v{V_MA}, v12, 8, v13')
    a(f'v_lshl_or_b32 v{V_AR}, v10, 7, v13')
    a(f's_add_u32 s{S_KB1}, s{S_C}, 4\ns_min_u32 s{S_KB1}, s{S_KB1}, 6')
    a(f's_and_b32 s31, s{S_B}, 4\ns_lshl_b32 s31, s31, 15\ns_add_u32 s31, s31, {WS_Q}\ns_cmp_eq_u32 s{S_ROLE}, 1\ns_cselect_b32 s31, {WS_MOD}, s31\ns_lshl_b32 s{S_DST}, s30, 11\ns_add_u32 s{S_DST}, s{S_DST}, s31')
    a(f's_lshl_b32 s31, s{S_C}, 9\ns_add_u32 s{S_DST}, s{S_DST}, s31')
    a(f's_lshl_b32 s30, s{S_C}, 7\ns_lshl_b32 s31, s{S_KB1}, 7\nv_mov_b32 v13, 0')
    a(f's_mov_b32 s{SRD_C + 2}, 7168\ns_mov_b32 s{SRD_C + 3}, 0x20000')
    a('s_waitcnt lgkmcnt(0)\ns_barrier')
    if cfg['abl'] & 1:
        a('s_branch L_exit')
    srd(SRD_WS, P_WS, WS_SIZE)
    a(f's_cmp_eq_u32 s{S_ROLE}, 1\ns_cselect_b64 {sr(SRD_C, 2)}, {sr(P_C, 2)}, {sr(P_X, 2)}')
    a(f's_load_dword s{S_E}, {sr(P_WS, 2)}, 0')
    a(f's_sub_u32 s32, s{S_ROLE}, 1\ns_cmp_lt_u32 s32, 2\ns_cbranch_scc0 L_c0')
    a(f'buffer_load_dwordx4 v[228:231], v{V_XA}, {sr(SRD_C, 4)}, s30 offen')
    a(f'buffer_load_dwordx4 v[232:235], v{V_XA}, {sr(SRD_C, 4)}, s31 offen')
    a('L_c0:')
    if cfg['pref']:
        skip = a.lab('L_np')
        a(f's_cmp_eq_u32 s{S_R}, 6\ns_cbranch_scc0 {skip}')
        a('s_getpc_b64 s[24:25]\nL_pc0:')
        a(f's_sub_u32 s24, s24, L_pc0-{NAME}_kernel\ns_subb_u32 s25, s25, 0')
        a(f's_lshl_b32 s30, s{S_C}, 13\nv_lshl_add_u32 v12, v0, 7, s30\nv_min_u32 v12, L_end-{NAME}_kernel, v12')
        a('global_load_dword v14, v12, s[24:25]')
        a(f'{skip}:')
    a(f'v_mul_u32_u24 v{V_TR}, {BLK}, v10\nv_and_b32 v13, 15, v0\nv_lshl_add_u32 v{V_TR}, v13, 3, v{V_TR}')
    a(f's_lshl_b32 s26, s{S_C}, 8\ns_add_u32 s26, s26, {L_W}\nv_add_u32 v{V_TR}, s26, v{V_TR}')
    a('s_mov_b32 s36, 0x00ff00ff\ns_mov_b32 s37, 0x00ff00ff\nv_mov_b32 v85, 0')
    a('s_waitcnt vmcnt(0) lgkmcnt(0)')
    a(f's_add_u32 s{S_E}, s{S_E}, 1\ns_and_b32 s{S_E8}, s{S_E}, 0xff')
    a(f's_mov_b32 s56, s{S_E}\ns_lshr_b32 s57, s{S_E}, 2\ns_lshr_b32 s58, s{S_E}, 4\ns_lshr_b32 s59, s{S_E}, 6')
    a(f's_getreg_b32 s{S_XO}, hwreg(HW_REG_XCC_ID, 0, 3)\ns_lshl_b32 s{S_XO}, s{S_XO}, 29\ns_and_b32 s30, s{S_E}, 0x1fffffff\ns_or_b32 s{S_XO}, s{S_XO}, s30')
    a(f's_cmp_eq_u32 s{S_C}, 1\ns_cbranch_scc0 L_c1')
    a(f's_lshl_b32 s30, s{S_H}, 8\ns_lshl_b32 s31, s{S_R}, 2\ns_add_u32 s30, s30, s31\ns_add_u32 s30, s30, {WS_CEN}')
    a(f'v_mov_b32 v12, 0\nv_mov_b32 v14, s{S_XO}\ns_mov_b64 exec, 1\nbuffer_store_dword v14, v12, {sr(SRD_WS, 4)}, s30 offen\ns_mov_b64 exec, -1')
    a('L_c1:')
    if cfg['touch']:
        a(f's_cmp_eq_u32 s{S_C}, 2\ns_cbranch_scc0 L_c2')
        a(f's_lshl3_add_u32 s30, s{S_B}, s{S_H}\ns_lshl2_add_u32 s30, s30, 3\ns_lshl_b32 s30, s30, 20\ns_load_dword s8, {sr(P_V, 2)}, s30')
        a(f's_mul_i32 s30, s{S_H}, 458752\ns_load_dword s9, {sr(P_WO, 2)}, s30\ns_load_dword s10, {sr(P_WO, 2)}, s30 offset:458748')
        a(f's_load_dword s11, {sr(P_W1, 2)}, 0\ns_load_dword s12, {sr(P_W3, 2)}, 0\ns_load_dword s13, {sr(P_OUT, 2)}, 0')
        a(f's_mov_b32 s30, 0x3ff000\ns_load_dword s14, {sr(P_WS, 2)}, s30')
        a('L_c2:')
    a(f's_cmp_eq_u32 s{S_ROLE}, 0\ns_cbranch_scc1 L_mid')
    a(f's_cmp_eq_u32 s{S_ROLE}, 3\ns_cbranch_scc1 L_gemm0')
    for k in range(8):
        a(f'v_lshlrev_b32 v{12 + 2 * k}, 16, v{228 + k}\nv_and_b32 v{13 + 2 * k}, 0xffff0000, v{228 + k}')
    a(f's_cmp_eq_u32 s{S_ROLE}, 2\ns_cbranch_scc1 L_actQ')
    a(f's_mov_b32 s26, {LOG2E | 0x80000000:#x}')
    for k in range(16):
        a(f'v_mul_f32 v{28 + k}, s26, v{12 + k}')
    for k in range(16):
        a(f'v_exp_f32 v{28 + k}, v{28 + k}')
    for k in range(16):
        a(f'v_add_f32 v{28 + k}, 1.0, v{28 + k}')
    a('s_mov_b32 s27, 0x7f7fffff')
    for k in range(16):
        a(f'v_min_f32 v{28 + k}, s27, v{28 + k}')
    for k in range(16):
        a(f'v_rcp_f32 v{44 + k}, v{28 + k}')
    for k in range(0, 16, 2):
        a(f'v_pk_mul_f32 {vr(60 + k, 2)}, {vr(12 + k, 2)}, {vr(44 + k, 2)}')
    for k in range(0, 16, 2):
        a(f'v_pk_fma_f32 {vr(12 + k, 2)}, {vr(60 + k, 2)}, {vr(28 + k, 2)}, {vr(12 + k, 2)} neg_lo:[1,0,0] neg_hi:[1,0,0]')
    for k in range(0, 16, 2):
        a(f'v_pk_fma_f32 {vr(12 + k, 2)}, {vr(12 + k, 2)}, {vr(44 + k, 2)}, {vr(60 + k, 2)}')
    a('s_branch L_actW')

    def ln_scalars(mean, var, t):
        rnd(mean, mean)
        rnd(var, var)
        a(f'v_add_f32 v{var}, 0x3727c5ac, v{var}')
        rnd(var, var)
        a(f'v_sqrt_f32 v{var}, v{var}')
        rnd(t, var)
        a(f'v_rcp_f32 v{var}, v{t}')

    def ln_norm(x, n, mean2, rs2, exact=None):
        for k in range(0, n, 2):
            a(f'v_pk_add_f32 {vr(x + k, 2)}, {vr(x + k, 2)}, {vr(mean2, 2)} op_sel_hi:[1,0] neg_lo:[0,1] neg_hi:[0,1]')
        for k in range(n):
            rnd(x + k, x + k)
        for k in range(0, n, 2):
            a(f'v_pk_mul_f32 {vr((exact or x) + k, 2)}, {vr(x + k, 2)}, {vr(rs2, 2)} op_sel_hi:[1,0]')
        if exact:
            for k in range(0, n, 2):
                a(f'v_pk_fma_f32 {vr(x + k, 2)}, {vr(exact + k, 2)}, {vr(rs2, 2)}, {vr(x + k, 2)} op_sel:[0,1,0] op_sel_hi:[1,1,1] neg_lo:[1,0,0] neg_hi:[1,0,0]')
            for k in range(0, n, 2):
                a(f'v_pk_fma_f32 {vr(x + k, 2)}, {vr(x + k, 2)}, {vr(rs2, 2)}, {vr(exact + k, 2)} op_sel_hi:[1,0,1]')
        for k in range(n):
            rnd(x + k, x + k)

    def ln_mod(x, n, c1, sh):
        for k in range(0, n, 2):
            a(f'v_pk_mul_f32 {vr(x + k, 2)}, {vr(x + k, 2)}, {vr(c1 + k, 2)}')
        for k in range(n):
            rnd(x + k, x + k)
        for k in range(0, n, 2):
            a(f'v_pk_add_f32 {vr(x + k, 2)}, {vr(x + k, 2)}, {vr(sh + k, 2)}')

    def mod_params(blk_shift, blk_scale, sh, c1, raw, kbs):
        nb = len(kbs)
        for q, base in enumerate((blk_shift, blk_scale)):
            for j, kb in enumerate(kbs):
                a(f's_lshl_b32 s{24 + nb * q + j}, s{kb}, 11\ns_add_u32 s{24 + nb * q + j}, s{24 + nb * q + j}, {WS_MOD + base * 2048}')
        poll(a.lab('m'), [(raw + 8 * q + 4 * h, f'buffer_load_dwordx3 {vr(raw + 8 * q + 4 * h, 3)}, v{V_MA}, {sr(SRD_WS, 4)}, s{24 + q} offen offset:{128 * h} sc1')
                          for q in range(2 * nb) for h in range(2)], False)
        for k in range(2 * nb):
            for dw in range(2):
                a(f'v_lshlrev_b32 v{sh + 4 * k + 2 * dw}, 16, v{raw + 4 * k + 1 + dw}\nv_and_b32 v{sh + 4 * k + 2 * dw + 1}, 0xffff0000, v{raw + 4 * k + 1 + dw}')
                a(f'v_lshlrev_b32 v{c1 + 4 * k + 2 * dw}, 16, v{raw + 8 * nb + 4 * k + 1 + dw}\nv_and_b32 v{c1 + 4 * k + 2 * dw + 1}, 0xffff0000, v{raw + 8 * nb + 4 * k + 1 + dw}')
        for k in range(8 * nb):
            a(f'v_add_f32 v{c1 + k}, 1.0, v{c1 + k}')
        for k in range(8 * nb):
            rnd(c1 + k, c1 + k)

    def write_act(x):
        for k in range(8):
            a(f'v_cvt_pk_bf16_f32 v{x + k}, v{x + 2 * k}, v{x + 2 * k + 1}')
        a(f's_lshl_b32 s30, s{S_C}, 10\ns_lshl_b32 s31, s{S_KB1}, 10\nv_add_u32 v10, s30, v{V_L16}\nv_add_u32 v11, s31, v{V_L16}')
        a(f'ds_write_b128 v10, {vr(x, 4)} offset:{L_A}\nds_write_b128 v11, {vr(x + 4, 4)} offset:{L_A}')

    def stats_setup():
        a(f'v_lshrrev_b32 v47, 5, v0\nv_and_b32 v45, 0x70, v{V_AR}\nv_lshl_or_b32 v47, v47, 7, v45\ns_lshl_b32 s30, s{S_C}, 2\nv_add_u32 v47, s30, v47')
        a(f's_cmp_eq_u32 s{S_C}, 3\ns_cselect_b32 s30, 0, 1.0\nv_mov_b32 v44, s30')

    def stats_local():
        for q in range(2):
            x, p = 12 + 8 * q, 28 + 6 * q
            a(f'v_pk_add_f32 {vr(p, 2)}, {vr(x, 2)}, {vr(x + 2, 2)}\nv_pk_mul_f32 {vr(p + 2, 2)}, {vr(x, 2)}, {vr(x, 2)}\nv_pk_add_f32 {vr(p + 4, 2)}, {vr(x + 4, 2)}, {vr(x + 6, 2)}')
        for k in (2, 4, 6):
            for q in range(2):
                x, p = 12 + 8 * q, 28 + 6 * q
                a(f'v_pk_fma_f32 {vr(p + 2, 2)}, {vr(x + k, 2)}, {vr(x + k, 2)}, {vr(p + 2, 2)}')
                if k == 2:
                    a(f'v_pk_add_f32 {vr(p, 2)}, {vr(p, 2)}, {vr(p + 4, 2)}')
        a('v_pk_fma_f32 v[28:29], v[34:35], v[44:45], v[28:29] op_sel_hi:[1,0,1]\nv_pk_fma_f32 v[30:31], v[36:37], v[44:45], v[30:31] op_sel_hi:[1,0,1]')
        a('v_add_f32 v28, v28, v29\nv_add_f32 v30, v30, v31')
        a('v_permlane32_swap_b32 v28, v30\nv_add_f32 v28, v28, v30')
        a('v_mov_b32 v30, v28\nv_permlane16_swap_b32 v28, v30\nv_add_f32 v28, v28, v30')
        dpp('v_add_f32', 28, 28, 28, 'row_ror:8')
        a(f'ds_write_b32 v47, v28 offset:{L_ST}\ns_waitcnt lgkmcnt(0)')

    def stats_final():
        a(f'ds_read_b128 v[28:31], v45 offset:{L_ST}\nds_read_b128 v[32:35], v45 offset:{L_ST + 128}\ns_waitcnt lgkmcnt(0)')
        a('v_pk_add_f32 v[28:29], v[28:29], v[30:31]\nv_pk_add_f32 v[32:33], v[32:33], v[34:35]')
        a('v_add_f32 v28, v28, v29\nv_add_f32 v30, v32, v33\nv_mul_f32 v28, 0x3b124925, v28\nv_mul_f32 v30, 0x3b124925, v30')
        a('v_fma_f32 v30, -v28, v28, v30\nv_max_f32 v30, 0, v30')

    a('L_actQ:')
    stats_setup()
    stats_local()
    flag_add(F_S3, 10)
    spin_lds(F_S3, 4, 10)
    stats_final()
    ln_scalars(28, 30, 31)
    a(f's_cmp_lt_u32 s{S_B}, 4\ns_cselect_b32 s{S_KB1}, s{S_C}, s{S_KB1}\ns_cbranch_scc1 L_qh0')
    for k in range(8):
        a(f'v_mov_b32 v{12 + k}, v{20 + k}')
    a('L_qh0:')
    ln_norm(12, 8, 28, 30, exact=44)
    spin_lds(F_MT, 1, 10)
    stamp(1)
    census(76)
    mod_params(0, 7, 28, 44, 144, (S_KB1,))
    census_done(76)
    stamp(2)
    ln_mod(12, 8, 44, 28)
    for k in range(4):
        a(f'v_cvt_pk_bf16_f32 v{12 + k}, v{12 + 2 * k}, v{13 + 2 * k}')
    a(f's_lshl_b32 s30, s{S_C}, 10\nv_add_u32 v10, s30, v{V_L16}\nds_write_b128 v10, v[12:15] offset:{L_A}\ns_waitcnt lgkmcnt(0)')
    flag_add(F_S1, 10)
    spin_lds(F_S1, 8, 10)
    stamp(3)

    def gemm(n):
        for s in range(n):
            a(f'ds_read_b128 {vr(T0 + 4 * s, 4)}, v{V_AR} offset:{L_A + 512 * s}')
        a('s_waitcnt lgkmcnt(0)')
        for s in range(n):
            a(f'v_mfma_f32_16x16x32_bf16 v[68:71], {vr(W56 + 4 * s, 4)}, {vr(T0 + 4 * s, 4)}, {"v[68:71]" if s else 0}')
    trread(W56, 8, V_TR)
    gemm(8)
    a(f'v_and_b32 v12, 7, v0\nv_and_b32 v13, 48, v0\nv_lshl_or_b32 v12, v12, 8, v13\ns_lshl_b32 s30, s{S_C}, 6\nv_add_u32 v12, s30, v12')
    for j in range(4):
        a(f'v_bfi_b32 v{68 + j}, 3, s{56 + j}, v{68 + j}')
    a(f'ds_write_b128 v12, v[68:71] offset:{L_A + 4096}\ns_waitcnt lgkmcnt(0)')
    flag_add(F_S4, 10)
    spin_lds(F_S4, 4, 10)
    a(f's_lshl_b32 s30, s{S_C}, 9\nv_add_u32 v12, s30, v{V_L16}\nds_read_b128 v[72:75], v12 offset:{L_A + 4096}\ns_waitcnt lgkmcnt(0)\ns_mov_b32 exec_hi, 0')
    group_store(f'buffer_store_dwordx4 v[72:75], v{V_L16}, {sr(SRD_WS, 4)}, s{S_DST} offen')
    a('s_mov_b64 exec, -1\ns_branch L_pub')

    a('L_actW:')
    write_act(12)
    a('L_gemm0:')
    a('s_waitcnt lgkmcnt(0)')
    flag_add(F_S1, 10)
    spin_lds(F_S1, 8, 10)
    stamp(3)
    trread(W56, 14, V_TR)
    a(f's_cmp_eq_u32 s{S_ROLE}, 3\ns_cbranch_scc1 L_mid')
    gemm(14)
    a(f'v_mov_b32 v72, s{S_E}\nv_mov_b32 v75, s{S_E}')
    a('v_cvt_pk_bf16_f32 v73, v68, v69\nv_cvt_pk_bf16_f32 v74, v70, v71')
    a(f's_mov_b64 exec, {MASK8}')
    a(f'buffer_store_dwordx4 v[72:75], v{V_AR}, {sr(SRD_WS, 4)}, s{S_DST} offen sc1')
    a('s_mov_b64 exec, -1')
    a('L_pub:')
    stamp(4)

    a('L_mid:')
    a('s_waitcnt lgkmcnt(0)')
    flag_add(F_VT, 12)
    a(f's_cmp_eq_u32 s{S_C}, 0\ns_cbranch_scc0 L_noq')
    spin_lds(F_KT, 1, 12)
    a(f's_lshl_b32 s30, s{S_H}, 14\ns_lshl_b32 s31, s{S_B}, 8\ns_add_u32 s30, s30, s31\ns_add_u32 s30, s30, {WS_Q}\ns_add_u32 s31, s30, 8192')
    a(f'v_lshrrev_b32 v12, 4, v0\nv_and_b32 v14, 0xf0, v{V_L16}\nv_lshl_or_b32 v14, v12, 11, v14\nv_lshlrev_b32 v15, 3, v0')
    two = [(16 + 4 * k, f'buffer_load_dwordx3 {vr(16 + 4 * k, 3)}, v14, {sr(SRD_WS, 4)}, s{30 + k} offen sc1') for k in range(2)]
    a('s_add_u32 s24, s30, 0x20000\ns_add_u32 s25, s31, 0x20000')
    poll('q', [(16 + 4 * k, f'buffer_load_dwordx4 {vr(16 + 4 * k, 4)}, v14, {sr(SRD_WS, 4)}, s{(30, 31, 24, 25)[k]} offen sc1') for k in range(4)], 2)
    for k in range(0, 8, 2):
        a(f'v_pk_add_f32 {vr(16 + k, 2)}, {vr(16 + k, 2)}, {vr(24 + k, 2)}')
    for k in range(4):
        a(f'v_cvt_pk_bf16_f32 v{16 + k}, v{16 + 2 * k}, v{17 + 2 * k}')
    a(f'ds_write_b64 v15, v[16:17] offset:{L_Q}\nds_write_b64 v15, v[18:19] offset:{L_Q + 512}\ns_waitcnt lgkmcnt(0)')
    flag_add(F_Q, 12)
    stamp(5)
    a('L_noq:')
    Z_GA, Z_GB, Z_X, Z_TAG, Z_OA = 80, 81, 82, 83, 85
    S_Z = 39

    def zrole(out):
        a(f's_cmp_lt_u32 s{S_H}, 7\ns_cbranch_scc0 {out}\ns_cmp_ge_u32 s{S_C}, 2\ns_cbranch_scc0 {out}')
        a(f's_lshl1_add_u32 s{S_Z}, s{S_R}, s{S_C}\ns_sub_u32 s{S_Z}, s{S_Z}, 2')
        if not cfg['repz']:
            a(f's_cmp_eq_u32 s{S_B}, s{S_H}\ns_cbranch_scc0 {out}')
    a(f's_cmp_lt_u32 s{S_B}, 7\ns_cbranch_scc0 L_noz')
    zrole('L_noz')
    spin_lds(F_Q, 1, 12)
    a(f's_mov_b64 {sr(SRD_C, 2)}, {sr(P_X, 2)}')
    a(f's_lshl_b32 s30, s{S_Z}, 8\ns_add_u32 s31, s30, {WS_MOD + 35 * 2048}\ns_add_u32 s30, s30, {WS_MOD + 14 * 2048}')
    a('v_and_b32 v14, 15, v0\nv_lshlrev_b32 v14, 4, v14')
    a(f'v_and_b32 v12, 7, v0\nv_mul_u32_u24 v12, 896, v12\nv_and_b32 v13, 8, v0\nv_add_u32 v12, v12, v13\nv_lshrrev_b32 v13, 4, v0\nv_lshl_add_u32 v12, v13, 1, v12')
    a(f's_lshl_b32 s27, s{S_Z}, 4\nv_add_u32 v{Z_OA}, s27, v12')
    a(f'buffer_load_ushort v{Z_X}, v{Z_OA}, {sr(SRD_C, 4)}, 0 offen')
    poll('z', two, False)
    a('v_cmp_lt_u32 vcc, 31, v0\nv_cndmask_b32 v17, v17, v18, vcc\nv_cndmask_b32 v21, v21, v22, vcc')
    a('v_and_b32 v13, 16, v0\nv_lshrrev_b32 v17, v13, v17\nv_lshrrev_b32 v21, v13, v21')
    a(f'v_lshlrev_b32 v{Z_GA}, 16, v17\nv_lshlrev_b32 v{Z_GB}, 16, v21\nv_lshlrev_b32 v{Z_X}, 16, v{Z_X}')
    a(f'v_cmp_gt_u32 vcc, 16, v0\nv_mov_b32 v13, s{S_E8}\nv_cndmask_b32 v{Z_TAG}, 0, v13, vcc')
    a('L_noz:')
    F_SH, F_C1 = 52, 68
    a(f's_cmp_eq_u32 s{S_ROLE}, 3\ns_cbranch_scc0 L_nofp')
    spin_lds(F_Q, 1, 12)
    mod_params(21, 28, F_SH, F_C1, 144, (S_C, S_KB1))
    a(f's_lshl_b32 s30, s{S_C}, 12\ns_add_u32 s30, s30, {L_PAR}\nv_add_u32 v12, s30, v{V_L16}')
    for k, r in enumerate((F_SH + 8, F_SH + 12, F_C1 + 8, F_C1 + 12)):
        a(f'ds_write_b128 v12, {vr(r, 4)} offset:{1024 * k}')
    a('L_nofp:')
    a(f's_cmp_eq_u32 s{S_C}, 1\ns_cbranch_scc0 L_nosm')
    a(f's_lshl_b32 s26, s{S_B}, 3\ns_or_b32 s26, s26, s{S_H}\ns_lshl_b32 s26, s26, 9\ns_add_u32 s26, s26, {WS_ML}\ns_lshl_b32 s27, s{S_D}, 7\ns_add_u32 s27, s27, s26')
    a('v_lshrrev_b32 v13, 4, v0')
    a(f'v_mov_b32 v49, v{V_AR}')
    a('v_and_b32 v50, 15, v0\nv_lshlrev_b32 v50, 4, v50\nv_lshl_or_b32 v50, v13, 9, v50')
    a('s_mov_b32 s32, 0x3db8aa3b')
    spin_lds(F_KT, 1, 12)
    census(48)
    spin_lds(F_VT, 4, 12)
    spin_lds(F_SC, 4, 12)
    a('s_waitcnt vmcnt(0)')
    census_done(48)
    stamp(6)
    for w in range(4):
        a(f'ds_read_b128 {vr(12 + 4 * w, 4)}, v{V_L16} offset:{L_SC + 1024 * w}')
    a('s_waitcnt lgkmcnt(0)')
    for k in range(16):
        rnd(12 + k, 12 + k)
    a('v_max3_f32 v45, v12, v13, v14')
    for k in range(15, 27, 2):
        a(f'v_max3_f32 v45, v45, v{k}, v{k + 1}')
    a('v_max_f32 v45, v45, v27')

    def head_allreduce(op, x, t):
        dpp(op, x, x, x, 'quad_perm:[1,0,3,2]')
        dpp(op, x, x, x, 'quad_perm:[2,3,0,1]')
        dpp(op, x, x, x, 'row_half_mirror')
        rows_allreduce(op, x, t)

    def exps(m):
        for k in range(16):
            a(f'v_sub_f32 v{28 + k}, v{12 + k}, v{m}')
        for k in range(16):
            a(f'v_mul_f32 v{28 + k}, s32, v{28 + k}')
        for k in range(16):
            a(f'v_exp_f32 v{28 + k}, v{28 + k}')
    head_allreduce('v_max_f32', 45, 47)
    exps(45)
    for st in (8, 4, 2):
        for k in range(0, st, 2):
            a(f'v_pk_add_f32 {vr(28 + k, 2)}, {vr(28 + k, 2)}, {vr(28 + st + k, 2)}')
    a('v_add_f32 v46, v28, v29')
    head_allreduce('v_add_f32', 46, 47)
    a(f's_and_b32 s30, s{S_E}, 0xffff\ns_lshr_b32 s31, s{S_E}, 16\nv_or_b32 v28, s30, v45\nv_mov_b32 v29, v46\nv_mov_b32 v30, s31')
    a('v_mov_b32_dpp v31, v46 row_ror:8 row_mask:0xf bank_mask:0xf')
    dpp('v_or_b32', 30, 45, 30, 'row_ror:8')
    a('s_mov_b64 exec, 0xff')
    group_store(f'buffer_store_dwordx4 v[28:31], v{V_L16}, {sr(SRD_WS, 4)}, s27 offen')
    a('s_mov_b64 exec, -1')
    a('s_mov_b32 s30, 0x05040100')
    a('L_mlpoll:')
    a(f'buffer_load_dwordx4 v[32:35], v49, {sr(SRD_WS, 4)}, s26 offen sc1\ns_waitcnt vmcnt(0)')
    a(f'v_perm_b32 v36, v34, v32, s30\nv_cmp_ne_u32 vcc, s{S_E}, v36\ns_cbranch_vccz L_mlgot')
    retry('L_mlpoll')
    a('L_mlgot:')
    stamp(7)
    a(f'v_cndmask_b32 v29, v34, v32, {MASK8}\nv_cndmask_b32 v30, v35, v33, {MASK8}\nv_and_b32 v29, 0xffff0000, v29')
    a('v_mov_b32 v45, v29')
    rows_allreduce('v_max_f32', 45, 47)
    a('v_sub_f32 v29, v29, v45\nv_mul_f32 v29, s32, v29\nv_exp_f32 v29, v29\nv_mul_f32 v46, v29, v30')
    rows_allreduce('v_add_f32', 46, 47)
    a('v_rcp_f32 v46, v46')
    exps(45)
    for k in range(0, 16, 2):
        a(f'v_pk_mul_f32 {vr(28 + k, 2)}, {vr(28 + k, 2)}, v[46:47] op_sel_hi:[1,0]')
    for uh in range(2):
        for dd in range(4):
            u, x = 2 * uh + (dd >> 1), dd & 1
            a(f'v_cvt_pk_bf16_f32 v{12 + 4 * uh + dd}, v{28 + 4 * (2 * x) + u}, v{28 + 4 * (2 * x + 1) + u}')
    a(f'ds_write_b128 v50, v[12:15] offset:{L_P}\nds_write_b128 v50, v[16:19] offset:{L_P + 256}')
    a(f's_add_u32 s30, s{S_FAST}, 1\nv_mov_b32 v20, s30\nv_mov_b32 v21, s{S_E}\nv_mov_b32 v22, 0\ns_waitcnt lgkmcnt(0)\nds_write_b64 v22, v[20:21] offset:{F_P}')
    stamp(8)
    a('L_nosm:')

    if cfg['abl'] & 16:
        a('s_branch L_exit')
    a(f's_and_b32 s30, s{S_B}, s{S_H}\ns_cmp_eq_u32 s30, 7\ns_cbranch_scc1 L_exit')
    if cfg['dry']:
        a(f's_cmp_eq_u32 s{S_C}, 3\ns_cbranch_scc0 L_tail')
        spin_lds(F_VT, 4, 12)
        a(f's_mov_b32 s{SRD_WS + 2}, 0\ns_mov_b32 s{S_E8}, 0\ns_mov_b32 s{S_FAST}, 32')
    a('L_tail:')
    a(f's_cmp_eq_u32 s{S_ROLE}, 3\ns_cbranch_scc1 L_ffn')
    a(f's_lshl_b32 s24, s{S_JJ}, 14\ns_lshl_b32 s30, s{S_C}, 7\ns_add_u32 s24, s24, s30\ns_add_u32 s24, s24, {WS_OP}')
    a('s_add_u32 s25, s24, 4096\ns_add_u32 s26, s24, 8192\ns_add_u32 s27, s24, 12288')
    a('v_and_b32 v12, 7, v0\nv_lshrrev_b32 v13, 3, v0\nv_lshlrev_b32 v14, 4, v12\nv_lshl_or_b32 v40, v13, 9, v14')
    a('v_lshlrev_b32 v14, 4, v13\nv_lshl_or_b32 v41, v12, 7, v14')
    a(f's_lshr_b32 s30, s{S_C}, 1\ns_lshl_b32 s30, s30, 10\ns_and_b32 s31, s{S_C}, 1\ns_lshl_b32 s31, s31, 3\ns_add_u32 s30, s30, s31\nv_add_u32 v41, s30, v41')
    a(f'v_and_b32 v14, 0xff, v{V_AR}\nv_and_b32 v13, 8, v0\nv_lshl_or_b32 v14, v13, 27, v14')
    a('v_lshrrev_b32 v13, 5, v0\nv_lshl_or_b32 v42, v13, 13, v14\nv_lshl_or_b32 v44, v13, 10, v14')
    a(f's_mul_i32 s23, s{S_H}, 56\ns_lshl3_add_u32 s23, s{S_B}, s23\ns_lshl1_add_u32 s23, s{S_C}, s23\ns_lshl2_add_u32 s23, s23, s{S_D}\ns_lshl_b32 s23, s23, 8\ns_add_u32 s23, s23, {WS_PL}')
    a(f's_lshl_b32 s{S_DST}, s{S_B}, 16\ns_lshl_b32 s30, s{S_JJ}, 8\ns_add_u32 s{S_DST}, s{S_DST}, s30\ns_lshl_b32 s30, s{S_C}, 14\ns_add_u32 s{S_DST}, s{S_DST}, s30')
    a(f's_add_u32 s{S_DST}, s{S_DST}, {WS_PA}\nv_mov_b32 v43, s{S_E}\ns_movk_i32 s38, 0xff')
    a(f's_cmp_eq_u32 s{SRD_WS + 2}, 0\ns_cbranch_scc1 L_wgo')
    spin_lds(F_P, 1, 12)
    a(f's_sub_u32 s{S_FAST}, s31, 1')
    code_prefetch('L_ffn')
    a('s_waitcnt vmcnt(0)\ns_barrier\nL_wgo:')
    stamp(9)
    if cfg['abl'] & 32:
        a('s_branch L_exit')

    poll('w', [(12 + 4 * s, f'buffer_load_dwordx4 {vr(12 + 4 * s, 4)}, v40, {sr(SRD_WS, 4)}, s{24 + s} offen sc1') for s in range(4)], True,
         lambda: trread(W56, 4, V_TR))
    a('v_pk_add_f32 v[12:13], v[12:13], v[16:17]\nv_pk_add_f32 v[20:21], v[20:21], v[24:25]')
    a('v_pk_add_f32 v[14:15], v[14:15], v[18:19]\nv_pk_add_f32 v[22:23], v[22:23], v[26:27]')
    a('v_pk_add_f32 v[12:13], v[12:13], v[20:21]\nv_pk_add_f32 v[14:15], v[14:15], v[22:23]')
    a('v_cvt_pk_bf16_f32 v12, v12, v13\nv_cvt_pk_bf16_f32 v13, v14, v15')
    a(f'ds_write_b64 v41, v[12:13] offset:{L_A}')
    bar('s_waitcnt lgkmcnt(0)')
    for s in range(4):
        a(f'ds_read_b128 {vr(12 + 4 * s, 4)}, v{V_AR} offset:{L_A + 512 * s}')
    for s in range(4):
        a(f's_waitcnt lgkmcnt({3 - s})')
        a(f'v_mfma_f32_16x16x32_bf16 v[28:31], {vr(W56 + 4 * s, 4)}, {vr(12 + 4 * s, 4)}, {"v[28:31]" if s else 0}')
    a('v_bfi_b32 v28, s38, v43, v28')
    a(f'buffer_store_dwordx4 v[28:31], v42, {sr(SRD_WS, 4)}, s{S_DST} offen sc1')
    a(f's_cmp_eq_u32 s{S_H}, 7\ns_cbranch_scc1 L_w7')
    if cfg['pal']:
        group_store(f'buffer_store_dwordx4 v[28:31], v44, {sr(SRD_WS, 4)}, s23 offen')
    stamp(10)
    if cfg['abl'] & 128:
        a('s_branch L_exit')
    zrole('L_tex')
    a('L_z1:')
    ZO = (20, 21, 22, 23, 24, 25, 26, 27)
    a(f's_lshl_b32 s30, s{S_Z}, 13\ns_add_u32 s{ZO[0]}, s30, {WS_PA}')
    for u in range(1, 8):
        a(f's_add_u32 s{ZO[u]}, s{ZO[0]}, {1024 * u}')
    if cfg['pal']:
        a(f's_mul_i32 s31, s{S_H}, 56\ns_add_u32 s31, s31, s{S_Z}\ns_lshl_b32 s31, s31, 10\ns_add_u32 s31, s31, {WS_PL}')
        a(f's_cmp_eq_u32 s{S_H}, 7\ns_cselect_b32 s31, s{ZO[7]}, s31\ns_mov_b32 m0, s{S_H}\ns_nop 0\ns_movreld_b32 s{ZO[0]}, s31')
    a(f's_lshl_b32 s32, s{S_Z}, 8\ns_add_u32 s32, s32, {WS_X1}')
    if cfg['repz']:
        a(f's_lshl_b32 s31, s{S_H}, 14\ns_add_u32 s32, s32, s31')

    def gather(name, n, off):
        poll(name, [(12 + 4 * u, f'buffer_load_dwordx4 {vr(12 + 4 * u, 4)}, v{V_L16}, {sr(SRD_WS, 4)}, ' + off(u) + ' sc1')
                    for u in range(n)], True)
        for st in (4, 2, 1):
            for u in range(st):
                if u + st < n:
                    for h in (0, 2):
                        a(f'v_pk_add_f32 {vr(12 + 4 * u + h, 2)}, {vr(12 + 4 * u + h, 2)}, {vr(12 + 4 * (u + st) + h, 2)}')
        a('v_permlane32_swap_b32 v12, v14\nv_permlane32_swap_b32 v13, v15\nv_pk_add_f32 v[12:13], v[12:13], v[14:15]')
        a('v_permlane16_swap_b32 v12, v13\nv_add_f32 v12, v12, v13')

    gather('a', 8, lambda u: f's{ZO[u]} offen')
    rnd(12, 12)
    a(f'v_mul_f32 v12, v{Z_GA}, v12')
    rnd(12, 12)
    a(f'v_add_f32 v12, v{Z_X}, v12')
    rnd(Z_X, 12)
    a(f'v_or_b32 v48, v{Z_TAG}, v{Z_X}\nv_mov_b32 v49, v{Z_X}\nv_permlane16_swap_b32 v48, v49')
    a('v_mov_b32 v50, v48\nv_mov_b32 v51, v49\nv_permlane32_swap_b32 v48, v50\nv_permlane32_swap_b32 v49, v51')
    a('s_mov_b64 exec, 0xffff')
    if cfg['repz']:
        group_store(f'buffer_store_dwordx4 v[48:51], v{V_L16}, {sr(SRD_WS, 4)}, s32 offen')
    else:
        a(f'buffer_store_dwordx4 v[48:51], v{V_L16}, {sr(SRD_WS, 4)}, s32 offen sc1')
    a('s_mov_b64 exec, -1')
    stamp(1)
    a(f's_cmp_eq_u32 s{S_B}, s{S_H}\ns_cbranch_scc0 L_zx')
    srd(SRD_C, P_OUT, 7168)
    a(f's_min_u32 s{SRD_C + 2}, s{SRD_C + 2}, s{SRD_WS + 2}')
    a(f'v_mov_b32 v44, s{S_E}\nv_mov_b32 v47, 0')
    a(f's_add_u32 s24, s30, {WS_PF}\ns_add_u32 s25, s24, 4096')
    gather('f', 7, lambda u: f's{24 + (u >> 2)} offen offset:{1024 * (u & 3)}')
    rnd(12, 12)
    a(f'v_mul_f32 v12, v{Z_GB}, v12')
    rnd(12, 12)
    a(f'v_add_f32 v12, v{Z_X}, v12\nv_cvt_pk_bf16_f32 v12, v12, v12')
    a(f'buffer_store_short v12, v{Z_OA}, {sr(SRD_C, 4)}, 0 offen')
    stamp(2)
    a(f's_cmp_eq_u32 s{S_Z}, 0\ns_cbranch_scc0 L_tex')
    a(f's_mov_b64 exec, 1\nbuffer_store_dword v44, v47, {sr(SRD_WS, 4)}, 0 offen sc1\ns_mov_b64 exec, -1')
    a('s_branch L_tex')
    a('L_w7:')
    stamp(10)
    if cfg['wb']:
        a(f's_or_b32 s{S_Z}, s{S_R}, s{S_C}\ns_cbranch_scc0 L_z1')
    a('s_branch L_tex')
    a('L_zx:')
    if cfg['wb']:
        a(f's_cmp_eq_u32 s{S_H}, 7\ns_cbranch_scc0 L_tex\nbuffer_wbl2 sc1')
    a('s_branch L_tex')

    a('L_ffn:')
    if cfg['abl'] & 128:
        a('s_branch L_exit')
    srd(SRD_A, P_W1, 1605632)
    srd(SRD_B, P_W3, 1605632)
    a(f's_movk_i32 s32, 3584\ns_movk_i32 s{S_A}, 28672\ns_mov_b32 s{S_Bs}, 229376\ns_lshl_b32 s{S_BASE}, s{S_JJ}, 7')
    a(f'v_mad_u32_u24 v{V_DM}, v{V_R8}, s32, v{V_NT}')
    a(f'v_lshrrev_b32 v12, 5, v0\nv_bfe_u32 v13, v0, 3, 1\nv_lshl_or_b32 v12, v12, 1, v13\nv_mul_u32_u24 v12, {BLS}, v12')
    a('v_and_b32 v13, 16, v0\nv_lshl_add_u32 v12, v13, 3, v12\nv_and_b32 v13, 7, v0\nv_lshl_add_u32 v12, v13, 3, v12')
    a(f's_lshl_b32 s30, s{S_C}, 8\ns_add_u32 s30, s30, {L_W}\nv_add_u32 v{V_TR}, s30, v12\nv_add_u32 v46, {56 * BLK}, v{V_TR}')
    a(f'v_and_b32 v14, 0xff, v{V_AR}\nv_lshrrev_b32 v13, 5, v0\nv_lshl_or_b32 v14, v13, 13, v14\nv_and_b32 v13, 8, v0\nv_lshl_or_b32 v48, v13, 13, v14\nv_lshl_or_b32 v8, v13, 27, v14')
    a(f's_lshl_b32 s{S_DST}, s{S_JJ}, 8\ns_lshl_b32 s30, s{S_C}, 14\ns_add_u32 s{S_DST}, s{S_DST}, s30\ns_add_u32 s{S_DST}, s{S_DST}, {WS_PF}')
    a(f's_add_u32 s20, s{S_DST}, 0x20000\ns_add_u32 s21, s{S_DST}, 0x40000\ns_add_u32 s22, s{S_DST}, 0x60000')
    a('v_and_b32 v12, 7, v0\nv_lshlrev_b32 v12, 1, v12\nv_and_b32 v13, 8, v0\nv_lshl_or_b32 v12, v13, 4, v12\nv_and_b32 v13, 16, v0\nv_lshl_or_b32 v12, v13, 2, v12')
    a(f'v_and_b32 v13, 32, v0\nv_or_b32 v12, v12, v13\ns_lshl_b32 s30, s{S_C}, 8\nv_add_u32 v49, s30, v12')
    a(f'v_mov_b32 v50, s{S_E}\ns_movk_i32 s38, 0xff\ns_mov_b32 s39, {LOG2E | 0x80000000:#x}')
    a(f'v_mov_b32 v12, 0x4444\nv_mov_b32 v13, 0xeeee\nv_cndmask_b32 v51, v13, v12, {MASK8}')
    for k in list(range(76, 88)) + list(range(60, 68)) + list(range(40, 44)):
        a(f'v_mov_b32 v{k}, 0')
    a(f's_mov_b32 s{S_KB1}, s{S_C}\ns_cmp_eq_u32 s{SRD_WS + 2}, 0\ns_cbranch_scc1 L_ln')
    code_prefetch('L_exit')
    a(f's_add_u32 s{S_BASE}, s{S_BASE}, {2 * 229376}\ns_waitcnt vmcnt(0)')
    dma(SRD_A, 5, L_W + 16 * BLS, bar=0, BLK=BLS)
    a(f's_sub_u32 s{S_BASE}, s{S_BASE}, {2 * 229376}')
    dma(SRD_B, 7, L_W + 56 * BLK, BLK=BLS)
    for m, va in enumerate((V_TR, 46)):
        if cfg['stamps'] == 3 and m == 0:
            stamp(1)
        a(f's_waitcnt vmcnt({0 if m else 14})')
        if cfg['stamps'] == 3:
            stamp(4 if m else 2)
        flag_add(F_S3 if m else F_S2, 12)
        spin_lds(F_S3 if m else F_S2, 4 if m else 8, 12)
        for kb in range(7):
            for rp in range(4):
                a(f'ds_read_b64_tr_b16 {vr(W112 + 56 * m + 8 * kb + 2 * rp, 2)}, v{va} offset:{(8 * kb + 4 * (rp >> 1)) * BLS + (rp & 1) * 64}')
    a('s_branch L_ln')
    a('L_fhelp:')
    a(f's_mov_b64 exec, -1\ns_add_u32 s{S_KB1}, s{S_W}, 4\ns_and_b32 s{S_E8}, s{S_E}, 0xff')
    a(f'v_lshlrev_b32 v{V_L16}, 4, v0\nv_lshrrev_b32 v12, 3, v0\nv_and_b32 v13, 0x70, v{V_L16}\nv_lshl_or_b32 v{V_MA}, v12, 8, v13')
    spin_lds(F_S3, 4, 12)
    a(f's_lshl_b32 s30, s{S_W}, 12\ns_add_u32 s30, s30, {L_PAR}\nv_add_u32 v12, s30, v{V_L16}')
    for k, r in enumerate((F_SH, F_SH + 4, F_C1, F_C1 + 4)):
        a(f'ds_read_b128 {vr(r, 4)}, v12 offset:{1024 * k}')
    a('L_ln:')
    a(f's_lshl_b32 s24, s{S_KB1}, 11\ns_add_u32 s24, s24, {WS_X1}')
    if cfg['repz']:
        a(f's_lshl_b32 s31, s{S_H}, 14\ns_add_u32 s24, s24, s31')
    a(f'v_and_b32 v12, 7, v0\nv_and_b32 v13, 32, v0\nv_lshlrev_b32 v13, 3, v13\nv_lshl_or_b32 v45, v12, 5, v13\ns_lshl_b32 s30, s{S_KB1}, 2\nv_add_u32 v47, s30, v45')
    a(f's_lshl_b32 s30, s{S_KB1}, 10\nv_add_u32 v44, s30, v{V_L16}\ns_or_b32 s25, s{S_W}, s{S_D}')

    def wb(pos):
        if cfg['wb'] == pos:
            a('s_cmp_eq_u32 s25, 0\ns_cbranch_scc0 L_nwb\nbuffer_wbl2 sc1\nL_nwb:')
    a('s_waitcnt lgkmcnt(0)')
    stamp(9)
    if cfg['abl'] & 32:
        a('s_branch L_exit')
    poll('x', [(12 + 4 * h, f'buffer_load_dwordx4 {vr(12 + 4 * h, 4)}, v{V_MA}, {sr(SRD_WS, 4)}, s24 offen offset:{128 * h} sc1') for h in range(2)], True)
    stamp(10)
    a('v_pk_mul_f32 v[30:31], v[14:15], v[14:15]\nv_pk_add_f32 v[28:29], v[14:15], v[18:19]\nv_pk_mul_f32 v[34:35], v[12:13], v[12:13]\nv_pk_add_f32 v[32:33], v[12:13], v[16:17]')
    a('v_pk_fma_f32 v[30:31], v[18:19], v[18:19], v[30:31]\nv_pk_fma_f32 v[34:35], v[16:17], v[16:17], v[34:35]')
    a('v_pk_add_f32 v[28:29], v[28:29], v[32:33]\nv_pk_add_f32 v[30:31], v[30:31], v[34:35]')
    a('v_add_f32 v28, v28, v29\nv_add_f32 v30, v30, v31')
    a('v_permlane32_swap_b32 v28, v30\nv_add_f32 v28, v28, v30')
    a('v_mov_b32 v30, v28\nv_permlane16_swap_b32 v28, v30\nv_add_f32 v28, v28, v30')
    dpp('v_add_f32', 28, 28, 28, 'row_ror:8')
    a(f'ds_write_b32 v47, v28 offset:{L_ST2}')
    bar('s_waitcnt lgkmcnt(0)')
    if cfg['stamps'] == 2:
        stamp(1)
    a(f'ds_read_b128 v[28:31], v45 offset:{L_ST2}\nds_read_b128 v[32:35], v45 offset:{L_ST2 + 16}')
    wb(1)
    a('s_waitcnt lgkmcnt(0)')
    a('v_pk_add_f32 v[28:29], v[28:29], v[30:31]\nv_pk_add_f32 v[32:33], v[32:33], v[34:35]\nv_pk_add_f32 v[28:29], v[28:29], v[32:33]')
    a('v_add_f32 v29, v28, v29\nv_mul_f32 v28, 0x3b124925, v29\nv_mul_f32 v30, 0x3b124925, v29\nv_permlane32_swap_b32 v28, v30')
    a('v_fma_f32 v30, -v28, v28, v30')
    rnd(28, 28)
    a('v_max_f32 v30, 0, v30')
    sub = [f'v_pk_add_f32 {vr(12 + k, 2)}, {vr(12 + k, 2)}, v[28:29] op_sel_hi:[1,0] neg_lo:[0,1] neg_hi:[0,1]' for k in range(0, 8, 2)]
    sub += [f'v_cvt_pk_bf16_f32 v{12 + k}, 0, v{12 + k}' for k in range(8)]
    chain = ['v_cvt_pk_bf16_f32 v30, 0, v30', 'v_add_f32 v30, 0x3727c5ac, v30', 'v_cvt_pk_bf16_f32 v30, 0, v30', 'v_sqrt_f32 v30, v30',
             'v_cvt_pk_bf16_f32 v30, 0, v30', 'v_rcp_f32 v30, v30']
    if cfg['lnx']:
        for k in range(6):
            a(chain[k])
            a(sub[2 * k])
            a(sub[2 * k + 1])
        wb(2)
        for k in range(0, 8, 2):
            a(f'v_pk_mul_f32 {vr(12 + k, 2)}, {vr(12 + k, 2)}, v[30:31] op_sel_hi:[1,0]')
        for k in range(8):
            rnd(12 + k, 12 + k)
        ln_mod(12, 8, F_C1, F_SH)
    else:
        sub = sub[:4] + [f'v_pk_mul_f32 {vr(12 + k, 2)}, {vr(12 + k, 2)}, {vr(F_C1 + k, 2)}' for k in range(0, 8, 2)]
        for k in range(6):
            a(chain[k])
            a(sub[k])
        a(sub[6])
        a(sub[7])
        for k in range(0, 8, 2):
            a(f'v_pk_fma_f32 {vr(12 + k, 2)}, {vr(12 + k, 2)}, v[30:31], {vr(F_SH + k, 2)} op_sel_hi:[1,0,1]')
    for k in range(4):
        a(f'v_cvt_pk_bf16_f32 v{12 + k}, v{12 + 2 * k}, v{13 + 2 * k}')
    a(f'ds_write_b128 v44, v[12:15] offset:{L_A}')
    wb(3)
    a(f's_cmp_lt_u32 s{S_W}, 4\ns_cbranch_scc1 L_fhx')
    bar('s_waitcnt lgkmcnt(0)')
    if cfg['stamps'] == 2:
        stamp(2)
        a('s_waitcnt lgkmcnt(0)')
    for kb in range(7):
        a(f'ds_read_b128 {vr(12 + 4 * kb, 4)}, v{V_L16} offset:{L_A + 1024 * kb}')
    for kb in range(7):
        a(f's_waitcnt lgkmcnt({6 - kb})')
        a(f'v_smfmac_f32_16x16x64_bf16 v[76:79], {vr(12 + 4 * kb, 4)}, {vr(W112 + 8 * kb, 8)}, v51')
        a(f'v_smfmac_f32_16x16x64_bf16 v[80:83], {vr(12 + 4 * kb, 4)}, {vr(W112 + 56 + 8 * kb, 8)}, v51')
    a('v_permlane32_swap_b32 v76, v78\nv_permlane32_swap_b32 v77, v79\nv_pk_add_f32 v[76:77], v[76:77], v[78:79]')
    a('v_permlane32_swap_b32 v80, v82')
    rnd(76, 76)
    rnd(77, 77)
    a('v_mul_f32 v12, s39, v76\nv_mul_f32 v13, s39, v77\nv_exp_f32 v12, v12\nv_exp_f32 v13, v13')
    a('v_permlane32_swap_b32 v81, v83')
    a('v_add_f32 v12, 1.0, v12\nv_add_f32 v13, 1.0, v13\nv_rcp_f32 v12, v12\nv_rcp_f32 v13, v13')
    a('v_pk_add_f32 v[80:81], v[80:81], v[82:83]')
    a('v_mul_f32 v12, v12, v76\nv_mul_f32 v13, v13, v77')
    for r in (80, 81, 12, 13):
        rnd(r, r)
    a('v_mul_f32 v12, v12, v80\nv_mul_f32 v13, v13, v81\nv_cvt_pk_bf16_f32 v12, v12, v13')
    a(f'ds_write_b16 v49, v12 offset:{L_H}\nds_write_b16_d16_hi v49, v12 offset:{L_H + 16}')
    bar('s_waitcnt lgkmcnt(0)')
    if cfg['stamps'] == 2:
        stamp(4)
    HB = ((60, 64), (84, 40))
    a(f's_mov_b64 exec, {MASK8}\nds_read_b128 v[60:63], v{V_AR} offset:{L_H}\nds_read_b128 v[64:67], v{V_AR} offset:{L_H + 512}')
    a(f's_not_b64 exec, exec\nds_read_b128 v[84:87], v{V_AR} offset:{L_H}\nds_read_b128 v[40:43], v{V_AR} offset:{L_H + 512}\ns_mov_b64 exec, -1')

    tag = lambda p: a(f'v_bfi_b32 v{12 + 4 * p}, s38, v50, v{12 + 4 * p}')
    put = lambda p: a(f'buffer_store_dwordx4 {vr(12 + 4 * p, 4)}, v{8 if p == 3 else 48}, {sr(SRD_WS, 4)}, s{(S_DST, 20, 21, 22)[p]} offen sc1')
    for i in range(7):
        d = vr(12 + 4 * (i >> 1), 4)
        for st in range(2):
            if i < 2:
                a(f's_waitcnt lgkmcnt({3 - 2 * i - st})')
            a(f'v_mfma_f32_16x16x32_bf16 {d}, {vr(W56 + 8 * i + 4 * st, 4)}, {vr(HB[i & 1][st], 4)}, {d if (st or i & 1) else 0}')
            if i >= 2 and (i, st) not in ((3, 1), (4, 0), (5, 1), (6, 0)):
                a('s_nop 1')
            if (i, st) in ((3, 1), (5, 1)):
                tag(i // 2 - 1)
            if (i, st) in ((4, 0), (6, 0)):
                put(i // 2 - 2)
    tag(2)
    put(2)
    tag(3)
    put(3)
    stamp(11)
    a('L_tex:')
    if cfg['dry']:
        a(f's_cmp_eq_u32 s{SRD_WS + 2}, 0\ns_cbranch_scc0 L_exit')
        a(f's_mov_b32 s{SRD_WS + 2}, {WS_SIZE}\ns_and_b32 s{S_E8}, s{S_E}, 0xff\ns_branch L_tail')
    else:
        a('s_branch L_exit')
    a('L_fhx:\ns_waitcnt lgkmcnt(0)\ns_barrier\ns_barrier')

    a('L_exit:')
    if cfg['probe']:
        pr = cfg['probe'].split('_')
        cls, k = pr[0][0], int(pr[0][1:])
        a(f's_waitcnt lgkmcnt(0)\ns_cmp_ge_u32 s{S_W}, 4\ns_cbranch_scc{1 if cls == "s" else 0} L_end')
        if cls == 's':
            a('s_barrier\ns_barrier\ns_barrier')
        for f in pr[1:]:
            if f[0] == 'r':
                a(f's_cmp_eq_u32 s{S_ROLE}, {f[1:]}\ns_cbranch_scc0 L_end')
            else:
                a(f's_bitcmp1_b32 {f[1:]}, s{S_H}\ns_cbranch_scc0 L_end')
        a(f's_cmp_eq_u32 s{S_ST0 + 2 * k}, 0\ns_cbranch_scc1 L_end\ns_mov_b32 s{S_CNT}, 0')
        a(f'L_pw:\ns_memrealtime s[30:31]\ns_waitcnt lgkmcnt(0)\ns_sub_u32 s30, s30, s{S_ST0 + 2 * k}\ns_cmp_ge_u32 s30, 6000\ns_cbranch_scc1 L_end')
        a(f's_add_u32 s{S_CNT}, s{S_CNT}, 1\ns_cmp_lt_u32 s{S_CNT}, 100000\ns_cbranch_scc1 L_pw\ns_branch L_end')
    if cfg['stamps']:
        a('s_waitcnt lgkmcnt(0)\ns_mov_b64 exec, 1')
        a(f's_lshl_b32 s30, s2, 3\ns_add_u32 s30, s30, s{S_W}\ns_lshl_b32 s30, s30, 6\ns_add_u32 s30, s30, {WS_STAMP}\nv_mov_b32 v0, s30')
        for q in range(3):
            for k in range(4):
                a(f'v_mov_b32 v{4 + k + 4 * q}, s{S_ST0 + 2 * (4 * q + k)}')
            a(f'global_store_dwordx4 v0, {vr(4 + 4 * q, 4)}, {sr(P_WS, 2)} offset:{16 * q}')
        a(f'v_mov_b32 v16, s{S_CNT}\nglobal_store_dword v0, v16, {sr(P_WS, 2)} offset:48')
    a('L_end:\ns_endpgm')
    a('.section .rodata,"a"\n.p2align 6')
    a(f'.amdhsa_kernel {NAME}_kernel')
    a('.amdhsa_next_free_vgpr 256\n.amdhsa_next_free_sgpr 102\n.amdhsa_accum_offset 256\n.amdhsa_group_segment_fixed_size 0')
    a('.amdhsa_kernarg_size 112\n.amdhsa_user_sgpr_count 2\n.amdhsa_user_sgpr_kernarg_segment_ptr 1\n.amdhsa_system_sgpr_workgroup_id_x 1')
    a('.amdhsa_float_denorm_mode_32 3\n.end_amdhsa_kernel')
    if cfg['abl'] & 4:
        k = a.lines.index('L_chain:')
        a.lines = [l for i, l in enumerate(a.lines) if i > k or not l.startswith(('v_mfma', 'v_perm', 'v_add_f32_dpp', 'ds_read_b128'))]
    return head + a.text()


if __name__ == '__main__':
    kw = {}
    for x in sys.argv[2:]:
        k, v = x.split('=')
        kw[k] = int(v) if v.lstrip('-').isdigit() else v
    open(sys.argv[1], 'w').write(gen(**kw))
```

```python
import sys
from asmlib import Asm, vr, sr

NAME = 'adaLN_cond__sliding_block_cached__glu_gated_swiglu__decode'

WS_EPOCH = 0x0
WS_MOD = 0x1000
WS_Q = 0x300000
WS_ML = 0x40000
WS_CEN = 0x50000
WS_PRG = 0x52000
WS_PL = 0x280000
WS_X1 = 0x60000
WS_OP = 0x80000
WS_PA = 0x100000
WS_PF = 0x180000
WS_STAMP = 0x200000
WS_SIZE = 0x400000

F_Q, F_SC, F_P, F_KT, F_VT, F_S1, F_S2, F_S3, F_S4, F_MT = 0, 4, 8, 16, 20, 24, 28, 32, 36, 40
L_ST, L_ST2 = 0x100, 0x200
L_Q, L_P, L_SC, L_A, L_H, L_W = 0x400, 0x800, 0x1000, 0x2000, 0x3C00, 0x4000
BLK = 1152
BLS = 1088
L_X = L_W + 56 * BLK
L_PAR = L_X + 64 * 1024
LDS_BYTES = L_X + 80 * 1024

S_W, S_H, S_B, S_D, S_R = 3, 4, 5, 6, 7
SRD_A, SRD_B, SRD_WS, SRD_C = 8, 12, 16, 20
S_E, S_C, S_CNT, S_JJ, S_E8 = 28, 29, 33, 34, 35
S_XO, S_FAST, P_DBG = 71, 75, 64
P_X, P_K, P_V, P_WQ, P_WO, P_W1, P_W3, P_W2, P_C, P_WM, P_OUT, P_WS = 40, 42, 44, 46, 48, 52, 54, 56, 58, 60, 62, 66
S_ST0 = 76
SP = 8
SPIN_CAP = 400000
LOG2E = 0x3FB8AA3B

DEF = dict(seg=((0, 8, 3, 14),), ktrig=60, wb=3, dry=1, lnx=1, touch=0, cks=(16, 26, 36, 46, 56, 77, 87, 97, 107), thr=48, epe=1, outw=0, outf='', fbm=0, mlown=1, ktouch=0, vsync=42, stamps=0, pref=1, probe='',
           prio=2, dflag=6, NL=16, mtrig=30, abl=0, fast=1, pref2=0, dbar=8, repz=1, pal=1, skip=1)
S_A, S_Bs, S_BASE, S_KB1, S_DST, S_ROLE = 68, 69, 70, 72, 73, 74


def gen(**kw):
    cfg = dict(DEF)
    cfg.update(kw)
    a = Asm()
    seg = cfg['seg']
    if isinstance(seg, str):
        seg = eval(seg)
    DV = seg[-1][1]
    KM = ([2, 1], [8, 16], [4, 32, 64, 128])
    lin = lambda cols, x: sum(c for k, c in enumerate(cols) if x >> k & 1) << 12
    WFL = 'nt'

    def stamp(k):
        if cfg['stamps']:
            a(f's_memrealtime {sr(S_ST0 + 2 * k, 2)}')

    def srd(d, p, size):
        a(f's_mov_b32 s{d}, s{p}\ns_mov_b32 s{d + 1}, s{p + 1}\ns_mov_b32 s{d + 2}, {size}\ns_mov_b32 s{d + 3}, 0x20000')

    def retry(lab):
        a(f's_add_u32 s{S_CNT}, s{S_CNT}, 1\ns_cmp_lt_u32 s{S_CNT}, {SPIN_CAP}\ns_cbranch_scc1 {lab}\ns_branch L_exit')

    def spin_lds(flag, n, t, two=False):
        top, done = a.lab('L_spin'), a.lab('L_got')
        a(f'{top}:\nv_mov_b32 v{t}, 0')
        if two:
            a(f'ds_read_b64 {vr(t, 2)}, v{t} offset:{flag}')
        else:
            a(f'ds_read_b32 v{t}, v{t} offset:{flag}')
        a(f's_waitcnt lgkmcnt(0)\nv_readfirstlane_b32 s31, v{t}\ns_cmp_ge_u32 s31, {n}\ns_cbranch_scc1 {done}')
        retry(top)
        a(f'{done}:')

    PEND = (8, 10, 12, 14, 42, 44, 46, 50)

    def poll(name, loads, tag8, between=None):
        top, chk, done = f'L_{name}poll', f'L_{name}chk', f'L_{name}got'
        for r, ins in loads:
            a(ins)
        if between:
            between()
        a(f's_branch {chk}\n{top}:')
        for k, (r, ins) in enumerate(loads):
            p = PEND[k]
            nx = a.lab('L_nx')
            a(f's_quadmask_b64 {sr(p, 2)}, {sr(p, 2)}')
            if cfg['skip'] and len(loads) > 2:
                a(f's_cbranch_scc0 {nx}')
            a(f's_bitreplicate_b64_b32 {sr(p, 2)}, s{p}\ns_wqm_b32 s{p}, s{p}\ns_bitreplicate_b64_b32 exec, s{p}\n{ins}\n{nx}:')
        a(f's_mov_b64 exec, -1\ns_add_u32 s{S_CNT}, s{S_CNT}, 1\ns_cmp_lt_u32 s{S_CNT}, {SPIN_CAP}\ns_cbranch_scc0 L_exit')
        a(f'{chk}:\ns_waitcnt vmcnt(0)')
        for k, (r, ins) in enumerate(loads):
            if tag8 == 2:
                a(f'v_xor_b32 v10, s56, v{r}')
                for j in range(1, 4):
                    a(f'v_bitop3_b32 v10, v10, v{r + j}, s{56 + j} bitop3:0xf6')
                a(f'v_and_b32 v10, 3, v10\nv_cmp_ne_u32_e64 {sr(PEND[k], 2)}, 0, v10')
            elif tag8:
                a(f'v_cmp_ne_u32_sdwa {sr(PEND[k], 2)}, v{r}, s{S_E8} src0_sel:BYTE_0 src1_sel:DWORD')
            else:
                a(f'v_cmp_ne_u32_e64 {sr(PEND[k], 2)}, s{S_E}, v{r}')
        a(f's_or_b64 vcc, {sr(PEND[0], 2)}, {sr(PEND[1], 2)}')
        for k in range(2, len(loads)):
            a(f's_or_b64 vcc, vcc, {sr(PEND[k], 2)}')
        a(f's_cbranch_scc1 {top}')
        if tag8 == 2:
            for r, ins in loads:
                for j in range(4):
                    a(f'v_and_b32 v{r + j}, -4, v{r + j}')
        elif tag8:
            for r, ins in loads:
                a(f'v_xor_b32 v{r}, s{S_E8}, v{r}')

    def census(t):
        a(f's_lshl_b32 s30, s{S_H}, 8\ns_add_u32 s30, s30, {WS_CEN}\nv_and_b32 v{t}, 31, v0\nv_lshlrev_b32 v{t}, 2, v{t}')
        a(f'buffer_load_dword v{t}, v{t}, {sr(SRD_WS, 4)}, s30 offen sc1')

    def census_done(t):
        a(f'v_cmp_eq_u32 vcc, s{S_XO}, v{t}\ns_bcnt1_i32_b32 s{S_FAST}, vcc_lo')

    def group_store(ins, cond=None):
        slow, done = a.lab('L_st'), a.lab('L_std')
        a(cond or f's_cmp_eq_u32 s{S_FAST}, {32 if cfg["fast"] else 99}')
        a(f's_cbranch_scc0 {slow}\n{ins}\ns_branch {done}\n{slow}:\n{ins} sc1\n{done}:')

    def code_prefetch(end):
        if not cfg['pref2']:
            return
        here, skip = a.lab('L_pc'), a.lab('L_npc')
        a(f's_cmp_eq_u32 s{S_C}, 3\ns_cbranch_scc0 {skip}')
        a(f's_getpc_b64 s[30:31]\n{here}:\nv_lshlrev_b32 v12, 7, v0\nv_min_u32 v12, {end}-{here}, v12\nglobal_load_dword v13, v12, s[30:31]')
        a(f'{skip}:')

    def bar(wait=''):
        skip = a.lab('L_nb')
        if cfg['dry']:
            a(f's_cmp_eq_u32 s{SRD_WS + 2}, 0\n{wait}\ns_cbranch_scc1 {skip}\ns_barrier\n{skip}:')
        else:
            a(f'{wait}\ns_barrier')

    def flag_add(flag, t, inc=1):
        a(f'v_mov_b32 v{t}, 0\nv_mov_b32 v{t + 1}, {inc}\ns_mov_b64 exec, 1\nds_add_u32 v{t}, v{t + 1} offset:{flag}\ns_mov_b64 exec, -1')

    def rnd(d, s):
        a(f'v_cvt_pk_bf16_f32 v{d}, 0, v{s}')

    def rows_allreduce(op, x, t):
        a(f'v_mov_b32 v{t}, v{x}\nv_permlane16_swap_b32 v{x}, v{t}\n{op} v{x}, v{x}, v{t}')
        a(f'v_mov_b32 v{t}, v{x}\nv_permlane32_swap_b32 v{x}, v{t}\n{op} v{x}, v{x}, v{t}')

    def dpp(op, d, s0, s1, ctl, rm=0xf, bm=0xf):
        a(f'{op}_dpp v{d}, v{s0}, v{s1} {ctl} row_mask:{rm:#x} bank_mask:{bm:#x}')

    hdr = open('cdna_kernels/' + NAME + '.s.ref').read().split('; Override launch')[0]
    head = hdr + f'; @launch grid=(256,1,1) block=(512,1,1) lds={LDS_BYTES}\n'
    a('.amdgcn_target "amdgcn-amd-amdhsa--gfx950"\n.text')
    a(f'.globl {NAME}_kernel\n.p2align 8\n.type {NAME}_kernel,@function\n{NAME}_kernel:')
    a('s_load_dwordx16 s[40:55], s[0:1], 0\ns_load_dwordx8 s[56:63], s[0:1], 64\ns_load_dwordx4 s[64:67], s[0:1], 96')
    stamp(0)
    a(f'v_lshrrev_b32 v1, 6, v0\ns_lshr_b32 s{S_B}, s2, 5\ns_cmp_ge_u32 s{S_B}, 8\ns_cbranch_scc1 L_end')
    a(f'v_readfirstlane_b32 s{S_W}, v1\nv_and_b32 v0, 63, v0')
    a(f's_and_b32 s{S_H}, s2, 7\ns_lshr_b32 s{S_R}, s2, 3\ns_and_b32 s{S_D}, s{S_R}, 3')
    a(f's_lshl_b32 s30, s{S_B}, 1\ns_lshr_b32 s{S_ROLE}, 0xcaa0, s30\ns_and_b32 s{S_ROLE}, s{S_ROLE}, 3')
    a(f's_and_b32 s30, s{S_B}, s{S_H}\ns_cmp_eq_u32 s30, 7\ns_cselect_b32 s{S_ROLE}, 0, s{S_ROLE}')
    a(f's_cmp_lt_u32 s2, 42\ns_cselect_b32 s{S_ROLE}, 1, s{S_ROLE}')
    a(f's_cmp_ge_u32 s{S_W}, 4\ns_cbranch_scc1 L_chain')

    def common():
        if cfg['stamps']:
            for k in range(1, 12):
                if k != 9:
                    a(f's_mov_b64 {sr(S_ST0 + 2 * k, 2)}, 0')
        a(f's_mov_b32 s{S_CNT}, 0')

    def decode(vrow, vnt):
        a(f's_lshl2_add_u32 s{S_JJ}, s{S_H}, s{S_D}\ns_and_b32 s{S_C}, s{S_W}, 3')
        a(f's_and_b32 s31, s{S_R}, 7\ns_lshl3_add_u32 s30, s{S_H}, s31\ns_cmp_lt_u32 s2, 42\ns_cselect_b32 s30, s2, s30')
        a(f'v_bfe_u32 v{vrow}, v0, 1, 3')
        a(f'v_lshrrev_b32 v10, 4, v0\nv_and_b32 v11, 1, v0\nv_lshlrev_b32 v11, 4, v11\nv_lshl_or_b32 v{vnt}, v10, 5, v11')

    V_R8, V_NT, V_TR, V_AR, V_L16, V_XA, V_MA, V_DM = 1, 2, 3, 4, 5, 6, 7, 9

    def dma(srdn, nt, lds0, bar=-1, BLK=BLK, qout=None):
        a(f's_lshl_b32 s30, s{S_C}, 1\ns_mul_i32 s31, s30, {BLK}\ns_add_u32 m0, s31, {lds0}')
        a(f's_mul_i32 s30, s30, s{S_A}\ns_add_u32 s30, s30, s{S_BASE}\ns_add_u32 s31, s30, s{S_A}')
        for t in range(nt):
            for u in range(2):
                k = 2 * t + u
                if k == bar:
                    a('s_barrier')
                if k == 8 and qout:
                    a(f's_cmp_eq_u32 s{S_ROLE}, 2\ns_cbranch_scc1 {qout}')
                a(f'buffer_load_dwordx4 v{V_DM}, {sr(srdn, 4)}, s{30 + u} offen {WFL} lds')
                if k < 2 * nt - 1:
                    a(f's_addk_i32 m0, {BLK if u == 0 else 7 * BLK}\ns_add_u32 s{30 + u}, s{30 + u}, s{S_Bs}')

    QA, QD, SC = 8, 24, 4
    RING = 32
    slot = lambda k: RING + 4 * k
    NL = cfg['NL']
    NSYNC = 56 + NL
    ACC = slot(0)
    parked = lambda n: 4 <= n < 4 + NL
    kslot = lambda n: slot((n - 4) % 8) if parked(n) else slot(n if n < 4 else n - NL)
    vidx = lambda i: 8 + (56 - NL + i) % 48
    vslot = lambda i: slot(vidx(i))
    S_LX = 27
    assert 8 <= NL <= 16
    a('v_and_b32 v4, 7, v0\nv_and_b32 v5, 48, v0\nv_lshl_or_b32 v1, v4, 9, v5\nv_and_b32 v5, 8, v0\nv_lshl_or_b32 v1, v5, 3, v1')
    a(f's_lshl3_add_u32 s32, s{S_B}, s{S_H}\ns_lshl2_add_u32 s32, s32, 3\ns_lshl_b32 s32, s32, 20')
    a(f's_lshl_b32 s37, s{S_D}, 15\ns_brev_b32 s31, s{S_W}\ns_lshr_b32 s31, s31, 18\ns_or_b32 s36, s37, s31')
    a(f's_mov_b32 s{SRD_A + 2}, 0x100000\ns_mov_b32 s{SRD_A + 3}, 0x20000')
    a(f's_cmp_lg_u32 s{S_ROLE}, 0\ns_cselect_b64 vcc, -1, 0')
    a('s_cbranch_scc1 L_role\nL_k0:')
    a('s_waitcnt lgkmcnt(0)')
    a(f's_add_u32 s{SRD_A}, s{P_K}, s32\ns_addc_u32 s{SRD_A + 1}, s{P_K + 1}, 0')
    stamp(9)

    def stream_setup():
        a('s_branch L_k4\nL_role:')
        decode(6, 7)
        a(f's_movk_i32 s26, 896\ns_mov_b32 s{SRD_C + 2}, 1605632\ns_and_b32 s31, s{S_B}, 4\ns_lshl_b32 s31, s31, 12\ns_add_u32 s30, s30, s31\ns_mul_i32 s31, s{S_JJ}, 448\ns_waitcnt lgkmcnt(0)')
        if cfg['ktouch']:
            a(f's_load_dword s24, {sr(P_K, 2)}, s32')
        a(f's_cmp_eq_u32 s{S_ROLE}, 1\ns_cmovk_i32 s26, 5376\ns_cmov_b32 s{SRD_C + 2}, 2408448\ns_cselect_b64 {sr(SRD_C, 2)}, {sr(P_WM, 2)}, {sr(P_W2, 2)}')
        a(f's_cmp_eq_u32 s{S_ROLE}, 2\ns_cmovk_i32 s26, 8192\ns_cmov_b32 s{SRD_C + 2}, 3670016\ns_cselect_b64 {sr(SRD_C, 2)}, {sr(P_WQ, 2)}, {sr(SRD_C, 2)}')
        a(f's_lshl_b32 s{S_A}, s26, 3\ns_lshl_b32 s{S_Bs}, s26, 6')
        a(f's_cmp_eq_u32 s{S_ROLE}, 3\ns_cmovk_i32 s{S_Bs}, 128\ns_cselect_b32 s30, s31, s30\ns_lshl_b32 s{S_BASE}, s30, 7')
        a(f's_mov_b32 s{SRD_C + 3}, 0x20000')
        a(f'v_mad_u32_u24 v{V_DM}, v6, s26, v7')
        if cfg['abl'] & 2:
            a('s_barrier')
        else:
            dma(SRD_C, 7, L_W, bar=cfg['dbar'], qout='L_k0')
        a('s_branch L_k0\nL_k4:')
        common()
        a(f's_lshl_b32 s{S_LX}, s{S_W}, 14\ns_add_u32 s{S_LX}, s{S_LX}, {L_X}')

    vdone = 0
    g0 = NL // 4
    regg = [0] + list(range(g0 + 1, 16))
    korder = [regg[2], regg[0], regg[1]]
    rest = regg[3:]
    for p in range(1, g0 + 1, 2):
        korder += [('rd', p)] + rest[:1] + [g for g in (p, p + 1) if g <= g0]
        rest = rest[1:]
    korder += rest
    kdone = set()
    qn = [0]

    def qk_post(gi, d):
        t, u = gi >> 2, gi & 3
        dpp('v_add_f32', SC + u, d + 1, d, 'row_ror:8', 1 << t, 0x3)
        dpp('v_add_f32', SC + u, d + 2, d + 3, 'row_ror:8', 1 << t, 0xc)

    def qk_some(landed, maxn):
        prev = None
        while korder and maxn:
            g = korder[0]
            if isinstance(g, tuple):
                for n in range(4 * g[1], min(4 * g[1] + 8, NL + 4)):
                    a(f'ds_read_b128 {vr(kslot(n), 4)}, v3 offset:{1024 * (n - 4)}')
                korder.pop(0)
                continue
            if 4 * g + 3 > landed:
                break
            korder.pop(0)
            maxn -= 1
            if parked(4 * g) and g % 2 == 1:
                a('s_waitcnt lgkmcnt(0)')
            d = QD + 4 * (qn[0] & 1)
            qn[0] += 1
            for j in range(4):
                a(f'v_mfma_f32_16x16x32_bf16 {vr(d, 4)}, {vr(QA + 4 * j, 4)}, {vr(kslot(4 * g + j), 4)}, {vr(d, 4) if j else 0}')
            if prev:
                qk_post(*prev)
            prev = (g, d)
            kdone.add(g)
        if prev:
            qk_post(*prev)
            if len(kdone) == 16:
                a(f's_lshl_b32 s31, s{S_W}, 10\nv_lshl_add_u32 v3, v0, 4, s31\nds_write_b128 v3, {vr(SC, 4)} offset:{L_SC}\ns_waitcnt lgkmcnt(0)')
                flag_add(F_SC, 4)
                stamp(3)

    def perms(dst_of, e0, G, r):
        lo, hi = vslot(8 * G + e0) + r, vslot(8 * G + e0 + 1) + r
        a(f'v_perm_b32 v{dst_of(2 * r) + e0 // 2}, v{hi}, v{lo}, s38')
        a(f'v_perm_b32 v{dst_of(2 * r + 1) + e0 // 2}, v{hi}, v{lo}, s39')

    def pv_mfma(G, j, b):
        a(f'v_mfma_f32_16x16x32_bf16 {vr(ACC + 4 * j, 4)}, {vr(QD + 4 * (G & 1), 4)}, {vr(b, 4)}, {vr(ACC + 4 * j, 4) if G else 0}')

    def pv_group(G):
        a('s_waitcnt lgkmcnt(0)')
        a(f'ds_read_b128 {vr(QD + 4 * ((G + 1) & 1), 4)}, v3 offset:{L_P + 256 * (G + 1)}')
        tmp = lambda j: QA + 4 * (j & 3)
        for r in range(4):
            for e0 in (0, 2, 4, 6):
                perms(tmp, e0, G, r)
            if r:
                pv_mfma(G, 2 * r - 1, tmp(2 * r - 1))
            pv_mfma(G, 2 * r, tmp(2 * r))
        pv_mfma(G, 7, tmp(7))

    cks = cfg['cks']
    if isinstance(cks, str):
        cks = eval(cks)
    extra = lambda after, n: 2 * sum(1 for m in cks if after <= m < n)
    pend = None
    for n in range(128):
        isk = n < 64
        n0, d, lite, rmask = [x for x in seg if x[0] <= n][-1]
        if n == 4:
            stream_setup()
        if n == n0 and n and rmask >= 0:
            a(f's_bitcmp1_b32 {rmask}, s{S_ROLE}\ns_cselect_b64 vcc, -1, 0')
        if n == 5:
            a('s_cbranch_vccnz L_nb\ns_barrier\nL_nb:')
        if n >= d:
            a(f's_waitcnt vmcnt({d - 1 + extra(n - d, n)})')
        if pend is not None and n - d > cks[pend]:
            k = pend + 1
            a(f's_add_u32 s60, s58, {k}\nv_subrev_u32 v7, s60, v7\nv_cmp_gt_u32 vcc, {16 - k}, v7')
            a('s_bcnt1_i32_b64 s60, vcc\ns_cmp_ge_u32 s60, s59\ns_cselect_b64 vcc, -1, 0')
            pend = None
        if lite and n >= d - lite:
            skip = a.lab('L_dp')
            a(f's_cbranch_vccnz {skip}\ns_waitcnt vmcnt({d - 1 - lite + extra(n - d + lite, n)})\n{skip}:')
        landed = n - d
        if n == d - lite:
            stamp(10)
        if n == 2 * (d - lite):
            stamp(11)
        if n == 120:
            a('s_setprio 3')
        if n == cfg['dflag']:
            assert seg[0][3] == 14 and n >= 4
            skip = a.lab('L_df')
            a(f's_cbranch_vccz {skip}\ns_waitcnt vmcnt({cfg["dflag"]})')
            flag_add(F_S1, 4)
            a(f'{skip}:')
        if n == NSYNC:
            stamp(1)
            if not cfg['abl'] & 9:
                spin_lds(F_Q, 1, 4)
            stamp(2)
            a('v_lshrrev_b32 v4, 1, v0\nv_and_b32 v4, 1, v4\nv_and_b32 v5, 1, v0\nv_lshrrev_b32 v6, 4, v0\nv_lshlrev_b32 v6, 4, v6')
            a('v_lshl_or_b32 v6, v5, 6, v6\nv_lshl_or_b32 v3, v4, 9, v6')
            for j in range(4):
                a(f'ds_read_b128 {vr(QA + 4 * j, 4)}, v3 offset:{L_Q + 128 * j}')
            a(f'v_lshl_add_u32 v3, v0, 4, s{S_LX}')
            a('s_waitcnt lgkmcnt(0)')
            qk_some(landed, 1 if NL >= 8 else 2)
        if isk:
            if n >= NSYNC:
                assert (n - 56) // 4 in kdone
            if n and n % 4 == 0:
                a(f's_add_u32 s36, s36, {lin(KM[2], n >> 2) - lin(KM[2], (n >> 2) - 1)}')
            if parked(n):
                a(f's_add_u32 m0, s{S_LX}, {1024 * (n - 4) - 128 * (n & 3)}')
                a(f'buffer_load_dwordx4 v1, {sr(SRD_A, 4)}, s36 offen offset:{128 * (n & 3)} nt lds')
            else:
                a(f'buffer_load_dwordx4 {vr(kslot(n), 4)}, v1, {sr(SRD_A, 4)}, s36 offen offset:{128 * (n & 3)} nt')
        else:
            i = n - 64
            if i < 48:
                kn = vidx(i) + NL
                assert kn >= 64 or kn // 4 in kdone, (i, kdone)
            else:
                assert vdone > (i - 48) // 8
            a(f's_add_u32 s30, s37, {lin(KM[2], i >> 2) + lin(KM[0], i & 3)}')
            a(f'buffer_load_dwordx4 {vr(vslot(i), 4)}, v2, {sr(SRD_B, 4)}, s30 offen nt')
        if n == 8:
            a(f'v_and_b32 v4, 7, v0\nv_lshrrev_b32 v5, 3, v0\nv_lshlrev_b32 v4, 4, v4\nv_lshl_or_b32 v2, v5, 9, v4')
            a(f's_lshl_b32 s31, s{S_W}, 7\ns_or_b32 s37, s37, s31')
            a(f's_add_u32 s{SRD_B}, s{P_V}, s32\ns_addc_u32 s{SRD_B + 1}, s{P_V + 1}, 0\ns_mov_b32 s{SRD_B + 2}, 0x100000\ns_mov_b32 s{SRD_B + 3}, 0x20000')
            srd(SRD_WS, P_WS, WS_SIZE)
            a('s_mov_b32 s38, 0x05040100\ns_mov_b32 s39, 0x07060302')
            if cks:
                a(f's_load_dword s58, {sr(P_WS, 2)}, 0')
                a(f's_and_b32 s57, s{S_R}, 1\ns_lshl1_add_u32 s56, s{S_H}, s57\ns_lshl_b32 s56, s56, 9\ns_add_u32 s56, s56, {WS_PRG}\ns_lshr_b32 s57, s{S_R}, 1')
                if cfg['fbm']:
                    a(f's_lshl_b32 s60, s{S_W}, 7\ns_add_u32 s56, s56, s60\ns_lshl1_add_u32 s57, s57, s56')
                else:
                    a(f's_lshl2_add_u32 s57, s57, s{S_W}\ns_lshl1_add_u32 s57, s57, s56')
                a('s_xor_b32 s56, s56, 512')
                a(f's_cmp_eq_u32 s{S_ROLE}, 3\ns_cselect_b32 s59, 0, {cfg["thr"]}')
        if n in cks:
            assert pend is None and not (NSYNC - d - 1 <= n <= NSYNC + 4) and n + d + 1 < 128 and n > 8
            pend = cks.index(n)
            if pend == 0:
                a('s_waitcnt lgkmcnt(0)\ns_add_u32 s58, s58, 1\ns_lshl_b32 s58, s58, 4\ns_and_b32 s58, s58, 0xffff')
            a(f'v_and_b32 v7, {15 if cfg["fbm"] else 63}, v0\nv_lshlrev_b32 v7, 1, v7\ns_add_u32 s60, s58, {pend + 1}\nv_mov_b32 v4, s60')
            a(f'buffer_load_ushort v7, v7, {sr(SRD_WS, 4)}, s56 offen sc1')
            a(f's_mov_b64 exec, 1\nbuffer_store_short v4, off, {sr(SRD_WS, 4)}, s57\ns_mov_b64 exec, -1')
        if n == cfg['ktrig']:
            assert n < NSYNC
            flag_add(F_KT, 4)
        if n == cfg['mtrig']:
            flag_add(F_MT, 4)
        if n == 112:
            a(f's_lshl3_add_u32 s30, s{S_H}, s{S_D}\ns_mul_i32 s30, s30, 448\ns_add_u32 s30, s30, s{S_B}\ns_lshl2_add_u32 s31, s{S_H}, s{S_D}')
            a(f's_movk_i32 s26, 896\ns_movk_i32 s25, {BLK}\ns_mov_b32 s{SRD_C + 2}, 3670016\ns_mov_b32 s{SRD_C + 3}, 0x20000')
            a(f's_cmp_eq_u32 s{S_ROLE}, 3\ns_cmovk_i32 s26, 3584\ns_cmovk_i32 s25, {BLS}\ns_cmov_b32 s{SRD_C + 2}, 1605632')
            a(f's_cselect_b64 {sr(SRD_C, 2)}, {sr(P_W1, 2)}, {sr(P_WO, 2)}\ns_cselect_b32 s30, s31, s30\ns_lshl_b32 s30, s30, 7')
            a(f's_lshl_b32 s31, s{S_W}, 4\ns_mul_i32 s31, s31, s26\ns_add_u32 s{S_A}, s30, s31\ns_lshl3_add_u32 s{S_Bs}, s26, s{S_A}')
            a(f's_add_u32 s{S_BASE}, s{S_A}, 229376\ns_add_u32 s{S_XO}, s{S_Bs}, 229376')
            a(f's_lshl_b32 s31, s{S_W}, 1\ns_mul_i32 s31, s31, s25\ns_add_u32 m0, s31, {L_W}\ns_mul_i32 s24, s25, 7')
            a('v_bfe_u32 v4, v0, 1, 3\nv_and_b32 v5, 48, v0\nv_and_b32 v6, 1, v0\nv_lshlrev_b32 v5, 1, v5\nv_lshl_or_b32 v5, v6, 4, v5\nv_mad_u32_u24 v1, v4, s26, v5')
        if n == 127:
            for k, so in enumerate((S_A, S_Bs, S_BASE, S_XO)):
                a(f'buffer_load_dwordx4 v1, {sr(SRD_C, 4)}, s{so} offen nt lds')
                if k < 3:
                    a(f's_add_u32 m0, m0, s{24 if k == 1 else 25}')
        if n >= NSYNC and korder:
            qk_some(landed, 4)
        if n == 64 + cfg['vsync']:
            assert len(kdone) == 16
            stamp(4)
            if not cfg['abl'] & 9:
                spin_lds(F_P, 1, 4, two=True)
            stamp(5)
            a(f'v_readfirstlane_b32 s{S_E}, v5\ns_sub_u32 s{S_FAST}, s31, 1')
            a('v_lshrrev_b32 v4, 1, v0\nv_and_b32 v4, 1, v4\nv_and_b32 v5, 1, v0\nv_lshrrev_b32 v6, 4, v0\nv_lshlrev_b32 v6, 5, v6')
            a('v_lshl_or_b32 v6, v5, 4, v6\nv_lshl_or_b32 v3, v4, 7, v6')
            a(f'ds_read_b128 {vr(QD, 4)}, v3 offset:{L_P}')
        if n >= 64 + cfg['vsync'] and vdone < 7 and 64 + 8 * vdone + 7 <= landed:
            pv_group(vdone)
            vdone += 1
    assert vdone == 7, vdone
    a(f's_lshl_b32 s30, s{S_H}, 2\ns_add_u32 s30, s30, s{S_W}\ns_lshl_b32 s30, s30, 14\ns_lshl_b32 s31, s{S_D}, 12\ns_add_u32 s30, s30, s31')
    a(f's_lshl_b32 s31, s{S_B}, 9\ns_add_u32 s30, s30, s31\ns_add_u32 s30, s30, {WS_OP}')
    a('v_and_b32 v8, 7, v0\nv_lshlrev_b32 v8, 4, v8\nv_and_b32 v9, 8, v0\nv_lshl_or_b32 v8, v9, 5, v8\nv_and_b32 v9, 16, v0\nv_lshl_or_b32 v8, v9, 3, v8')
    a(f's_movk_i32 s31, 0xff\nv_mov_b32 v9, s{S_E}')
    big = lambda j: vslot(24 + j)
    for pr in range(4):
        if 6 - 2 * pr < DV:
            a(f's_waitcnt vmcnt({10 - 2 * pr})')
        if pr < 3:
            for r in range(4):
                perms(big, 2 * pr, 7, r)
    stamp(6)
    a('s_waitcnt lgkmcnt(0)')

    def pv_post(j):
        d = ACC + 4 * j
        dpp('v_add_f32', 4 + (j & 3), d + 1, d, 'row_ror:8', 1 << (j >> 2), 0x3)
        dpp('v_add_f32', 4 + (j & 3), d + 2, d + 3, 'row_ror:8', 1 << (j >> 2), 0xc)
    perms(big, 6, 7, 0)
    perms(big, 6, 7, 1)
    pv_mfma(7, 0, big(0))
    perms(big, 6, 7, 2)
    pv_mfma(7, 1, big(1))
    perms(big, 6, 7, 3)
    for j in range(2, 8):
        pv_mfma(7, j, big(j))
        if j >= 4:
            pv_post(j - 4)
    for j in range(4, 8):
        pv_post(j)
    a('v_bfi_b32 v4, s31, v9, v4')
    a('s_mov_b32 exec_hi, 0')
    if not cfg['abl'] & 256:
        group_store(f'buffer_store_dwordx4 v[4:7], v8, {sr(SRD_WS, 4)}, s30 offen')
    a(f's_cmp_eq_u32 s{S_ROLE}, 3\ns_cbranch_scc1 L_fs')
    a('s_waitcnt vmcnt(1)\ns_barrier')
    stamp(7)
    a('s_barrier\ns_branch L_exit')
    a('L_fs:\ns_barrier\ns_mov_b64 exec, -1')
    stamp(7)
    a('s_waitcnt vmcnt(0)')
    flag_add(F_S2, 12)
    a(f's_cmp_lt_u32 s{S_W}, 3\ns_cbranch_scc1 L_fhelp')
    a('s_branch L_exit')

    W56, W112, T0 = 88, 144, 12
    MASK8 = 's[36:37]'

    def trread(dst, nops, vaddr):
        for s in range(nops):
            for rp in range(2):
                a(f'ds_read_b64_tr_b16 {vr(dst + 4 * s + 2 * rp, 2)}, v{vaddr} offset:{s * 4 * BLK + rp * 128}')

    a('L_chain:')
    if cfg['prio']:
        a(f's_setprio {cfg["prio"]}')
    a('v_mov_b32 v4, 0\nv_mov_b32 v5, 0\nv_mov_b32 v6, 0\nv_mov_b32 v7, 0\nv_lshlrev_b32 v8, 4, v0\nds_write_b128 v8, v[4:7]')
    common()
    if cfg['stamps']:
        a(f's_mov_b64 {sr(S_ST0 + 18, 2)}, 0')
    decode(V_R8, V_NT)
    a(f'v_lshlrev_b32 v{V_L16}, 4, v0')
    a(f'v_and_b32 v11, 7, v0\nv_lshrrev_b32 v12, 3, v0\nv_lshlrev_b32 v13, 4, v11')
    a(f'v_mul_u32_u24 v{V_XA}, 896, v11\nv_lshl_add_u32 v{V_XA}, v12, 4, v{V_XA}\nv_lshl_or_b32 v{V_MA}, v12, 8, v13')
    a(f'v_lshl_or_b32 v{V_AR}, v10, 7, v13')
    a(f's_add_u32 s{S_KB1}, s{S_C}, 4\ns_min_u32 s{S_KB1}, s{S_KB1}, 6')
    a(f's_and_b32 s31, s{S_B}, 4\ns_lshl_b32 s31, s31, 15\ns_add_u32 s31, s31, {WS_Q}\ns_cmp_eq_u32 s{S_ROLE}, 1\ns_cselect_b32 s31, {WS_MOD}, s31\ns_lshl_b32 s{S_DST}, s30, 11\ns_add_u32 s{S_DST}, s{S_DST}, s31')
    a(f's_lshl_b32 s31, s{S_C}, 9\ns_add_u32 s{S_DST}, s{S_DST}, s31')
    a(f's_lshl_b32 s30, s{S_C}, 7\ns_lshl_b32 s31, s{S_KB1}, 7\nv_mov_b32 v13, 0')
    a(f's_mov_b32 s{SRD_C + 2}, 7168\ns_mov_b32 s{SRD_C + 3}, 0x20000')
    a('s_waitcnt lgkmcnt(0)\ns_barrier')
    if cfg['abl'] & 1:
        a('s_branch L_exit')
    srd(SRD_WS, P_WS, WS_SIZE)
    a(f's_cmp_eq_u32 s{S_ROLE}, 1\ns_cselect_b64 {sr(SRD_C, 2)}, {sr(P_C, 2)}, {sr(P_X, 2)}')
    a(f's_load_dword s{S_E}, {sr(P_WS, 2)}, 0')
    a(f's_sub_u32 s32, s{S_ROLE}, 1\ns_cmp_lt_u32 s32, 2\ns_cbranch_scc0 L_c0')
    a(f'buffer_load_dwordx4 v[228:231], v{V_XA}, {sr(SRD_C, 4)}, s30 offen')
    a(f'buffer_load_dwordx4 v[232:235], v{V_XA}, {sr(SRD_C, 4)}, s31 offen')
    a('L_c0:')
    if cfg['pref']:
        skip = a.lab('L_np')
        a(f's_cmp_eq_u32 s{S_R}, 6\ns_cbranch_scc0 {skip}')
        a('s_getpc_b64 s[24:25]\nL_pc0:')
        a(f's_sub_u32 s24, s24, L_pc0-{NAME}_kernel\ns_subb_u32 s25, s25, 0')
        a(f's_lshl_b32 s30, s{S_C}, 13\nv_lshl_add_u32 v12, v0, 7, s30\nv_min_u32 v12, L_end-{NAME}_kernel, v12')
        a('global_load_dword v14, v12, s[24:25]')
        a(f'{skip}:')
    a(f'v_mul_u32_u24 v{V_TR}, {BLK}, v10\nv_and_b32 v13, 15, v0\nv_lshl_add_u32 v{V_TR}, v13, 3, v{V_TR}')
    a(f's_lshl_b32 s26, s{S_C}, 8\ns_add_u32 s26, s26, {L_W}\nv_add_u32 v{V_TR}, s26, v{V_TR}')
    a('s_mov_b32 s36, 0x00ff00ff\ns_mov_b32 s37, 0x00ff00ff\nv_mov_b32 v85, 0')
    a('s_waitcnt vmcnt(0) lgkmcnt(0)')
    a(f's_add_u32 s{S_E}, s{S_E}, 1\ns_and_b32 s{S_E8}, s{S_E}, 0xff')
    a(f's_mov_b32 s56, s{S_E}\ns_lshr_b32 s57, s{S_E}, 2\ns_lshr_b32 s58, s{S_E}, 4\ns_lshr_b32 s59, s{S_E}, 6')
    a(f's_getreg_b32 s{S_XO}, hwreg(HW_REG_XCC_ID, 0, 3)\ns_lshl_b32 s{S_XO}, s{S_XO}, 29\ns_and_b32 s30, s{S_E}, 0x1fffffff\ns_or_b32 s{S_XO}, s{S_XO}, s30')
    a(f's_cmp_eq_u32 s{S_C}, 1\ns_cbranch_scc0 L_c1')
    a(f's_lshl_b32 s30, s{S_H}, 8\ns_lshl_b32 s31, s{S_R}, 2\ns_add_u32 s30, s30, s31\ns_add_u32 s30, s30, {WS_CEN}')
    a(f'v_mov_b32 v12, 0\nv_mov_b32 v14, s{S_XO}\ns_mov_b64 exec, 1\nbuffer_store_dword v14, v12, {sr(SRD_WS, 4)}, s30 offen\ns_mov_b64 exec, -1')
    a('L_c1:')
    if cfg['touch']:
        a(f's_cmp_eq_u32 s{S_C}, 2\ns_cbranch_scc0 L_c2')
        a(f's_lshl3_add_u32 s30, s{S_B}, s{S_H}\ns_lshl2_add_u32 s30, s30, 3\ns_lshl_b32 s30, s30, 20\ns_load_dword s8, {sr(P_V, 2)}, s30')
        a(f's_mul_i32 s30, s{S_H}, 458752\ns_load_dword s9, {sr(P_WO, 2)}, s30\ns_load_dword s10, {sr(P_WO, 2)}, s30 offset:458748')
        a(f's_load_dword s11, {sr(P_W1, 2)}, 0\ns_load_dword s12, {sr(P_W3, 2)}, 0\ns_load_dword s13, {sr(P_OUT, 2)}, 0')
        a(f's_mov_b32 s30, 0x3ff000\ns_load_dword s14, {sr(P_WS, 2)}, s30')
        a('L_c2:')
    a(f's_cmp_eq_u32 s{S_ROLE}, 0\ns_cbranch_scc1 L_mid')
    a(f's_cmp_eq_u32 s{S_ROLE}, 3\ns_cbranch_scc1 L_gemm0')
    for k in range(8):
        a(f'v_lshlrev_b32 v{12 + 2 * k}, 16, v{228 + k}\nv_and_b32 v{13 + 2 * k}, 0xffff0000, v{228 + k}')
    a(f's_cmp_eq_u32 s{S_ROLE}, 2\ns_cbranch_scc1 L_actQ')
    a(f's_mov_b32 s26, {LOG2E | 0x80000000:#x}')
    for k in range(16):
        a(f'v_mul_f32 v{28 + k}, s26, v{12 + k}')
    for k in range(16):
        a(f'v_exp_f32 v{28 + k}, v{28 + k}')
    for k in range(16):
        a(f'v_add_f32 v{28 + k}, 1.0, v{28 + k}')
    a('s_mov_b32 s27, 0x7f7fffff')
    for k in range(16):
        a(f'v_min_f32 v{28 + k}, s27, v{28 + k}')
    for k in range(16):
        a(f'v_rcp_f32 v{44 + k}, v{28 + k}')
    for k in range(0, 16, 2):
        a(f'v_pk_mul_f32 {vr(60 + k, 2)}, {vr(12 + k, 2)}, {vr(44 + k, 2)}')
    for k in range(0, 16, 2):
        a(f'v_pk_fma_f32 {vr(12 + k, 2)}, {vr(60 + k, 2)}, {vr(28 + k, 2)}, {vr(12 + k, 2)} neg_lo:[1,0,0] neg_hi:[1,0,0]')
    for k in range(0, 16, 2):
        a(f'v_pk_fma_f32 {vr(12 + k, 2)}, {vr(12 + k, 2)}, {vr(44 + k, 2)}, {vr(60 + k, 2)}')
    a('s_branch L_actW')

    def ln_scalars(mean, var, t):
        rnd(mean, mean)
        rnd(var, var)
        a(f'v_add_f32 v{var}, 0x3727c5ac, v{var}')
        rnd(var, var)
        a(f'v_sqrt_f32 v{var}, v{var}')
        rnd(t, var)
        a(f'v_rcp_f32 v{var}, v{t}')

    def ln_norm(x, n, mean2, rs2, exact=None):
        for k in range(0, n, 2):
            a(f'v_pk_add_f32 {vr(x + k, 2)}, {vr(x + k, 2)}, {vr(mean2, 2)} op_sel_hi:[1,0] neg_lo:[0,1] neg_hi:[0,1]')
        for k in range(n):
            rnd(x + k, x + k)
        for k in range(0, n, 2):
            a(f'v_pk_mul_f32 {vr((exact or x) + k, 2)}, {vr(x + k, 2)}, {vr(rs2, 2)} op_sel_hi:[1,0]')
        if exact:
            for k in range(0, n, 2):
                a(f'v_pk_fma_f32 {vr(x + k, 2)}, {vr(exact + k, 2)}, {vr(rs2, 2)}, {vr(x + k, 2)} op_sel:[0,1,0] op_sel_hi:[1,1,1] neg_lo:[1,0,0] neg_hi:[1,0,0]')
            for k in range(0, n, 2):
                a(f'v_pk_fma_f32 {vr(x + k, 2)}, {vr(x + k, 2)}, {vr(rs2, 2)}, {vr(exact + k, 2)} op_sel_hi:[1,0,1]')
        for k in range(n):
            rnd(x + k, x + k)

    def ln_mod(x, n, c1, sh):
        for k in range(0, n, 2):
            a(f'v_pk_mul_f32 {vr(x + k, 2)}, {vr(x + k, 2)}, {vr(c1 + k, 2)}')
        for k in range(n):
            rnd(x + k, x + k)
        for k in range(0, n, 2):
            a(f'v_pk_add_f32 {vr(x + k, 2)}, {vr(x + k, 2)}, {vr(sh + k, 2)}')

    def mod_params(blk_shift, blk_scale, sh, c1, raw, kbs):
        nb = len(kbs)
        for q, base in enumerate((blk_shift, blk_scale)):
            for j, kb in enumerate(kbs):
                a(f's_lshl_b32 s{24 + nb * q + j}, s{kb}, 11\ns_add_u32 s{24 + nb * q + j}, s{24 + nb * q + j}, {WS_MOD + base * 2048}')
        poll(a.lab('m'), [(raw + 8 * q + 4 * h, f'buffer_load_dwordx3 {vr(raw + 8 * q + 4 * h, 3)}, v{V_MA}, {sr(SRD_WS, 4)}, s{24 + q} offen offset:{128 * h} sc1')
                          for q in range(2 * nb) for h in range(2)], False)
        for k in range(2 * nb):
            for dw in range(2):
                a(f'v_lshlrev_b32 v{sh + 4 * k + 2 * dw}, 16, v{raw + 4 * k + 1 + dw}\nv_and_b32 v{sh + 4 * k + 2 * dw + 1}, 0xffff0000, v{raw + 4 * k + 1 + dw}')
                a(f'v_lshlrev_b32 v{c1 + 4 * k + 2 * dw}, 16, v{raw + 8 * nb + 4 * k + 1 + dw}\nv_and_b32 v{c1 + 4 * k + 2 * dw + 1}, 0xffff0000, v{raw + 8 * nb + 4 * k + 1 + dw}')
        for k in range(8 * nb):
            a(f'v_add_f32 v{c1 + k}, 1.0, v{c1 + k}')
        for k in range(8 * nb):
            rnd(c1 + k, c1 + k)

    def write_act(x):
        for k in range(8):
            a(f'v_cvt_pk_bf16_f32 v{x + k}, v{x + 2 * k}, v{x + 2 * k + 1}')
        a(f's_lshl_b32 s30, s{S_C}, 10\ns_lshl_b32 s31, s{S_KB1}, 10\nv_add_u32 v10, s30, v{V_L16}\nv_add_u32 v11, s31, v{V_L16}')
        a(f'ds_write_b128 v10, {vr(x, 4)} offset:{L_A}\nds_write_b128 v11, {vr(x + 4, 4)} offset:{L_A}')

    def stats_setup():
        a(f'v_lshrrev_b32 v47, 5, v0\nv_and_b32 v45, 0x70, v{V_AR}\nv_lshl_or_b32 v47, v47, 7, v45\ns_lshl_b32 s30, s{S_C}, 2\nv_add_u32 v47, s30, v47')
        a(f's_cmp_eq_u32 s{S_C}, 3\ns_cselect_b32 s30, 0, 1.0\nv_mov_b32 v44, s30')

    def stats_local():
        for q in range(2):
            x, p = 12 + 8 * q, 28 + 6 * q
            a(f'v_pk_add_f32 {vr(p, 2)}, {vr(x, 2)}, {vr(x + 2, 2)}\nv_pk_mul_f32 {vr(p + 2, 2)}, {vr(x, 2)}, {vr(x, 2)}\nv_pk_add_f32 {vr(p + 4, 2)}, {vr(x + 4, 2)}, {vr(x + 6, 2)}')
        for k in (2, 4, 6):
            for q in range(2):
                x, p = 12 + 8 * q, 28 + 6 * q
                a(f'v_pk_fma_f32 {vr(p + 2, 2)}, {vr(x + k, 2)}, {vr(x + k, 2)}, {vr(p + 2, 2)}')
                if k == 2:
                    a(f'v_pk_add_f32 {vr(p, 2)}, {vr(p, 2)}, {vr(p + 4, 2)}')
        a('v_pk_fma_f32 v[28:29], v[34:35], v[44:45], v[28:29] op_sel_hi:[1,0,1]\nv_pk_fma_f32 v[30:31], v[36:37], v[44:45], v[30:31] op_sel_hi:[1,0,1]')
        a('v_add_f32 v28, v28, v29\nv_add_f32 v30, v30, v31')
        a('v_permlane32_swap_b32 v28, v30\nv_add_f32 v28, v28, v30')
        a('v_mov_b32 v30, v28\nv_permlane16_swap_b32 v28, v30\nv_add_f32 v28, v28, v30')
        dpp('v_add_f32', 28, 28, 28, 'row_ror:8')
        a(f'ds_write_b32 v47, v28 offset:{L_ST}\ns_waitcnt lgkmcnt(0)')

    def stats_final():
        a(f'ds_read_b128 v[28:31], v45 offset:{L_ST}\nds_read_b128 v[32:35], v45 offset:{L_ST + 128}\ns_waitcnt lgkmcnt(0)')
        a('v_pk_add_f32 v[28:29], v[28:29], v[30:31]\nv_pk_add_f32 v[32:33], v[32:33], v[34:35]')
        a('v_add_f32 v28, v28, v29\nv_add_f32 v30, v32, v33\nv_mul_f32 v28, 0x3b124925, v28\nv_mul_f32 v30, 0x3b124925, v30')
        a('v_fma_f32 v30, -v28, v28, v30\nv_max_f32 v30, 0, v30')

    a('L_actQ:')
    stats_setup()
    stats_local()
    flag_add(F_S3, 10)
    spin_lds(F_S3, 4, 10)
    stats_final()
    ln_scalars(28, 30, 31)
    a(f's_cmp_lt_u32 s{S_B}, 4\ns_cselect_b32 s{S_KB1}, s{S_C}, s{S_KB1}\ns_cbranch_scc1 L_qh0')
    for k in range(8):
        a(f'v_mov_b32 v{12 + k}, v{20 + k}')
    a('L_qh0:')
    ln_norm(12, 8, 28, 30, exact=44)
    spin_lds(F_MT, 1, 10)
    stamp(1)
    census(76)
    mod_params(0, 7, 28, 44, 144, (S_KB1,))
    census_done(76)
    stamp(2)
    ln_mod(12, 8, 44, 28)
    for k in range(4):
        a(f'v_cvt_pk_bf16_f32 v{12 + k}, v{12 + 2 * k}, v{13 + 2 * k}')
    a(f's_lshl_b32 s30, s{S_C}, 10\nv_add_u32 v10, s30, v{V_L16}\nds_write_b128 v10, v[12:15] offset:{L_A}\ns_waitcnt lgkmcnt(0)')
    flag_add(F_S1, 10)
    spin_lds(F_S1, 8, 10)
    stamp(3)

    def gemm(n):
        for s in range(n):
            a(f'ds_read_b128 {vr(T0 + 4 * s, 4)}, v{V_AR} offset:{L_A + 512 * s}')
        a('s_waitcnt lgkmcnt(0)')
        for s in range(n):
            a(f'v_mfma_f32_16x16x32_bf16 v[68:71], {vr(W56 + 4 * s, 4)}, {vr(T0 + 4 * s, 4)}, {"v[68:71]" if s else 0}')
    trread(W56, 8, V_TR)
    gemm(8)
    a(f'v_and_b32 v12, 7, v0\nv_and_b32 v13, 48, v0\nv_lshl_or_b32 v12, v12, 8, v13\ns_lshl_b32 s30, s{S_C}, 6\nv_add_u32 v12, s30, v12')
    for j in range(4):
        a(f'v_bfi_b32 v{68 + j}, 3, s{56 + j}, v{68 + j}')
    a(f'ds_write_b128 v12, v[68:71] offset:{L_A + 4096}\ns_waitcnt lgkmcnt(0)')
    flag_add(F_S4, 10)
    spin_lds(F_S4, 4, 10)
    a(f's_lshl_b32 s30, s{S_C}, 9\nv_add_u32 v12, s30, v{V_L16}\nds_read_b128 v[72:75], v12 offset:{L_A + 4096}\ns_waitcnt lgkmcnt(0)\ns_mov_b32 exec_hi, 0')
    group_store(f'buffer_store_dwordx4 v[72:75], v{V_L16}, {sr(SRD_WS, 4)}, s{S_DST} offen')
    a('s_mov_b64 exec, -1\ns_branch L_pub')

    a('L_actW:')
    write_act(12)
    a('L_gemm0:')
    a('s_waitcnt lgkmcnt(0)')
    flag_add(F_S1, 10)
    spin_lds(F_S1, 8, 10)
    stamp(3)
    trread(W56, 14, V_TR)
    a(f's_cmp_eq_u32 s{S_ROLE}, 3\ns_cbranch_scc1 L_mid')
    gemm(14)
    a(f'v_mov_b32 v72, s{S_E}\nv_mov_b32 v75, s{S_E}')
    a('v_cvt_pk_bf16_f32 v73, v68, v69\nv_cvt_pk_bf16_f32 v74, v70, v71')
    a(f's_mov_b64 exec, {MASK8}')
    a(f'buffer_store_dwordx4 v[72:75], v{V_AR}, {sr(SRD_WS, 4)}, s{S_DST} offen sc1')
    a('s_mov_b64 exec, -1')
    a('L_pub:')
    stamp(4)

    a('L_mid:')
    a('s_waitcnt lgkmcnt(0)')
    flag_add(F_VT, 12)
    a(f's_cmp_eq_u32 s{S_C}, 0\ns_cbranch_scc0 L_noq')
    spin_lds(F_KT, 1, 12)
    a(f's_lshl_b32 s30, s{S_H}, 14\ns_lshl_b32 s31, s{S_B}, 8\ns_add_u32 s30, s30, s31\ns_add_u32 s30, s30, {WS_Q}\ns_add_u32 s31, s30, 8192')
    a(f'v_lshrrev_b32 v12, 4, v0\nv_and_b32 v14, 0xf0, v{V_L16}\nv_lshl_or_b32 v14, v12, 11, v14\nv_lshlrev_b32 v15, 3, v0')
    two = [(16 + 4 * k, f'buffer_load_dwordx3 {vr(16 + 4 * k, 3)}, v14, {sr(SRD_WS, 4)}, s{30 + k} offen sc1') for k in range(2)]
    a('s_add_u32 s24, s30, 0x20000\ns_add_u32 s25, s31, 0x20000')
    poll('q', [(16 + 4 * k, f'buffer_load_dwordx4 {vr(16 + 4 * k, 4)}, v14, {sr(SRD_WS, 4)}, s{(30, 31, 24, 25)[k]} offen sc1') for k in range(4)], 2)
    for k in range(0, 8, 2):
        a(f'v_pk_add_f32 {vr(16 + k, 2)}, {vr(16 + k, 2)}, {vr(24 + k, 2)}')
    for k in range(4):
        a(f'v_cvt_pk_bf16_f32 v{16 + k}, v{16 + 2 * k}, v{17 + 2 * k}')
    a(f'ds_write_b64 v15, v[16:17] offset:{L_Q}\nds_write_b64 v15, v[18:19] offset:{L_Q + 512}\ns_waitcnt lgkmcnt(0)')
    flag_add(F_Q, 12)
    stamp(5)
    a('L_noq:')
    Z_GA, Z_GB, Z_X, Z_TAG, Z_OA = 80, 81, 82, 83, 85
    S_Z = 39

    def zrole(out):
        a(f's_cmp_lt_u32 s{S_H}, 7\ns_cbranch_scc0 {out}\ns_cmp_ge_u32 s{S_C}, 2\ns_cbranch_scc0 {out}')
        a(f's_lshl1_add_u32 s{S_Z}, s{S_R}, s{S_C}\ns_sub_u32 s{S_Z}, s{S_Z}, 2')
        if not cfg['repz']:
            a(f's_cmp_eq_u32 s{S_B}, s{S_H}\ns_cbranch_scc0 {out}')
    a(f's_cmp_lt_u32 s{S_B}, 7\ns_cbranch_scc0 L_noz')
    zrole('L_noz')
    spin_lds(F_Q, 1, 12)
    a(f's_mov_b64 {sr(SRD_C, 2)}, {sr(P_X, 2)}')
    a(f's_lshl_b32 s30, s{S_Z}, 8\ns_add_u32 s31, s30, {WS_MOD + 35 * 2048}\ns_add_u32 s30, s30, {WS_MOD + 14 * 2048}')
    a('v_and_b32 v14, 15, v0\nv_lshlrev_b32 v14, 4, v14')
    a(f'v_and_b32 v12, 7, v0\nv_mul_u32_u24 v12, 896, v12\nv_and_b32 v13, 8, v0\nv_add_u32 v12, v12, v13\nv_lshrrev_b32 v13, 4, v0\nv_lshl_add_u32 v12, v13, 1, v12')
    a(f's_lshl_b32 s27, s{S_Z}, 4\nv_add_u32 v{Z_OA}, s27, v12')
    a(f'buffer_load_ushort v{Z_X}, v{Z_OA}, {sr(SRD_C, 4)}, 0 offen')
    poll('z', two, False)
    a('v_cmp_lt_u32 vcc, 31, v0\nv_cndmask_b32 v17, v17, v18, vcc\nv_cndmask_b32 v21, v21, v22, vcc')
    a('v_and_b32 v13, 16, v0\nv_lshrrev_b32 v17, v13, v17\nv_lshrrev_b32 v21, v13, v21')
    a(f'v_lshlrev_b32 v{Z_GA}, 16, v17\nv_lshlrev_b32 v{Z_GB}, 16, v21\nv_lshlrev_b32 v{Z_X}, 16, v{Z_X}')
    a(f'v_cmp_gt_u32 vcc, 16, v0\nv_mov_b32 v13, s{S_E8}\nv_cndmask_b32 v{Z_TAG}, 0, v13, vcc')
    a('L_noz:')
    F_SH, F_C1 = 52, 68
    a(f's_cmp_eq_u32 s{S_ROLE}, 3\ns_cbranch_scc0 L_nofp')
    spin_lds(F_Q, 1, 12)
    mod_params(21, 28, F_SH, F_C1, 144, (S_C, S_KB1))
    a(f's_lshl_b32 s30, s{S_C}, 12\ns_add_u32 s30, s30, {L_PAR}\nv_add_u32 v12, s30, v{V_L16}')
    for k, r in enumerate((F_SH + 8, F_SH + 12, F_C1 + 8, F_C1 + 12)):
        a(f'ds_write_b128 v12, {vr(r, 4)} offset:{1024 * k}')
    a('L_nofp:')
    a(f's_cmp_eq_u32 s{S_C}, 1\ns_cbranch_scc0 L_nosm')
    a(f's_lshl_b32 s26, s{S_B}, 3\ns_or_b32 s26, s26, s{S_H}\ns_lshl_b32 s26, s26, 9\ns_add_u32 s26, s26, {WS_ML}\ns_lshl_b32 s27, s{S_D}, 7\ns_add_u32 s27, s27, s26')
    a('v_lshrrev_b32 v13, 4, v0')
    a(f'v_mov_b32 v49, v{V_AR}')
    a('v_and_b32 v50, 15, v0\nv_lshlrev_b32 v50, 4, v50\nv_lshl_or_b32 v50, v13, 9, v50')
    a('s_mov_b32 s32, 0x3db8aa3b')
    spin_lds(F_KT, 1, 12)
    census(48)
    spin_lds(F_VT, 4, 12)
    spin_lds(F_SC, 4, 12)
    a('s_waitcnt vmcnt(0)')
    census_done(48)
    stamp(6)
    for w in range(4):
        a(f'ds_read_b128 {vr(12 + 4 * w, 4)}, v{V_L16} offset:{L_SC + 1024 * w}')
    a('s_waitcnt lgkmcnt(0)')
    for k in range(16):
        rnd(12 + k, 12 + k)
    a('v_max3_f32 v45, v12, v13, v14')
    for k in range(15, 27, 2):
        a(f'v_max3_f32 v45, v45, v{k}, v{k + 1}')
    a('v_max_f32 v45, v45, v27')

    def head_allreduce(op, x, t):
        dpp(op, x, x, x, 'quad_perm:[1,0,3,2]')
        dpp(op, x, x, x, 'quad_perm:[2,3,0,1]')
        dpp(op, x, x, x, 'row_half_mirror')
        rows_allreduce(op, x, t)

    def exps(m):
        for k in range(16):
            a(f'v_sub_f32 v{28 + k}, v{12 + k}, v{m}')
        for k in range(16):
            a(f'v_mul_f32 v{28 + k}, s32, v{28 + k}')
        for k in range(16):
            a(f'v_exp_f32 v{28 + k}, v{28 + k}')
    head_allreduce('v_max_f32', 45, 47)
    exps(45)
    for st in (8, 4, 2):
        for k in range(0, st, 2):
            a(f'v_pk_add_f32 {vr(28 + k, 2)}, {vr(28 + k, 2)}, {vr(28 + st + k, 2)}')
    a('v_add_f32 v46, v28, v29')
    head_allreduce('v_add_f32', 46, 47)
    a(f's_and_b32 s30, s{S_E}, 0xffff\ns_lshr_b32 s31, s{S_E}, 16\nv_or_b32 v28, s30, v45\nv_mov_b32 v29, v46\nv_mov_b32 v30, s31')
    a('v_mov_b32_dpp v31, v46 row_ror:8 row_mask:0xf bank_mask:0xf')
    dpp('v_or_b32', 30, 45, 30, 'row_ror:8')
    a('s_mov_b64 exec, 0xff')
    group_store(f'buffer_store_dwordx4 v[28:31], v{V_L16}, {sr(SRD_WS, 4)}, s27 offen')
    a('s_mov_b64 exec, -1')
    a('s_mov_b32 s30, 0x05040100')
    if cfg['mlown']:
        for k in range(4):
            a(f'v_mov_b32_dpp v{32 + k}, v{28 + k} row_newbcast:0 row_mask:0xf bank_mask:0xf')
        a(f's_lshl_b32 s31, s{S_D}, 4\ns_lshl_b64 s[8:9], 0xffff, s31\ns_not_b64 s[8:9], s[8:9]')
    else:
        a('s_mov_b64 s[8:9], -1')
    a('L_mlpoll:')
    a(f's_mov_b64 exec, s[8:9]\nbuffer_load_dwordx4 v[32:35], v49, {sr(SRD_WS, 4)}, s26 offen sc1\ns_mov_b64 exec, -1\ns_waitcnt vmcnt(0)')
    a(f'v_perm_b32 v36, v34, v32, s30\nv_cmp_ne_u32 vcc, s{S_E}, v36\ns_cbranch_vccz L_mlgot')
    retry('L_mlpoll')
    a('L_mlgot:')
    stamp(7)
    a(f'v_cndmask_b32 v29, v34, v32, {MASK8}\nv_cndmask_b32 v30, v35, v33, {MASK8}\nv_and_b32 v29, 0xffff0000, v29')
    a('v_mov_b32 v45, v29')
    rows_allreduce('v_max_f32', 45, 47)
    a('v_sub_f32 v29, v29, v45\nv_mul_f32 v29, s32, v29\nv_exp_f32 v29, v29\nv_mul_f32 v46, v29, v30')
    rows_allreduce('v_add_f32', 46, 47)
    a('v_rcp_f32 v46, v46')
    exps(45)
    for k in range(0, 16, 2):
        a(f'v_pk_mul_f32 {vr(28 + k, 2)}, {vr(28 + k, 2)}, v[46:47] op_sel_hi:[1,0]')
    for uh in range(2):
        for dd in range(4):
            u, x = 2 * uh + (dd >> 1), dd & 1
            a(f'v_cvt_pk_bf16_f32 v{12 + 4 * uh + dd}, v{28 + 4 * (2 * x) + u}, v{28 + 4 * (2 * x + 1) + u}')
    a(f'ds_write_b128 v50, v[12:15] offset:{L_P}\nds_write_b128 v50, v[16:19] offset:{L_P + 256}')
    a(f's_add_u32 s30, s{S_FAST}, 1\nv_mov_b32 v20, s30\nv_mov_b32 v21, s{S_E}\nv_mov_b32 v22, 0\ns_waitcnt lgkmcnt(0)\nds_write_b64 v22, v[20:21] offset:{F_P}')
    stamp(8)
    a('L_nosm:')

    if cfg['abl'] & 16:
        a('s_branch L_exit')
    a(f's_and_b32 s30, s{S_B}, s{S_H}\ns_cmp_eq_u32 s30, 7\ns_cbranch_scc1 L_exit')
    if cfg['dry']:
        a(f's_cmp_eq_u32 s{S_C}, 3\ns_cbranch_scc0 L_tail')
        spin_lds(F_VT, 4, 12)
        a(f's_mov_b32 s{SRD_WS + 2}, 0\ns_mov_b32 s{S_E8}, 0\ns_mov_b32 s{S_FAST}, 32')
    a('L_tail:')
    a(f's_cmp_eq_u32 s{S_ROLE}, 3\ns_cbranch_scc1 L_ffn')
    a(f's_lshl_b32 s24, s{S_JJ}, 14\ns_lshl_b32 s30, s{S_C}, 7\ns_add_u32 s24, s24, s30\ns_add_u32 s24, s24, {WS_OP}')
    a('s_add_u32 s25, s24, 4096\ns_add_u32 s26, s24, 8192\ns_add_u32 s27, s24, 12288')
    a('v_and_b32 v12, 7, v0\nv_lshrrev_b32 v13, 3, v0\nv_lshlrev_b32 v14, 4, v12\nv_lshl_or_b32 v40, v13, 9, v14')
    a('v_lshlrev_b32 v14, 4, v13\nv_lshl_or_b32 v41, v12, 7, v14')
    a(f's_lshr_b32 s30, s{S_C}, 1\ns_lshl_b32 s30, s30, 10\ns_and_b32 s31, s{S_C}, 1\ns_lshl_b32 s31, s31, 3\ns_add_u32 s30, s30, s31\nv_add_u32 v41, s30, v41')
    a(f'v_and_b32 v14, 0xff, v{V_AR}\nv_and_b32 v13, 8, v0\nv_lshl_or_b32 v14, v13, 27, v14')
    a('v_lshrrev_b32 v13, 5, v0\nv_lshl_or_b32 v42, v13, 13, v14\nv_lshl_or_b32 v44, v13, 10, v14')
    a(f's_mul_i32 s23, s{S_H}, 56\ns_lshl3_add_u32 s23, s{S_B}, s23\ns_lshl1_add_u32 s23, s{S_C}, s23\ns_lshl2_add_u32 s23, s23, s{S_D}\ns_lshl_b32 s23, s23, 8\ns_add_u32 s23, s23, {WS_PL}')
    a(f's_lshl_b32 s{S_DST}, s{S_B}, 16\ns_lshl_b32 s30, s{S_JJ}, 8\ns_add_u32 s{S_DST}, s{S_DST}, s30\ns_lshl_b32 s30, s{S_C}, 14\ns_add_u32 s{S_DST}, s{S_DST}, s30')
    a(f's_add_u32 s{S_DST}, s{S_DST}, {WS_PA}\nv_mov_b32 v43, s{S_E}\ns_movk_i32 s38, 0xff')
    a(f's_cmp_eq_u32 s{SRD_WS + 2}, 0\ns_cbranch_scc1 L_wgo')
    spin_lds(F_P, 1, 12)
    a(f's_sub_u32 s{S_FAST}, s31, 1')
    code_prefetch('L_ffn')
    a('s_waitcnt vmcnt(0)\ns_barrier\nL_wgo:')
    stamp(9)
    if cfg['abl'] & 32:
        a('s_branch L_exit')

    poll('w', [(12 + 4 * s, f'buffer_load_dwordx4 {vr(12 + 4 * s, 4)}, v40, {sr(SRD_WS, 4)}, s{24 + s} offen sc1') for s in range(4)], True,
         lambda: trread(W56, 4, V_TR))
    a('v_pk_add_f32 v[12:13], v[12:13], v[16:17]\nv_pk_add_f32 v[20:21], v[20:21], v[24:25]')
    a('v_pk_add_f32 v[14:15], v[14:15], v[18:19]\nv_pk_add_f32 v[22:23], v[22:23], v[26:27]')
    a('v_pk_add_f32 v[12:13], v[12:13], v[20:21]\nv_pk_add_f32 v[14:15], v[14:15], v[22:23]')
    a('v_cvt_pk_bf16_f32 v12, v12, v13\nv_cvt_pk_bf16_f32 v13, v14, v15')
    a(f'ds_write_b64 v41, v[12:13] offset:{L_A}')
    bar('s_waitcnt lgkmcnt(0)')
    for s in range(4):
        a(f'ds_read_b128 {vr(12 + 4 * s, 4)}, v{V_AR} offset:{L_A + 512 * s}')
    for s in range(4):
        a(f's_waitcnt lgkmcnt({3 - s})')
        a(f'v_mfma_f32_16x16x32_bf16 v[28:31], {vr(W56 + 4 * s, 4)}, {vr(12 + 4 * s, 4)}, {"v[28:31]" if s else 0}')
    a('v_bfi_b32 v28, s38, v43, v28')
    a(f'buffer_store_dwordx4 v[28:31], v42, {sr(SRD_WS, 4)}, s{S_DST} offen sc1')
    a(f's_cmp_eq_u32 s{S_H}, 7\ns_cbranch_scc1 L_w7')
    if cfg['pal']:
        group_store(f'buffer_store_dwordx4 v[28:31], v44, {sr(SRD_WS, 4)}, s23 offen')
    stamp(10)
    if cfg['abl'] & 128:
        a('s_branch L_exit')
    zrole('L_tex')
    a('L_z1:')
    ZO = (20, 21, 22, 23, 24, 25, 26, 27)
    a(f's_lshl_b32 s30, s{S_Z}, 13\ns_add_u32 s{ZO[0]}, s30, {WS_PA}')
    for u in range(1, 8):
        a(f's_add_u32 s{ZO[u]}, s{ZO[0]}, {1024 * u}')
    if cfg['pal']:
        a(f's_mul_i32 s31, s{S_H}, 56\ns_add_u32 s31, s31, s{S_Z}\ns_lshl_b32 s31, s31, 10\ns_add_u32 s31, s31, {WS_PL}')
        a(f's_cmp_eq_u32 s{S_H}, 7\ns_cselect_b32 s31, s{ZO[7]}, s31\ns_mov_b32 m0, s{S_H}\ns_nop 0\ns_movreld_b32 s{ZO[0]}, s31')
    a(f's_lshl_b32 s32, s{S_Z}, 8\ns_add_u32 s32, s32, {WS_X1}')
    if cfg['repz']:
        a(f's_lshl_b32 s31, s{S_H}, 14\ns_add_u32 s32, s32, s31')

    def gather(name, n, off):
        poll(name, [(12 + 4 * u, f'buffer_load_dwordx4 {vr(12 + 4 * u, 4)}, v{V_L16}, {sr(SRD_WS, 4)}, ' + off(u) + ' sc1')
                    for u in range(n)], True)
        for st in (4, 2, 1):
            for u in range(st):
                if u + st < n:
                    for h in (0, 2):
                        a(f'v_pk_add_f32 {vr(12 + 4 * u + h, 2)}, {vr(12 + 4 * u + h, 2)}, {vr(12 + 4 * (u + st) + h, 2)}')
        a('v_permlane32_swap_b32 v12, v14\nv_permlane32_swap_b32 v13, v15\nv_pk_add_f32 v[12:13], v[12:13], v[14:15]')
        a('v_permlane16_swap_b32 v12, v13\nv_add_f32 v12, v12, v13')

    gather('a', 8, lambda u: f's{ZO[u]} offen')
    rnd(12, 12)
    a(f'v_mul_f32 v12, v{Z_GA}, v12')
    rnd(12, 12)
    a(f'v_add_f32 v12, v{Z_X}, v12')
    rnd(Z_X, 12)
    a(f'v_or_b32 v48, v{Z_TAG}, v{Z_X}\nv_mov_b32 v49, v{Z_X}\nv_permlane16_swap_b32 v48, v49')
    a('v_mov_b32 v50, v48\nv_mov_b32 v51, v49\nv_permlane32_swap_b32 v48, v50\nv_permlane32_swap_b32 v49, v51')
    a('s_mov_b64 exec, 0xffff')
    if cfg['repz']:
        group_store(f'buffer_store_dwordx4 v[48:51], v{V_L16}, {sr(SRD_WS, 4)}, s32 offen')
    else:
        a(f'buffer_store_dwordx4 v[48:51], v{V_L16}, {sr(SRD_WS, 4)}, s32 offen sc1')
    a('s_mov_b64 exec, -1')
    stamp(1)
    a(f's_cmp_eq_u32 s{S_B}, s{S_H}\ns_cbranch_scc0 L_zx')
    srd(SRD_C, P_OUT, 7168)
    a(f's_min_u32 s{SRD_C + 2}, s{SRD_C + 2}, s{SRD_WS + 2}')
    a(f'v_mov_b32 v44, s{S_E}\nv_mov_b32 v47, 0')
    a(f's_add_u32 s24, s30, {WS_PF}\ns_add_u32 s25, s24, 4096')
    if cfg['epe']:
        a(f's_cmp_eq_u32 s{S_Z}, 0\ns_cbranch_scc0 L_nep')
        a(f's_mov_b64 exec, 1\nbuffer_store_dword v44, v47, {sr(SRD_WS, 4)}, 0 offen sc1\ns_mov_b64 exec, -1\nL_nep:')
    gather('f', 7, lambda u: f's{24 + (u >> 2)} offen offset:{1024 * (u & 3)}')
    rnd(12, 12)
    a(f'v_mul_f32 v12, v{Z_GB}, v12')
    rnd(12, 12)
    if cfg['outw']:
        a(f'v_add_f32 v13, v{Z_X}, v12\nv_add_f32 v12, v{Z_X}, v12\nv_permlane16_swap_b32 v12, v13')
        a('v_cvt_pk_bf16_f32 v14, v12, v13\nv_cvt_pk_bf16_f32 v15, v12, v13\nv_permlane32_swap_b32 v14, v15')
        a(f's_mov_b64 exec, 0xffff\nbuffer_store_dwordx2 v[14:15], v{Z_OA}, {sr(SRD_C, 4)}, 0 offen {cfg["outf"]}\ns_mov_b64 exec, -1')
    else:
        a(f'v_add_f32 v12, v{Z_X}, v12\nv_cvt_pk_bf16_f32 v12, v12, v12')
        a(f'buffer_store_short v12, v{Z_OA}, {sr(SRD_C, 4)}, 0 offen {cfg["outf"]}')
    stamp(2)
    if not cfg['epe']:
        a(f's_cmp_eq_u32 s{S_Z}, 0\ns_cbranch_scc0 L_tex')
        a(f's_mov_b64 exec, 1\nbuffer_store_dword v44, v47, {sr(SRD_WS, 4)}, 0 offen sc1\ns_mov_b64 exec, -1')
    a('s_branch L_tex')
    a('L_w7:')
    stamp(10)
    if cfg['wb']:
        a(f's_or_b32 s{S_Z}, s{S_R}, s{S_C}\ns_cbranch_scc0 L_z1')
    a('s_branch L_tex')
    a('L_zx:')
    if cfg['wb']:
        a(f's_cmp_eq_u32 s{S_H}, 7\ns_cbranch_scc0 L_tex\nbuffer_wbl2 sc1')
    a('s_branch L_tex')

    a('L_ffn:')
    if cfg['abl'] & 128:
        a('s_branch L_exit')
    srd(SRD_A, P_W1, 1605632)
    srd(SRD_B, P_W3, 1605632)
    a(f's_movk_i32 s32, 3584\ns_movk_i32 s{S_A}, 28672\ns_mov_b32 s{S_Bs}, 229376\ns_lshl_b32 s{S_BASE}, s{S_JJ}, 7')
    a(f'v_mad_u32_u24 v{V_DM}, v{V_R8}, s32, v{V_NT}')
    a(f'v_lshrrev_b32 v12, 5, v0\nv_bfe_u32 v13, v0, 3, 1\nv_lshl_or_b32 v12, v12, 1, v13\nv_mul_u32_u24 v12, {BLS}, v12')
    a('v_and_b32 v13, 16, v0\nv_lshl_add_u32 v12, v13, 3, v12\nv_and_b32 v13, 7, v0\nv_lshl_add_u32 v12, v13, 3, v12')
    a(f's_lshl_b32 s30, s{S_C}, 8\ns_add_u32 s30, s30, {L_W}\nv_add_u32 v{V_TR}, s30, v12\nv_add_u32 v46, {56 * BLK}, v{V_TR}')
    a(f'v_and_b32 v14, 0xff, v{V_AR}\nv_lshrrev_b32 v13, 5, v0\nv_lshl_or_b32 v14, v13, 13, v14\nv_and_b32 v13, 8, v0\nv_lshl_or_b32 v48, v13, 13, v14\nv_lshl_or_b32 v8, v13, 27, v14')
    a(f's_lshl_b32 s{S_DST}, s{S_JJ}, 8\ns_lshl_b32 s30, s{S_C}, 14\ns_add_u32 s{S_DST}, s{S_DST}, s30\ns_add_u32 s{S_DST}, s{S_DST}, {WS_PF}')
    a(f's_add_u32 s20, s{S_DST}, 0x20000\ns_add_u32 s21, s{S_DST}, 0x40000\ns_add_u32 s22, s{S_DST}, 0x60000')
    a('v_and_b32 v12, 7, v0\nv_lshlrev_b32 v12, 1, v12\nv_and_b32 v13, 8, v0\nv_lshl_or_b32 v12, v13, 4, v12\nv_and_b32 v13, 16, v0\nv_lshl_or_b32 v12, v13, 2, v12')
    a(f'v_and_b32 v13, 32, v0\nv_or_b32 v12, v12, v13\ns_lshl_b32 s30, s{S_C}, 8\nv_add_u32 v49, s30, v12')
    a(f'v_mov_b32 v50, s{S_E}\ns_movk_i32 s38, 0xff\ns_mov_b32 s39, {LOG2E | 0x80000000:#x}')
    a(f'v_mov_b32 v12, 0x4444\nv_mov_b32 v13, 0xeeee\nv_cndmask_b32 v51, v13, v12, {MASK8}')
    for k in list(range(76, 88)) + list(range(60, 68)) + list(range(40, 44)):
        a(f'v_mov_b32 v{k}, 0')
    a(f's_mov_b32 s{S_KB1}, s{S_C}\ns_cmp_eq_u32 s{SRD_WS + 2}, 0\ns_cbranch_scc1 L_ln')
    code_prefetch('L_exit')
    a(f's_add_u32 s{S_BASE}, s{S_BASE}, {2 * 229376}\ns_waitcnt vmcnt(0)')
    dma(SRD_A, 5, L_W + 16 * BLS, bar=0, BLK=BLS)
    a(f's_sub_u32 s{S_BASE}, s{S_BASE}, {2 * 229376}')
    dma(SRD_B, 7, L_W + 56 * BLK, BLK=BLS)
    for m, va in enumerate((V_TR, 46)):
        if cfg['stamps'] == 3 and m == 0:
            stamp(1)
        a(f's_waitcnt vmcnt({0 if m else 14})')
        if cfg['stamps'] == 3:
            stamp(4 if m else 2)
        flag_add(F_S3 if m else F_S2, 12)
        spin_lds(F_S3 if m else F_S2, 4 if m else 8, 12)
        for kb in range(7):
            for rp in range(4):
                a(f'ds_read_b64_tr_b16 {vr(W112 + 56 * m + 8 * kb + 2 * rp, 2)}, v{va} offset:{(8 * kb + 4 * (rp >> 1)) * BLS + (rp & 1) * 64}')
    a('s_branch L_ln')
    a('L_fhelp:')
    a(f's_mov_b64 exec, -1\ns_add_u32 s{S_KB1}, s{S_W}, 4\ns_and_b32 s{S_E8}, s{S_E}, 0xff')
    a(f'v_lshlrev_b32 v{V_L16}, 4, v0\nv_lshrrev_b32 v12, 3, v0\nv_and_b32 v13, 0x70, v{V_L16}\nv_lshl_or_b32 v{V_MA}, v12, 8, v13')
    spin_lds(F_S3, 4, 12)
    a(f's_lshl_b32 s30, s{S_W}, 12\ns_add_u32 s30, s30, {L_PAR}\nv_add_u32 v12, s30, v{V_L16}')
    for k, r in enumerate((F_SH, F_SH + 4, F_C1, F_C1 + 4)):
        a(f'ds_read_b128 {vr(r, 4)}, v12 offset:{1024 * k}')
    a('L_ln:')
    a(f's_lshl_b32 s24, s{S_KB1}, 11\ns_add_u32 s24, s24, {WS_X1}')
    if cfg['repz']:
        a(f's_lshl_b32 s31, s{S_H}, 14\ns_add_u32 s24, s24, s31')
    a(f'v_and_b32 v12, 7, v0\nv_and_b32 v13, 32, v0\nv_lshlrev_b32 v13, 3, v13\nv_lshl_or_b32 v45, v12, 5, v13\ns_lshl_b32 s30, s{S_KB1}, 2\nv_add_u32 v47, s30, v45')
    a(f's_lshl_b32 s30, s{S_KB1}, 10\nv_add_u32 v44, s30, v{V_L16}\ns_xor_b32 s25, s{S_D}, 3\ns_or_b32 s25, s25, s{S_W}')

    def wb(pos):
        if cfg['wb'] == pos:
            a('s_cmp_eq_u32 s25, 0\ns_cbranch_scc0 L_nwb\nbuffer_wbl2 sc1\nL_nwb:')
    a('s_waitcnt lgkmcnt(0)')
    stamp(9)
    if cfg['abl'] & 32:
        a('s_branch L_exit')
    poll('x', [(12 + 4 * h, f'buffer_load_dwordx4 {vr(12 + 4 * h, 4)}, v{V_MA}, {sr(SRD_WS, 4)}, s24 offen offset:{128 * h} sc1') for h in range(2)], True)
    stamp(10)
    a('v_pk_mul_f32 v[30:31], v[14:15], v[14:15]\nv_pk_add_f32 v[28:29], v[14:15], v[18:19]\nv_pk_mul_f32 v[34:35], v[12:13], v[12:13]\nv_pk_add_f32 v[32:33], v[12:13], v[16:17]')
    a('v_pk_fma_f32 v[30:31], v[18:19], v[18:19], v[30:31]\nv_pk_fma_f32 v[34:35], v[16:17], v[16:17], v[34:35]')
    a('v_pk_add_f32 v[28:29], v[28:29], v[32:33]\nv_pk_add_f32 v[30:31], v[30:31], v[34:35]')
    a('v_add_f32 v28, v28, v29\nv_add_f32 v30, v30, v31')
    a('v_permlane32_swap_b32 v28, v30\nv_add_f32 v28, v28, v30')
    a('v_mov_b32 v30, v28\nv_permlane16_swap_b32 v28, v30\nv_add_f32 v28, v28, v30')
    dpp('v_add_f32', 28, 28, 28, 'row_ror:8')
    a(f'ds_write_b32 v47, v28 offset:{L_ST2}')
    bar('s_waitcnt lgkmcnt(0)')
    if cfg['stamps'] == 2:
        stamp(1)
    a(f'ds_read_b128 v[28:31], v45 offset:{L_ST2}\nds_read_b128 v[32:35], v45 offset:{L_ST2 + 16}')
    wb(1)
    a('s_waitcnt lgkmcnt(0)')
    a('v_pk_add_f32 v[28:29], v[28:29], v[30:31]\nv_pk_add_f32 v[32:33], v[32:33], v[34:35]\nv_pk_add_f32 v[28:29], v[28:29], v[32:33]')
    a('v_add_f32 v29, v28, v29\nv_mul_f32 v28, 0x3b124925, v29\nv_mul_f32 v30, 0x3b124925, v29\nv_permlane32_swap_b32 v28, v30')
    a('v_fma_f32 v30, -v28, v28, v30')
    rnd(28, 28)
    a('v_max_f32 v30, 0, v30')
    sub = [f'v_pk_add_f32 {vr(12 + k, 2)}, {vr(12 + k, 2)}, v[28:29] op_sel_hi:[1,0] neg_lo:[0,1] neg_hi:[0,1]' for k in range(0, 8, 2)]
    sub += [f'v_cvt_pk_bf16_f32 v{12 + k}, 0, v{12 + k}' for k in range(8)]
    chain = ['v_cvt_pk_bf16_f32 v30, 0, v30', 'v_add_f32 v30, 0x3727c5ac, v30', 'v_cvt_pk_bf16_f32 v30, 0, v30', 'v_sqrt_f32 v30, v30',
             'v_cvt_pk_bf16_f32 v30, 0, v30', 'v_rcp_f32 v30, v30']
    if cfg['lnx']:
        for k in range(6):
            a(chain[k])
            a(sub[2 * k])
            a(sub[2 * k + 1])
        wb(2)
        for k in range(0, 8, 2):
            a(f'v_pk_mul_f32 {vr(12 + k, 2)}, {vr(12 + k, 2)}, v[30:31] op_sel_hi:[1,0]')
        for k in range(8):
            rnd(12 + k, 12 + k)
        ln_mod(12, 8, F_C1, F_SH)
    else:
        sub = sub[:4] + [f'v_pk_mul_f32 {vr(12 + k, 2)}, {vr(12 + k, 2)}, {vr(F_C1 + k, 2)}' for k in range(0, 8, 2)]
        for k in range(6):
            a(chain[k])
            a(sub[k])
        a(sub[6])
        a(sub[7])
        for k in range(0, 8, 2):
            a(f'v_pk_fma_f32 {vr(12 + k, 2)}, {vr(12 + k, 2)}, v[30:31], {vr(F_SH + k, 2)} op_sel_hi:[1,0,1]')
    for k in range(4):
        a(f'v_cvt_pk_bf16_f32 v{12 + k}, v{12 + 2 * k}, v{13 + 2 * k}')
    a(f'ds_write_b128 v44, v[12:15] offset:{L_A}')
    wb(3)
    a(f's_cmp_lt_u32 s{S_W}, 4\ns_cbranch_scc1 L_fhx')
    bar('s_waitcnt lgkmcnt(0)')
    if cfg['stamps'] == 2:
        stamp(2)
        a('s_waitcnt lgkmcnt(0)')
    for kb in range(7):
        a(f'ds_read_b128 {vr(12 + 4 * kb, 4)}, v{V_L16} offset:{L_A + 1024 * kb}')
    for kb in range(7):
        a(f's_waitcnt lgkmcnt({6 - kb})')
        a(f'v_smfmac_f32_16x16x64_bf16 v[76:79], {vr(12 + 4 * kb, 4)}, {vr(W112 + 8 * kb, 8)}, v51')
        a(f'v_smfmac_f32_16x16x64_bf16 v[80:83], {vr(12 + 4 * kb, 4)}, {vr(W112 + 56 + 8 * kb, 8)}, v51')
    a('v_permlane32_swap_b32 v76, v78\nv_permlane32_swap_b32 v77, v79\nv_pk_add_f32 v[76:77], v[76:77], v[78:79]')
    a('v_permlane32_swap_b32 v80, v82')
    rnd(76, 76)
    rnd(77, 77)
    a('v_mul_f32 v12, s39, v76\nv_mul_f32 v13, s39, v77\nv_exp_f32 v12, v12\nv_exp_f32 v13, v13')
    a('v_permlane32_swap_b32 v81, v83')
    a('v_add_f32 v12, 1.0, v12\nv_add_f32 v13, 1.0, v13\nv_rcp_f32 v12, v12\nv_rcp_f32 v13, v13')
    a('v_pk_add_f32 v[80:81], v[80:81], v[82:83]')
    a('v_mul_f32 v12, v12, v76\nv_mul_f32 v13, v13, v77')
    for r in (80, 81, 12, 13):
        rnd(r, r)
    a('v_mul_f32 v12, v12, v80\nv_mul_f32 v13, v13, v81\nv_cvt_pk_bf16_f32 v12, v12, v13')
    a(f'ds_write_b16 v49, v12 offset:{L_H}\nds_write_b16_d16_hi v49, v12 offset:{L_H + 16}')
    bar('s_waitcnt lgkmcnt(0)')
    if cfg['stamps'] == 2:
        stamp(4)
    HB = ((60, 64), (84, 40))
    a(f's_mov_b64 exec, {MASK8}\nds_read_b128 v[60:63], v{V_AR} offset:{L_H}\nds_read_b128 v[64:67], v{V_AR} offset:{L_H + 512}')
    a(f's_not_b64 exec, exec\nds_read_b128 v[84:87], v{V_AR} offset:{L_H}\nds_read_b128 v[40:43], v{V_AR} offset:{L_H + 512}\ns_mov_b64 exec, -1')

    tag = lambda p: a(f'v_bfi_b32 v{12 + 4 * p}, s38, v50, v{12 + 4 * p}')
    put = lambda p: a(f'buffer_store_dwordx4 {vr(12 + 4 * p, 4)}, v{8 if p == 3 else 48}, {sr(SRD_WS, 4)}, s{(S_DST, 20, 21, 22)[p]} offen sc1')
    for i in range(7):
        d = vr(12 + 4 * (i >> 1), 4)
        for st in range(2):
            if i < 2:
                a(f's_waitcnt lgkmcnt({3 - 2 * i - st})')
            a(f'v_mfma_f32_16x16x32_bf16 {d}, {vr(W56 + 8 * i + 4 * st, 4)}, {vr(HB[i & 1][st], 4)}, {d if (st or i & 1) else 0}')
            if i >= 2 and (i, st) not in ((3, 1), (4, 0), (5, 1), (6, 0)):
                a('s_nop 1')
            if (i, st) in ((3, 1), (5, 1)):
                tag(i // 2 - 1)
            if (i, st) in ((4, 0), (6, 0)):
                put(i // 2 - 2)
    tag(2)
    put(2)
    tag(3)
    put(3)
    stamp(11)
    a('L_tex:')
    if cfg['dry']:
        a(f's_cmp_eq_u32 s{SRD_WS + 2}, 0\ns_cbranch_scc0 L_exit')
        a(f's_mov_b32 s{SRD_WS + 2}, {WS_SIZE}\ns_and_b32 s{S_E8}, s{S_E}, 0xff\ns_branch L_tail')
    else:
        a('s_branch L_exit')
    a('L_fhx:\ns_waitcnt lgkmcnt(0)\ns_barrier\ns_barrier')

    a('L_exit:')
    if cfg['probe']:
        pr = cfg['probe'].split('_')
        cls, k = pr[0][0], int(pr[0][1:])
        a(f's_waitcnt lgkmcnt(0)\ns_cmp_ge_u32 s{S_W}, 4\ns_cbranch_scc{1 if cls == "s" else 0} L_end')
        if cls == 's':
            a('s_barrier\ns_barrier\ns_barrier')
        for f in pr[1:]:
            if f[0] == 'r':
                a(f's_cmp_eq_u32 s{S_ROLE}, {f[1:]}\ns_cbranch_scc0 L_end')
            else:
                a(f's_bitcmp1_b32 {f[1:]}, s{S_H}\ns_cbranch_scc0 L_end')
        a(f's_cmp_eq_u32 s{S_ST0 + 2 * k}, 0\ns_cbranch_scc1 L_end\ns_mov_b32 s{S_CNT}, 0')
        a(f'L_pw:\ns_memrealtime s[30:31]\ns_waitcnt lgkmcnt(0)\ns_sub_u32 s30, s30, s{S_ST0 + 2 * k}\ns_cmp_ge_u32 s30, 6000\ns_cbranch_scc1 L_end')
        a(f's_add_u32 s{S_CNT}, s{S_CNT}, 1\ns_cmp_lt_u32 s{S_CNT}, 100000\ns_cbranch_scc1 L_pw\ns_branch L_end')
    if cfg['stamps']:
        a('s_waitcnt lgkmcnt(0)\ns_mov_b64 exec, 1')
        a(f's_lshl_b32 s30, s2, 3\ns_add_u32 s30, s30, s{S_W}\ns_lshl_b32 s30, s30, 6\ns_add_u32 s30, s30, {WS_STAMP}\nv_mov_b32 v0, s30')
        for q in range(3):
            for k in range(4):
                a(f'v_mov_b32 v{4 + k + 4 * q}, s{S_ST0 + 2 * (4 * q + k)}')
            a(f'global_store_dwordx4 v0, {vr(4 + 4 * q, 4)}, {sr(P_WS, 2)} offset:{16 * q}')
        a(f'v_mov_b32 v16, s{S_CNT}\nglobal_store_dword v0, v16, {sr(P_WS, 2)} offset:48')
    a('L_end:\ns_endpgm')
    a('.section .rodata,"a"\n.p2align 6')
    a(f'.amdhsa_kernel {NAME}_kernel')
    a('.amdhsa_next_free_vgpr 256\n.amdhsa_next_free_sgpr 102\n.amdhsa_accum_offset 256\n.amdhsa_group_segment_fixed_size 0')
    a('.amdhsa_kernarg_size 112\n.amdhsa_user_sgpr_count 2\n.amdhsa_user_sgpr_kernarg_segment_ptr 1\n.amdhsa_system_sgpr_workgroup_id_x 1')
    a('.amdhsa_float_denorm_mode_32 3\n.end_amdhsa_kernel')
    if cfg['abl'] & 4:
        k = a.lines.index('L_chain:')
        a.lines = [l for i, l in enumerate(a.lines) if i > k or not l.startswith(('v_mfma', 'v_perm', 'v_add_f32_dpp', 'ds_read_b128'))]
    return head + a.text()


if __name__ == '__main__':
    kw = {}
    for x in sys.argv[2:]:
        k, v = x.split('=')
        kw[k] = int(v) if v.lstrip('-').isdigit() else v
    open(sys.argv[1], 'w').write(gen(**kw))
```

```python
import sys
from asmlib import Asm, vr, sr

NAME = 'adaLN_cond__sliding_block_cached__glu_gated_swiglu__decode'

WS_EPOCH = 0x0
WS_MOD = 0x1000
WS_Q = 0x300000
WS_ML = 0x40000
WS_CEN = 0x50000
WS_PRG = 0x52000
WS_PL = 0x280000
WS_X1 = 0x60000
WS_OP = 0x80000
WS_PA = 0x100000
WS_PF = 0x180000
WS_STAMP = 0x200000
WS_SIZE = 0x400000

F_Q, F_SC, F_P, F_KT, F_VT, F_S1, F_S2, F_S3, F_S4, F_MT = 0, 4, 8, 16, 20, 24, 28, 32, 36, 40
L_ST, L_ST2 = 0x100, 0x200
L_Q, L_P, L_SC, L_A, L_H, L_W = 0x400, 0x800, 0x1000, 0x2000, 0x3C00, 0x4000
BLK = 1152
BLS = 1088
L_X = L_W + 56 * BLK
L_PAR = L_X + 64 * 1024
LDS_BYTES = L_X + 80 * 1024

S_W, S_H, S_B, S_D, S_R = 3, 4, 5, 6, 7
SRD_A, SRD_B, SRD_WS, SRD_C = 8, 12, 16, 20
S_E, S_C, S_CNT, S_JJ, S_E8 = 28, 29, 33, 34, 35
S_XO, S_FAST, P_DBG = 71, 75, 64
P_X, P_K, P_V, P_WQ, P_WO, P_W1, P_W3, P_W2, P_C, P_WM, P_OUT, P_WS = 40, 42, 44, 46, 48, 52, 54, 56, 58, 60, 62, 66
S_ST0 = 76
SPIN_CAP = 400000
LOG2E = 0x3FB8AA3B

DEF = dict(seg=((0, 8, 3, 14),), cks=(16, 26, 36, 46, 56, 77, 87, 97, 107), thr=48, ktrig=60, mtrig=30, vsync=42, NL=16, dflag=6, dbar=8,
           prio=2, pref=1, wb=1, lnx=1, fast=1, stamps=0, probe='', abl=0, zsh=16, pwo=0, pwl=0, pra=0, km=None)
S_A, S_Bs, S_BASE, S_KB1, S_DST, S_ROLE = 68, 69, 70, 72, 73, 74


def gen(**kw):
    cfg = dict(DEF)
    cfg.update(kw)
    a = Asm()
    seg = cfg['seg']
    if isinstance(seg, str):
        seg = eval(seg)
    DV = seg[-1][1]
    KM = cfg['km'] or ([2, 1], [8, 16], [4, 32, 64, 128])
    lin = lambda cols, x: sum(c for k, c in enumerate(cols) if x >> k & 1) << 12
    WFL = 'nt'

    def stamp(k):
        if cfg['stamps']:
            a(f's_memrealtime {sr(S_ST0 + 2 * k, 2)}')

    def srd(d, p, size):
        a(f's_mov_b32 s{d}, s{p}\ns_mov_b32 s{d + 1}, s{p + 1}\ns_mov_b32 s{d + 2}, {size}\ns_mov_b32 s{d + 3}, 0x20000')

    def retry(lab):
        a(f's_add_u32 s{S_CNT}, s{S_CNT}, 1\ns_cmp_lt_u32 s{S_CNT}, {SPIN_CAP}\ns_cbranch_scc1 {lab}\ns_branch L_exit')

    def spin_lds(flag, n, t, two=False):
        top, done = a.lab('L_spin'), a.lab('L_got')
        a(f'{top}:\nv_mov_b32 v{t}, 0')
        if two:
            a(f'ds_read_b64 {vr(t, 2)}, v{t} offset:{flag}')
        else:
            a(f'ds_read_b32 v{t}, v{t} offset:{flag}')
        a(f's_waitcnt lgkmcnt(0)\nv_readfirstlane_b32 s31, v{t}\ns_cmp_ge_u32 s31, {n}\ns_cbranch_scc1 {done}')
        retry(top)
        a(f'{done}:')

    PEND = (8, 10, 12, 14, 42, 44, 46, 50)

    def poll(name, loads, tag8, between=None, last_lo=False, issued=False):
        top, chk, done = f'L_{name}poll', f'L_{name}chk', f'L_{name}got'
        for k, (r, ins) in enumerate([] if issued else loads):
            a(f's_mov_b32 exec_hi, 0\n{ins}\ns_mov_b32 exec_hi, -1' if last_lo and k == len(loads) - 1 else ins)
        if between:
            between()
        a(f's_branch {chk}\n{top}:')
        for k, (r, ins) in enumerate(loads):
            p = PEND[k]
            a(f's_quadmask_b64 {sr(p, 2)}, {sr(p, 2)}')
            a(f's_bitreplicate_b64_b32 {sr(p, 2)}, s{p}\ns_wqm_b32 s{p}, s{p}\ns_bitreplicate_b64_b32 exec, s{p}\n{ins}')
        a(f's_mov_b64 exec, -1\ns_add_u32 s{S_CNT}, s{S_CNT}, 1\ns_cmp_lt_u32 s{S_CNT}, {SPIN_CAP}\ns_cbranch_scc0 L_exit')
        a(f'{chk}:\ns_waitcnt vmcnt(0)')
        for k, (r, ins) in enumerate(loads):
            if tag8 == 2:
                a(f'v_xor_b32 v10, s56, v{r}')
                for j in range(1, 4):
                    a(f'v_bitop3_b32 v10, v10, v{r + j}, s{56 + j} bitop3:0xf6')
                a(f'v_and_b32 v10, 3, v10\nv_cmp_ne_u32_e64 {sr(PEND[k], 2)}, 0, v10')
            elif tag8:
                a(f'v_cmp_ne_u32_sdwa {sr(PEND[k], 2)}, v{r}, s{S_E8} src0_sel:BYTE_0 src1_sel:DWORD')
            else:
                a(f'v_cmp_ne_u32_e64 {sr(PEND[k], 2)}, s{S_E}, v{r}')
        a(f's_or_b64 vcc, {sr(PEND[0], 2)}, {sr(PEND[1], 2)}')
        for k in range(2, len(loads)):
            a(f's_or_b64 vcc, vcc, {sr(PEND[k], 2)}')
        a(f's_cbranch_scc1 {top}')
        if tag8 == 2:
            for r, ins in loads:
                for j in range(4):
                    a(f'v_and_b32 v{r + j}, -4, v{r + j}')
        elif tag8:
            for r, ins in loads:
                a(f'v_xor_b32 v{r}, s{S_E8}, v{r}')

    def census(t):
        a(f's_lshl_b32 s30, s{S_H}, 8\ns_add_u32 s30, s30, {WS_CEN}\nv_and_b32 v{t}, 31, v0\nv_lshlrev_b32 v{t}, 2, v{t}')
        a(f'buffer_load_dword v{t}, v{t}, {sr(SRD_WS, 4)}, s30 offen sc1')

    def census_done(t):
        a(f'v_cmp_eq_u32 vcc, s{S_XO}, v{t}\ns_bcnt1_i32_b32 s{S_FAST}, vcc_lo')

    def group_store(ins, cond=None):
        slow, done = a.lab('L_st'), a.lab('L_std')
        a(cond or f's_cmp_eq_u32 s{S_FAST}, {32 if cfg["fast"] else 99}')
        a(f's_cbranch_scc0 {slow}\n{ins}\ns_branch {done}\n{slow}:\n{ins} sc1\n{done}:')

    def pair_srd(p, w):
        a(f's_mov_b64 {sr(p, 2)}, {sr(P_WS, 2)}\ns_mov_b64 {sr(w, 2)}, {sr(P_WS, 2)}\ns_mov_b32 s{p + 3}, 0x20000\ns_mov_b32 s{w + 3}, 0x20000')
        a(f's_cmp_eq_u32 s{S_FAST}, {32 if cfg["fast"] else 99}\ns_cselect_b32 s{p + 2}, s{SRD_WS + 2}, 0\ns_cselect_b32 s{w + 2}, 0, s{SRD_WS + 2}')

    def pair_store(data, addr, soff, p, w):
        a(f'buffer_store_dwordx4 {vr(data, 4)}, v{addr}, {sr(p, 4)}, s{soff} offen\nbuffer_store_dwordx4 {vr(data, 4)}, v{addr}, {sr(w, 4)}, s{soff} offen sc1')

    def flag_add(flag, t, inc=1):
        a(f'v_mov_b32 v{t}, 0\nv_mov_b32 v{t + 1}, {inc}\ns_mov_b64 exec, 1\nds_add_u32 v{t}, v{t + 1} offset:{flag}\ns_mov_b64 exec, -1')

    def rnd(d, s):
        a(f'v_cvt_pk_bf16_f32 v{d}, 0, v{s}')

    def rows_allreduce(op, x, t):
        a(f'v_mov_b32 v{t}, v{x}\nv_permlane16_swap_b32 v{x}, v{t}\n{op} v{x}, v{x}, v{t}')
        a(f'v_mov_b32 v{t}, v{x}\nv_permlane32_swap_b32 v{x}, v{t}\n{op} v{x}, v{x}, v{t}')

    def dpp(op, d, s0, s1, ctl, rm=0xf, bm=0xf):
        a(f'{op}_dpp v{d}, v{s0}, v{s1} {ctl} row_mask:{rm:#x} bank_mask:{bm:#x}')

    hdr = open('cdna_kernels/' + NAME + '.s.ref').read().split('; Override launch')[0]
    head = hdr + f'; @launch grid=(256,1,1) block=(512,1,1) lds={LDS_BYTES}\n'
    a('.amdgcn_target "amdgcn-amd-amdhsa--gfx950"\n.text')
    a(f'.globl {NAME}_kernel\n.p2align 8\n.type {NAME}_kernel,@function\n{NAME}_kernel:')
    a('s_load_dwordx16 s[40:55], s[0:1], 0\ns_load_dwordx8 s[56:63], s[0:1], 64\ns_load_dwordx4 s[64:67], s[0:1], 96')
    stamp(0)
    a(f'v_lshrrev_b32 v1, 6, v0\ns_lshr_b32 s{S_B}, s2, 5\ns_cmp_ge_u32 s{S_B}, 8\ns_cbranch_scc1 L_end')
    a(f'v_readfirstlane_b32 s{S_W}, v1\nv_and_b32 v0, 63, v0')
    a(f's_and_b32 s{S_H}, s2, 7\ns_lshr_b32 s{S_R}, s2, 3\ns_and_b32 s{S_D}, s{S_R}, 3')
    a(f's_lshl_b32 s30, s{S_B}, 1\ns_lshr_b32 s{S_ROLE}, 0xcaa0, s30\ns_and_b32 s{S_ROLE}, s{S_ROLE}, 3')
    a(f's_and_b32 s30, s2, 0xe7\ns_cmpk_eq_u32 s30, 0xe0\ns_cselect_b32 s{S_ROLE}, 0, s{S_ROLE}')
    a(f's_cmp_lt_u32 s2, 42\ns_cselect_b32 s{S_ROLE}, 1, s{S_ROLE}')
    a(f's_cmp_ge_u32 s{S_W}, 4\ns_cbranch_scc1 L_chain')

    def common():
        if cfg['stamps']:
            for k in range(1, 12):
                if k != 9:
                    a(f's_mov_b64 {sr(S_ST0 + 2 * k, 2)}, 0')
        a(f's_mov_b32 s{S_CNT}, 0')

    def decode(vrow, vnt):
        a(f's_lshl2_add_u32 s{S_JJ}, s{S_H}, s{S_D}\ns_and_b32 s{S_C}, s{S_W}, 3')
        a(f's_and_b32 s31, s{S_R}, 7\ns_lshl3_add_u32 s30, s{S_H}, s31\ns_cmp_lt_u32 s2, 42\ns_cselect_b32 s30, s2, s30')
        a(f'v_bfe_u32 v{vrow}, v0, 1, 3')
        a(f'v_lshrrev_b32 v10, 4, v0\nv_and_b32 v11, 1, v0\nv_lshlrev_b32 v11, 4, v11\nv_lshl_or_b32 v{vnt}, v10, 5, v11')

    V_R8, V_NT, V_TR, V_AR, V_L16, V_XA, V_MA, V_DM = 1, 2, 3, 4, 5, 6, 7, 9

    def dma(srdn, nt, lds0, bar=-1, BLK=BLK, qout=None):
        a(f's_lshl_b32 s30, s{S_C}, 1\ns_mul_i32 s31, s30, {BLK}\ns_add_u32 m0, s31, {lds0}')
        a(f's_mul_i32 s30, s30, s{S_A}\ns_add_u32 s30, s30, s{S_BASE}\ns_add_u32 s31, s30, s{S_A}')
        for t in range(nt):
            for u in range(2):
                k = 2 * t + u
                if k == bar:
                    a('s_barrier')
                if k == 8 and qout:
                    a(f's_cmp_eq_u32 s{S_ROLE}, 2\ns_cbranch_scc1 {qout}')
                a(f'buffer_load_dwordx4 v{V_DM}, {sr(srdn, 4)}, s{30 + u} offen {WFL} lds')
                if k < 2 * nt - 1:
                    a(f's_addk_i32 m0, {BLK if u == 0 else 7 * BLK}\ns_add_u32 s{30 + u}, s{30 + u}, s{S_Bs}')

    QA, QD, SC = 8, 24, 4
    RING = 32
    slot = lambda k: RING + 4 * k
    NL = cfg['NL']
    NSYNC = 56 + NL
    ACC = slot(0)
    parked = lambda n: 4 <= n < 4 + NL
    kslot = lambda n: slot((n - 4) % 8) if parked(n) else slot(n if n < 4 else n - NL)
    vidx = lambda i: 8 + (56 - NL + i) % 48
    vslot = lambda i: slot(vidx(i))
    S_LX = 27
    assert 8 <= NL <= 16
    if cfg['abl'] & 1024:
        a('v_and_b32 v4, 7, v0\nv_lshrrev_b32 v5, 3, v0\nv_lshlrev_b32 v4, 4, v4\nv_lshl_or_b32 v1, v5, 9, v4')
    else:
        a('v_and_b32 v4, 7, v0\nv_and_b32 v5, 48, v0\nv_lshl_or_b32 v1, v4, 9, v5\nv_and_b32 v5, 8, v0\nv_lshl_or_b32 v1, v5, 3, v1')
    a(f's_lshl3_add_u32 s32, s{S_B}, s{S_H}\ns_lshl2_add_u32 s32, s32, 3\ns_lshl_b32 s32, s32, 20')
    if cfg['km']:
        tab = lambda c: sum((lin(c, x) >> 12) << (8 * x) for x in range(4))
        a(f's_lshl_b32 s31, s{S_D}, 3\ns_lshr_b32 s37, {tab(KM[1])}, s31\ns_lshl_b32 s31, s{S_W}, 3\ns_lshr_b32 s36, {tab(KM[0])}, s31')
        a('s_or_b32 s36, s36, s37\ns_lshl_b32 s36, s36, 24\ns_lshr_b32 s36, s36, 12\ns_lshl_b32 s37, s37, 24\ns_lshr_b32 s37, s37, 12')
    else:
        a(f's_lshl_b32 s37, s{S_D}, 15\ns_brev_b32 s31, s{S_W}\ns_lshr_b32 s31, s31, 18\ns_or_b32 s36, s37, s31')
    a(f's_mov_b32 s{SRD_A + 2}, 0x100000\ns_mov_b32 s{SRD_A + 3}, 0x20000')
    a(f's_bitcmp1_b32 14, s{S_ROLE}\ns_cselect_b64 vcc, -1, 0')
    a('s_cbranch_scc1 L_role\nL_k0:')
    a('s_waitcnt lgkmcnt(0)')
    a(f's_add_u32 s{SRD_A}, s{P_K}, s32\ns_addc_u32 s{SRD_A + 1}, s{P_K + 1}, 0')
    stamp(9)

    def stream_setup():
        a('s_branch L_k4\nL_role:')
        decode(6, 7)
        a(f's_movk_i32 s26, 896\ns_mov_b32 s{SRD_C + 2}, 1605632\ns_and_b32 s31, s{S_B}, 4\ns_lshl_b32 s31, s31, 12\ns_add_u32 s30, s30, s31\ns_sub_u32 s31, s{S_JJ}, 4\ns_mulk_i32 s31, 448\ns_waitcnt lgkmcnt(0)')
        a(f's_cmp_eq_u32 s{S_ROLE}, 1\ns_cmovk_i32 s26, 5376\ns_cmov_b32 s{SRD_C + 2}, 2408448\ns_cselect_b64 {sr(SRD_C, 2)}, {sr(P_WM, 2)}, {sr(P_W2, 2)}')
        a(f's_cmp_eq_u32 s{S_ROLE}, 2\ns_cmovk_i32 s26, 8192\ns_cmov_b32 s{SRD_C + 2}, 3670016\ns_cselect_b64 {sr(SRD_C, 2)}, {sr(P_WQ, 2)}, {sr(SRD_C, 2)}')
        a(f's_lshl_b32 s{S_A}, s26, 3\ns_lshl_b32 s{S_Bs}, s26, 6')
        a(f's_cmp_eq_u32 s{S_ROLE}, 3\ns_cmovk_i32 s{S_Bs}, 128\ns_cselect_b32 s30, s31, s30\ns_lshl_b32 s{S_BASE}, s30, 7')
        a(f's_mov_b32 s{SRD_C + 3}, 0x20000')
        a(f'v_mad_u32_u24 v{V_DM}, v6, s26, v7')
        if cfg['abl'] & 2:
            a('s_barrier')
        else:
            dma(SRD_C, 7, L_W, bar=cfg['dbar'], qout='L_k0')
        a('s_branch L_k0\nL_k4:')
        common()
        a(f's_lshl_b32 s{S_LX}, s{S_W}, 14\ns_add_u32 s{S_LX}, s{S_LX}, {L_X}')

    vdone = 0
    g0 = NL // 4
    regg = [0] + list(range(g0 + 1, 16))
    korder = [regg[2], regg[0], regg[1]]
    rest = regg[3:]
    for p in range(1, g0 + 1, 2):
        korder += [('rd', p)] + rest[:1] + [g for g in (p, p + 1) if g <= g0]
        rest = rest[1:]
    korder += rest
    kdone = set()
    qn = [0]

    def qk_post(gi, d):
        t, u = gi >> 2, gi & 3
        dpp('v_add_f32', SC + u, d + 1, d, 'row_ror:8', 1 << t, 0x3)
        dpp('v_add_f32', SC + u, d + 2, d + 3, 'row_ror:8', 1 << t, 0xc)

    def qk_some(landed, maxn):
        prev = None
        while korder and maxn:
            g = korder[0]
            if isinstance(g, tuple):
                for n in range(4 * g[1], min(4 * g[1] + 8, NL + 4)):
                    a(f'ds_read_b128 {vr(kslot(n), 4)}, v3 offset:{1024 * (n - 4)}')
                korder.pop(0)
                continue
            if 4 * g + 3 > landed:
                break
            korder.pop(0)
            maxn -= 1
            if parked(4 * g) and g % 2 == 1:
                a('s_waitcnt lgkmcnt(0)')
            d = QD + 4 * (qn[0] & 1)
            qn[0] += 1
            for j in range(4):
                a(f'v_mfma_f32_16x16x32_bf16 {vr(d, 4)}, {vr(QA + 4 * j, 4)}, {vr(kslot(4 * g + j), 4)}, {vr(d, 4) if j else 0}')
            if prev:
                qk_post(*prev)
            prev = (g, d)
            kdone.add(g)
        if prev:
            qk_post(*prev)
            if len(kdone) == 16:
                a(f's_lshl_b32 s31, s{S_W}, 10\nv_lshl_add_u32 v3, v0, 4, s31\nds_write_b128 v3, {vr(SC, 4)} offset:{L_SC}\ns_waitcnt lgkmcnt(0)')
                flag_add(F_SC, 4)
                stamp(3)

    def perms(dst_of, e0, G, r):
        lo, hi = vslot(8 * G + e0) + r, vslot(8 * G + e0 + 1) + r
        a(f'v_perm_b32 v{dst_of(2 * r) + e0 // 2}, v{hi}, v{lo}, s38')
        a(f'v_perm_b32 v{dst_of(2 * r + 1) + e0 // 2}, v{hi}, v{lo}, s39')

    def pv_mfma(G, j, b):
        a(f'v_mfma_f32_16x16x32_bf16 {vr(ACC + 4 * j, 4)}, {vr(QD + 4 * (G & 1), 4)}, {vr(b, 4)}, {vr(ACC + 4 * j, 4) if G else 0}')

    def pv_group(G):
        a('s_waitcnt lgkmcnt(0)')
        a(f'ds_read_b128 {vr(QD + 4 * ((G + 1) & 1), 4)}, v3 offset:{L_P + 256 * (G + 1)}')
        tmp = lambda j: QA + 4 * (j & 3)
        for r in range(4):
            for e0 in (0, 2, 4, 6):
                perms(tmp, e0, G, r)
            if r:
                pv_mfma(G, 2 * r - 1, tmp(2 * r - 1))
            pv_mfma(G, 2 * r, tmp(2 * r))
        pv_mfma(G, 7, tmp(7))

    def op_addr(d, t):
        a(f'v_and_b32 v{d}, 7, v0\nv_lshlrev_b32 v{d}, 4, v{d}\nv_and_b32 v{t}, 8, v0\nv_lshl_or_b32 v{d}, v{t}, 5, v{d}\nv_and_b32 v{t}, 16, v0\nv_lshl_or_b32 v{d}, v{t}, 3, v{d}')
        a(f'v_and_b32 v{t}, 32, v0\nv_lshl_or_b32 v{d}, v{t}, 25, v{d}')

    cks = cfg['cks']
    if isinstance(cks, str):
        cks = eval(cks)
    NPW = 64 + cfg['vsync'] + 2
    xops = [m for m in cks for _ in range(2)] + ([NPW] if cfg['pwo'] else [])
    extra = lambda after, n: sum(1 for m in xops if after <= m < n)
    pend = None
    for n in range(128):
        isk = n < 64
        n0, d, lite, rmask = [x for x in seg if x[0] <= n][-1]
        if n == 4:
            stream_setup()
        if n == n0 and n and rmask >= 0:
            a(f's_bitcmp1_b32 {rmask}, s{S_ROLE}\ns_cselect_b64 vcc, -1, 0')
        if n == 5:
            a('s_cbranch_vccnz L_nb\ns_barrier\nL_nb:')
        if n >= d:
            a(f's_waitcnt vmcnt({d - 1 + extra(n - d, n)})')
        if pend is not None and n - d > cks[pend]:
            k = pend + 1
            a(f's_add_u32 s60, s58, {k}\nv_subrev_u32 v7, s60, v7\nv_cmp_gt_u32 vcc, {16 - k}, v7')
            a('s_bcnt1_i32_b64 s60, vcc\ns_cmp_ge_u32 s60, s59\ns_cselect_b64 vcc, -1, 0')
            pend = None
        if lite and n >= d - lite:
            skip = a.lab('L_dp')
            a(f's_cbranch_vccnz {skip}\ns_waitcnt vmcnt({d - 1 - lite + extra(n - d + lite, n)})\n{skip}:')
        landed = n - d
        if n == d - lite:
            stamp(10)
        if n == 2 * (d - lite):
            stamp(11)
        if n == 120:
            a('s_setprio 3')
        if n == cfg['dflag']:
            assert seg[0][3] == 14 and n >= 5
            skip = a.lab('L_df')
            a(f's_cbranch_vccz {skip}\ns_waitcnt vmcnt({cfg["dflag"]})\n{skip}:')
            flag_add(F_S1, 4)
        if n == NSYNC:
            stamp(1)
            if not cfg['abl'] & 9:
                spin_lds(F_Q, 1, 4)
            stamp(2)
            a('v_lshrrev_b32 v4, 1, v0\nv_and_b32 v4, 1, v4\nv_and_b32 v5, 1, v0\nv_lshrrev_b32 v6, 4, v0\nv_lshlrev_b32 v6, 4, v6')
            a('v_lshl_or_b32 v6, v5, 6, v6\nv_lshl_or_b32 v3, v4, 9, v6')
            for j in range(4):
                a(f'ds_read_b128 {vr(QA + 4 * j, 4)}, v3 offset:{L_Q + 128 * j}')
            a(f'v_lshl_add_u32 v3, v0, 4, s{S_LX}')
            a('s_waitcnt lgkmcnt(0)')
            qk_some(landed, 1 if NL >= 8 else 2)
        if isk:
            if n >= NSYNC:
                assert (n - 56) // 4 in kdone
            if n and n % 4 == 0:
                a(f's_xor_b32 s36, s36, {lin(KM[2], n >> 2) ^ lin(KM[2], (n >> 2) - 1)}')
            if parked(n):
                a(f's_add_u32 m0, s{S_LX}, {1024 * (n - 4) - 128 * (n & 3)}')
                a(f'buffer_load_dwordx4 v1, {sr(SRD_A, 4)}, s36 offen offset:{128 * (n & 3)} nt lds')
            else:
                a(f'buffer_load_dwordx4 {vr(kslot(n), 4)}, v1, {sr(SRD_A, 4)}, s36 offen offset:{128 * (n & 3)} nt')
        else:
            i = n - 64
            if i < 48:
                kn = vidx(i) + NL
                assert kn >= 64 or kn // 4 in kdone, (i, kdone)
            else:
                assert vdone > (i - 48) // 8
            a(f's_add_u32 s30, s37, {lin(KM[2], i >> 2) + lin(KM[0], i & 3)}')
            a(f'buffer_load_dwordx4 {vr(vslot(i), 4)}, v2, {sr(SRD_B, 4)}, s30 offen nt')
        if n == 8:
            a(f'v_and_b32 v4, 7, v0\nv_lshrrev_b32 v5, 3, v0\nv_lshlrev_b32 v4, 4, v4\nv_lshl_or_b32 v2, v5, 9, v4')
            a(f's_lshl_b32 s31, s{S_W}, 7\ns_or_b32 s37, s37, s31')
            a(f's_add_u32 s{SRD_B}, s{P_V}, s32\ns_addc_u32 s{SRD_B + 1}, s{P_V + 1}, 0\ns_mov_b32 s{SRD_B + 2}, 0x100000\ns_mov_b32 s{SRD_B + 3}, 0x20000')
            srd(SRD_WS, P_WS, WS_SIZE)
            a('s_mov_b32 s38, 0x05040100\ns_mov_b32 s39, 0x07060302')
            if cks:
                a(f's_load_dword s58, {sr(P_WS, 2)}, 0')
                a(f's_and_b32 s57, s{S_R}, 1\ns_lshl1_add_u32 s56, s{S_H}, s57\ns_lshl_b32 s56, s56, 9\ns_add_u32 s56, s56, {WS_PRG}\ns_lshr_b32 s57, s{S_R}, 1')
                a(f's_lshl2_add_u32 s57, s57, s{S_W}\ns_lshl1_add_u32 s57, s57, s56')
                a('s_xor_b32 s56, s56, 512')
                a(f's_cmp_eq_u32 s{S_ROLE}, 3\ns_cselect_b32 s59, 0, {cfg["thr"]}')
        if n in cks:
            assert pend is None and not (NSYNC - d - 1 <= n <= NSYNC + 4) and n + d + 1 < 128 and n > 8
            pend = cks.index(n)
            if pend == 0:
                a('s_waitcnt lgkmcnt(0)\ns_add_u32 s58, s58, 1\ns_lshl_b32 s58, s58, 4\ns_and_b32 s58, s58, 0xffff')
            a(f'v_lshlrev_b32 v7, 1, v0\ns_add_u32 s60, s58, {pend + 1}\nv_mov_b32 v4, s60')
            a(f'buffer_load_ushort v7, v7, {sr(SRD_WS, 4)}, s56 offen sc1')
            a(f's_mov_b64 exec, 1\nbuffer_store_short v4, off, {sr(SRD_WS, 4)}, s57\ns_mov_b64 exec, -1')
        if n == cfg['ktrig']:
            assert n < NSYNC
            flag_add(F_KT, 4)
        if n == cfg['mtrig']:
            flag_add(F_MT, 4)
        if n == NPW:
            assert n < 112
            a(f's_lshl2_add_u32 s32, s{S_H}, s{S_W}\ns_lshl2_add_u32 s32, s32, s{S_D}\ns_lshl3_add_u32 s32, s32, s{S_B}\ns_lshl_b32 s32, s32, 9\ns_add_u32 s32, s32, {WS_OP}')
            pair_srd(8, 40)
            if cfg['pwo']:
                op_addr(1, 5)
                a(f's_sub_u32 s31, s{S_E}, 1\nv_mov_b32 v4, s31\nbuffer_store_dwordx4 v[4:7], v1, s[8:11], s32 offen')
        if n == 112:
            a(f's_lshl3_add_u32 s30, s{S_H}, s{S_D}\ns_mul_i32 s30, s30, 448\ns_add_u32 s30, s30, s{S_B}\ns_lshl2_add_u32 s31, s{S_H}, s{S_D}\ns_sub_u32 s31, s31, 4')
            a(f's_movk_i32 s26, 896\ns_movk_i32 s25, {BLK}\ns_mov_b32 s{SRD_C + 2}, 3670016\ns_mov_b32 s{SRD_C + 3}, 0x20000')
            a(f's_cmp_eq_u32 s{S_ROLE}, 3\ns_cmovk_i32 s26, 3584\ns_cmovk_i32 s25, {BLS}\ns_cmov_b32 s{SRD_C + 2}, 1605632')
            a(f's_cselect_b64 {sr(SRD_C, 2)}, {sr(P_W1, 2)}, {sr(P_WO, 2)}\ns_cselect_b32 s30, s31, s30\ns_lshl_b32 s30, s30, 7')
            a(f's_lshl_b32 s31, s{S_W}, 4\ns_mul_i32 s31, s31, s26\ns_add_u32 s{S_A}, s30, s31\ns_lshl3_add_u32 s{S_Bs}, s26, s{S_A}')
            a(f's_add_u32 s{S_BASE}, s{S_A}, 229376\ns_add_u32 s{S_XO}, s{S_Bs}, 229376')
            a(f's_lshl_b32 s31, s{S_W}, 1\ns_mul_i32 s31, s31, s25\ns_add_u32 m0, s31, {L_W}\ns_mul_i32 s24, s25, 7')
            a('v_bfe_u32 v4, v0, 1, 3\nv_and_b32 v5, 48, v0\nv_and_b32 v6, 1, v0\nv_lshlrev_b32 v5, 1, v5\nv_lshl_or_b32 v5, v6, 4, v5\nv_mad_u32_u24 v1, v4, s26, v5')
        if n == 127:
            for k, so in enumerate((S_A, S_Bs, S_BASE, S_XO)):
                if cfg['abl'] & 512:
                    a(f's_mov_b32 s{SRD_C + 2}, 0')
                a(f'buffer_load_dwordx4 v1, {sr(SRD_C, 4)}, s{so} offen nt lds')
                if k < 3:
                    a(f's_add_u32 m0, m0, s{24 if k == 1 else 25}')
        if n >= NSYNC and korder:
            qk_some(landed, 4)
        if n == 64 + cfg['vsync']:
            assert len(kdone) == 16
            stamp(4)
            if not cfg['abl'] & 9:
                spin_lds(F_P, 1, 4, two=True)
            stamp(5)
            a(f'v_readfirstlane_b32 s{S_E}, v5\ns_sub_u32 s{S_FAST}, s31, 1')
            a('v_lshrrev_b32 v4, 1, v0\nv_and_b32 v4, 1, v4\nv_and_b32 v5, 1, v0\nv_lshrrev_b32 v6, 4, v0\nv_lshlrev_b32 v6, 5, v6')
            a('v_lshl_or_b32 v6, v5, 4, v6\nv_lshl_or_b32 v3, v4, 7, v6')
            a(f'ds_read_b128 {vr(QD, 4)}, v3 offset:{L_P}')
        if n >= 64 + cfg['vsync'] and vdone < 7 and 64 + 8 * vdone + 7 <= landed:
            pv_group(vdone)
            vdone += 1
    assert vdone == 7, vdone
    op_addr(8, 9)
    a(f's_movk_i32 s31, 0xff\nv_mov_b32 v9, s{S_E}')
    big = lambda j: vslot(24 + j)
    for pr in range(4):
        if 6 - 2 * pr < DV:
            a(f's_waitcnt vmcnt({10 - 2 * pr})')
        if pr < 3:
            for r in range(4):
                perms(big, 2 * pr, 7, r)
    stamp(6)
    a('s_waitcnt lgkmcnt(0)')

    def pv_post(j):
        d = ACC + 4 * j
        dpp('v_add_f32', 4 + (j & 3), d + 1, d, 'row_ror:8', 1 << (j >> 2), 0x3)
        dpp('v_add_f32', 4 + (j & 3), d + 2, d + 3, 'row_ror:8', 1 << (j >> 2), 0xc)
    perms(big, 6, 7, 0)
    perms(big, 6, 7, 1)
    pv_mfma(7, 0, big(0))
    perms(big, 6, 7, 2)
    pv_mfma(7, 1, big(1))
    perms(big, 6, 7, 3)
    for j in range(2, 8):
        pv_mfma(7, j, big(j))
        if j >= 4:
            pv_post(j - 4)
    for j in range(4, 8):
        pv_post(j)
    a('v_bfi_b32 v4, s31, v9, v4')
    pair_store(4, 8, 32, 8, 40)
    if not cfg['abl'] & 17:
        a(f's_cmp_eq_u32 s{S_ROLE}, 3\ns_cbranch_scc1 L_fs')
    a('s_waitcnt vmcnt(2)\ns_barrier')
    stamp(7)
    a('s_barrier\ns_branch L_exit')
    a('L_fs:\ns_barrier')
    stamp(7)
    a('s_waitcnt vmcnt(0)')
    flag_add(F_S2, 12)
    a(f's_cmp_lt_u32 s{S_W}, 3\ns_cbranch_scc1 L_fhelp')
    a('s_branch L_exit')

    W56, W112, T0 = 88, 144, 12
    MASK8 = 's[36:37]'

    def trread(dst, nops, vaddr):
        for s in range(nops):
            for rp in range(2):
                a(f'ds_read_b64_tr_b16 {vr(dst + 4 * s + 2 * rp, 2)}, v{vaddr} offset:{s * 4 * BLK + rp * 128}')

    a('L_chain:')
    if cfg['prio']:
        a(f's_setprio {cfg["prio"]}')
    a('v_mov_b32 v4, 0\nv_mov_b32 v5, 0\nv_mov_b32 v6, 0\nv_mov_b32 v7, 0\nv_lshlrev_b32 v8, 4, v0\nds_write_b128 v8, v[4:7]')
    common()
    if cfg['stamps']:
        a(f's_mov_b64 {sr(S_ST0 + 18, 2)}, 0')
    decode(V_R8, V_NT)
    a(f'v_lshlrev_b32 v{V_L16}, 4, v0')
    a(f'v_and_b32 v11, 7, v0\nv_lshrrev_b32 v12, 3, v0\nv_lshlrev_b32 v13, 4, v11')
    a(f'v_mul_u32_u24 v{V_XA}, 896, v11\nv_lshl_add_u32 v{V_XA}, v12, 4, v{V_XA}\nv_lshl_or_b32 v{V_MA}, v12, 8, v13')
    a(f'v_lshl_or_b32 v{V_AR}, v10, 7, v13')
    a(f's_add_u32 s{S_KB1}, s{S_C}, 4\ns_min_u32 s{S_KB1}, s{S_KB1}, 6')
    a(f's_and_b32 s31, s{S_B}, 4\ns_lshl_b32 s31, s31, 15\ns_add_u32 s31, s31, {WS_Q}\ns_cmp_eq_u32 s{S_ROLE}, 1\ns_cselect_b32 s31, {WS_MOD}, s31\ns_lshl_b32 s{S_DST}, s30, 11\ns_add_u32 s{S_DST}, s{S_DST}, s31')
    a(f's_lshl_b32 s31, s{S_C}, 9\ns_add_u32 s{S_DST}, s{S_DST}, s31')
    a(f's_lshl_b32 s30, s{S_C}, 7\ns_lshl_b32 s31, s{S_KB1}, 7\nv_mov_b32 v13, 0')
    a(f's_mov_b32 s{SRD_C + 2}, 7168\ns_mov_b32 s{SRD_C + 3}, 0x20000')
    a('s_waitcnt lgkmcnt(0)\ns_barrier')
    if cfg['abl'] & 1:
        a('s_branch L_exit')
    srd(SRD_WS, P_WS, WS_SIZE)
    a(f's_cmp_eq_u32 s{S_ROLE}, 1\ns_cselect_b64 {sr(SRD_C, 2)}, {sr(P_C, 2)}, {sr(P_X, 2)}')
    epoch = f's_load_dword s{S_E}, {sr(P_WS, 2)}, 0'
    if cfg['pref']:
        skip = a.lab('L_np')
        a(f's_cmp_eq_u32 s{S_R}, 6\ns_cbranch_scc0 {skip}')
        a('s_getpc_b64 s[24:25]\nL_pc0:')
        a(f's_sub_u32 s24, s24, L_pc0-{NAME}_kernel\ns_subb_u32 s25, s25, 0')
        a(f's_lshl_b32 s26, s{S_C}, 13\nv_lshl_add_u32 v12, v0, 7, s26\nv_min_u32 v12, L_end-{NAME}_kernel, v12')
        a('global_load_dword v15, v12, s[24:25]')
        a(f'{skip}:')
    a(epoch)
    a('s_cmp_ge_u32 s2, 14\ns_cbranch_scc0 L_xl')
    spin_lds(F_S1, 4, 14)
    a('L_xl:')
    a(f's_lshl_b32 s26, s{S_KB1}, 7\ns_bitcmp1_b32 6, s{S_ROLE}\ns_cbranch_scc0 L_c0')
    a(f'buffer_load_dwordx4 v[228:231], v{V_XA}, {sr(SRD_C, 4)}, s30 offen')
    a(f'buffer_load_dwordx4 v[232:235], v{V_XA}, {sr(SRD_C, 4)}, s26 offen')
    a('L_c0:')
    a(f'v_mul_u32_u24 v{V_TR}, {BLK}, v10\nv_and_b32 v13, 15, v0\nv_lshl_add_u32 v{V_TR}, v13, 3, v{V_TR}')
    a(f's_lshl_b32 s26, s{S_C}, 8\ns_add_u32 s26, s26, {L_W}\nv_add_u32 v{V_TR}, s26, v{V_TR}')
    a('s_mov_b32 s36, 0x00ff00ff\ns_mov_b32 s37, 0x00ff00ff\nv_mov_b32 v85, 0')
    a('s_waitcnt vmcnt(0) lgkmcnt(0)')
    a(f's_add_u32 s{S_E}, s{S_E}, 1\ns_and_b32 s{S_E8}, s{S_E}, 0xff')
    a(f's_mov_b32 s56, s{S_E}\ns_lshr_b32 s57, s{S_E}, 2\ns_lshr_b32 s58, s{S_E}, 4\ns_lshr_b32 s59, s{S_E}, 6')
    a(f's_getreg_b32 s{S_XO}, hwreg(HW_REG_XCC_ID, 0, 3)\ns_lshl_b32 s{S_XO}, s{S_XO}, 29\ns_and_b32 s30, s{S_E}, 0x1fffffff\ns_or_b32 s{S_XO}, s{S_XO}, s30')
    a(f's_cmp_eq_u32 s{S_C}, 1\ns_cbranch_scc0 L_c1')
    a(f's_lshl_b32 s30, s{S_H}, 8\ns_lshl_b32 s31, s{S_R}, 2\ns_add_u32 s30, s30, s31\ns_add_u32 s30, s30, {WS_CEN}')
    a(f'v_mov_b32 v12, 0\nv_mov_b32 v14, s{S_XO}\ns_mov_b64 exec, 1\nbuffer_store_dword v14, v12, {sr(SRD_WS, 4)}, s30 offen\ns_mov_b64 exec, -1')
    a('L_c1:')
    a(f's_cmp_eq_u32 s{S_ROLE}, 0\ns_cbranch_scc1 L_mid')
    a(f's_cmp_eq_u32 s{S_ROLE}, 3\ns_cbranch_scc1 L_gemm0')
    for k in range(8):
        a(f'v_lshlrev_b32 v{12 + 2 * k}, 16, v{228 + k}\nv_and_b32 v{13 + 2 * k}, 0xffff0000, v{228 + k}')
    a(f's_cmp_eq_u32 s{S_ROLE}, 2\ns_cbranch_scc1 L_actQ')
    a(f's_mov_b32 s26, {LOG2E | 0x80000000:#x}')
    for k in range(16):
        a(f'v_mul_f32 v{28 + k}, s26, v{12 + k}')
    for k in range(16):
        a(f'v_exp_f32 v{28 + k}, v{28 + k}')
    for k in range(16):
        a(f'v_add_f32 v{28 + k}, 1.0, v{28 + k}')
    a('s_mov_b32 s27, 0x7f7fffff')
    for k in range(16):
        a(f'v_min_f32 v{28 + k}, s27, v{28 + k}')
    for k in range(16):
        a(f'v_rcp_f32 v{44 + k}, v{28 + k}')
    for k in range(0, 16, 2):
        a(f'v_pk_mul_f32 {vr(60 + k, 2)}, {vr(12 + k, 2)}, {vr(44 + k, 2)}')
    for k in range(0, 16, 2):
        a(f'v_pk_fma_f32 {vr(12 + k, 2)}, {vr(60 + k, 2)}, {vr(28 + k, 2)}, {vr(12 + k, 2)} neg_lo:[1,0,0] neg_hi:[1,0,0]')
    for k in range(0, 16, 2):
        a(f'v_pk_fma_f32 {vr(12 + k, 2)}, {vr(12 + k, 2)}, {vr(44 + k, 2)}, {vr(60 + k, 2)}')
    a('s_branch L_actW')

    def ln_scalars(mean, var, t):
        rnd(mean, mean)
        rnd(var, var)
        a(f'v_add_f32 v{var}, 0x3727c5ac, v{var}')
        rnd(var, var)
        a(f'v_sqrt_f32 v{var}, v{var}')
        rnd(t, var)
        a(f'v_rcp_f32 v{var}, v{t}')

    def ln_norm(x, n, mean2, rs2, exact=None):
        for k in range(0, n, 2):
            a(f'v_pk_add_f32 {vr(x + k, 2)}, {vr(x + k, 2)}, {vr(mean2, 2)} op_sel_hi:[1,0] neg_lo:[0,1] neg_hi:[0,1]')
        for k in range(n):
            rnd(x + k, x + k)
        for k in range(0, n, 2):
            a(f'v_pk_mul_f32 {vr((exact or x) + k, 2)}, {vr(x + k, 2)}, {vr(rs2, 2)} op_sel_hi:[1,0]')
        if exact:
            for k in range(0, n, 2):
                a(f'v_pk_fma_f32 {vr(x + k, 2)}, {vr(exact + k, 2)}, {vr(rs2, 2)}, {vr(x + k, 2)} op_sel:[0,1,0] op_sel_hi:[1,1,1] neg_lo:[1,0,0] neg_hi:[1,0,0]')
            for k in range(0, n, 2):
                a(f'v_pk_fma_f32 {vr(x + k, 2)}, {vr(x + k, 2)}, {vr(rs2, 2)}, {vr(exact + k, 2)} op_sel_hi:[1,0,1]')
        for k in range(n):
            rnd(x + k, x + k)

    def ln_mod(x, n, c1, sh):
        for k in range(0, n, 2):
            a(f'v_pk_mul_f32 {vr(x + k, 2)}, {vr(x + k, 2)}, {vr(c1 + k, 2)}')
        for k in range(n):
            rnd(x + k, x + k)
        for k in range(0, n, 2):
            a(f'v_pk_add_f32 {vr(x + k, 2)}, {vr(x + k, 2)}, {vr(sh + k, 2)}')

    def mod_params(blk_shift, blk_scale, sh, c1, raw, kbs):
        nb = len(kbs)
        for q, base in enumerate((blk_shift, blk_scale)):
            for j, kb in enumerate(kbs):
                a(f's_lshl_b32 s{24 + nb * q + j}, s{kb}, 11\ns_add_u32 s{24 + nb * q + j}, s{24 + nb * q + j}, {WS_MOD + base * 2048}')
        poll(a.lab('m'), [(raw + 8 * q + 4 * h, f'buffer_load_dwordx3 {vr(raw + 8 * q + 4 * h, 3)}, v{V_MA}, {sr(SRD_WS, 4)}, s{24 + q} offen offset:{128 * h} sc1')
                          for q in range(2 * nb) for h in range(2)], False)
        for k in range(2 * nb):
            for dw in range(2):
                a(f'v_lshlrev_b32 v{sh + 4 * k + 2 * dw}, 16, v{raw + 4 * k + 1 + dw}\nv_and_b32 v{sh + 4 * k + 2 * dw + 1}, 0xffff0000, v{raw + 4 * k + 1 + dw}')
                a(f'v_lshlrev_b32 v{c1 + 4 * k + 2 * dw}, 16, v{raw + 8 * nb + 4 * k + 1 + dw}\nv_and_b32 v{c1 + 4 * k + 2 * dw + 1}, 0xffff0000, v{raw + 8 * nb + 4 * k + 1 + dw}')
        for k in range(8 * nb):
            a(f'v_add_f32 v{c1 + k}, 1.0, v{c1 + k}')
        for k in range(8 * nb):
            rnd(c1 + k, c1 + k)

    def write_act(x):
        for k in range(8):
            a(f'v_cvt_pk_bf16_f32 v{x + k}, v{x + 2 * k}, v{x + 2 * k + 1}')
        a(f's_lshl_b32 s30, s{S_C}, 10\ns_lshl_b32 s31, s{S_KB1}, 10\nv_add_u32 v10, s30, v{V_L16}\nv_add_u32 v11, s31, v{V_L16}')
        a(f'ds_write_b128 v10, {vr(x, 4)} offset:{L_A}\nds_write_b128 v11, {vr(x + 4, 4)} offset:{L_A}')

    def stats_setup():
        a(f'v_lshrrev_b32 v47, 5, v0\nv_and_b32 v45, 0x70, v{V_AR}\nv_lshl_or_b32 v47, v47, 7, v45\ns_lshl_b32 s30, s{S_C}, 2\nv_add_u32 v47, s30, v47')
        a(f's_cmp_eq_u32 s{S_C}, 3\ns_cselect_b32 s30, 0, 1.0\nv_mov_b32 v44, s30')

    def stats_local():
        for q in range(2):
            x, p = 12 + 8 * q, 28 + 6 * q
            a(f'v_pk_add_f32 {vr(p, 2)}, {vr(x, 2)}, {vr(x + 2, 2)}\nv_pk_mul_f32 {vr(p + 2, 2)}, {vr(x, 2)}, {vr(x, 2)}\nv_pk_add_f32 {vr(p + 4, 2)}, {vr(x + 4, 2)}, {vr(x + 6, 2)}')
        for k in (2, 4, 6):
            for q in range(2):
                x, p = 12 + 8 * q, 28 + 6 * q
                a(f'v_pk_fma_f32 {vr(p + 2, 2)}, {vr(x + k, 2)}, {vr(x + k, 2)}, {vr(p + 2, 2)}')
                if k == 2:
                    a(f'v_pk_add_f32 {vr(p, 2)}, {vr(p, 2)}, {vr(p + 4, 2)}')
        a('v_pk_fma_f32 v[28:29], v[34:35], v[44:45], v[28:29] op_sel_hi:[1,0,1]\nv_pk_fma_f32 v[30:31], v[36:37], v[44:45], v[30:31] op_sel_hi:[1,0,1]')
        a('v_add_f32 v28, v28, v29\nv_add_f32 v30, v30, v31')
        a('v_permlane32_swap_b32 v28, v30\nv_add_f32 v28, v28, v30')
        a('v_mov_b32 v30, v28\nv_permlane16_swap_b32 v28, v30\nv_add_f32 v28, v28, v30')
        dpp('v_add_f32', 28, 28, 28, 'row_ror:8')
        a(f'ds_write_b32 v47, v28 offset:{L_ST}\ns_waitcnt lgkmcnt(0)')

    def stats_final():
        a(f'ds_read_b128 v[28:31], v45 offset:{L_ST}\nds_read_b128 v[32:35], v45 offset:{L_ST + 128}\ns_waitcnt lgkmcnt(0)')
        a('v_pk_add_f32 v[28:29], v[28:29], v[30:31]\nv_pk_add_f32 v[32:33], v[32:33], v[34:35]')
        a('v_add_f32 v28, v28, v29\nv_add_f32 v30, v32, v33\nv_mul_f32 v28, 0x3b124925, v28\nv_mul_f32 v30, 0x3b124925, v30')
        a('v_fma_f32 v30, -v28, v28, v30\nv_max_f32 v30, 0, v30')

    a('L_actQ:')
    stats_setup()
    stats_local()
    flag_add(F_S3, 10)
    spin_lds(F_S3, 4, 10)
    stats_final()
    ln_scalars(28, 30, 31)
    a(f's_cmp_lt_u32 s{S_B}, 4\ns_cselect_b32 s{S_KB1}, s{S_C}, s{S_KB1}\ns_cbranch_scc1 L_qh0')
    for k in range(8):
        a(f'v_mov_b32 v{12 + k}, v{20 + k}')
    a('L_qh0:')
    ln_norm(12, 8, 28, 30, exact=44)
    spin_lds(F_MT, 1, 10)
    stamp(1)
    census(76)
    mod_params(0, 7, 28, 44, 144, (S_KB1,))
    census_done(76)
    stamp(2)
    ln_mod(12, 8, 44, 28)
    for k in range(4):
        a(f'v_cvt_pk_bf16_f32 v{12 + k}, v{12 + 2 * k}, v{13 + 2 * k}')
    a(f's_lshl_b32 s30, s{S_C}, 10\nv_add_u32 v10, s30, v{V_L16}\nds_write_b128 v10, v[12:15] offset:{L_A}\ns_waitcnt lgkmcnt(0)')
    flag_add(F_S1, 10)
    spin_lds(F_S1, 8, 10)
    stamp(3)

    def gemm(n):
        for s in range(n):
            a(f'ds_read_b128 {vr(T0 + 4 * s, 4)}, v{V_AR} offset:{L_A + 512 * s}')
        a('s_waitcnt lgkmcnt(0)')
        for s in range(n):
            a(f'v_mfma_f32_16x16x32_bf16 v[68:71], {vr(W56 + 4 * s, 4)}, {vr(T0 + 4 * s, 4)}, {"v[68:71]" if s else 0}')
    trread(W56, 8, V_TR)
    gemm(8)
    a(f'v_and_b32 v12, 7, v0\nv_and_b32 v13, 48, v0\nv_lshl_or_b32 v12, v12, 8, v13\ns_lshl_b32 s30, s{S_C}, 6\nv_add_u32 v12, s30, v12')
    for j in range(4):
        a(f'v_bfi_b32 v{68 + j}, 3, s{56 + j}, v{68 + j}')
    a(f'ds_write_b128 v12, v[68:71] offset:{L_A + 4096}\ns_waitcnt lgkmcnt(0)')
    flag_add(F_S4, 10)
    spin_lds(F_S4, 4, 10)
    a(f's_lshl_b32 s30, s{S_C}, 9\nv_add_u32 v12, s30, v{V_L16}\nds_read_b128 v[72:75], v12 offset:{L_A + 4096}\ns_waitcnt lgkmcnt(0)\ns_mov_b32 exec_hi, 0')
    group_store(f'buffer_store_dwordx4 v[72:75], v{V_L16}, {sr(SRD_WS, 4)}, s{S_DST} offen')
    a('s_mov_b64 exec, -1\ns_branch L_pub')

    a('L_actW:')
    write_act(12)
    a('L_gemm0:')
    a('s_waitcnt lgkmcnt(0)')
    flag_add(F_S1, 10)
    spin_lds(F_S1, 8, 10)
    stamp(3)
    trread(W56, 14, V_TR)
    a(f's_cmp_eq_u32 s{S_ROLE}, 3\ns_cbranch_scc1 L_mid')
    gemm(14)
    a(f'v_mov_b32 v72, s{S_E}\nv_mov_b32 v75, s{S_E}')
    a('v_cvt_pk_bf16_f32 v73, v68, v69\nv_cvt_pk_bf16_f32 v74, v70, v71')
    a(f's_mov_b64 exec, {MASK8}')
    a(f'buffer_store_dwordx4 v[72:75], v{V_AR}, {sr(SRD_WS, 4)}, s{S_DST} offen sc1')
    a('s_mov_b64 exec, -1')
    a('L_pub:')
    stamp(4)

    a('L_mid:')
    a('s_waitcnt lgkmcnt(0)')
    flag_add(F_VT, 12)
    a(f's_cmp_eq_u32 s{S_C}, 0\ns_cbranch_scc0 L_noq')
    spin_lds(F_KT, 1, 12)
    a(f's_lshl_b32 s30, s{S_H}, 14\ns_lshl_b32 s31, s{S_B}, 8\ns_add_u32 s30, s30, s31\ns_add_u32 s30, s30, {WS_Q}\ns_add_u32 s31, s30, 8192')
    a(f'v_lshrrev_b32 v12, 4, v0\nv_and_b32 v14, 0xf0, v{V_L16}\nv_lshl_or_b32 v14, v12, 11, v14\nv_lshlrev_b32 v15, 3, v0')
    two = [(16 + 4 * k, f'buffer_load_dwordx3 {vr(16 + 4 * k, 3)}, v14, {sr(SRD_WS, 4)}, s{30 + k} offen sc1') for k in range(2)]
    a('s_add_u32 s24, s30, 0x20000\ns_add_u32 s25, s31, 0x20000')
    poll('q', [(16 + 4 * k, f'buffer_load_dwordx4 {vr(16 + 4 * k, 4)}, v14, {sr(SRD_WS, 4)}, s{(30, 31, 24, 25)[k]} offen sc1') for k in range(4)], 2)
    for k in range(0, 8, 2):
        a(f'v_pk_add_f32 {vr(16 + k, 2)}, {vr(16 + k, 2)}, {vr(24 + k, 2)}')
    for k in range(4):
        a(f'v_cvt_pk_bf16_f32 v{16 + k}, v{16 + 2 * k}, v{17 + 2 * k}')
    a(f'ds_write_b64 v15, v[16:17] offset:{L_Q}\nds_write_b64 v15, v[18:19] offset:{L_Q + 512}\ns_waitcnt lgkmcnt(0)')
    flag_add(F_Q, 12)
    stamp(5)
    a('L_noq:')
    F_SH, F_C1 = 52, 68
    a(f's_cmp_eq_u32 s{S_ROLE}, 3\ns_cbranch_scc0 L_nofp')
    spin_lds(F_Q, 1, 12)
    mod_params(21, 28, F_SH, F_C1, 144, (S_C, S_KB1))
    a(f's_lshl_b32 s30, s{S_C}, 12\ns_add_u32 s30, s30, {L_PAR}\nv_add_u32 v12, s30, v{V_L16}')
    for k, r in enumerate((F_SH + 8, F_SH + 12, F_C1 + 8, F_C1 + 12)):
        a(f'ds_write_b128 v12, {vr(r, 4)} offset:{1024 * k}')
    a('L_nofp:')
    a(f's_cmp_eq_u32 s{S_C}, 1\ns_cbranch_scc0 L_nosm')
    a(f's_lshl_b32 s26, s{S_B}, 3\ns_or_b32 s26, s26, s{S_H}\ns_lshl_b32 s26, s26, 9\ns_add_u32 s26, s26, {WS_ML}\ns_lshl_b32 s27, s{S_D}, 7\ns_add_u32 s27, s27, s26')
    a('v_lshrrev_b32 v13, 4, v0')
    a(f'v_mov_b32 v49, v{V_AR}')
    a('v_and_b32 v50, 15, v0\nv_lshlrev_b32 v50, 4, v50\nv_lshl_or_b32 v50, v13, 9, v50')
    a('s_mov_b32 s32, 0x3db8aa3b')
    spin_lds(F_KT, 1, 12)
    census(48)
    spin_lds(F_VT, 4, 12)
    spin_lds(F_SC, 4, 12)
    a('s_waitcnt vmcnt(0)')
    census_done(48)
    stamp(6)
    for w in range(4):
        a(f'ds_read_b128 {vr(12 + 4 * w, 4)}, v{V_L16} offset:{L_SC + 1024 * w}')
    a('s_waitcnt lgkmcnt(0)')
    for k in range(16):
        rnd(12 + k, 12 + k)
    a('v_max3_f32 v45, v12, v13, v14')
    for k in range(15, 27, 2):
        a(f'v_max3_f32 v45, v45, v{k}, v{k + 1}')
    a('v_max_f32 v45, v45, v27')

    def head_allreduce(op, x, t):
        dpp(op, x, x, x, 'quad_perm:[1,0,3,2]')
        dpp(op, x, x, x, 'quad_perm:[2,3,0,1]')
        dpp(op, x, x, x, 'row_half_mirror')
        rows_allreduce(op, x, t)

    def exps(m):
        for k in range(16):
            a(f'v_sub_f32 v{28 + k}, v{12 + k}, v{m}')
        for k in range(16):
            a(f'v_mul_f32 v{28 + k}, s32, v{28 + k}')
        for k in range(16):
            a(f'v_exp_f32 v{28 + k}, v{28 + k}')
    head_allreduce('v_max_f32', 45, 47)
    exps(45)
    for st in (8, 4, 2):
        for k in range(0, st, 2):
            a(f'v_pk_add_f32 {vr(28 + k, 2)}, {vr(28 + k, 2)}, {vr(28 + st + k, 2)}')
    a('v_add_f32 v46, v28, v29')
    head_allreduce('v_add_f32', 46, 47)
    a(f's_and_b32 s30, s{S_E}, 0xffff\ns_lshr_b32 s31, s{S_E}, 16\nv_or_b32 v28, s30, v45\nv_mov_b32 v29, v46\nv_mov_b32 v30, s31')
    a('v_mov_b32_dpp v31, v46 row_ror:8 row_mask:0xf bank_mask:0xf')
    dpp('v_or_b32', 30, 45, 30, 'row_ror:8')
    a('s_mov_b64 exec, 0xff')
    group_store(f'buffer_store_dwordx4 v[28:31], v{V_L16}, {sr(SRD_WS, 4)}, s27 offen')
    a('s_mov_b64 exec, -1')
    a('s_mov_b32 s30, 0x05040100')
    for k in range(4):
        a(f'v_mov_b32_dpp v{32 + k}, v{28 + k} row_newbcast:0 row_mask:0xf bank_mask:0xf')
    a(f's_lshl_b32 s31, s{S_D}, 4\ns_lshl_b64 s[8:9], 0xffff, s31\ns_not_b64 s[8:9], s[8:9]')
    a('L_mlpoll:')
    a(f's_mov_b64 exec, s[8:9]\nbuffer_load_dwordx4 v[32:35], v49, {sr(SRD_WS, 4)}, s26 offen sc1\ns_mov_b64 exec, -1\ns_waitcnt vmcnt(0)')
    a(f'v_perm_b32 v36, v34, v32, s30\nv_cmp_ne_u32 vcc, s{S_E}, v36\ns_cbranch_vccz L_mlgot')
    retry('L_mlpoll')
    a('L_mlgot:')
    stamp(7)
    a(f'v_cndmask_b32 v29, v34, v32, {MASK8}\nv_cndmask_b32 v30, v35, v33, {MASK8}\nv_and_b32 v29, 0xffff0000, v29')
    a('v_mov_b32 v45, v29')
    rows_allreduce('v_max_f32', 45, 47)
    a('v_sub_f32 v29, v29, v45\nv_mul_f32 v29, s32, v29\nv_exp_f32 v29, v29\nv_mul_f32 v46, v29, v30')
    rows_allreduce('v_add_f32', 46, 47)
    a('v_rcp_f32 v46, v46')
    exps(45)
    for k in range(0, 16, 2):
        a(f'v_pk_mul_f32 {vr(28 + k, 2)}, {vr(28 + k, 2)}, v[46:47] op_sel_hi:[1,0]')
    for uh in range(2):
        for dd in range(4):
            u, x = 2 * uh + (dd >> 1), dd & 1
            a(f'v_cvt_pk_bf16_f32 v{12 + 4 * uh + dd}, v{28 + 4 * (2 * x) + u}, v{28 + 4 * (2 * x + 1) + u}')
    a(f'ds_write_b128 v50, v[12:15] offset:{L_P}\nds_write_b128 v50, v[16:19] offset:{L_P + 256}')
    a(f's_add_u32 s30, s{S_FAST}, 1\nv_mov_b32 v20, s30\nv_mov_b32 v21, s{S_E}\nv_mov_b32 v22, 0\ns_waitcnt lgkmcnt(0)\nds_write_b64 v22, v[20:21] offset:{F_P}')
    stamp(8)
    a('L_nosm:')

    if cfg['abl'] & 16:
        a('s_branch L_exit')
    a(f's_cmp_eq_u32 s{S_ROLE}, 3\ns_cbranch_scc1 L_ffn\ns_cmp_eq_u32 s{S_B}, 7\ns_cbranch_scc1 L_idle')
    Z_GA, Z_GB, Z_X, Z_TAG, Z_XA, Z_OA, Z_PA, Z_PR = 80, 81, 82, 83, 84, 85, 52, 72
    S_Z = 39
    a(f's_lshl2_add_u32 s{S_Z}, s{S_R}, s{S_C}\ns_add_u32 s{S_Z}, s{S_Z}, {cfg["zsh"]}\ns_cmp_ge_u32 s{S_Z}, 112\ns_cselect_b32 s30, 112, 0\ns_sub_u32 s{S_Z}, s{S_Z}, s30')
    spin_lds(F_Q, 1, 12)
    a(f's_mov_b64 {sr(SRD_C, 2)}, {sr(P_X, 2)}')
    a(f's_lshl_b32 s30, s{S_Z}, 7\ns_add_u32 s31, s30, {WS_MOD + 35 * 2048}\ns_add_u32 s30, s30, {WS_MOD + 14 * 2048}')
    a(f'v_and_b32 v14, 0x70, v{V_L16}\nv_mul_u32_u24 v12, 56, v14\nv_lshrrev_b32 v13, 4, v0\nv_lshl_add_u32 v12, v13, 1, v12')
    a(f's_lshl_b32 s27, s{S_Z}, 3\nv_add_u32 v{Z_OA}, s27, v12')
    a(f'buffer_load_ushort v{Z_X}, v{Z_OA}, {sr(SRD_C, 4)}, 0 offen')
    poll('z', two, False)
    a('v_cmp_lt_u32 vcc, 31, v0\nv_cndmask_b32 v17, v17, v18, vcc\nv_cndmask_b32 v21, v21, v22, vcc')
    a('v_and_b32 v13, 16, v0\nv_lshrrev_b32 v17, v13, v17\nv_lshrrev_b32 v21, v13, v21')
    a(f'v_lshlrev_b32 v{Z_GA}, 16, v17\nv_lshlrev_b32 v{Z_GB}, 16, v21\nv_lshlrev_b32 v{Z_X}, 16, v{Z_X}')
    a(f'v_and_b32 v13, 8, v0\nv_lshl_or_b32 v{Z_OA}, v13, 27, v{Z_OA}')
    a(f'v_cmp_gt_u32 vcc, 16, v0\nv_mov_b32 v13, s{S_E8}\nv_cndmask_b32 v{Z_TAG}, 0, v13, vcc')
    a(f'v_lshrrev_b32 v13, 3, v0\nv_lshl_or_b32 v{Z_XA}, v13, 27, v{V_L16}')
    a(f'v_lshrrev_b32 v13, 5, v0\nv_add_u32 v14, {WS_PL - WS_PA}, v{V_L16}')
    for u in range(4):
        a(f's_sub_u32 s30, s{S_H}, {2 * u}\nv_cmp_eq_u32 vcc, s30, v13\nv_cndmask_b32 v{Z_PA + u}, v{V_L16}, v14, vcc')
    a(f's_lshl_b32 s{S_A}, s{S_Z}, 12\ns_add_u32 s{S_Bs}, s{S_A}, {WS_PF}\ns_add_u32 s{S_A}, s{S_A}, {WS_PA}')
    a(f's_lshl_b32 s32, s{S_H}, 7\ns_add_u32 s32, s32, s{S_Z}\ns_lshl_b32 s32, s32, 7\ns_add_u32 s32, s32, {WS_X1}')
    a(f's_lshl_b32 s24, s{S_JJ}, 14\ns_lshl_b32 s30, s{S_C}, 7\ns_add_u32 s24, s24, s30\ns_add_u32 s24, s24, {WS_OP}')
    a('s_add_u32 s25, s24, 4096\ns_add_u32 s26, s24, 8192\ns_add_u32 s27, s24, 12288')
    a('v_and_b32 v12, 7, v0\nv_lshrrev_b32 v13, 3, v0\nv_lshlrev_b32 v14, 4, v12\nv_lshl_or_b32 v40, v13, 9, v14')
    a('v_lshlrev_b32 v15, 4, v13\nv_lshl_or_b32 v41, v12, 7, v15')
    a(f's_lshr_b32 s30, s{S_C}, 1\ns_lshl_b32 s30, s30, 10\ns_and_b32 s31, s{S_C}, 1\ns_lshl3_add_u32 s30, s31, s30\nv_add_u32 v41, s30, v41')
    a('v_and_b32 v13, 8, v0\nv_lshl_or_b32 v14, v13, 27, v14\nv_lshrrev_b32 v13, 4, v0\nv_lshl_or_b32 v42, v13, 12, v14')
    a(f's_lshl2_add_u32 s{S_DST}, s{S_B}, s{S_C}\ns_lshl_b32 s{S_DST}, s{S_DST}, 7\ns_add_u32 s{S_DST}, s{S_DST}, s{S_JJ}\ns_lshl_b32 s{S_DST}, s{S_DST}, 7')
    a(f's_add_u32 s{S_BASE}, s{S_DST}, {WS_PL}\ns_add_u32 s{S_DST}, s{S_DST}, {WS_PA}\nv_mov_b32 v43, s{S_E}\ns_movk_i32 s38, 0xff')
    srd(SRD_C, P_OUT, 7168)
    spin_lds(F_P, 1, 12)
    a(f's_sub_u32 s{S_FAST}, s31, 1')
    pair_srd(44, 56)
    GA = 56
    a(f's_mov_b64 s[48:49], {sr(P_WS, 2)}\ns_mov_b32 s51, 0x20000\ns_cmp_eq_u32 s{S_H}, 1\ns_cselect_b32 s50, s{SRD_WS + 2}, 0\ns_sub_u32 s{S_KB1}, s32, 0x4000')
    a('s_waitcnt vmcnt(0)\ns_barrier')
    stamp(9)
    poll('w', [(12 + 4 * s, f'buffer_load_dwordx4 {vr(12 + 4 * s, 4)}, v40, {sr(SRD_WS, 4)}, s{24 + s} offen sc1') for s in range(4)], True,
         lambda: trread(W56, 4, V_TR))

    def sum4(g=12):
        a(f'v_pk_add_f32 v[14:15], {vr(g + 2, 2)}, {vr(g + 6, 2)}\nv_pk_add_f32 v[22:23], {vr(g + 10, 2)}, {vr(g + 14, 2)}')
        a(f'v_pk_add_f32 v[12:13], {vr(g, 2)}, {vr(g + 4, 2)}\nv_pk_add_f32 v[20:21], {vr(g + 8, 2)}, {vr(g + 12, 2)}')
        a('v_pk_add_f32 v[14:15], v[14:15], v[22:23]\nv_pk_add_f32 v[12:13], v[12:13], v[20:21]')
    sum4()
    a('v_cvt_pk_bf16_f32 v12, v12, v13\nv_cvt_pk_bf16_f32 v13, v14, v15')
    a(f'ds_write_b64 v41, v[12:13] offset:{L_A}')
    a('s_waitcnt lgkmcnt(0)\ns_barrier')
    for s in range(4):
        a(f'ds_read_b128 {vr(12 + 4 * s, 4)}, v{V_AR} offset:{L_A + 512 * s}')
    for s in range(4):
        a(f's_waitcnt lgkmcnt({3 - s})')
        a(f'v_mfma_f32_16x16x32_bf16 v[28:31], {vr(W56 + 4 * s, 4)}, {vr(12 + 4 * s, 4)}, {"v[28:31]" if s else 0}')
    a(f's_cmp_eq_u32 s{S_H}, 0')
    a('v_bfi_b32 v28, s38, v43, v28')
    a(f'buffer_store_dwordx4 v[28:31], v42, {sr(SRD_WS, 4)}, s{S_DST} offen sc1')
    stamp(10)
    a('s_cbranch_scc1 L_fin')
    pair_store(28, 42, S_BASE, 44, 56)

    def gather(name, g, addr, soff, last_lo, issued=False):
        poll(name, [(g + 4 * u, f'buffer_load_dwordx4 {vr(g + 4 * u, 4)}, v{addr(u)}, {sr(SRD_WS, 4)}, s{soff} offen offset:{1024 * u} sc1')
                    for u in range(4)], True, None, last_lo, issued)
        sum4(g)
        a('v_permlane32_swap_b32 v12, v14\nv_permlane32_swap_b32 v13, v15\nv_pk_add_f32 v[12:13], v[12:13], v[14:15]')
        a('v_permlane16_swap_b32 v12, v13\nv_add_f32 v12, v12, v13')
        dpp('v_add_f32', 12, 12, 12, 'row_ror:8')

    gather('a', GA, lambda u: Z_PA + u, S_A, False)
    rnd(12, 12)
    a(f'v_mul_f32 v12, v{Z_GA}, v12')
    rnd(12, 12)
    a(f'v_add_f32 v12, v{Z_X}, v12')
    rnd(49, 12)
    a(f'v_or_b32 v48, v{Z_TAG}, v49\nv_permlane16_swap_b32 v48, v49')
    a('v_mov_b32 v50, v48\nv_mov_b32 v51, v49\nv_permlane32_swap_b32 v48, v50\nv_permlane32_swap_b32 v49, v51')
    pair_store(48, Z_XA, 32, 44, 56)
    a(f'buffer_store_dwordx4 v[48:51], v{Z_XA}, s[48:51], s{S_KB1} offen sc1')
    stamp(1)
    a('s_branch L_exit' if cfg['stamps'] else 's_endpgm')
    a('L_fin:')
    a(f'v_mov_b32 v24, s{S_E8}\nv_mov_b32 v25, 0\nv_mov_b32 v26, 0\nv_mov_b32 v27, 0\nv_and_b32 v52, 0x70, v{V_L16}')
    for u in range(4):
        ins = f'buffer_load_dwordx4 {vr(12 + 4 * u, 4)}, v{V_L16}, {sr(SRD_WS, 4)}, s{S_Bs} offen offset:{1024 * u} sc1'
        a(ins if u < 3 else f's_mov_b32 exec_hi, 0\n{ins}\ns_mov_b32 exec_hi, -1')
    a(f'L_ypoll:\nbuffer_load_dwordx4 {vr(GA, 4)}, v52, {sr(SRD_WS, 4)}, s32 offen sc1\ns_waitcnt vmcnt(0)')
    a(f'v_cmp_ne_u32_sdwa vcc, v{GA}, s{S_E8} src0_sel:BYTE_0 src1_sel:DWORD\ns_cbranch_vccz L_ygot')
    retry('L_ypoll')
    a('L_ygot:')
    a(f'v_xor_b32 v{Z_X}, s{S_E8}, v{GA}')
    for k in range(1, 4):
        a(f'v_mov_b32_dpp v{Z_X}, v{GA + k} quad_perm:[0,1,2,3] row_mask:{1 << k:#x} bank_mask:0xf')
    gather('f', 12, lambda u: V_L16, S_Bs, True, True)
    rnd(12, 12)
    a(f'v_mul_f32 v12, v{Z_GB}, v12')
    rnd(12, 12)
    a(f'v_add_f32 v12, v{Z_X}, v12\nv_cvt_pk_bf16_f32 v12, v12, v12')
    a(f'buffer_store_short v12, v{Z_OA}, {sr(SRD_C, 4)}, 0 offen')
    stamp(2)
    a('s_branch L_exit' if cfg['stamps'] else 's_endpgm')

    a(f'L_idle:\ns_or_b32 s30, s{S_D}, s{S_C}\ns_cbranch_scc1 L_exit')
    a(f's_barrier\ns_barrier\ns_mov_b32 s32, {WS_X1}\nv_and_b32 v52, 0x70, v{V_L16}\nv_mov_b32 v43, s{S_E}')
    a(f'L_ipoll:\nbuffer_load_dword v12, v52, {sr(SRD_WS, 4)}, s32 offen sc1\ns_waitcnt vmcnt(0)')
    a(f'v_cmp_ne_u32_sdwa vcc, v12, s{S_E8} src0_sel:BYTE_0 src1_sel:DWORD\ns_cbranch_vccz L_igot')
    retry('L_ipoll')
    a(f'L_igot:\ns_mov_b64 exec, 1\nbuffer_store_dword v43, off, {sr(SRD_WS, 4)}, 0 sc1')
    if cfg['wb']:
        a('buffer_wbl2 sc1')
    if cfg['stamps']:
        stamp(1)
        a('s_waitcnt vmcnt(0)')
        stamp(11)
    a('s_branch L_exit')

    a('L_ffn:')
    a(f's_sub_u32 s{S_JJ}, s{S_JJ}, 4')
    srd(SRD_A, P_W1, 1605632)
    srd(SRD_B, P_W3, 1605632)
    a(f's_movk_i32 s32, 3584\ns_movk_i32 s{S_A}, 28672\ns_mov_b32 s{S_Bs}, 229376\ns_lshl_b32 s{S_BASE}, s{S_JJ}, 7')
    a(f'v_mad_u32_u24 v{V_DM}, v{V_R8}, s32, v{V_NT}')
    a(f'v_lshrrev_b32 v12, 5, v0\nv_bfe_u32 v13, v0, 3, 1\nv_lshl_or_b32 v12, v12, 1, v13\nv_mul_u32_u24 v12, {BLS}, v12')
    a('v_and_b32 v13, 16, v0\nv_lshl_add_u32 v12, v13, 3, v12\nv_and_b32 v13, 7, v0\nv_lshl_add_u32 v12, v13, 3, v12')
    a(f's_lshl_b32 s30, s{S_C}, 8\ns_add_u32 s30, s30, {L_W}\nv_add_u32 v{V_TR}, s30, v12\nv_add_u32 v46, {56 * BLK}, v{V_TR}')
    a(f'v_and_b32 v14, 0x70, v{V_L16}\nv_lshrrev_b32 v13, 4, v0\nv_lshl_or_b32 v14, v13, 12, v14\nv_and_b32 v13, 8, v0\nv_lshl_or_b32 v48, v13, 13, v14\nv_lshl_or_b32 v8, v13, 27, v14')
    a(f's_lshl_b32 s{S_DST}, s{S_JJ}, 7\ns_lshl_b32 s30, s{S_C}, 14\ns_add_u32 s{S_DST}, s{S_DST}, s30\ns_add_u32 s{S_DST}, s{S_DST}, {WS_PF}')
    a(f's_add_u32 s20, s{S_DST}, 0x20000\ns_add_u32 s21, s{S_DST}, 0x40000\ns_add_u32 s22, s{S_DST}, 0x60000')
    a('v_and_b32 v12, 7, v0\nv_lshlrev_b32 v12, 1, v12\nv_and_b32 v13, 8, v0\nv_lshl_or_b32 v12, v13, 4, v12\nv_and_b32 v13, 48, v0\nv_lshl_or_b32 v12, v13, 1, v12')
    a(f's_lshl_b32 s30, s{S_C}, 8\nv_add_u32 v49, s30, v12')
    a(f'v_mov_b32 v50, s{S_E}\ns_movk_i32 s38, 0xff\ns_mov_b32 s39, {LOG2E | 0x80000000:#x}')
    a('v_and_b32 v12, 1, v0\nv_mul_u32_u24 v51, 0xaaaa, v12\nv_add_u32 v51, 0x4444, v51')
    a('v_lshlrev_b32 v12, 7, v12\nv_lshl_or_b32 v12, v13, 4, v12\nv_and_b32 v13, 14, v0\nv_lshl_or_b32 v10, v13, 3, v12')
    for k in list(range(76, 88)) + list(range(60, 68)) + list(range(40, 44)):
        a(f'v_mov_b32 v{k}, 0')
    a(f's_mov_b32 s{S_KB1}, s{S_C}')
    a(f's_add_u32 s{S_BASE}, s{S_BASE}, {2 * 229376}\ns_waitcnt vmcnt(0)')
    dma(SRD_A, 5, L_W + 16 * BLS, bar=0, BLK=BLS)
    a(f's_sub_u32 s{S_BASE}, s{S_BASE}, {2 * 229376}')
    dma(SRD_B, 7, L_W + 56 * BLK, BLK=BLS)
    for m, va in enumerate((V_TR, 46)):
        if cfg['stamps'] == 3 and m == 0:
            stamp(1)
        a(f's_waitcnt vmcnt({0 if m else 14})')
        if cfg['stamps'] == 3:
            stamp(4 if m else 2)
        flag_add(F_S3 if m else F_S2, 12)
        spin_lds(F_S3 if m else F_S2, 4 if m else 8, 12)
        for kb in range(7):
            for rp in range(4):
                a(f'ds_read_b64_tr_b16 {vr(W112 + 56 * m + 8 * kb + 2 * rp, 2)}, v{va} offset:{(8 * kb + 4 * (rp >> 1)) * BLS + (rp & 1) * 64}')
    a('s_branch L_ln')
    a('L_fhelp:')
    a(f's_mov_b64 exec, -1\ns_add_u32 s{S_KB1}, s{S_W}, 4\ns_and_b32 s{S_E8}, s{S_E}, 0xff')
    a(f'v_lshlrev_b32 v{V_L16}, 4, v0\nv_lshrrev_b32 v12, 3, v0\nv_and_b32 v13, 0x70, v{V_L16}\nv_lshl_or_b32 v{V_MA}, v12, 8, v13')
    spin_lds(F_S3, 4, 12)
    a(f's_lshl_b32 s30, s{S_W}, 12\ns_add_u32 s30, s30, {L_PAR}\nv_add_u32 v12, s30, v{V_L16}')
    for k, r in enumerate((F_SH, F_SH + 4, F_C1, F_C1 + 4)):
        a(f'ds_read_b128 {vr(r, 4)}, v12 offset:{1024 * k}')
    a('L_ln:')
    a(f's_lshl_b32 s24, s{S_KB1}, 11\ns_add_u32 s24, s24, {WS_X1}')
    a(f's_lshl_b32 s31, s{S_H}, 14\ns_add_u32 s24, s24, s31')
    a(f'v_and_b32 v12, 7, v0\nv_and_b32 v13, 32, v0\nv_lshlrev_b32 v13, 3, v13\nv_lshl_or_b32 v45, v12, 5, v13\ns_lshl_b32 s30, s{S_KB1}, 2\nv_add_u32 v47, s30, v45')
    a(f's_lshl_b32 s30, s{S_KB1}, 10\nv_add_u32 v44, s30, v{V_L16}')
    a('s_waitcnt lgkmcnt(0)')
    stamp(9)
    poll('x', [(12 + 4 * h, f'buffer_load_dwordx4 {vr(12 + 4 * h, 4)}, v{V_MA}, {sr(SRD_WS, 4)}, s24 offen offset:{128 * h} sc1') for h in range(2)], True)
    stamp(10)
    if cfg['stamps'] == 4:
        a(f's_memtime {sr(S_ST0 + 2, 2)}')
    a('v_pk_mul_f32 v[30:31], v[14:15], v[14:15]\nv_pk_add_f32 v[28:29], v[14:15], v[18:19]\nv_pk_mul_f32 v[34:35], v[12:13], v[12:13]\nv_pk_add_f32 v[32:33], v[12:13], v[16:17]')
    a('v_pk_fma_f32 v[30:31], v[18:19], v[18:19], v[30:31]\nv_pk_fma_f32 v[34:35], v[16:17], v[16:17], v[34:35]')
    a('v_pk_add_f32 v[28:29], v[28:29], v[32:33]\nv_pk_add_f32 v[30:31], v[30:31], v[34:35]')
    a('v_add_f32 v28, v28, v29\nv_add_f32 v30, v30, v31')
    a('v_permlane32_swap_b32 v28, v30\nv_add_f32 v28, v28, v30')
    a('v_mov_b32 v30, v28\nv_permlane16_swap_b32 v28, v30\nv_add_f32 v28, v28, v30')
    dpp('v_add_f32', 28, 28, 28, 'row_ror:8')
    a(f'ds_write_b32 v47, v28 offset:{L_ST2}')
    a('s_waitcnt lgkmcnt(0)\ns_barrier')
    if cfg['stamps'] == 2:
        stamp(1)
    a(f'ds_read_b128 v[28:31], v45 offset:{L_ST2}\nds_read_b128 v[32:35], v45 offset:{L_ST2 + 16}')
    a('s_waitcnt lgkmcnt(0)')
    a('v_pk_add_f32 v[28:29], v[28:29], v[30:31]\nv_pk_add_f32 v[32:33], v[32:33], v[34:35]\nv_pk_add_f32 v[28:29], v[28:29], v[32:33]')
    a('v_add_f32 v29, v28, v29\nv_mul_f32 v28, 0x3b124925, v29\nv_mul_f32 v30, 0x3b124925, v29\nv_permlane32_swap_b32 v28, v30')
    a('v_fma_f32 v30, -v28, v28, v30')
    rnd(28, 28)
    a('v_max_f32 v30, 0, v30')
    sub = [f'v_pk_add_f32 {vr(12 + k, 2)}, {vr(12 + k, 2)}, v[28:29] op_sel_hi:[1,0] neg_lo:[0,1] neg_hi:[0,1]' for k in range(0, 8, 2)]
    sub += [f'v_cvt_pk_bf16_f32 v{12 + k}, 0, v{12 + k}' for k in range(8)]
    chain = ['v_cvt_pk_bf16_f32 v30, 0, v30', 'v_add_f32 v30, 0x3727c5ac, v30', 'v_cvt_pk_bf16_f32 v30, 0, v30', 'v_sqrt_f32 v30, v30',
             'v_cvt_pk_bf16_f32 v30, 0, v30', 'v_rcp_f32 v30, v30']
    if cfg['lnx']:
        for k in range(6):
            a(chain[k])
            a(sub[2 * k])
            a(sub[2 * k + 1])
        for k in range(0, 8, 2):
            a(f'v_pk_mul_f32 {vr(12 + k, 2)}, {vr(12 + k, 2)}, v[30:31] op_sel_hi:[1,0]')
        for k in range(8):
            rnd(12 + k, 12 + k)
        ln_mod(12, 8, F_C1, F_SH)
    else:
        sub = sub[:4] + [f'v_pk_mul_f32 {vr(12 + k, 2)}, {vr(12 + k, 2)}, {vr(F_C1 + k, 2)}' for k in range(0, 8, 2)]
        for k in range(6):
            a(chain[k])
            a(sub[k])
        a(sub[6])
        a(sub[7])
        for k in range(0, 8, 2):
            a(f'v_pk_fma_f32 {vr(12 + k, 2)}, {vr(12 + k, 2)}, v[30:31], {vr(F_SH + k, 2)} op_sel_hi:[1,0,1]')
    for k in range(4):
        a(f'v_cvt_pk_bf16_f32 v{12 + k}, v{12 + 2 * k}, v{13 + 2 * k}')
    a(f'ds_write_b128 v44, v[12:15] offset:{L_A}')
    a(f's_cmp_lt_u32 s{S_W}, 4\ns_cbranch_scc1 L_fhx')
    a('s_waitcnt lgkmcnt(0)\ns_barrier')
    if cfg['stamps'] == 2:
        stamp(2)
        a('s_waitcnt lgkmcnt(0)')
    for kb in range(7):
        a(f'ds_read_b128 {vr(12 + 4 * kb, 4)}, v10 offset:{L_A + 1024 * kb}')
    for kb in range(7):
        a(f's_waitcnt lgkmcnt({6 - kb})')
        a(f'v_smfmac_f32_16x16x64_bf16 v[76:79], {vr(12 + 4 * kb, 4)}, {vr(W112 + 8 * kb, 8)}, v51')
    gate = ['s_nop 1', 's_nop 2',
            'v_add_f32 v76, v76, v77\nv_add_f32 v77, v78, v79',
            'v_cvt_pk_bf16_f32 v76, 0, v76\nv_cvt_pk_bf16_f32 v77, 0, v77',
            'v_mul_f32 v78, s39, v76\nv_mul_f32 v79, s39, v77',
            'v_exp_f32 v78, v78', 'v_exp_f32 v79, v79']
    for kb in range(7):
        a(f'v_smfmac_f32_16x16x64_bf16 v[80:83], {vr(12 + 4 * kb, 4)}, {vr(W112 + 56 + 8 * kb, 8)}, v51')
        a(gate[kb])
    a('v_add_f32 v78, 1.0, v78\nv_add_f32 v79, 1.0, v79\nv_rcp_f32 v78, v78\nv_rcp_f32 v79, v79')
    a('v_mul_f32 v78, v78, v76\nv_mul_f32 v79, v79, v77')
    rnd(78, 78)
    a('v_add_f32 v80, v80, v81\nv_add_f32 v81, v82, v83')
    for r in (79, 80, 81):
        rnd(r, r)
    a('v_pk_mul_f32 v[12:13], v[78:79], v[80:81]\nv_cvt_pk_bf16_f32 v12, v12, v13')
    a(f'ds_write_b16 v49, v12 offset:{L_H}\nds_write_b16_d16_hi v49, v12 offset:{L_H + 16}')
    def down(fl):
        a('s_waitcnt lgkmcnt(0)\ns_barrier')
        if cfg['stamps'] == 2:
            stamp(4)
        HB = ((60, 64), (84, 40))
        a(f's_mov_b64 exec, {MASK8}\nds_read_b128 v[60:63], v{V_AR} offset:{L_H}\nds_read_b128 v[64:67], v{V_AR} offset:{L_H + 512}')
        a(f's_not_b64 exec, exec\nds_read_b128 v[84:87], v{V_AR} offset:{L_H}\nds_read_b128 v[40:43], v{V_AR} offset:{L_H + 512}\ns_mov_b64 exec, -1')
        tag = lambda p: a(f'v_bfi_b32 v{12 + 4 * p}, s38, v50, v{12 + 4 * p}')
        put = lambda p: a(f'buffer_store_dwordx4 {vr(12 + 4 * p, 4)}, v{8 if p == 3 else 48}, {sr(SRD_WS, 4)}, s{(S_DST, 20, 21, 22)[p]} offen {fl}')
        for i in range(7):
            d = vr(12 + 4 * (i >> 1), 4)
            for st in range(2):
                if i < 2:
                    a(f's_waitcnt lgkmcnt({3 - 2 * i - st})')
                a(f'v_mfma_f32_16x16x32_bf16 {d}, {vr(W56 + 8 * i + 4 * st, 4)}, {vr(HB[i & 1][st], 4)}, {d if (st or i & 1) else 0}')
                if i >= 2 and (i, st) not in ((3, 1), (4, 0), (5, 1), (6, 0)):
                    a('s_nop 1')
                if (i, st) in ((3, 1), (5, 1)):
                    tag(i // 2 - 1)
                if (i, st) in ((4, 0), (6, 0)):
                    put(i // 2 - 2)
        tag(2)
        put(2)
        tag(3)
        put(3)
        stamp(11)
        if cfg['stamps'] == 4:
            a(f's_memtime {sr(S_ST0 + 4, 2)}')
    down('sc1')
    a('s_branch L_exit' if cfg['stamps'] else 's_endpgm')
    a('L_fhx:\ns_waitcnt lgkmcnt(0)\ns_barrier\ns_barrier')

    a('L_exit:')
    if cfg['probe']:
        pr = cfg['probe'].split('_')
        cls, k = pr[0][0], int(pr[0][1:])
        a(f's_waitcnt lgkmcnt(0)\ns_cmp_ge_u32 s{S_W}, 4\ns_cbranch_scc{1 if cls == "s" else 0} L_end')
        if cls == 's':
            a('s_barrier\ns_barrier\ns_barrier')
        for f in pr[1:]:
            if f[0] == 'r':
                a(f's_cmp_eq_u32 s{S_ROLE}, {f[1:]}\ns_cbranch_scc0 L_end')
            else:
                a(f's_bitcmp1_b32 {f[1:]}, s{S_H}\ns_cbranch_scc0 L_end')
        a(f's_cmp_eq_u32 s{S_ST0 + 2 * k}, 0\ns_cbranch_scc1 L_end\ns_mov_b32 s{S_CNT}, 0')
        a(f'L_pw:\ns_memrealtime s[30:31]\ns_waitcnt lgkmcnt(0)\ns_sub_u32 s30, s30, s{S_ST0 + 2 * k}\ns_cmp_ge_u32 s30, 6000\ns_cbranch_scc1 L_end')
        a(f's_add_u32 s{S_CNT}, s{S_CNT}, 1\ns_cmp_lt_u32 s{S_CNT}, 100000\ns_cbranch_scc1 L_pw\ns_branch L_end')
    if cfg['stamps']:
        a('s_waitcnt lgkmcnt(0)\ns_mov_b64 exec, 1')
        a(f's_lshl_b32 s30, s2, 3\ns_add_u32 s30, s30, s{S_W}\ns_lshl_b32 s30, s30, 6\ns_add_u32 s30, s30, {WS_STAMP}\nv_mov_b32 v0, s30')
        for q in range(3):
            for k in range(4):
                a(f'v_mov_b32 v{4 + k + 4 * q}, s{S_ST0 + 2 * (4 * q + k)}')
            a(f'global_store_dwordx4 v0, {vr(4 + 4 * q, 4)}, {sr(P_WS, 2)} offset:{16 * q}')
        a(f'v_mov_b32 v16, s{S_CNT}\nglobal_store_dword v0, v16, {sr(P_WS, 2)} offset:48')
    a('L_end:\ns_endpgm')
    a('.section .rodata,"a"\n.p2align 6')
    a(f'.amdhsa_kernel {NAME}_kernel')
    a('.amdhsa_next_free_vgpr 256\n.amdhsa_next_free_sgpr 102\n.amdhsa_accum_offset 256\n.amdhsa_group_segment_fixed_size 0')
    a('.amdhsa_kernarg_size 112\n.amdhsa_user_sgpr_count 2\n.amdhsa_user_sgpr_kernarg_segment_ptr 1\n.amdhsa_system_sgpr_workgroup_id_x 1')
    a('.amdhsa_float_denorm_mode_32 3\n.end_amdhsa_kernel')
    if cfg['abl'] & 4:
        k = a.lines.index('L_chain:')
        a.lines = [l for i, l in enumerate(a.lines) if i > k or not l.startswith(('v_mfma', 'v_perm', 'v_add_f32_dpp', 'ds_read_b128'))]
    return head + a.text()


if __name__ == '__main__':
    kw = {}
    for x in sys.argv[2:]:
        k, v = x.split('=')
        kw[k] = int(v) if v.lstrip('-').isdigit() else v
    open(sys.argv[1], 'w').write(gen(**kw))
```

```python
import sys
from asmlib import Asm, vr, sr

NAME = 'adaLN_cond__sliding_block_cached__glu_gated_swiglu__decode'

WS_EPOCH = 0x0
WS_MOD = 0x1000
WS_Q = 0x300000
WS_ML = 0x40000
WS_CEN = 0x50000
WS_PRG = 0x52000
WS_PL = 0x280000
WS_X1 = 0x60000
WS_OP = 0x80000
WS_PA = 0x100000
WS_PF = 0x180000
WS_STAMP = 0x200000
WS_SIZE = 0x400000

F_Q, F_SC, F_P, F_KT, F_VT, F_S1, F_S2, F_S3, F_S4, F_MT = 0, 4, 8, 16, 20, 24, 28, 32, 36, 40
L_ST, L_ST2 = 0x100, 0x200
L_Q, L_P, L_SC, L_A, L_H, L_W = 0x400, 0x800, 0x1000, 0x2000, 0x3C00, 0x4000
BLK = 1152
BLS = 1088
L_X = L_W + 56 * BLK
L_PAR = L_X + 64 * 1024
LDS_BYTES = L_X + 80 * 1024

S_W, S_H, S_B, S_D, S_R = 3, 4, 5, 6, 7
SRD_A, SRD_B, SRD_WS, SRD_C = 8, 12, 16, 20
S_E, S_C, S_CNT, S_JJ = 28, 29, 33, 34
S_XO, S_FAST, P_DBG = 71, 75, 64
P_X, P_K, P_V, P_WQ, P_WO, P_W1, P_W3, P_W2, P_C, P_WM, P_OUT, P_WS = 40, 42, 44, 46, 48, 52, 54, 56, 58, 60, 62, 66
S_ST0 = 76
SPIN_CAP = 400000
LOG2E = 0x3FB8AA3B

DEF = dict(seg=((0, 8, 3, 14),), cks=(16, 26, 36, 46, 56, 77, 87, 97, 107), thr=40, ktrig=60, mtrig=30, vsync=42, NL=16, dflag=6, dbar=8,
           prio=2, pref=1, wb=1, lnx=0, fast=1, stamps=0, probe='', abl=0, km=None, fpre=6, thr0=26, swz=1, lag='wafx',  fthr=4, fn=127)
S_A, S_Bs, S_BASE, S_KB1, S_DST, S_ROLE = 68, 69, 70, 72, 73, 74


def gen(**kw):
    cfg = dict(DEF)
    cfg.update(kw)
    a = Asm()
    seg = cfg['seg']
    if isinstance(seg, str):
        seg = eval(seg)
    DV = seg[-1][1]
    KM = cfg['km'] or ([2, 1], [8, 16], [4, 32, 64, 128])
    lin = lambda cols, x: sum(c for k, c in enumerate(cols) if x >> k & 1) << 12
    WFL = 'nt'

    def stamp(k):
        if cfg['stamps']:
            a(f's_memrealtime {sr(S_ST0 + 2 * k, 2)}')

    def srd(d, p, size):
        a(f's_mov_b32 s{d}, s{p}\ns_mov_b32 s{d + 1}, s{p + 1}\ns_mov_b32 s{d + 2}, {size}\ns_mov_b32 s{d + 3}, 0x20000')

    def retry(lab):
        a(f's_add_u32 s{S_CNT}, s{S_CNT}, 1\ns_cmp_lt_u32 s{S_CNT}, {SPIN_CAP}\ns_cbranch_scc1 {lab}\ns_branch L_exit')

    def spin_lds(flag, n, t, two=False):
        top, done = a.lab('L_spin'), a.lab('L_got')
        a(f'{top}:\nv_mov_b32 v{t}, 0')
        if two:
            a(f'ds_read_b64 {vr(t, 2)}, v{t} offset:{flag}')
        else:
            a(f'ds_read_b32 v{t}, v{t} offset:{flag}')
        a(f's_waitcnt lgkmcnt(0)\nv_readfirstlane_b32 s31, v{t}\ns_cmp_ge_u32 s31, {n}\ns_cbranch_scc1 {done}')
        retry(top)
        a(f'{done}:')

    PEND = (8, 10, 12, 14, 42, 44, 46, 50)

    def reload(p, ins):
        a(f's_quadmask_b64 {sr(p, 2)}, {sr(p, 2)}\ns_bitreplicate_b64_b32 {sr(p, 2)}, s{p}\ns_wqm_b32 s{p}, s{p}\ns_bitreplicate_b64_b32 exec, s{p}\n{ins}')

    def expand(p, x):
        a(f's_quadmask_b64 {sr(p, 2)}, {sr(p, 2)}\ns_bitreplicate_b64_b32 {sr(p, 2)}, s{p}\ns_wqm_b32 s{p}, s{p}\ns_bitreplicate_b64_b32 {sr(x, 2)}, s{p}')

    V_E8 = 11

    def tag8(d):
        a(f'v_and_b32 v{d}, 3, v0\nv_mul_u32_u24 v{d}, 7, v{d}\nv_lshrrev_b32 v{d}, v{d}, s{S_E}\nv_and_b32 v{d}, 0xff, v{d}\nv_bfi_b32 v{d}, 1, s{S_E}, v{d}')

    def tag2(d):
        a(f'v_and_b32 v{d + 3}, 3, v0\nv_mul_u32_u24 v{d + 3}, 6, v{d + 3}\nv_lshrrev_b32 v{d + 3}, v{d + 3}, s{S_E}\nv_mov_b32 v{d}, s{S_E}')
        for j in range(1, 4):
            a(f'v_lshrrev_b32 v{d + j}, {2 * j}, v{d + 3}')

    def poll(name, loads, kind, between=None, X=None):
        top, chk, done = f'L_{name}poll', f'L_{name}chk', f'L_{name}got'
        for r, ins in loads:
            a(ins)
        if between:
            between()
        if name not in cfg['lag']:
            X = None
        for x in X or ():
            a(f's_mov_b64 {sr(x, 2)}, -1')
        a(f's_branch {chk}')
        a(f'{top}:')
        for k, (r, ins) in enumerate(loads):
            if X:
                a(f's_mov_b64 exec, {sr(X[k], 2)}\n{ins}')
            else:
                reload(PEND[k], ins)
        for k, x in enumerate(X or ()):
            expand(PEND[k], x)
        a(f's_mov_b64 exec, -1\ns_add_u32 s{S_CNT}, s{S_CNT}, 1\ns_cmp_lt_u32 s{S_CNT}, {SPIN_CAP}\ns_cbranch_scc0 L_exit')
        a(f'{chk}:')
        a('s_waitcnt vmcnt(0)')
        for k, (r, ins) in enumerate(loads):
            if kind == 2:
                a(f'v_xor_b32 v10, v32, v{r}')
                for j in range(1, 4):
                    a(f'v_bitop3_b32 v10, v10, v{r + j}, v{32 + j} bitop3:0xf6')
                a(f'v_and_b32 v10, 3, v10\nv_cmp_ne_u32_e64 {sr(PEND[k], 2)}, 0, v10')
            elif kind:
                a(f'v_cmp_ne_u32_sdwa {sr(PEND[k], 2)}, v{r}, v{V_E8} src0_sel:BYTE_0 src1_sel:DWORD')
            else:
                a(f'v_cmp_ne_u32_e64 {sr(PEND[k], 2)}, s{S_E}, v{r}')
        a(f's_or_b64 vcc, {sr(PEND[0], 2)}, {sr(PEND[1], 2)}')
        for k in range(2, len(loads)):
            a(f's_or_b64 vcc, vcc, {sr(PEND[k], 2)}')
        a(f's_cbranch_scc1 {top}')
        if kind == 2:
            for r, ins in loads:
                for j in range(4):
                    a(f'v_and_b32 v{r + j}, -4, v{r + j}')
        elif kind:
            for r, ins in loads:
                a(f'v_xor_b32 v{r}, v{V_E8}, v{r}')

    V_T0, V_T1, V_TW = 36, 37, 43

    def htags(t):
        a(f'v_and_b32 v{t}, 7, v0\nv_mul_u32_u24 v{t}, 3, v{t}\nv_lshrrev_b32 v{t}, v{t}, s{S_E}\ns_mov_b32 s38, 0x10001\ns_and_b32 s30, s{S_E}, 1')
        a(f'v_bfe_u32 v{V_T0}, v{t}, 1, 1\nv_lshl_or_b32 v{V_T0}, v{V_T0}, 16, s30')
        a(f'v_bfe_u32 v{V_T1}, v{t}, 2, 1\nv_bfe_u32 v{t}, v{t}, 3, 1\nv_lshl_or_b32 v{V_T1}, v{t}, 16, v{V_T1}')
        a(f'v_mov_b32 v{V_TW}, v{V_T0}\nv_mov_b32_dpp v{V_TW}, v{V_T1} quad_perm:[0,1,2,3] row_mask:0xa bank_mask:0xf')

    def hpack(d, x):
        return [f'v_add_u32 v{x + k}, 0x8000, v{x + k}' for k in range(4)] + [
            f'v_cvt_pk_bf16_f32 v{d + 1}, v{x + 2}, v{x + 3}', f'v_cvt_pk_bf16_f32 v{d}, v{x}, v{x + 1}',
            f'v_bfi_b32 v{d + 1}, s38, v{V_TW}, v{d + 1}', f'v_bfi_b32 v{d}, s38, v{V_TW}, v{d}']

    def hgather(name, g, ld, issued=False):
        top, chk = f'L_{name}poll', f'L_{name}chk'
        if not issued:
            for u in range(4):
                a(ld(u))
        X = (40, 42, 52, 54) if name in cfg['lag'] else None
        for x in X or ():
            a(f's_mov_b64 {sr(x, 2)}, -1')
        if X and issued:
            a(f's_mov_b32 s{X[3] + 1}, 0')
        a(f's_branch {chk}\n{top}:')
        if X:
            for u in range(4):
                a(f's_mov_b64 exec, {sr(X[u], 2)}\n{ld(u)}')
            a('s_mov_b64 exec, -1')
        for u in range(4):
            a(f'v_bitop3_b32 v32, v{12 + 2 * u}, v{13 + 2 * u}, s38 bitop3:0xa8\nv_cmp_ne_u32_e64 {sr(PEND[u], 2)}, 0, v32')
        for u in range(4):
            if X:
                expand(PEND[u], X[u])
            else:
                reload(PEND[u], ld(u))
        a(f's_mov_b64 exec, -1\ns_add_u32 s{S_CNT}, s{S_CNT}, 1\ns_cmp_lt_u32 s{S_CNT}, {SPIN_CAP}\ns_cbranch_scc0 L_exit')
        a(f'{chk}:')
        a('s_waitcnt vmcnt(0)')
        for k in range(8):
            a(f'v_bitop3_b32 v{12 + k}, v{g + 2 * k}, v{g + 2 * k + 1}, v{V_T1 if k & 1 else V_T0} bitop3:0x7e')
        a('v_or3_b32 v32, v12, v13, v14\nv_or3_b32 v33, v15, v16, v17\nv_or3_b32 v32, v32, v18, v19\nv_bitop3_b32 v32, v32, v33, s38 bitop3:0xa8\nv_cmp_ne_u32 vcc, 0, v32')
        a(f's_cbranch_vccnz {top}')
        clean = [f'v_xor_b32 v{g + k}, v{V_T1 if k & 2 else V_T0}, v{g + k}' for k in range(16)]
        a('\n'.join(clean[:6]))
        for u in range(4):
            a(f'v_mfma_f32_16x16x32_bf16 v[28:31], v[76:79], {vr(g + 4 * u, 4)}, {"v[28:31]" if u else 0}')
            a('\n'.join(clean[6 + 4 * u:10 + 4 * u]))
        for k in range(4):
            dpp('v_add_f32', 28 + k, 28 + k, 28 + k, 'row_ror:8')

    def census(t):
        a(f's_lshl_b32 s30, s{S_H}, 8\ns_add_u32 s30, s30, {WS_CEN}\nv_and_b32 v{t}, 31, v0\nv_lshlrev_b32 v{t}, 2, v{t}')
        a(f'buffer_load_dword v{t}, v{t}, {sr(SRD_WS, 4)}, s30 offen sc1')

    def census_done(t):
        a(f'v_cmp_eq_u32 vcc, s{S_XO}, v{t}\ns_bcnt1_i32_b32 s{S_FAST}, vcc_lo')

    def group_store(ins, cond=None):
        slow, done = a.lab('L_st'), a.lab('L_std')
        a(cond or f's_cmp_eq_u32 s{S_FAST}, {32 if cfg["fast"] else 99}')
        a(f's_cbranch_scc0 {slow}\n{ins}\ns_branch {done}\n{slow}:\n{ins} sc1\n{done}:')

    def pair_srd(p, w):
        a(f's_mov_b64 {sr(p, 2)}, {sr(P_WS, 2)}\ns_mov_b64 {sr(w, 2)}, {sr(P_WS, 2)}\ns_mov_b32 s{p + 3}, 0x20000\ns_mov_b32 s{w + 3}, 0x20000')
        a(f's_cmp_eq_u32 s{S_FAST}, {32 if cfg["fast"] else 99}\ns_cselect_b32 s{p + 2}, s{SRD_WS + 2}, 0\ns_cselect_b32 s{w + 2}, 0, s{SRD_WS + 2}')

    def pair_store(data, addr, soff, p, w):
        a(f'buffer_store_dwordx4 {vr(data, 4)}, v{addr}, {sr(p, 4)}, s{soff} offen\nbuffer_store_dwordx4 {vr(data, 4)}, v{addr}, {sr(w, 4)}, s{soff} offen sc1')

    def flag_add(flag, t, inc=1):
        a(f'v_mov_b32 v{t}, 0\nv_mov_b32 v{t + 1}, {inc}\ns_mov_b64 exec, 1\nds_add_u32 v{t}, v{t + 1} offset:{flag}\ns_mov_b64 exec, -1')

    def rnd(d, s):
        a(f'v_cvt_pk_bf16_f32 v{d}, 0, v{s}')

    def rows_allreduce(op, x, t):
        a(f'v_mov_b32 v{t}, v{x}\nv_permlane16_swap_b32 v{x}, v{t}\n{op} v{x}, v{x}, v{t}')
        a(f'v_mov_b32 v{t}, v{x}\nv_permlane32_swap_b32 v{x}, v{t}\n{op} v{x}, v{x}, v{t}')

    def dpp(op, d, s0, s1, ctl, rm=0xf, bm=0xf):
        a(f'{op}_dpp v{d}, v{s0}, v{s1} {ctl} row_mask:{rm:#x} bank_mask:{bm:#x}')

    hdr = open('cdna_kernels/' + NAME + '.s.ref').read().split('; Override launch')[0]
    head = hdr + f'; @launch grid=(256,1,1) block=(512,1,1) lds={LDS_BYTES}\n'
    a('.amdgcn_target "amdgcn-amd-amdhsa--gfx950"\n.text')
    a(f'.globl {NAME}_kernel\n.p2align 8\n.type {NAME}_kernel,@function\n{NAME}_kernel:')
    a('s_load_dwordx16 s[40:55], s[0:1], 0\ns_load_dwordx8 s[56:63], s[0:1], 64\ns_load_dwordx4 s[64:67], s[0:1], 96')
    stamp(0)
    a(f'v_lshrrev_b32 v1, 6, v0\ns_lshr_b32 s{S_B}, s2, 5\ns_cmp_ge_u32 s{S_B}, 8\ns_cbranch_scc1 L_end')
    a(f'v_readfirstlane_b32 s{S_W}, v1\nv_and_b32 v0, 63, v0')
    a(f's_and_b32 s{S_H}, s2, 7\ns_lshr_b32 s{S_R}, s2, 3\ns_and_b32 s{S_D}, s{S_R}, 3')
    a(f's_lshl_b32 s30, s{S_B}, 1\ns_lshr_b32 s{S_ROLE}, 0xcaa0, s30\ns_and_b32 s{S_ROLE}, s{S_ROLE}, 3')
    a(f's_and_b32 s30, s2, 0xe7\ns_cmpk_eq_u32 s30, 0xe0\ns_cselect_b32 s{S_ROLE}, 0, s{S_ROLE}')
    a(f's_cmp_lt_u32 s2, 42\ns_cselect_b32 s{S_ROLE}, 1, s{S_ROLE}')
    a(f's_cmp_ge_u32 s{S_W}, 4\ns_cbranch_scc1 L_chain')

    def common():
        if cfg['stamps']:
            for k in range(1, 12):
                if k != 9:
                    a(f's_mov_b64 {sr(S_ST0 + 2 * k, 2)}, 0')
        a(f's_mov_b32 s{S_CNT}, 0')

    def decode(vrow, vnt):
        a(f's_lshl2_add_u32 s{S_JJ}, s{S_H}, s{S_D}\ns_and_b32 s{S_C}, s{S_W}, 3')
        a(f's_and_b32 s31, s{S_R}, 7\ns_lshl3_add_u32 s30, s{S_H}, s31\ns_cmp_lt_u32 s2, 42\ns_cselect_b32 s30, s2, s30')
        a(f'v_bfe_u32 v{vrow}, v0, 1, 3')
        a(f'v_lshrrev_b32 v10, 4, v0\nv_and_b32 v11, 1, v0\nv_lshlrev_b32 v11, 4, v11\nv_lshl_or_b32 v{vnt}, v10, 5, v11')

    V_R8, V_NT, V_TR, V_AR, V_L16, V_XA, V_MA, V_DM = 1, 2, 3, 4, 5, 6, 7, 9

    def dma(srdn, nt, lds0, bar=-1, BLK=BLK, qout=None):
        a(f's_lshl_b32 s30, s{S_C}, 1\ns_mul_i32 s31, s30, {BLK}\ns_add_u32 m0, s31, {lds0}')
        a(f's_mul_i32 s30, s30, s{S_A}\ns_add_u32 s30, s30, s{S_BASE}\ns_add_u32 s31, s30, s{S_A}')
        for t in range(nt):
            for u in range(2):
                k = 2 * t + u
                if k == bar:
                    a('s_barrier')
                if k == 8 and qout:
                    a(f's_cmp_eq_u32 s{S_ROLE}, 2\ns_cbranch_scc1 {qout}')
                a(f'buffer_load_dwordx4 v{V_DM}, {sr(srdn, 4)}, s{30 + u} offen {WFL} lds')
                if k < 2 * nt - 1:
                    a(f's_addk_i32 m0, {BLK if u == 0 else 7 * BLK}\ns_add_u32 s{30 + u}, s{30 + u}, s{S_Bs}')

    QA, QD, SC = 8, 24, 4
    RING = 32
    slot = lambda k: RING + 4 * k
    NL = cfg['NL']
    NSYNC = 56 + NL
    ACC = slot(0)
    parked = lambda n: 4 <= n < 4 + NL
    kslot = lambda n: slot((n - 4) % 8) if parked(n) else slot(n if n < 4 else n - NL)
    vidx = lambda i: 8 + (56 - NL + i) % 48
    vslot = lambda i: slot(vidx(i))
    S_LX = 27
    assert 8 <= NL <= 16
    if cfg['abl'] & 1024:
        a('v_and_b32 v4, 7, v0\nv_lshrrev_b32 v5, 3, v0\nv_lshlrev_b32 v4, 4, v4\nv_lshl_or_b32 v1, v5, 9, v4')
    else:
        a('v_and_b32 v4, 7, v0\nv_and_b32 v5, 48, v0\nv_lshl_or_b32 v1, v4, 9, v5\nv_and_b32 v5, 8, v0\nv_lshl_or_b32 v1, v5, 3, v1')
    a(f's_lshl3_add_u32 s32, s{S_B}, s{S_H}\ns_lshl2_add_u32 s32, s32, 3\ns_lshl_b32 s32, s32, 20')
    if cfg['km']:
        tab = lambda c: sum((lin(c, x) >> 12) << (8 * x) for x in range(4))
        a(f's_lshl_b32 s31, s{S_D}, 3\ns_lshr_b32 s37, {tab(KM[1])}, s31\ns_lshl_b32 s31, s{S_W}, 3\ns_lshr_b32 s36, {tab(KM[0])}, s31')
        a('s_or_b32 s36, s36, s37\ns_lshl_b32 s36, s36, 24\ns_lshr_b32 s36, s36, 12\ns_lshl_b32 s37, s37, 24\ns_lshr_b32 s37, s37, 12')
    else:
        a(f's_lshl_b32 s37, s{S_D}, 15\ns_brev_b32 s31, s{S_W}\ns_lshr_b32 s31, s31, 18\ns_or_b32 s36, s37, s31')
    a(f's_mov_b32 s{SRD_A + 2}, 0x100000\ns_mov_b32 s{SRD_A + 3}, 0x20000')
    a(f's_bitcmp1_b32 14, s{S_ROLE}\ns_cselect_b64 vcc, -1, 0')
    a('s_cbranch_scc1 L_role\nL_k0:')
    a('s_waitcnt lgkmcnt(0)')
    a(f's_add_u32 s{SRD_A}, s{P_K}, s32\ns_addc_u32 s{SRD_A + 1}, s{P_K + 1}, 0')
    stamp(9)

    def stream_setup():
        a('s_branch L_k4\nL_role:')
        decode(6, 7)
        a(f's_movk_i32 s26, 896\ns_mov_b32 s{SRD_C + 2}, 1605632\ns_and_b32 s31, s{S_B}, 4\ns_lshl_b32 s31, s31, 12\ns_add_u32 s30, s30, s31\ns_sub_u32 s31, s{S_JJ}, 4\ns_mulk_i32 s31, 448\ns_waitcnt lgkmcnt(0)')
        a(f's_cmp_eq_u32 s{S_ROLE}, 1\ns_cmovk_i32 s26, 5376\ns_cmov_b32 s{SRD_C + 2}, 2408448\ns_cselect_b64 {sr(SRD_C, 2)}, {sr(P_WM, 2)}, {sr(P_W2, 2)}')
        a(f's_cmp_eq_u32 s{S_ROLE}, 2\ns_cmovk_i32 s26, 8192\ns_cmov_b32 s{SRD_C + 2}, 3670016\ns_cselect_b64 {sr(SRD_C, 2)}, {sr(P_WQ, 2)}, {sr(SRD_C, 2)}')
        a(f's_lshl_b32 s{S_A}, s26, 3\ns_lshl_b32 s{S_Bs}, s26, 6')
        a(f's_cmp_eq_u32 s{S_ROLE}, 3\ns_cmovk_i32 s{S_Bs}, 128\ns_cselect_b32 s30, s31, s30\ns_lshl_b32 s{S_BASE}, s30, 7')
        a(f's_mov_b32 s{SRD_C + 3}, 0x20000')
        a(f'v_mad_u32_u24 v{V_DM}, v6, s26, v7')
        if cfg['abl'] & 2:
            a('s_barrier')
        else:
            dma(SRD_C, 7, L_W, bar=cfg['dbar'], qout='L_k0')
        a('s_branch L_k0\nL_k4:')
        common()
        a(f's_lshl_b32 s{S_LX}, s{S_W}, 14\ns_add_u32 s{S_LX}, s{S_LX}, {L_X}')

    vdone = 0
    g0 = NL // 4
    regg = [0] + list(range(g0 + 1, 16))
    korder = [regg[2], regg[0], regg[1]]
    rest = regg[3:]
    for p in range(1, g0 + 1, 2):
        korder += [('rd', p)] + rest[:1] + [g for g in (p, p + 1) if g <= g0]
        rest = rest[1:]
    korder += rest
    kdone = set()
    qn = [0]

    def qk_post(gi, d):
        t, u = gi >> 2, gi & 3
        dpp('v_add_f32', SC + u, d + 1, d, 'row_ror:8', 1 << t, 0x3)
        dpp('v_add_f32', SC + u, d + 2, d + 3, 'row_ror:8', 1 << t, 0xc)

    def qk_some(landed, maxn):
        prev = None
        while korder and maxn:
            g = korder[0]
            if isinstance(g, tuple):
                for n in range(4 * g[1], min(4 * g[1] + 8, NL + 4)):
                    a(f'ds_read_b128 {vr(kslot(n), 4)}, v3 offset:{1024 * (n - 4)}')
                korder.pop(0)
                continue
            if 4 * g + 3 > landed:
                break
            korder.pop(0)
            maxn -= 1
            if parked(4 * g) and g % 2 == 1:
                a('s_waitcnt lgkmcnt(0)')
            d = QD + 4 * (qn[0] & 1)
            qn[0] += 1
            for j in range(4):
                a(f'v_mfma_f32_16x16x32_bf16 {vr(d, 4)}, {vr(QA + 4 * j, 4)}, {vr(kslot(4 * g + j), 4)}, {vr(d, 4) if j else 0}')
            if prev:
                qk_post(*prev)
            prev = (g, d)
            kdone.add(g)
        if prev:
            qk_post(*prev)
            if len(kdone) == 16:
                a(f's_lshl_b32 s31, s{S_W}, 10\nv_lshl_add_u32 v3, v0, 4, s31\nds_write_b128 v3, {vr(SC, 4)} offset:{L_SC}\ns_waitcnt lgkmcnt(0)')
                flag_add(F_SC, 4)
                stamp(3)

    def perms(dst_of, e0, G, r):
        lo, hi = vslot(8 * G + e0) + r, vslot(8 * G + e0 + 1) + r
        a(f'v_perm_b32 v{dst_of(2 * r) + e0 // 2}, v{hi}, v{lo}, s38')
        a(f'v_perm_b32 v{dst_of(2 * r + 1) + e0 // 2}, v{hi}, v{lo}, s39')

    def pv_mfma(G, j, b):
        a(f'v_mfma_f32_16x16x32_bf16 {vr(ACC + 4 * j, 4)}, {vr(QD + 4 * (G & 1), 4)}, {vr(b, 4)}, {vr(ACC + 4 * j, 4) if G else 0}')

    def pv_group(G):
        a('s_waitcnt lgkmcnt(0)')
        a(f'ds_read_b128 {vr(QD + 4 * ((G + 1) & 1), 4)}, v3 offset:{L_P + 256 * (G + 1)}')
        tmp = lambda j: QA + 4 * (j & 3)
        for r in range(4):
            for e0 in (0, 2, 4, 6):
                perms(tmp, e0, G, r)
            if r:
                pv_mfma(G, 2 * r - 1, tmp(2 * r - 1))
            pv_mfma(G, 2 * r, tmp(2 * r))
        pv_mfma(G, 7, tmp(7))

    def op_addr(d, t):
        a(f'v_and_b32 v{d}, 7, v0\nv_lshlrev_b32 v{d}, 4, v{d}\nv_and_b32 v{t}, 8, v0\nv_lshl_or_b32 v{d}, v{t}, 5, v{d}\nv_and_b32 v{t}, 16, v0\nv_lshl_or_b32 v{d}, v{t}, 3, v{d}')
        a(f'v_and_b32 v{t}, 32, v0\nv_lshl_or_b32 v{d}, v{t}, 25, v{d}')

    cks = cfg['cks']
    if isinstance(cks, str):
        cks = eval(cks)
    NPW = 64 + cfg['vsync'] + 2
    xops = [m for m in cks for _ in range(2)]
    extra = lambda after, n: sum(1 for m in xops if after <= m < n)
    pend = None
    for n in range(128):
        isk = n < 64
        n0, d, lite, rmask = [x for x in seg if x[0] <= n][-1]
        if n == 4:
            stream_setup()
        if n == n0 and n and rmask >= 0:
            a(f's_bitcmp1_b32 {rmask}, s{S_ROLE}\ns_cselect_b64 vcc, -1, 0')
        if n == 5:
            a('s_cbranch_vccnz L_nb\ns_barrier\nL_nb:')
        if n >= d:
            a(f's_waitcnt vmcnt({d - 1 + extra(n - d, n)})')
        if pend is not None and n - d > cks[pend]:
            k = pend + 1
            a(f's_add_u32 s60, s58, {k}\nv_subrev_u32 v7, s60, v7\nv_cmp_gt_u32 vcc, {16 - k}, v7')
            a('s_bcnt1_i32_b64 s60, vcc\ns_cmp_ge_u32 s60, s59\ns_cselect_b64 vcc, -1, 0')
            pend = None
        if lite and n >= d - lite:
            skip = a.lab('L_dp')
            a(f's_cbranch_vccnz {skip}\ns_waitcnt vmcnt({d - 1 - lite + extra(n - d + lite, n)})\n{skip}:')
        landed = n - d
        if n == d - lite:
            stamp(10)
        if n == 2 * (d - lite):
            stamp(11)
        if n == 120:
            a('s_setprio 3')
        if n == cfg['dflag']:
            assert seg[0][3] == 14 and n >= 5
            skip = a.lab('L_df')
            a(f's_cbranch_vccz {skip}\ns_waitcnt vmcnt({cfg["dflag"]})\n{skip}:')
            flag_add(F_S1, 4)
        if n == NSYNC:
            stamp(1)
            if not cfg['abl'] & 9:
                spin_lds(F_Q, 1, 4)
            stamp(2)
            a('v_lshrrev_b32 v4, 1, v0\nv_and_b32 v4, 1, v4\nv_and_b32 v5, 1, v0\nv_lshrrev_b32 v6, 4, v0\nv_lshlrev_b32 v6, 4, v6')
            a('v_lshl_or_b32 v6, v5, 6, v6\nv_lshl_or_b32 v3, v4, 9, v6')
            for j in range(4):
                a(f'ds_read_b128 {vr(QA + 4 * j, 4)}, v3 offset:{L_Q + 128 * j}')
            a(f'v_lshl_add_u32 v3, v0, 4, s{S_LX}')
            a('s_waitcnt lgkmcnt(0)')
            qk_some(landed, 1 if NL >= 8 else 2)
        if isk:
            if n >= NSYNC:
                assert (n - 56) // 4 in kdone
            if n and n % 4 == 0:
                a(f's_xor_b32 s36, s36, {lin(KM[2], n >> 2) ^ lin(KM[2], (n >> 2) - 1)}')
            if parked(n):
                a(f's_add_u32 m0, s{S_LX}, {1024 * (n - 4) - 128 * (n & 3)}')
                a(f'buffer_load_dwordx4 v1, {sr(SRD_A, 4)}, s36 offen offset:{128 * (n & 3)} nt lds')
            else:
                a(f'buffer_load_dwordx4 {vr(kslot(n), 4)}, v1, {sr(SRD_A, 4)}, s36 offen offset:{128 * (n & 3)} nt')
        else:
            i = n - 64
            if i < 48:
                kn = vidx(i) + NL
                assert kn >= 64 or kn // 4 in kdone, (i, kdone)
            else:
                assert vdone > (i - 48) // 8
            a(f's_add_u32 s30, s37, {lin(KM[2], i >> 2) + lin(KM[0], i & 3)}')
            a(f'buffer_load_dwordx4 {vr(vslot(i), 4)}, v2, {sr(SRD_B, 4)}, s30 offen nt')
        if n == 8:
            a(f'v_and_b32 v4, 7, v0\nv_lshrrev_b32 v5, 3, v0\nv_lshlrev_b32 v4, 4, v4\nv_lshl_or_b32 v2, v5, 9, v4')
            a(f's_lshl_b32 s31, s{S_W}, 7\ns_or_b32 s37, s37, s31')
            a(f's_add_u32 s{SRD_B}, s{P_V}, s32\ns_addc_u32 s{SRD_B + 1}, s{P_V + 1}, 0\ns_mov_b32 s{SRD_B + 2}, 0x100000\ns_mov_b32 s{SRD_B + 3}, 0x20000')
            srd(SRD_WS, P_WS, WS_SIZE)
            a('s_mov_b32 s38, 0x05040100\ns_mov_b32 s39, 0x07060302')
            if cks:
                a(f's_load_dword s58, {sr(P_WS, 2)}, 0')
                a(f's_and_b32 s57, s{S_R}, 1\ns_lshl1_add_u32 s56, s{S_H}, s57\ns_lshl_b32 s56, s56, 9\ns_add_u32 s56, s56, {WS_PRG}\ns_lshr_b32 s57, s{S_R}, 1')
                a(f's_lshl2_add_u32 s57, s57, s{S_W}\ns_lshl1_add_u32 s57, s57, s56')
                a('s_xor_b32 s56, s56, 512')
                a(f's_cmp_eq_u32 s{S_H}, 0\ns_cselect_b32 s59, {cfg["thr0"]}, {cfg["thr"]}\ns_cmp_eq_u32 s{S_ROLE}, 3\ns_cselect_b32 s59, 0, s59')
        if n in cks:
            assert pend is None and not (NSYNC - d - 1 <= n <= NSYNC + 4) and n + d + 1 < 128 and n > 8
            pend = cks.index(n)
            if pend == 0:
                a('s_waitcnt lgkmcnt(0)\ns_add_u32 s58, s58, 1\ns_lshl_b32 s58, s58, 4\ns_and_b32 s58, s58, 0xffff')
            a(f'v_lshlrev_b32 v7, 1, v0\ns_add_u32 s60, s58, {pend + 1}\nv_mov_b32 v4, s60')
            a(f'buffer_load_ushort v7, v7, {sr(SRD_WS, 4)}, s56 offen sc1')
            a(f's_mov_b64 exec, 1\nbuffer_store_short v4, off, {sr(SRD_WS, 4)}, s57\ns_mov_b64 exec, -1')
        if n == cfg['ktrig']:
            assert n < NSYNC
            flag_add(F_KT, 4)
        if n == cfg['mtrig']:
            flag_add(F_MT, 4)
        if n == NPW:
            assert n < 112
            a(f's_lshl2_add_u32 s32, s{S_H}, s{S_W}\ns_lshl2_add_u32 s32, s32, s{S_D}\ns_lshl3_add_u32 s32, s32, s{S_B}\ns_lshl_b32 s32, s32, 9\ns_add_u32 s32, s32, {WS_OP}')
            pair_srd(8, 40)
        if n == 112:
            a(f's_lshl3_add_u32 s30, s{S_H}, s{S_D}\ns_mul_i32 s30, s30, 448\ns_add_u32 s30, s30, s{S_B}\ns_lshl2_add_u32 s31, s{S_H}, s{S_D}\ns_sub_u32 s31, s31, 4')
            a(f's_movk_i32 s26, 896\ns_movk_i32 s25, {BLK}\ns_mov_b32 s{SRD_C + 2}, 3670016\ns_mov_b32 s{SRD_C + 3}, 0x20000')
            a(f's_cmp_eq_u32 s{S_ROLE}, 3\ns_cmovk_i32 s26, 3584\ns_cmovk_i32 s25, {BLS}\ns_cmov_b32 s{SRD_C + 2}, 1605632')
            a(f's_cselect_b64 {sr(SRD_C, 2)}, {sr(P_W1, 2)}, {sr(P_WO, 2)}\ns_cselect_b32 s30, s31, s30\ns_lshl_b32 s30, s30, 7')
            a(f's_lshl_b32 s31, s{S_W}, 4\ns_mul_i32 s31, s31, s26\ns_add_u32 s{S_A}, s30, s31\ns_lshl3_add_u32 s{S_Bs}, s26, s{S_A}')
            a(f's_add_u32 s{S_BASE}, s{S_A}, 229376\ns_add_u32 s{S_XO}, s{S_Bs}, 229376')
            a(f's_lshl_b32 s31, s{S_W}, 1\ns_mul_i32 s31, s31, s25\ns_add_u32 m0, s31, {L_W}\ns_mul_i32 s24, s25, 7')
            a('v_bfe_u32 v4, v0, 1, 3\nv_and_b32 v5, 48, v0\nv_and_b32 v6, 1, v0\nv_lshlrev_b32 v5, 1, v5\nv_lshl_or_b32 v5, v6, 4, v5\nv_mad_u32_u24 v1, v4, s26, v5')
        if n == 127:
            for k, so in enumerate((S_A, S_Bs, S_BASE, S_XO)):
                if cfg['abl'] & 512:
                    a(f's_mov_b32 s{SRD_C + 2}, 0')
                a(f'buffer_load_dwordx4 v1, {sr(SRD_C, 4)}, s{so} offen nt lds')
                if k < 3:
                    a(f's_add_u32 m0, m0, s{24 if k == 1 else 25}')
        if n == cfg['fn'] and cfg['fpre']:
            flag_add(F_S4, 4, 16)
        if n >= NSYNC and korder:
            qk_some(landed, 4)
        if n == 64 + cfg['vsync']:
            assert len(kdone) == 16
            stamp(4)
            if not cfg['abl'] & 9:
                spin_lds(F_P, 1, 4, two=True)
            stamp(5)
            a(f'v_readfirstlane_b32 s{S_E}, v5\ns_sub_u32 s{S_FAST}, s31, 1')
            a('v_lshrrev_b32 v4, 1, v0\nv_and_b32 v4, 1, v4\nv_and_b32 v5, 1, v0\nv_lshrrev_b32 v6, 4, v0\nv_lshlrev_b32 v6, 5, v6')
            a('v_lshl_or_b32 v6, v5, 4, v6\nv_lshl_or_b32 v3, v4, 7, v6')
            a(f'ds_read_b128 {vr(QD, 4)}, v3 offset:{L_P}')
        if n >= 64 + cfg['vsync'] and vdone < 7 and 64 + 8 * vdone + 7 <= landed:
            pv_group(vdone)
            vdone += 1
    assert vdone == 7, vdone
    op_addr(8, 9)
    a('s_movk_i32 s31, 0xff')
    tag8(9)
    big = lambda j: vslot(24 + j)
    for pr in range(4):
        if 6 - 2 * pr < DV:
            a(f's_waitcnt vmcnt({10 - 2 * pr})')
        if pr < 3:
            for r in range(4):
                perms(big, 2 * pr, 7, r)
    stamp(6)
    a('s_waitcnt lgkmcnt(0)')

    def pv_post(j):
        d = ACC + 4 * j
        dpp('v_add_f32', 4 + (j & 3), d + 1, d, 'row_ror:8', 1 << (j >> 2), 0x3)
        dpp('v_add_f32', 4 + (j & 3), d + 2, d + 3, 'row_ror:8', 1 << (j >> 2), 0xc)
    perms(big, 6, 7, 0)
    perms(big, 6, 7, 1)
    pv_mfma(7, 0, big(0))
    perms(big, 6, 7, 2)
    pv_mfma(7, 1, big(1))
    perms(big, 6, 7, 3)
    for j in range(2, 8):
        pv_mfma(7, j, big(j))
        if j >= 4:
            pv_post(j - 4)
    for j in range(4, 8):
        pv_post(j)
    a('v_bfi_b32 v4, s31, v9, v4')
    a('s_mov_b32 exec_hi, 0')
    pair_store(4, 8, 32, 8, 40)
    a('s_mov_b32 exec_hi, -1')
    if not cfg['abl'] & 17:
        a(f's_cmp_eq_u32 s{S_ROLE}, 3\ns_cbranch_scc1 L_fs')
    a('s_waitcnt vmcnt(2)\ns_barrier')
    stamp(7)
    a('s_barrier\ns_branch L_exit')
    a('L_fs:\ns_barrier')
    stamp(7)
    a('s_waitcnt vmcnt(0)')
    flag_add(F_S2, 12)
    a(f's_cmp_lt_u32 s{S_W}, 3\ns_cbranch_scc1 L_fhelp')
    a('s_branch L_exit')

    W56, W112, T0 = 88, 144, 12
    MASK8 = 's[36:37]'

    def trread(dst, nops, vaddr):
        for s in range(nops):
            for rp in range(2):
                a(f'ds_read_b64_tr_b16 {vr(dst + 4 * s + 2 * rp, 2)}, v{vaddr} offset:{s * 4 * BLK + rp * 128}')

    a('L_chain:')
    if cfg['prio']:
        a(f's_setprio {cfg["prio"]}')
    a('v_mov_b32 v4, 0\nv_mov_b32 v5, 0\nv_mov_b32 v6, 0\nv_mov_b32 v7, 0\nv_lshlrev_b32 v8, 4, v0\nds_write_b128 v8, v[4:7]')
    common()
    if cfg['stamps']:
        a(f's_mov_b64 {sr(S_ST0 + 18, 2)}, 0')
    decode(V_R8, V_NT)
    a(f'v_lshlrev_b32 v{V_L16}, 4, v0')
    a(f'v_and_b32 v11, 7, v0\nv_lshrrev_b32 v12, 3, v0\nv_lshlrev_b32 v13, 4, v11')
    a(f'v_mul_u32_u24 v{V_XA}, 896, v11\nv_lshl_add_u32 v{V_XA}, v12, 4, v{V_XA}\nv_lshl_or_b32 v{V_MA}, v12, 8, v13')
    a(f'v_lshl_or_b32 v{V_AR}, v10, 7, v13')
    a(f's_add_u32 s{S_KB1}, s{S_C}, 4\ns_min_u32 s{S_KB1}, s{S_KB1}, 6')
    a(f's_and_b32 s31, s{S_B}, 4\ns_lshl_b32 s31, s31, 15\ns_add_u32 s31, s31, {WS_Q}\ns_cmp_eq_u32 s{S_ROLE}, 1\ns_cselect_b32 s31, {WS_MOD}, s31\ns_lshl_b32 s{S_DST}, s30, 11\ns_add_u32 s{S_DST}, s{S_DST}, s31')
    a(f's_lshl_b32 s31, s{S_C}, 9\ns_add_u32 s{S_DST}, s{S_DST}, s31')
    a(f's_lshl_b32 s30, s{S_C}, 7\ns_lshl_b32 s31, s{S_KB1}, 7\nv_mov_b32 v13, 0')
    a(f's_mov_b32 s{SRD_C + 2}, 7168\ns_mov_b32 s{SRD_C + 3}, 0x20000')
    a('s_waitcnt lgkmcnt(0)\ns_barrier')
    if cfg['abl'] & 1:
        a('s_branch L_exit')
    srd(SRD_WS, P_WS, WS_SIZE)
    a(f's_cmp_eq_u32 s{S_ROLE}, 1\ns_cselect_b64 {sr(SRD_C, 2)}, {sr(P_C, 2)}, {sr(P_X, 2)}')
    epoch = f's_load_dword s{S_E}, {sr(P_WS, 2)}, 0'
    if cfg['pref']:
        skip = a.lab('L_np')
        a(f's_cmp_eq_u32 s{S_R}, 6\ns_cbranch_scc0 {skip}')
        a('s_getpc_b64 s[24:25]\nL_pc0:')
        a(f's_sub_u32 s24, s24, L_pc0-{NAME}_kernel\ns_subb_u32 s25, s25, 0')
        a(f's_lshl_b32 s26, s{S_C}, 13\nv_lshl_add_u32 v12, v0, 7, s26\nv_min_u32 v12, L_end-{NAME}_kernel, v12')
        a('global_load_dword v15, v12, s[24:25]')
        a(f'{skip}:')
    a(epoch)
    a('s_cmp_ge_u32 s2, 14\ns_cbranch_scc0 L_xl')
    spin_lds(F_S1, 4, 14)
    a('L_xl:')
    a(f's_lshl_b32 s26, s{S_KB1}, 7\ns_bitcmp1_b32 6, s{S_ROLE}\ns_cbranch_scc0 L_c0')
    a(f'buffer_load_dwordx4 v[228:231], v{V_XA}, {sr(SRD_C, 4)}, s30 offen')
    a(f'buffer_load_dwordx4 v[232:235], v{V_XA}, {sr(SRD_C, 4)}, s26 offen')
    a('L_c0:')
    a(f'v_mul_u32_u24 v{V_TR}, {BLK}, v10\nv_and_b32 v13, 15, v0\nv_lshl_add_u32 v{V_TR}, v13, 3, v{V_TR}')
    a(f's_lshl_b32 s26, s{S_C}, 8\ns_add_u32 s26, s26, {L_W}\nv_add_u32 v{V_TR}, s26, v{V_TR}')
    a('s_mov_b32 s36, 0x00ff00ff\ns_mov_b32 s37, 0x00ff00ff\nv_mov_b32 v85, 0')
    a('s_waitcnt vmcnt(0) lgkmcnt(0)')
    a(f's_add_u32 s{S_E}, s{S_E}, 1')
    a(f's_getreg_b32 s{S_XO}, hwreg(HW_REG_XCC_ID, 0, 3)\ns_lshl_b32 s{S_XO}, s{S_XO}, 29\ns_and_b32 s30, s{S_E}, 0x1fffffff\ns_or_b32 s{S_XO}, s{S_XO}, s30')
    a(f's_cmp_eq_u32 s{S_C}, 1\ns_cbranch_scc0 L_c1')
    a(f's_lshl_b32 s30, s{S_H}, 8\ns_lshl_b32 s31, s{S_R}, 2\ns_add_u32 s30, s30, s31\ns_add_u32 s30, s30, {WS_CEN}')
    a(f'v_mov_b32 v12, 0\nv_mov_b32 v14, s{S_XO}\ns_mov_b64 exec, 1\nbuffer_store_dword v14, v12, {sr(SRD_WS, 4)}, s30 offen\ns_mov_b64 exec, -1')
    a('L_c1:')
    a(f's_cmp_eq_u32 s{S_ROLE}, 0\ns_cbranch_scc1 L_mid')
    a(f's_cmp_eq_u32 s{S_ROLE}, 3\ns_cbranch_scc1 L_gemm0')
    for k in range(8):
        a(f'v_lshlrev_b32 v{12 + 2 * k}, 16, v{228 + k}\nv_and_b32 v{13 + 2 * k}, 0xffff0000, v{228 + k}')
    a(f's_cmp_eq_u32 s{S_ROLE}, 2\ns_cbranch_scc1 L_actQ')
    a(f's_mov_b32 s26, {LOG2E | 0x80000000:#x}')
    for k in range(16):
        a(f'v_mul_f32 v{28 + k}, s26, v{12 + k}')
    for k in range(16):
        a(f'v_exp_f32 v{28 + k}, v{28 + k}')
    for k in range(16):
        a(f'v_add_f32 v{28 + k}, 1.0, v{28 + k}')
    a('s_mov_b32 s27, 0x7f7fffff')
    for k in range(16):
        a(f'v_min_f32 v{28 + k}, s27, v{28 + k}')
    for k in range(16):
        a(f'v_rcp_f32 v{44 + k}, v{28 + k}')
    for k in range(0, 16, 2):
        a(f'v_pk_mul_f32 {vr(60 + k, 2)}, {vr(12 + k, 2)}, {vr(44 + k, 2)}')
    for k in range(0, 16, 2):
        a(f'v_pk_fma_f32 {vr(12 + k, 2)}, {vr(60 + k, 2)}, {vr(28 + k, 2)}, {vr(12 + k, 2)} neg_lo:[1,0,0] neg_hi:[1,0,0]')
    for k in range(0, 16, 2):
        a(f'v_pk_fma_f32 {vr(12 + k, 2)}, {vr(12 + k, 2)}, {vr(44 + k, 2)}, {vr(60 + k, 2)}')
    a('s_branch L_actW')

    def ln_scalars(mean, var, t):
        rnd(mean, mean)
        rnd(var, var)
        a(f'v_add_f32 v{var}, 0x3727c5ac, v{var}')
        rnd(var, var)
        a(f'v_sqrt_f32 v{var}, v{var}')
        rnd(t, var)
        a(f'v_rcp_f32 v{var}, v{t}')

    def ln_norm(x, n, mean2, rs2, exact=None):
        for k in range(0, n, 2):
            a(f'v_pk_add_f32 {vr(x + k, 2)}, {vr(x + k, 2)}, {vr(mean2, 2)} op_sel_hi:[1,0] neg_lo:[0,1] neg_hi:[0,1]')
        for k in range(n):
            rnd(x + k, x + k)
        for k in range(0, n, 2):
            a(f'v_pk_mul_f32 {vr((exact or x) + k, 2)}, {vr(x + k, 2)}, {vr(rs2, 2)} op_sel_hi:[1,0]')
        if exact:
            for k in range(0, n, 2):
                a(f'v_pk_fma_f32 {vr(x + k, 2)}, {vr(exact + k, 2)}, {vr(rs2, 2)}, {vr(x + k, 2)} op_sel:[0,1,0] op_sel_hi:[1,1,1] neg_lo:[1,0,0] neg_hi:[1,0,0]')
            for k in range(0, n, 2):
                a(f'v_pk_fma_f32 {vr(x + k, 2)}, {vr(x + k, 2)}, {vr(rs2, 2)}, {vr(exact + k, 2)} op_sel_hi:[1,0,1]')
        for k in range(n):
            rnd(x + k, x + k)

    def ln_mod(x, n, c1, sh):
        for k in range(0, n, 2):
            a(f'v_pk_mul_f32 {vr(x + k, 2)}, {vr(x + k, 2)}, {vr(c1 + k, 2)}')
        for k in range(n):
            rnd(x + k, x + k)
        for k in range(0, n, 2):
            a(f'v_pk_add_f32 {vr(x + k, 2)}, {vr(x + k, 2)}, {vr(sh + k, 2)}')

    def mod_params(blk_shift, blk_scale, sh, c1, raw, kbs):
        nb = len(kbs)
        for q, base in enumerate((blk_shift, blk_scale)):
            for j, kb in enumerate(kbs):
                a(f's_lshl_b32 s{24 + nb * q + j}, s{kb}, 11\ns_add_u32 s{24 + nb * q + j}, s{24 + nb * q + j}, {WS_MOD + base * 2048}')
        poll(a.lab('m'), [(raw + 8 * q + 4 * h, f'buffer_load_dwordx3 {vr(raw + 8 * q + 4 * h, 3)}, v{V_MA}, {sr(SRD_WS, 4)}, s{24 + q} offen offset:{128 * h} sc1')
                          for q in range(2 * nb) for h in range(2)], False)
        for k in range(2 * nb):
            for dw in range(2):
                a(f'v_lshlrev_b32 v{sh + 4 * k + 2 * dw}, 16, v{raw + 4 * k + 1 + dw}\nv_and_b32 v{sh + 4 * k + 2 * dw + 1}, 0xffff0000, v{raw + 4 * k + 1 + dw}')
                a(f'v_lshlrev_b32 v{c1 + 4 * k + 2 * dw}, 16, v{raw + 8 * nb + 4 * k + 1 + dw}\nv_and_b32 v{c1 + 4 * k + 2 * dw + 1}, 0xffff0000, v{raw + 8 * nb + 4 * k + 1 + dw}')
        for k in range(8 * nb):
            a(f'v_add_f32 v{c1 + k}, 1.0, v{c1 + k}')
        for k in range(8 * nb):
            rnd(c1 + k, c1 + k)

    def write_act(x):
        for k in range(8):
            a(f'v_cvt_pk_bf16_f32 v{x + k}, v{x + 2 * k}, v{x + 2 * k + 1}')
        a(f's_lshl_b32 s30, s{S_C}, 10\ns_lshl_b32 s31, s{S_KB1}, 10\nv_add_u32 v10, s30, v{V_L16}\nv_add_u32 v11, s31, v{V_L16}')
        a(f'ds_write_b128 v10, {vr(x, 4)} offset:{L_A}\nds_write_b128 v11, {vr(x + 4, 4)} offset:{L_A}')

    def stats_setup():
        a(f'v_lshrrev_b32 v47, 5, v0\nv_and_b32 v45, 0x70, v{V_AR}\nv_lshl_or_b32 v47, v47, 7, v45\ns_lshl_b32 s30, s{S_C}, 2\nv_add_u32 v47, s30, v47')
        a(f's_cmp_eq_u32 s{S_C}, 3\ns_cselect_b32 s30, 0, 1.0\nv_mov_b32 v44, s30')

    def stats_local():
        for q in range(2):
            x, p = 12 + 8 * q, 28 + 6 * q
            a(f'v_pk_add_f32 {vr(p, 2)}, {vr(x, 2)}, {vr(x + 2, 2)}\nv_pk_mul_f32 {vr(p + 2, 2)}, {vr(x, 2)}, {vr(x, 2)}\nv_pk_add_f32 {vr(p + 4, 2)}, {vr(x + 4, 2)}, {vr(x + 6, 2)}')
        for k in (2, 4, 6):
            for q in range(2):
                x, p = 12 + 8 * q, 28 + 6 * q
                a(f'v_pk_fma_f32 {vr(p + 2, 2)}, {vr(x + k, 2)}, {vr(x + k, 2)}, {vr(p + 2, 2)}')
                if k == 2:
                    a(f'v_pk_add_f32 {vr(p, 2)}, {vr(p, 2)}, {vr(p + 4, 2)}')
        a('v_pk_fma_f32 v[28:29], v[34:35], v[44:45], v[28:29] op_sel_hi:[1,0,1]\nv_pk_fma_f32 v[30:31], v[36:37], v[44:45], v[30:31] op_sel_hi:[1,0,1]')
        a('v_add_f32 v28, v28, v29\nv_add_f32 v30, v30, v31')
        a('v_permlane32_swap_b32 v28, v30\nv_add_f32 v28, v28, v30')
        a('v_mov_b32 v30, v28\nv_permlane16_swap_b32 v28, v30\nv_add_f32 v28, v28, v30')
        dpp('v_add_f32', 28, 28, 28, 'row_ror:8')
        a(f'ds_write_b32 v47, v28 offset:{L_ST}\ns_waitcnt lgkmcnt(0)')

    def stats_final():
        a(f'ds_read_b128 v[28:31], v45 offset:{L_ST}\nds_read_b128 v[32:35], v45 offset:{L_ST + 128}\ns_waitcnt lgkmcnt(0)')
        a('v_pk_add_f32 v[28:29], v[28:29], v[30:31]\nv_pk_add_f32 v[32:33], v[32:33], v[34:35]')
        a('v_add_f32 v28, v28, v29\nv_add_f32 v30, v32, v33\nv_mul_f32 v28, 0x3b124925, v28\nv_mul_f32 v30, 0x3b124925, v30')
        a('v_fma_f32 v30, -v28, v28, v30\nv_max_f32 v30, 0, v30')

    a('L_actQ:')
    stats_setup()
    stats_local()
    flag_add(F_S3, 10)
    spin_lds(F_S3, 4, 10)
    stats_final()
    ln_scalars(28, 30, 31)
    a(f's_cmp_lt_u32 s{S_B}, 4\ns_cselect_b32 s{S_KB1}, s{S_C}, s{S_KB1}\ns_cbranch_scc1 L_qh0')
    for k in range(8):
        a(f'v_mov_b32 v{12 + k}, v{20 + k}')
    a('L_qh0:')
    ln_norm(12, 8, 28, 30, exact=44)
    spin_lds(F_MT, 1, 10)
    stamp(1)
    census(76)
    mod_params(0, 7, 28, 44, 144, (S_KB1,))
    census_done(76)
    stamp(2)
    ln_mod(12, 8, 44, 28)
    for k in range(4):
        a(f'v_cvt_pk_bf16_f32 v{12 + k}, v{12 + 2 * k}, v{13 + 2 * k}')
    a(f's_lshl_b32 s30, s{S_C}, 10\nv_add_u32 v10, s30, v{V_L16}\nds_write_b128 v10, v[12:15] offset:{L_A}\ns_waitcnt lgkmcnt(0)')
    flag_add(F_S1, 10)
    spin_lds(F_S1, 8, 10)
    stamp(3)

    def gemm(n):
        for s in range(n):
            a(f'ds_read_b128 {vr(T0 + 4 * s, 4)}, v{V_AR} offset:{L_A + 512 * s}')
        a('s_waitcnt lgkmcnt(0)')
        for s in range(n):
            a(f'v_mfma_f32_16x16x32_bf16 v[68:71], {vr(W56 + 4 * s, 4)}, {vr(T0 + 4 * s, 4)}, {"v[68:71]" if s else 0}')
    trread(W56, 8, V_TR)
    gemm(8)
    a(f'v_and_b32 v12, 7, v0\nv_and_b32 v13, 48, v0\nv_lshl_or_b32 v12, v12, 8, v13\ns_lshl_b32 s30, s{S_C}, 6\nv_add_u32 v12, s30, v12')
    tag2(32)
    a(f'ds_write_b128 v12, v[68:71] offset:{L_A + 4096}\ns_waitcnt lgkmcnt(0)')
    flag_add(F_S4, 10)
    spin_lds(F_S4, 4, 10)
    a(f's_lshl_b32 s30, s{S_C}, 9\nv_add_u32 v12, s30, v{V_L16}\nds_read_b128 v[72:75], v12 offset:{L_A + 4096}\ns_waitcnt lgkmcnt(0)')
    for j in range(4):
        a(f'v_bfi_b32 v{72 + j}, 3, v{32 + j}, v{72 + j}')
    a('s_mov_b32 exec_hi, 0')
    group_store(f'buffer_store_dwordx4 v[72:75], v{V_L16}, {sr(SRD_WS, 4)}, s{S_DST} offen')
    a('s_mov_b64 exec, -1\ns_branch L_pub')

    a('L_actW:')
    write_act(12)
    a('L_gemm0:')
    a('s_waitcnt lgkmcnt(0)')
    flag_add(F_S1, 10)
    spin_lds(F_S1, 8, 10)
    stamp(3)
    trread(W56, 14, V_TR)
    a(f's_cmp_eq_u32 s{S_ROLE}, 3\ns_cbranch_scc1 L_mid')
    gemm(14)
    a(f'v_mov_b32 v72, s{S_E}\nv_mov_b32 v75, s{S_E}')
    a('v_cvt_pk_bf16_f32 v73, v68, v69\nv_cvt_pk_bf16_f32 v74, v70, v71')
    a(f's_mov_b64 exec, {MASK8}')
    a(f'buffer_store_dwordx4 v[72:75], v{V_AR}, {sr(SRD_WS, 4)}, s{S_DST} offen sc1')
    a('s_mov_b64 exec, -1')
    a('L_pub:')
    stamp(4)

    a('L_mid:')
    a('s_waitcnt lgkmcnt(0)')
    flag_add(F_VT, 12)
    a(f's_cmp_eq_u32 s{S_C}, 0\ns_cbranch_scc0 L_noq')
    spin_lds(F_KT, 1, 12)
    a(f's_lshl_b32 s30, s{S_H}, 14\ns_lshl_b32 s31, s{S_B}, 8\ns_add_u32 s30, s30, s31\ns_add_u32 s30, s30, {WS_Q}\ns_add_u32 s31, s30, 8192')
    a(f'v_lshrrev_b32 v12, 4, v0\nv_and_b32 v14, 0xf0, v{V_L16}\nv_lshl_or_b32 v14, v12, 11, v14\nv_lshlrev_b32 v15, 3, v0')
    a('s_add_u32 s24, s30, 0x20000\ns_add_u32 s25, s31, 0x20000')
    tag2(32)
    poll('q', [(16 + 4 * k, f'buffer_load_dwordx4 {vr(16 + 4 * k, 4)}, v14, {sr(SRD_WS, 4)}, s{(30, 31, 24, 25)[k]} offen sc1') for k in range(4)], 2)
    for k in range(0, 8, 2):
        a(f'v_pk_add_f32 {vr(16 + k, 2)}, {vr(16 + k, 2)}, {vr(24 + k, 2)}')
    for k in range(4):
        a(f'v_cvt_pk_bf16_f32 v{16 + k}, v{16 + 2 * k}, v{17 + 2 * k}')
    a(f'ds_write_b64 v15, v[16:17] offset:{L_Q}\nds_write_b64 v15, v[18:19] offset:{L_Q + 512}\ns_waitcnt lgkmcnt(0)')
    flag_add(F_Q, 12)
    stamp(5)
    a('L_noq:')
    F_SH, F_C1 = 52, 68
    a(f's_cmp_eq_u32 s{S_ROLE}, 3\ns_cbranch_scc0 L_nofp')
    spin_lds(F_Q, 1, 12)
    mod_params(21, 28, F_SH, F_C1, 144, (S_C, S_KB1))
    a(f's_lshl_b32 s30, s{S_C}, 12\ns_add_u32 s30, s30, {L_PAR}\nv_add_u32 v12, s30, v{V_L16}')
    for k, r in enumerate((F_SH + 8, F_SH + 12, F_C1 + 8, F_C1 + 12)):
        a(f'ds_write_b128 v12, {vr(r, 4)} offset:{1024 * k}')
    a('L_nofp:')
    a(f's_cmp_eq_u32 s{S_C}, 1\ns_cbranch_scc0 L_nosm')
    a(f's_lshl_b32 s26, s{S_B}, 3\ns_or_b32 s26, s26, s{S_H}\ns_lshl_b32 s26, s26, 9\ns_add_u32 s26, s26, {WS_ML}\ns_lshl_b32 s27, s{S_D}, 7\ns_add_u32 s27, s27, s26')
    a('v_lshrrev_b32 v13, 4, v0')
    a(f'v_mov_b32 v49, v{V_AR}')
    a('v_and_b32 v50, 15, v0\nv_lshlrev_b32 v50, 4, v50\nv_lshl_or_b32 v50, v13, 9, v50')
    a('s_mov_b32 s32, 0x3db8aa3b')
    spin_lds(F_KT, 1, 12)
    census(48)
    spin_lds(F_VT, 4, 12)
    spin_lds(F_SC, 4, 12)
    a('s_waitcnt vmcnt(0)')
    census_done(48)
    stamp(6)
    for w in range(4):
        a(f'ds_read_b128 {vr(12 + 4 * w, 4)}, v{V_L16} offset:{L_SC + 1024 * w}')
    a('s_waitcnt lgkmcnt(0)')
    for k in range(16):
        rnd(12 + k, 12 + k)
    a('v_max3_f32 v45, v12, v13, v14')
    for k in range(15, 27, 2):
        a(f'v_max3_f32 v45, v45, v{k}, v{k + 1}')
    a('v_max_f32 v45, v45, v27')

    def head_allreduce(op, x, t):
        dpp(op, x, x, x, 'quad_perm:[1,0,3,2]')
        dpp(op, x, x, x, 'quad_perm:[2,3,0,1]')
        dpp(op, x, x, x, 'row_half_mirror')
        rows_allreduce(op, x, t)

    def exps(m):
        for k in range(16):
            a(f'v_sub_f32 v{28 + k}, v{12 + k}, v{m}')
        for k in range(16):
            a(f'v_mul_f32 v{28 + k}, s32, v{28 + k}')
        for k in range(16):
            a(f'v_exp_f32 v{28 + k}, v{28 + k}')
    head_allreduce('v_max_f32', 45, 47)
    exps(45)
    for st in (8, 4, 2):
        for k in range(0, st, 2):
            a(f'v_pk_add_f32 {vr(28 + k, 2)}, {vr(28 + k, 2)}, {vr(28 + st + k, 2)}')
    a('v_add_f32 v46, v28, v29')
    head_allreduce('v_add_f32', 46, 47)
    a(f's_and_b32 s30, s{S_E}, 0xffff\ns_lshr_b32 s31, s{S_E}, 16\nv_or_b32 v28, s30, v45\nv_mov_b32 v29, v46\nv_mov_b32 v30, s31')
    a('v_mov_b32_dpp v31, v46 row_ror:8 row_mask:0xf bank_mask:0xf')
    dpp('v_or_b32', 30, 45, 30, 'row_ror:8')
    a('s_mov_b64 exec, 0xff')
    group_store(f'buffer_store_dwordx4 v[28:31], v{V_L16}, {sr(SRD_WS, 4)}, s27 offen')
    a('s_mov_b64 exec, -1')
    a('s_mov_b32 s30, 0x05040100')
    for k in range(4):
        a(f'v_mov_b32_dpp v{32 + k}, v{28 + k} row_newbcast:0 row_mask:0xf bank_mask:0xf')
    a(f's_lshl_b32 s31, s{S_D}, 4\ns_lshl_b64 s[8:9], 0xffff, s31\ns_not_b64 s[8:9], s[8:9]')
    a('L_mlpoll:')
    a(f's_mov_b64 exec, s[8:9]\nbuffer_load_dwordx4 v[32:35], v49, {sr(SRD_WS, 4)}, s26 offen sc1\ns_mov_b64 exec, -1\ns_waitcnt vmcnt(0)')
    a(f'v_perm_b32 v36, v34, v32, s30\nv_cmp_ne_u32 vcc, s{S_E}, v36\ns_cbranch_vccz L_mlgot')
    retry('L_mlpoll')
    a('L_mlgot:')
    stamp(7)
    a(f'v_cndmask_b32 v29, v34, v32, {MASK8}\nv_cndmask_b32 v30, v35, v33, {MASK8}\nv_and_b32 v29, 0xffff0000, v29')
    a('v_mov_b32 v45, v29')
    rows_allreduce('v_max_f32', 45, 47)
    a('v_sub_f32 v29, v29, v45\nv_mul_f32 v29, s32, v29\nv_exp_f32 v29, v29\nv_mul_f32 v46, v29, v30')
    rows_allreduce('v_add_f32', 46, 47)
    a('v_rcp_f32 v46, v46')
    exps(45)
    for k in range(0, 16, 2):
        a(f'v_pk_mul_f32 {vr(28 + k, 2)}, {vr(28 + k, 2)}, v[46:47] op_sel_hi:[1,0]')
    for uh in range(2):
        for dd in range(4):
            u, x = 2 * uh + (dd >> 1), dd & 1
            a(f'v_cvt_pk_bf16_f32 v{12 + 4 * uh + dd}, v{28 + 4 * (2 * x) + u}, v{28 + 4 * (2 * x + 1) + u}')
    a(f'ds_write_b128 v50, v[12:15] offset:{L_P}\nds_write_b128 v50, v[16:19] offset:{L_P + 256}')
    a(f's_add_u32 s30, s{S_FAST}, 1\nv_mov_b32 v20, s30\nv_mov_b32 v21, s{S_E}\nv_mov_b32 v22, 0\ns_waitcnt lgkmcnt(0)\nds_write_b64 v22, v[20:21] offset:{F_P}')
    stamp(8)
    a('L_nosm:')

    if cfg['abl'] & 16:
        a('s_branch L_exit')
    tag8(V_E8)
    a(f's_cmp_eq_u32 s{S_ROLE}, 3\ns_cbranch_scc1 L_ffn\ns_cmp_eq_u32 s{S_B}, 7\ns_cbranch_scc1 L_idle')
    Z_G, Z_X, Z_XA, Z_OA, Z_PA = 80, 72, 84, 85, 52
    S_Z = 39
    a(f's_lshl1_add_u32 s{S_Z}, s{S_R}, s{S_C}\ns_add_u32 s{S_Z}, s{S_Z}, 6\ns_cmp_ge_u32 s{S_Z}, 56\ns_cselect_b32 s30, 56, 0\ns_sub_u32 s{S_Z}, s{S_Z}, s30')
    a(f'v_and_b32 v86, 0xff, v{V_AR}\nv_and_b32 v12, 7, v0\nv_mul_u32_u24 v12, 896, v12\nv_and_b32 v13, 16, v0\nv_lshrrev_b32 v13, 1, v13')
    a(f's_lshl_b32 s27, s{S_Z}, 4\nv_add3_u32 v{Z_OA}, s27, v12, v13')
    a(f's_cmp_ge_u32 s{S_C}, 2\ns_cbranch_scc0 L_noz')
    spin_lds(F_Q, 1, 12)
    a(f's_mov_b64 {sr(SRD_C, 2)}, {sr(P_X, 2)}')
    a(f's_cmp_eq_u32 s{S_H}, 0\ns_cselect_b32 s31, {21 * 2048}, 0\ns_lshl_b32 s30, s{S_Z}, 8\ns_add_u32 s30, s30, s31\ns_add_u32 s30, s30, {WS_MOD + 14 * 2048}')
    a(f'buffer_load_dwordx2 v[20:21], v{Z_OA}, {sr(SRD_C, 4)}, 0 offen')
    a(f'L_zpoll:\nbuffer_load_dwordx3 v[16:18], v86, {sr(SRD_WS, 4)}, s30 offen sc1\ns_waitcnt vmcnt(0)')
    a(f'v_cmp_ne_u32 vcc, s{S_E}, v16\ns_cbranch_vccz L_zgot')
    retry('L_zpoll')
    a('L_zgot:')
    for d, r in ((Z_G, 17), (Z_G + 2, 18), (Z_X, 20), (Z_X + 2, 21)):
        a(f'v_lshlrev_b32 v{d}, 16, v{r}\nv_and_b32 v{d + 1}, 0xffff0000, v{r}')
    a('L_noz:')
    a(f'v_and_b32 v13, 40, v0\nv_lshl_or_b32 v{Z_OA}, v13, 24, v{Z_OA}\nv_lshl_or_b32 v{Z_XA}, v13, 24, v86')
    a(f'v_lshrrev_b32 v13, 5, v0\nv_add_u32 v14, {WS_PL - WS_PA}, v{V_L16}')
    for u in range(4):
        a(f's_sub_u32 s30, s{S_H}, {2 * u}\nv_cmp_eq_u32 vcc, s30, v13\nv_cndmask_b32 v{Z_PA + u}, v{V_L16}, v14, vcc')
    a(f's_lshl_b32 s{S_A}, s{S_Z}, 12\ns_add_u32 s{S_Bs}, s{S_A}, {WS_PF}\ns_add_u32 s{S_A}, s{S_A}, {WS_PA}')
    a(f's_lshl_b32 s32, s{S_H}, 6\ns_add_u32 s32, s32, s{S_Z}\ns_lshl_b32 s32, s32, 8\ns_add_u32 s32, s32, {WS_X1}')
    a('v_and_b32 v13, 1, v0\nv_lshlrev_b32 v13, 4, v13\nv_mov_b32 v14, 0x3f80\nv_lshlrev_b32 v14, v13, v14\nv_bfe_u32 v13, v0, 1, 2')
    for k in range(4):
        a(f'v_cmp_eq_u32 vcc, {k}, v13\nv_cndmask_b32 v{76 + k}, 0, v14, vcc')
    htags(13)
    a(f's_lshl_b32 s24, s{S_JJ}, 14\ns_lshl_b32 s30, s{S_C}, 7\ns_add_u32 s24, s24, s30\ns_add_u32 s24, s24, {WS_OP}')
    a('s_add_u32 s25, s24, 4096\ns_add_u32 s26, s24, 8192\ns_add_u32 s27, s24, 12288')
    a('v_and_b32 v12, 7, v0\nv_lshrrev_b32 v13, 3, v0\nv_lshlrev_b32 v14, 4, v12\nv_lshl_or_b32 v40, v13, 9, v14')
    if cfg['swz']:
        a('v_add_u32 v15, v12, v13\nv_and_b32 v15, 7, v15\nv_lshlrev_b32 v15, 4, v15\nv_lshl_or_b32 v41, v12, 7, v15')
        a('v_lshrrev_b32 v16, 4, v0\nv_add_u32 v15, v12, v16\nv_and_b32 v15, 7, v15\nv_lshlrev_b32 v15, 4, v15\nv_lshl_or_b32 v44, v16, 7, v15\nv_xor_b32 v45, 64, v44')
    else:
        a(f'v_lshlrev_b32 v15, 4, v13\nv_lshl_or_b32 v41, v12, 7, v15\nv_mov_b32 v44, v{V_AR}\nv_mov_b32 v45, v{V_AR}')
    a(f's_lshr_b32 s30, s{S_C}, 1\ns_lshl_b32 s30, s30, 10\ns_and_b32 s31, s{S_C}, 1\ns_lshl3_add_u32 s30, s31, s30\nv_add_u32 v41, s30, v41')
    a('v_and_b32 v13, 24, v0\nv_lshl_or_b32 v14, v13, 25, v14\nv_lshrrev_b32 v13, 5, v0\nv_lshl_or_b32 v42, v13, 12, v14')
    a(f's_lshl2_add_u32 s{S_DST}, s{S_B}, s{S_C}\ns_lshl_b32 s{S_DST}, s{S_DST}, 6\ns_add_u32 s{S_DST}, s{S_DST}, s{S_JJ}\ns_lshl_b32 s{S_DST}, s{S_DST}, 7')
    a(f's_add_u32 s{S_BASE}, s{S_DST}, {WS_PL}\ns_add_u32 s{S_DST}, s{S_DST}, {WS_PA}')
    srd(SRD_C, P_OUT, 7168)
    spin_lds(F_P, 1, 12)
    a(f's_sub_u32 s{S_FAST}, s31, 1')
    pair_srd(44, 56)
    GA = 56
    a('s_movk_i32 s60, 0xff\ns_movk_i32 s61, 0xff')
    a(f's_mov_b64 s[48:49], {sr(P_WS, 2)}\ns_mov_b32 s51, 0x20000\ns_cmp_eq_u32 s{S_H}, 1\ns_cselect_b32 s50, s{SRD_WS + 2}, 0\ns_sub_u32 s{S_KB1}, s32, 0x4000')
    wld = [(12 + 4 * s, f'buffer_load_dwordx4 {vr(12 + 4 * s, 4)}, v40, {sr(SRD_WS, 4)}, s{24 + s} offen sc1') for s in range(4)]
    a('s_barrier')
    stamp(9)
    if cfg['stamps'] == 5:
        a(f's_mov_b32 s{S_CNT}, 1')
    poll('w', wld, True, lambda: trread(W56, 4, V_TR), X=(40, 42, 52, 54))

    def sum4(g=12):
        a(f'v_pk_add_f32 v[14:15], {vr(g + 2, 2)}, {vr(g + 6, 2)}\nv_pk_add_f32 v[22:23], {vr(g + 10, 2)}, {vr(g + 14, 2)}')
        a(f'v_pk_add_f32 v[12:13], {vr(g, 2)}, {vr(g + 4, 2)}\nv_pk_add_f32 v[20:21], {vr(g + 8, 2)}, {vr(g + 12, 2)}')
        a('v_pk_add_f32 v[14:15], v[14:15], v[22:23]\nv_pk_add_f32 v[12:13], v[12:13], v[20:21]')
    if cfg['stamps'] == 5:
        stamp(3)
        a(f's_mov_b32 s{S_ST0 + 8}, s{S_CNT}')
    sum4()
    a('v_cvt_pk_bf16_f32 v12, v12, v13\nv_cvt_pk_bf16_f32 v13, v14, v15')
    a(f'ds_write_b64 v41, v[12:13] offset:{L_A}')
    a('s_waitcnt lgkmcnt(0)\ns_barrier')
    for s in range(4):
        a(f'ds_read_b128 {vr(12 + 4 * s, 4)}, v{44 + (s & 1)} offset:{L_A + 512 * s}')
    for s in range(4):
        a(f's_waitcnt lgkmcnt({3 - s})')
        a(f'v_mfma_f32_16x16x32_bf16 v[28:31], {vr(W56 + 4 * s, 4)}, {vr(12 + 4 * s, 4)}, {"v[28:31]" if s else 0}')
    a(f's_cmp_eq_u32 s{S_H}, 0')
    a('\n'.join(hpack(48, 28)))
    a('v_permlane16_swap_b32 v49, v51\nv_permlane16_swap_b32 v48, v50')
    a('s_mov_b64 exec, s[60:61]')
    a(f'buffer_store_dwordx4 v[48:51], v42, {sr(SRD_WS, 4)}, s{S_DST} offen sc1')
    stamp(10)
    a('s_cbranch_scc1 L_fin')
    a(f's_cmp_ge_u32 s{S_C}, 2')
    pair_store(48, 42, S_BASE, 44, 56)
    a('s_mov_b64 exec, -1\ns_cbranch_scc0 L_exit')

    hgather('a', GA, lambda u: f'buffer_load_dwordx4 {vr(GA + 4 * u, 4)}, v{Z_PA + u}, {sr(SRD_WS, 4)}, s{S_A} offen offset:{1024 * u} sc1')
    gated = f'v_pk_fma_f32 v[28:29], v[28:29], {vr(Z_G, 2)}, {vr(Z_X, 2)}\nv_pk_fma_f32 v[30:31], v[30:31], {vr(Z_G + 2, 2)}, {vr(Z_X + 2, 2)}'
    a(gated)
    for k in range(4):
        rnd(28 + k, 28 + k)
        if k == 1:
            a(f'v_or_b32 v28, v{V_E8}, v28')
    a('s_mov_b64 exec, 0xff00ff')
    pair_store(28, Z_XA, 32, 44, 56)
    a(f'buffer_store_dwordx4 v[28:31], v{Z_XA}, s[48:51], s{S_KB1} offen sc1')
    stamp(1)
    a('s_branch L_exit' if cfg['stamps'] else 's_endpgm')
    a('L_fin:\ns_mov_b64 exec, -1')
    a(f's_cmp_ge_u32 s{S_C}, 2\ns_cbranch_scc0 L_exit')
    a(f'v_mov_b32 v{GA + 12}, v{V_T0}\nv_mov_b32 v{GA + 13}, v{V_T0}\nv_mov_b32 v{GA + 14}, v{V_T1}\nv_mov_b32 v{GA + 15}, v{V_T1}')
    ldf = lambda u: f'buffer_load_dwordx4 {vr(GA + 4 * u, 4)}, v{V_L16}, {sr(SRD_WS, 4)}, s{S_Bs} offen offset:{1024 * u} sc1'
    for u in range(4):
        a(ldf(u) if u < 3 else f's_mov_b32 exec_hi, 0\n{ldf(u)}\ns_mov_b32 exec_hi, -1')
    a(f'L_ypoll:\nbuffer_load_dwordx4 {vr(Z_X, 4)}, v86, {sr(SRD_WS, 4)}, s32 offen sc1\ns_waitcnt vmcnt(0)')
    a(f'v_cmp_ne_u32_sdwa vcc, v{Z_X}, v{V_E8} src0_sel:BYTE_0 src1_sel:DWORD\ns_cbranch_vccz L_ygot')
    retry('L_ypoll')
    a(f'L_ygot:\nv_xor_b32 v{Z_X}, v{V_E8}, v{Z_X}')
    hgather('f', GA, ldf, True)
    a(gated)
    a('v_cvt_pk_bf16_f32 v28, v28, v29\nv_cvt_pk_bf16_f32 v29, v30, v31')
    a('s_mov_b64 exec, 0xff00ff')
    a(f'buffer_store_dwordx2 v[28:29], v{Z_OA}, {sr(SRD_C, 4)}, 0 offen')
    stamp(2)
    a('s_branch L_exit' if cfg['stamps'] else 's_endpgm')

    a(f'L_idle:\ns_or_b32 s30, s{S_D}, s{S_C}\ns_cbranch_scc1 L_exit')
    a(f's_barrier\ns_barrier\ns_mov_b32 s32, {WS_X1}\nv_and_b32 v52, 0x70, v{V_L16}\nv_mov_b32 v43, s{S_E}')
    a(f'L_ipoll:\nbuffer_load_dword v12, v52, {sr(SRD_WS, 4)}, s32 offen sc1\ns_waitcnt vmcnt(0)')
    a(f'v_cmp_ne_u32_sdwa vcc, v12, v{V_E8} src0_sel:BYTE_0 src1_sel:DWORD\ns_cbranch_vccz L_igot')
    retry('L_ipoll')
    a(f'L_igot:\ns_mov_b64 exec, 1\nbuffer_store_dword v43, off, {sr(SRD_WS, 4)}, 0 sc1')
    if cfg['wb']:
        a('buffer_wbl2 sc1')
    if cfg['stamps']:
        stamp(1)
        a('s_waitcnt vmcnt(0)')
        stamp(11)
    a('s_branch L_exit')

    a('L_ffn:')
    a(f's_sub_u32 s{S_JJ}, s{S_JJ}, 4')
    srd(SRD_A, P_W1, 1605632)
    srd(SRD_B, P_W3, 1605632)
    a(f's_movk_i32 s32, 3584\ns_movk_i32 s{S_A}, 28672\ns_mov_b32 s{S_Bs}, 229376\ns_lshl_b32 s{S_BASE}, s{S_JJ}, 7')
    a(f'v_mad_u32_u24 v{V_DM}, v{V_R8}, s32, v{V_NT}')
    a(f'v_lshrrev_b32 v12, 5, v0\nv_bfe_u32 v13, v0, 3, 1\nv_lshl_or_b32 v12, v12, 1, v13\nv_mul_u32_u24 v12, {BLS}, v12')
    a('v_and_b32 v13, 16, v0\nv_lshl_add_u32 v12, v13, 3, v12\nv_and_b32 v13, 7, v0\nv_lshl_add_u32 v12, v13, 3, v12')
    a(f's_lshl_b32 s30, s{S_C}, 8\ns_add_u32 s30, s30, {L_W}\nv_add_u32 v{V_TR}, s30, v12\nv_add_u32 v46, {56 * BLK}, v{V_TR}')
    a(f'v_and_b32 v14, 0x70, v{V_L16}\nv_lshrrev_b32 v13, 5, v0\nv_lshl_or_b32 v14, v13, 12, v14\nv_and_b32 v13, 24, v0\nv_lshl_or_b32 v48, v13, 12, v14')
    a('v_add_u32 v13, 8, v13\nv_and_b32 v13, 32, v13\nv_lshl_or_b32 v8, v13, 25, v48')
    a(f's_lshl_b32 s{S_DST}, s{S_JJ}, 7\ns_lshl_b32 s30, s{S_C}, 13\ns_add_u32 s{S_DST}, s{S_DST}, s30\ns_add_u32 s{S_DST}, s{S_DST}, {WS_PF}\ns_add_u32 s20, s{S_DST}, 0x20000')
    htags(13)
    a(f'v_mov_b32 v50, v{V_TW}')
    a('v_and_b32 v12, 7, v0\nv_lshlrev_b32 v12, 1, v12\nv_and_b32 v13, 8, v0\nv_lshl_or_b32 v12, v13, 4, v12\nv_and_b32 v13, 48, v0\nv_lshl_or_b32 v12, v13, 1, v12')
    a(f's_lshl_b32 s30, s{S_C}, 8\nv_add_u32 v49, s30, v12')
    a(f's_mov_b32 s39, {LOG2E | 0x80000000:#x}')
    a('v_and_b32 v12, 1, v0\nv_mul_u32_u24 v51, 0xaaaa, v12\nv_add_u32 v51, 0x4444, v51')
    a('v_lshlrev_b32 v12, 7, v12\nv_lshl_or_b32 v12, v13, 4, v12\nv_and_b32 v13, 14, v0\nv_lshl_or_b32 v10, v13, 3, v12')
    for k in list(range(76, 88)) + list(range(60, 68)) + list(range(40, 44)):
        a(f'v_mov_b32 v{k}, 0')
    a(f's_mov_b32 s{S_KB1}, s{S_C}')
    a(f's_add_u32 s{S_BASE}, s{S_BASE}, {2 * 229376}\ns_waitcnt vmcnt(0)')
    if cfg['fpre']:
        spin_lds(F_S4, 16 * cfg['fthr'], 12)
    dma(SRD_A, 5, L_W + 16 * BLS, bar=cfg['fpre'], BLK=BLS)
    a(f's_sub_u32 s{S_BASE}, s{S_BASE}, {2 * 229376}')
    dma(SRD_B, 7, L_W + 56 * BLK, bar=cfg['fpre'] - 10, BLK=BLS)
    for m, va in enumerate((V_TR, 46)):
        if cfg['stamps'] == 3 and m == 0:
            stamp(1)
        a(f's_waitcnt vmcnt({0 if m else 14})')
        if cfg['stamps'] == 3:
            stamp(4 if m else 2)
        flag_add(F_S3 if m else F_S2, 12)
        spin_lds(F_S3 if m else F_S2, 4 if m else 8, 12)
        for kb in range(7):
            for rp in range(4):
                a(f'ds_read_b64_tr_b16 {vr(W112 + 56 * m + 8 * kb + 2 * rp, 2)}, v{va} offset:{(8 * kb + 4 * (rp >> 1)) * BLS + (rp & 1) * 64}')
    a('s_branch L_ln')
    a('L_fhelp:')
    a(f's_mov_b64 exec, -1\ns_add_u32 s{S_KB1}, s{S_W}, 4')
    a(f'v_lshlrev_b32 v{V_L16}, 4, v0\nv_lshrrev_b32 v12, 3, v0\nv_and_b32 v13, 0x70, v{V_L16}\nv_lshl_or_b32 v{V_MA}, v12, 8, v13')
    a(f'v_mov_b32 v{V_E8}, v9')
    spin_lds(F_S3, 4, 12)
    a(f's_lshl_b32 s30, s{S_W}, 12\ns_add_u32 s30, s30, {L_PAR}\nv_add_u32 v12, s30, v{V_L16}')
    for k, r in enumerate((F_SH, F_SH + 4, F_C1, F_C1 + 4)):
        a(f'ds_read_b128 {vr(r, 4)}, v12 offset:{1024 * k}')
    a('L_ln:')
    a(f's_lshl_b32 s24, s{S_KB1}, 11\ns_add_u32 s24, s24, {WS_X1}')
    a(f's_lshl_b32 s31, s{S_H}, 14\ns_add_u32 s24, s24, s31')
    a(f'v_and_b32 v12, 7, v0\nv_and_b32 v13, 32, v0\nv_lshlrev_b32 v13, 3, v13\nv_lshl_or_b32 v45, v12, 5, v13\ns_lshl_b32 s30, s{S_KB1}, 2\nv_add_u32 v47, s30, v45')
    a(f's_lshl_b32 s30, s{S_KB1}, 10\nv_add_u32 v44, s30, v{V_L16}')
    a('s_waitcnt lgkmcnt(0)')
    stamp(9)
    poll('x', [(12 + 4 * h, f'buffer_load_dwordx4 {vr(12 + 4 * h, 4)}, v{V_MA}, {sr(SRD_WS, 4)}, s24 offen offset:{128 * h} sc1') for h in range(2)], True, X=(12, 14))
    stamp(10)
    if cfg['stamps'] == 4:
        a(f's_memtime {sr(S_ST0 + 2, 2)}')
    a('v_pk_mul_f32 v[30:31], v[14:15], v[14:15]\nv_pk_add_f32 v[28:29], v[14:15], v[18:19]\nv_pk_mul_f32 v[34:35], v[12:13], v[12:13]\nv_pk_add_f32 v[32:33], v[12:13], v[16:17]')
    a('v_pk_fma_f32 v[30:31], v[18:19], v[18:19], v[30:31]\nv_pk_fma_f32 v[34:35], v[16:17], v[16:17], v[34:35]')
    a('v_pk_add_f32 v[28:29], v[28:29], v[32:33]\nv_pk_add_f32 v[30:31], v[30:31], v[34:35]')
    a('v_add_f32 v28, v28, v29\nv_add_f32 v30, v30, v31')
    a('v_permlane32_swap_b32 v28, v30\nv_add_f32 v28, v28, v30')
    a('v_mov_b32 v30, v28\nv_permlane16_swap_b32 v28, v30\nv_add_f32 v28, v28, v30')
    dpp('v_add_f32', 28, 28, 28, 'row_ror:8')
    a(f'ds_write_b32 v47, v28 offset:{L_ST2}')
    a('s_waitcnt lgkmcnt(0)\ns_barrier')
    if cfg['stamps'] == 2:
        stamp(1)
    a(f'ds_read_b128 v[28:31], v45 offset:{L_ST2}\nds_read_b128 v[32:35], v45 offset:{L_ST2 + 16}')
    a('s_waitcnt lgkmcnt(0)')
    a('v_pk_add_f32 v[28:29], v[28:29], v[30:31]\nv_pk_add_f32 v[32:33], v[32:33], v[34:35]\nv_pk_add_f32 v[28:29], v[28:29], v[32:33]')
    a('v_add_f32 v29, v28, v29\nv_mul_f32 v28, 0x3b124925, v29\nv_mul_f32 v30, 0x3b124925, v29\nv_permlane32_swap_b32 v28, v30')
    a('v_fma_f32 v30, -v28, v28, v30')
    rnd(28, 28)
    a('v_max_f32 v30, 0, v30')
    sub = [f'v_pk_add_f32 {vr(12 + k, 2)}, {vr(12 + k, 2)}, v[28:29] op_sel_hi:[1,0] neg_lo:[0,1] neg_hi:[0,1]' for k in range(0, 8, 2)]
    sub += [f'v_cvt_pk_bf16_f32 v{12 + k}, 0, v{12 + k}' for k in range(8)]
    chain = ['v_cvt_pk_bf16_f32 v30, 0, v30', 'v_add_f32 v30, 0x3727c5ac, v30', 'v_cvt_pk_bf16_f32 v30, 0, v30', 'v_sqrt_f32 v30, v30',
             'v_cvt_pk_bf16_f32 v30, 0, v30', 'v_rcp_f32 v30, v30']
    if cfg['lnx']:
        for k in range(6):
            a(chain[k])
            a(sub[2 * k])
            a(sub[2 * k + 1])
        for k in range(0, 8, 2):
            a(f'v_pk_mul_f32 {vr(12 + k, 2)}, {vr(12 + k, 2)}, v[30:31] op_sel_hi:[1,0]')
        for k in range(8):
            rnd(12 + k, 12 + k)
        ln_mod(12, 8, F_C1, F_SH)
    else:
        sub = sub[:4] + [f'v_pk_mul_f32 {vr(12 + k, 2)}, {vr(12 + k, 2)}, {vr(F_C1 + k, 2)}' for k in range(0, 8, 2)]
        for k in range(6):
            a(chain[k])
            a(sub[k])
        a(sub[6])
        a(sub[7])
        for k in range(0, 8, 2):
            a(f'v_pk_fma_f32 {vr(12 + k, 2)}, {vr(12 + k, 2)}, v[30:31], {vr(F_SH + k, 2)} op_sel_hi:[1,0,1]')
    for k in range(4):
        a(f'v_cvt_pk_bf16_f32 v{12 + k}, v{12 + 2 * k}, v{13 + 2 * k}')
    a(f'ds_write_b128 v44, v[12:15] offset:{L_A}')
    a(f's_cmp_lt_u32 s{S_W}, 4\ns_cbranch_scc1 L_fhx')
    a('s_waitcnt lgkmcnt(0)\ns_barrier')
    if cfg['stamps'] == 2:
        stamp(2)
        a('s_waitcnt lgkmcnt(0)')
    for kb in range(7):
        a(f'ds_read_b128 {vr(12 + 4 * kb, 4)}, v10 offset:{L_A + 1024 * kb}')
    for kb in range(7):
        a(f's_waitcnt lgkmcnt({6 - kb})')
        a(f'v_smfmac_f32_16x16x64_bf16 v[76:79], {vr(12 + 4 * kb, 4)}, {vr(W112 + 8 * kb, 8)}, v51')
    gate = ['s_nop 1', 's_nop 2',
            'v_add_f32 v76, v76, v77\nv_add_f32 v77, v78, v79',
            'v_cvt_pk_bf16_f32 v76, 0, v76\nv_cvt_pk_bf16_f32 v77, 0, v77',
            'v_mul_f32 v78, s39, v76\nv_mul_f32 v79, s39, v77',
            'v_exp_f32 v78, v78', 'v_exp_f32 v79, v79']
    for kb in range(7):
        a(f'v_smfmac_f32_16x16x64_bf16 v[80:83], {vr(12 + 4 * kb, 4)}, {vr(W112 + 56 + 8 * kb, 8)}, v51')
        a(gate[kb])
    a('v_add_f32 v78, 1.0, v78\nv_add_f32 v79, 1.0, v79\nv_rcp_f32 v78, v78\nv_rcp_f32 v79, v79')
    a('v_mul_f32 v78, v78, v76\nv_mul_f32 v79, v79, v77')
    rnd(78, 78)
    a('v_add_f32 v80, v80, v81\nv_add_f32 v81, v82, v83')
    for r in (79, 80, 81):
        rnd(r, r)
    a('v_pk_mul_f32 v[12:13], v[78:79], v[80:81]\nv_cvt_pk_bf16_f32 v12, v12, v13')
    a(f'ds_write_b16 v49, v12 offset:{L_H}\nds_write_b16_d16_hi v49, v12 offset:{L_H + 16}')
    def down(fl):
        a('s_waitcnt lgkmcnt(0)\ns_barrier')
        if cfg['stamps'] == 2:
            stamp(4)
        HB = ((60, 64), (84, 40))
        a(f's_mov_b64 exec, {MASK8}\nds_read_b128 v[60:63], v{V_AR} offset:{L_H}\nds_read_b128 v[64:67], v{V_AR} offset:{L_H + 512}')
        a(f's_not_b64 exec, exec\nds_read_b128 v[84:87], v{V_AR} offset:{L_H}\nds_read_b128 v[40:43], v{V_AR} offset:{L_H + 512}\ns_mov_b64 exec, -1')
        pk = lambda p: [x.replace(f'v{V_TW},', 'v50,') for x in hpack(28 + 2 * p, 12 + 4 * p)]
        put = lambda k: [f'v_permlane16_swap_b32 v{29 + 4 * k}, v{31 + 4 * k}', f'v_permlane16_swap_b32 v{28 + 4 * k}, v{30 + 4 * k}',
                         f'buffer_store_dwordx4 {vr(28 + 4 * k, 4)}, v{8 if k else 48}, {sr(SRD_WS, 4)}, s{20 if k else S_DST} offen {fl}']
        p0, p1, p2, p3, s0 = pk(0), pk(1), pk(2), pk(3), put(0)
        fill = {4: ['s_nop 1'], 5: ['s_nop 2'], 6: p0[:2], 7: p0[2:4], 8: p0[4:6], 9: p0[6:], 10: p1[:3], 11: p1[3:6], 12: p1[6:] + p3[:1], 13: s0 + p3[1:]}
        for n, (i, st) in enumerate([(i, st) for i in (0, 1, 2, 3, 6, 4, 5) for st in range(2)]):
            d = vr(12 + 4 * (i >> 1), 4)
            if n < 4:
                a(f's_waitcnt lgkmcnt({3 - n})')
            a(f'v_mfma_f32_16x16x32_bf16 {d}, {vr(W56 + 8 * i + 4 * st, 4)}, {vr(HB[i & 1][st], 4)}, {d if (st or i & 1) else 0}')
            a('\n'.join(fill.get(n, [])))
        a('\n'.join(p2 + put(1)))
        stamp(11)
        if cfg['stamps'] == 4:
            a(f's_memtime {sr(S_ST0 + 4, 2)}')
    down('sc1')
    a('s_branch L_exit' if cfg['stamps'] else 's_endpgm')
    a('L_fhx:\ns_waitcnt lgkmcnt(0)\ns_barrier\ns_barrier')

    a('L_exit:')
    if cfg['probe']:
        pr = cfg['probe'].split('_')
        cls, k = pr[0][0], int(pr[0][1:])
        a(f's_waitcnt lgkmcnt(0)\ns_cmp_ge_u32 s{S_W}, 4\ns_cbranch_scc{1 if cls == "s" else 0} L_end')
        if cls == 's':
            a('s_barrier\ns_barrier\ns_barrier')
        for f in pr[1:]:
            if f[0] == 'r':
                a(f's_cmp_eq_u32 s{S_ROLE}, {f[1:]}\ns_cbranch_scc0 L_end')
            else:
                a(f's_bitcmp1_b32 {f[1:]}, s{S_H}\ns_cbranch_scc0 L_end')
        a(f's_cmp_eq_u32 s{S_ST0 + 2 * k}, 0\ns_cbranch_scc1 L_end\ns_mov_b32 s{S_CNT}, 0')
        a(f'L_pw:\ns_memrealtime s[30:31]\ns_waitcnt lgkmcnt(0)\ns_sub_u32 s30, s30, s{S_ST0 + 2 * k}\ns_cmp_ge_u32 s30, 6000\ns_cbranch_scc1 L_end')
        a(f's_add_u32 s{S_CNT}, s{S_CNT}, 1\ns_cmp_lt_u32 s{S_CNT}, 100000\ns_cbranch_scc1 L_pw\ns_branch L_end')
    if cfg['stamps']:
        a('s_waitcnt lgkmcnt(0)\ns_mov_b64 exec, 1')
        a(f's_lshl_b32 s30, s2, 3\ns_add_u32 s30, s30, s{S_W}\ns_lshl_b32 s30, s30, 6\ns_add_u32 s30, s30, {WS_STAMP}\nv_mov_b32 v0, s30')
        for q in range(3):
            for k in range(4):
                a(f'v_mov_b32 v{4 + k + 4 * q}, s{S_ST0 + 2 * (4 * q + k)}')
            a(f'global_store_dwordx4 v0, {vr(4 + 4 * q, 4)}, {sr(P_WS, 2)} offset:{16 * q}')
        a(f'v_mov_b32 v16, s{S_CNT}\nglobal_store_dword v0, v16, {sr(P_WS, 2)} offset:48')
    a('L_end:\ns_endpgm')
    a('.section .rodata,"a"\n.p2align 6')
    a(f'.amdhsa_kernel {NAME}_kernel')
    a('.amdhsa_next_free_vgpr 256\n.amdhsa_next_free_sgpr 102\n.amdhsa_accum_offset 256\n.amdhsa_group_segment_fixed_size 0')
    a('.amdhsa_kernarg_size 112\n.amdhsa_user_sgpr_count 2\n.amdhsa_user_sgpr_kernarg_segment_ptr 1\n.amdhsa_system_sgpr_workgroup_id_x 1')
    a('.amdhsa_float_denorm_mode_32 3\n.end_amdhsa_kernel')
    if cfg['abl'] & 4:
        k = a.lines.index('L_chain:')
        a.lines = [l for i, l in enumerate(a.lines) if i > k or not l.startswith(('v_mfma', 'v_perm', 'v_add_f32_dpp', 'ds_read_b128'))]
    return head + a.text()


if __name__ == '__main__':
    kw = {}
    for x in sys.argv[2:]:
        k, v = x.split('=')
        kw[k] = int(v) if v.lstrip('-').isdigit() else v
    open(sys.argv[1], 'w').write(gen(**kw))
```

```python
import sys
from asmlib import Asm, vr, sr

NAME = 'adaLN_cond__sliding_block_cached__glu_gated_swiglu__decode'

WS_EPOCH = 0x0
WS_MOD = 0x1000
WS_Q = 0x300000
WS_ML = 0x40000
WS_CEN = 0x50000
WS_PRG = 0x52000
WS_PL = 0x280000
WS_X1 = 0x60000
WS_OP = 0x80000
WS_PA = 0x100000
WS_PF = 0x180000
WS_STAMP = 0x200000
WS_SIZE = 0x400000

F_Q, F_SC, F_P, F_KT, F_VT, F_S1, F_S2, F_S3, F_S4, F_MT = 0, 4, 8, 16, 20, 24, 28, 32, 36, 40
L_ST, L_ST2 = 0x100, 0x200
L_Q, L_P, L_SC, L_A, L_H, L_W = 0x400, 0x800, 0x1000, 0x2000, 0x3C00, 0x4000
BLK = 1152
BLS = 1088
L_X = L_W + 56 * BLK
L_PAR = L_X + 64 * 1024
LDS_BYTES = L_X + 80 * 1024

S_W, S_H, S_B, S_D, S_R = 3, 4, 5, 6, 7
SRD_A, SRD_B, SRD_WS, SRD_C = 8, 12, 16, 20
S_E, S_C, S_CNT, S_JJ = 28, 29, 33, 34
S_XO, S_FAST, P_DBG = 71, 75, 64
P_X, P_K, P_V, P_WQ, P_WO, P_W1, P_W3, P_W2, P_C, P_WM, P_OUT, P_WS = 40, 42, 44, 46, 48, 52, 54, 56, 58, 60, 62, 66
S_ST0 = 76
SPIN_CAP = 400000
LOG2E = 0x3FB8AA3B

DEF = dict(seg=((0, 8, 3, 14),), cks=(16, 26, 36, 46, 56, 77, 87, 97, 107), thr=40, ktrig=60, mtrig=30, vsync=42, NL=16, dflag=6, dbar=8,
           prio=2, pref=1, wb=1, lnx=0, fast=1, stamps=0, probe='', abl=0, km=None, fpre=6, thr0=26, swz=1, stub=1, lag='wafx',  fthr=4, fn=127)
S_A, S_Bs, S_BASE, S_KB1, S_DST, S_ROLE = 68, 69, 70, 72, 73, 74


def gen(**kw):
    cfg = dict(DEF)
    cfg.update(kw)
    a = Asm()
    seg = cfg['seg']
    if isinstance(seg, str):
        seg = eval(seg)
    DV = seg[-1][1]
    KM = cfg['km'] or ([2, 1], [8, 16], [4, 32, 64, 128])
    lin = lambda cols, x: sum(c for k, c in enumerate(cols) if x >> k & 1) << 12
    WFL = 'nt'

    def stamp(k):
        if cfg['stamps']:
            a(f's_memrealtime {sr(S_ST0 + 2 * k, 2)}')

    def srd(d, p, size):
        a(f's_mov_b32 s{d}, s{p}\ns_mov_b32 s{d + 1}, s{p + 1}\ns_mov_b32 s{d + 2}, {size}\ns_mov_b32 s{d + 3}, 0x20000')

    def retry(lab):
        a(f's_add_u32 s{S_CNT}, s{S_CNT}, 1\ns_cmp_lt_u32 s{S_CNT}, {SPIN_CAP}\ns_cbranch_scc1 {lab}\ns_branch L_exit')

    def spin_lds(flag, n, t, two=False):
        top, done = a.lab('L_spin'), a.lab('L_got')
        a(f'{top}:\nv_mov_b32 v{t}, 0')
        if two:
            a(f'ds_read_b64 {vr(t, 2)}, v{t} offset:{flag}')
        else:
            a(f'ds_read_b32 v{t}, v{t} offset:{flag}')
        a(f's_waitcnt lgkmcnt(0)\nv_readfirstlane_b32 s31, v{t}\ns_cmp_ge_u32 s31, {n}\ns_cbranch_scc1 {done}')
        retry(top)
        a(f'{done}:')

    PEND = (8, 10, 12, 14, 42, 44, 46, 50)

    def reload(p, ins):
        a(f's_quadmask_b64 {sr(p, 2)}, {sr(p, 2)}\ns_bitreplicate_b64_b32 {sr(p, 2)}, s{p}\ns_wqm_b32 s{p}, s{p}\ns_bitreplicate_b64_b32 exec, s{p}\n{ins}')

    def expand(p, x):
        a(f's_quadmask_b64 {sr(p, 2)}, {sr(p, 2)}\ns_bitreplicate_b64_b32 {sr(p, 2)}, s{p}\ns_wqm_b32 s{p}, s{p}\ns_bitreplicate_b64_b32 {sr(x, 2)}, s{p}')

    V_E8 = 11

    def tag8(d):
        a(f'v_and_b32 v{d}, 3, v0\nv_mul_u32_u24 v{d}, 7, v{d}\nv_lshrrev_b32 v{d}, v{d}, s{S_E}\nv_and_b32 v{d}, 0xff, v{d}\nv_bfi_b32 v{d}, 1, s{S_E}, v{d}')

    def tag2(d):
        a(f'v_and_b32 v{d + 3}, 3, v0\nv_mul_u32_u24 v{d + 3}, 6, v{d + 3}\nv_lshrrev_b32 v{d + 3}, v{d + 3}, s{S_E}\nv_mov_b32 v{d}, s{S_E}')
        for j in range(1, 4):
            a(f'v_lshrrev_b32 v{d + j}, {2 * j}, v{d + 3}')

    def poll(name, loads, kind, between=None, X=None):
        top, chk, done = f'L_{name}poll', f'L_{name}chk', f'L_{name}got'
        for r, ins in loads:
            a(ins)
        if between:
            between()
        if name not in cfg['lag']:
            X = None
        for x in X or ():
            a(f's_mov_b64 {sr(x, 2)}, -1')
        a(f's_branch {chk}')
        a(f'{top}:')
        for k, (r, ins) in enumerate(loads):
            if X:
                a(f's_mov_b64 exec, {sr(X[k], 2)}\n{ins}')
            else:
                reload(PEND[k], ins)
        for k, x in enumerate(X or ()):
            expand(PEND[k], x)
        a(f's_mov_b64 exec, -1\ns_add_u32 s{S_CNT}, s{S_CNT}, 1\ns_cmp_lt_u32 s{S_CNT}, {SPIN_CAP}\ns_cbranch_scc0 L_exit')
        a(f'{chk}:')
        a('s_waitcnt vmcnt(0)')
        for k, (r, ins) in enumerate(loads):
            if kind == 2:
                a(f'v_xor_b32 v10, v32, v{r}')
                for j in range(1, 4):
                    a(f'v_bitop3_b32 v10, v10, v{r + j}, v{32 + j} bitop3:0xf6')
                a(f'v_and_b32 v10, 3, v10\nv_cmp_ne_u32_e64 {sr(PEND[k], 2)}, 0, v10')
            elif kind:
                a(f'v_cmp_ne_u32_sdwa {sr(PEND[k], 2)}, v{r}, v{V_E8} src0_sel:BYTE_0 src1_sel:DWORD')
            else:
                a(f'v_cmp_ne_u32_e64 {sr(PEND[k], 2)}, s{S_E}, v{r}')
        a(f's_or_b64 vcc, {sr(PEND[0], 2)}, {sr(PEND[1], 2)}')
        for k in range(2, len(loads)):
            a(f's_or_b64 vcc, vcc, {sr(PEND[k], 2)}')
        a(f's_cbranch_scc1 {top}')
        if kind == 2:
            for r, ins in loads:
                for j in range(4):
                    a(f'v_and_b32 v{r + j}, -4, v{r + j}')
        elif kind:
            for r, ins in loads:
                a(f'v_xor_b32 v{r}, v{V_E8}, v{r}')

    V_T0, V_T1, V_TW = 36, 37, 43

    def htags(t):
        a(f'v_and_b32 v{t}, 7, v0\nv_mul_u32_u24 v{t}, 3, v{t}\nv_lshrrev_b32 v{t}, v{t}, s{S_E}\ns_mov_b32 s38, 0x10001\ns_and_b32 s30, s{S_E}, 1')
        a(f'v_bfe_u32 v{V_T0}, v{t}, 1, 1\nv_lshl_or_b32 v{V_T0}, v{V_T0}, 16, s30')
        a(f'v_bfe_u32 v{V_T1}, v{t}, 2, 1\nv_bfe_u32 v{t}, v{t}, 3, 1\nv_lshl_or_b32 v{V_T1}, v{t}, 16, v{V_T1}')
        a(f'v_mov_b32 v{V_TW}, v{V_T0}\nv_mov_b32_dpp v{V_TW}, v{V_T1} quad_perm:[0,1,2,3] row_mask:0xa bank_mask:0xf')

    def hpack(d, x):
        return [f'v_add_u32 v{x + k}, 0x8000, v{x + k}' for k in range(4)] + [
            f'v_cvt_pk_bf16_f32 v{d + 1}, v{x + 2}, v{x + 3}', f'v_cvt_pk_bf16_f32 v{d}, v{x}, v{x + 1}',
            f'v_bfi_b32 v{d + 1}, s38, v{V_TW}, v{d + 1}', f'v_bfi_b32 v{d}, s38, v{V_TW}, v{d}']

    def hgather(name, g, ld, issued=False):
        top, chk = f'L_{name}poll', f'L_{name}chk'
        if not issued:
            for u in range(4):
                a(ld(u))
        X = (40, 42, 52, 54) if name in cfg['lag'] else None
        for x in X or ():
            a(f's_mov_b64 {sr(x, 2)}, -1')
        if X and issued:
            a(f's_mov_b32 s{X[3] + 1}, 0')
        a(f's_branch {chk}\n{top}:')
        if X:
            for u in range(4):
                a(f's_mov_b64 exec, {sr(X[u], 2)}\n{ld(u)}')
            a('s_mov_b64 exec, -1')
        for u in range(4):
            a(f'v_bitop3_b32 v32, v{12 + 2 * u}, v{13 + 2 * u}, s38 bitop3:0xa8\nv_cmp_ne_u32_e64 {sr(PEND[u], 2)}, 0, v32')
        for u in range(4):
            if X:
                expand(PEND[u], X[u])
            else:
                reload(PEND[u], ld(u))
        a(f's_mov_b64 exec, -1\ns_add_u32 s{S_CNT}, s{S_CNT}, 1\ns_cmp_lt_u32 s{S_CNT}, {SPIN_CAP}\ns_cbranch_scc0 L_exit')
        a(f'{chk}:')
        a('s_waitcnt vmcnt(0)')
        for k in range(8):
            a(f'v_bitop3_b32 v{12 + k}, v{g + 2 * k}, v{g + 2 * k + 1}, v{V_T1 if k & 1 else V_T0} bitop3:0x7e')
        a('v_or3_b32 v32, v12, v13, v14\nv_or3_b32 v33, v15, v16, v17\nv_or3_b32 v32, v32, v18, v19\nv_bitop3_b32 v32, v32, v33, s38 bitop3:0xa8\nv_cmp_ne_u32 vcc, 0, v32')
        a(f's_cbranch_vccnz {top}')
        clean = [f'v_xor_b32 v{g + k}, v{V_T1 if k & 2 else V_T0}, v{g + k}' for k in range(16)]
        a('\n'.join(clean[:6]))
        for u in range(4):
            a(f'v_mfma_f32_16x16x32_bf16 v[28:31], v[76:79], {vr(g + 4 * u, 4)}, {"v[28:31]" if u else 0}')
            a('\n'.join(clean[6 + 4 * u:10 + 4 * u]))
        for k in range(4):
            dpp('v_add_f32', 28 + k, 28 + k, 28 + k, 'row_ror:8')

    def census(t):
        a(f's_lshl_b32 s30, s{S_H}, 8\ns_add_u32 s30, s30, {WS_CEN}\nv_and_b32 v{t}, 31, v0\nv_lshlrev_b32 v{t}, 2, v{t}')
        a(f'buffer_load_dword v{t}, v{t}, {sr(SRD_WS, 4)}, s30 offen sc1')

    def census_done(t):
        a(f'v_cmp_eq_u32 vcc, s{S_XO}, v{t}\ns_bcnt1_i32_b32 s{S_FAST}, vcc_lo')

    def group_store(ins, cond=None):
        slow, done = a.lab('L_st'), a.lab('L_std')
        a(cond or f's_cmp_eq_u32 s{S_FAST}, {32 if cfg["fast"] else 99}')
        a(f's_cbranch_scc0 {slow}\n{ins}\ns_branch {done}\n{slow}:\n{ins} sc1\n{done}:')

    def pair_srd(p, w):
        a(f's_mov_b64 {sr(p, 2)}, {sr(P_WS, 2)}\ns_mov_b64 {sr(w, 2)}, {sr(P_WS, 2)}\ns_mov_b32 s{p + 3}, 0x20000\ns_mov_b32 s{w + 3}, 0x20000')
        a(f's_cmp_eq_u32 s{S_FAST}, {32 if cfg["fast"] else 99}\ns_cselect_b32 s{p + 2}, s{SRD_WS + 2}, 0\ns_cselect_b32 s{w + 2}, 0, s{SRD_WS + 2}')

    def pair_store(data, addr, soff, p, w):
        a(f'buffer_store_dwordx4 {vr(data, 4)}, v{addr}, {sr(p, 4)}, s{soff} offen\nbuffer_store_dwordx4 {vr(data, 4)}, v{addr}, {sr(w, 4)}, s{soff} offen sc1')

    def flag_add(flag, t, inc=1):
        a(f'v_mov_b32 v{t}, 0\nv_mov_b32 v{t + 1}, {inc}\ns_mov_b64 exec, 1\nds_add_u32 v{t}, v{t + 1} offset:{flag}\ns_mov_b64 exec, -1')

    def rnd(d, s):
        a(f'v_cvt_pk_bf16_f32 v{d}, 0, v{s}')

    def rows_allreduce(op, x, t):
        a(f'v_mov_b32 v{t}, v{x}\nv_permlane16_swap_b32 v{x}, v{t}\n{op} v{x}, v{x}, v{t}')
        a(f'v_mov_b32 v{t}, v{x}\nv_permlane32_swap_b32 v{x}, v{t}\n{op} v{x}, v{x}, v{t}')

    def dpp(op, d, s0, s1, ctl, rm=0xf, bm=0xf):
        a(f'{op}_dpp v{d}, v{s0}, v{s1} {ctl} row_mask:{rm:#x} bank_mask:{bm:#x}')

    hdr = open('cdna_kernels/' + NAME + '.s.ref').read().split('; Override launch')[0]
    head = hdr + f'; @launch grid=(256,1,1) block=(512,1,1) lds={LDS_BYTES}\n'
    a('.amdgcn_target "amdgcn-amd-amdhsa--gfx950"\n.text')
    a(f'.globl {NAME}_kernel\n.p2align 8\n.type {NAME}_kernel,@function\n{NAME}_kernel:')
    a('s_load_dwordx16 s[40:55], s[0:1], 0\ns_load_dwordx8 s[56:63], s[0:1], 64\ns_load_dwordx4 s[64:67], s[0:1], 96')
    stamp(0)
    a(f'v_lshrrev_b32 v1, 6, v0\ns_lshr_b32 s{S_B}, s2, 5\ns_cmp_ge_u32 s{S_B}, 8\ns_cbranch_scc1 L_end')
    a(f'v_readfirstlane_b32 s{S_W}, v1\nv_and_b32 v0, 63, v0')
    a(f's_and_b32 s{S_H}, s2, 7\ns_lshr_b32 s{S_R}, s2, 3\ns_and_b32 s{S_D}, s{S_R}, 3')
    a(f's_lshl_b32 s30, s{S_B}, 1\ns_lshr_b32 s{S_ROLE}, 0xcaa0, s30\ns_and_b32 s{S_ROLE}, s{S_ROLE}, 3')
    a(f's_and_b32 s30, s2, 0xe7\ns_cmpk_eq_u32 s30, 0xe0\ns_cselect_b32 s{S_ROLE}, 0, s{S_ROLE}')
    a(f's_cmp_lt_u32 s2, 42\ns_cselect_b32 s{S_ROLE}, 1, s{S_ROLE}')
    a(f's_cmp_ge_u32 s{S_W}, 4\ns_cbranch_scc1 {"L_cstub" if cfg["stub"] else "L_chain"}')
    clear = 'v_mov_b32 v4, 0\nv_mov_b32 v5, 0\nv_mov_b32 v6, 0\nv_mov_b32 v7, 0\nv_lshlrev_b32 v8, 4, v0\nds_write_b128 v8, v[4:7]'

    def common():
        if cfg['stamps']:
            for k in range(1, 12):
                if k != 9:
                    a(f's_mov_b64 {sr(S_ST0 + 2 * k, 2)}, 0')
        a(f's_mov_b32 s{S_CNT}, 0')

    def decode(vrow, vnt):
        a(f's_lshl2_add_u32 s{S_JJ}, s{S_H}, s{S_D}\ns_and_b32 s{S_C}, s{S_W}, 3')
        a(f's_and_b32 s31, s{S_R}, 7\ns_lshl3_add_u32 s30, s{S_H}, s31\ns_cmp_lt_u32 s2, 42\ns_cselect_b32 s30, s2, s30')
        a(f'v_bfe_u32 v{vrow}, v0, 1, 3')
        a(f'v_lshrrev_b32 v10, 4, v0\nv_and_b32 v11, 1, v0\nv_lshlrev_b32 v11, 4, v11\nv_lshl_or_b32 v{vnt}, v10, 5, v11')

    V_R8, V_NT, V_TR, V_AR, V_L16, V_XA, V_MA, V_DM = 1, 2, 3, 4, 5, 6, 7, 9

    def dma(srdn, nt, lds0, bar=-1, BLK=BLK, qout=None):
        a(f's_lshl_b32 s30, s{S_C}, 1\ns_mul_i32 s31, s30, {BLK}\ns_add_u32 m0, s31, {lds0}')
        a(f's_mul_i32 s30, s30, s{S_A}\ns_add_u32 s30, s30, s{S_BASE}\ns_add_u32 s31, s30, s{S_A}')
        for t in range(nt):
            for u in range(2):
                k = 2 * t + u
                if k == bar:
                    a('s_barrier')
                if k == 8 and qout:
                    a(f's_cmp_eq_u32 s{S_ROLE}, 2\ns_cbranch_scc1 {qout}')
                a(f'buffer_load_dwordx4 v{V_DM}, {sr(srdn, 4)}, s{30 + u} offen {WFL} lds')
                if k < 2 * nt - 1:
                    a(f's_addk_i32 m0, {BLK if u == 0 else 7 * BLK}\ns_add_u32 s{30 + u}, s{30 + u}, s{S_Bs}')

    QA, QD, SC = 8, 24, 4
    RING = 32
    slot = lambda k: RING + 4 * k
    NL = cfg['NL']
    NSYNC = 56 + NL
    ACC = slot(0)
    parked = lambda n: 4 <= n < 4 + NL
    kslot = lambda n: slot((n - 4) % 8) if parked(n) else slot(n if n < 4 else n - NL)
    vidx = lambda i: 8 + (56 - NL + i) % 48
    vslot = lambda i: slot(vidx(i))
    S_LX = 27
    assert 8 <= NL <= 16
    if cfg['abl'] & 1024:
        a('v_and_b32 v4, 7, v0\nv_lshrrev_b32 v5, 3, v0\nv_lshlrev_b32 v4, 4, v4\nv_lshl_or_b32 v1, v5, 9, v4')
    else:
        a('v_and_b32 v4, 7, v0\nv_and_b32 v5, 48, v0\nv_lshl_or_b32 v1, v4, 9, v5\nv_and_b32 v5, 8, v0\nv_lshl_or_b32 v1, v5, 3, v1')
    a(f's_lshl3_add_u32 s32, s{S_B}, s{S_H}\ns_lshl2_add_u32 s32, s32, 3\ns_lshl_b32 s32, s32, 20')
    if cfg['km']:
        tab = lambda c: sum((lin(c, x) >> 12) << (8 * x) for x in range(4))
        a(f's_lshl_b32 s31, s{S_D}, 3\ns_lshr_b32 s37, {tab(KM[1])}, s31\ns_lshl_b32 s31, s{S_W}, 3\ns_lshr_b32 s36, {tab(KM[0])}, s31')
        a('s_or_b32 s36, s36, s37\ns_lshl_b32 s36, s36, 24\ns_lshr_b32 s36, s36, 12\ns_lshl_b32 s37, s37, 24\ns_lshr_b32 s37, s37, 12')
    else:
        a(f's_lshl_b32 s37, s{S_D}, 15\ns_brev_b32 s31, s{S_W}\ns_lshr_b32 s31, s31, 18\ns_or_b32 s36, s37, s31')
    a(f's_mov_b32 s{SRD_A + 2}, 0x100000\ns_mov_b32 s{SRD_A + 3}, 0x20000')
    a(f's_bitcmp1_b32 14, s{S_ROLE}\ns_cselect_b64 vcc, -1, 0')
    a('s_cbranch_scc1 L_role\nL_k0:')
    a('s_waitcnt lgkmcnt(0)')
    a(f's_add_u32 s{SRD_A}, s{P_K}, s32\ns_addc_u32 s{SRD_A + 1}, s{P_K + 1}, 0')
    stamp(9)

    def stream_setup():
        a('s_branch L_k4')
        if cfg['stub']:
            a(f'L_cstub:\n{clear}\ns_waitcnt lgkmcnt(0)\ns_barrier\ns_branch L_chain')
        a('L_role:')
        decode(6, 7)
        a(f's_movk_i32 s26, 896\ns_mov_b32 s{SRD_C + 2}, 1605632\ns_and_b32 s31, s{S_B}, 4\ns_lshl_b32 s31, s31, 12\ns_add_u32 s30, s30, s31\ns_sub_u32 s31, s{S_JJ}, 4\ns_mulk_i32 s31, 448\ns_waitcnt lgkmcnt(0)')
        a(f's_cmp_eq_u32 s{S_ROLE}, 1\ns_cmovk_i32 s26, 5376\ns_cmov_b32 s{SRD_C + 2}, 2408448\ns_cselect_b64 {sr(SRD_C, 2)}, {sr(P_WM, 2)}, {sr(P_W2, 2)}')
        a(f's_cmp_eq_u32 s{S_ROLE}, 2\ns_cmovk_i32 s26, 8192\ns_cmov_b32 s{SRD_C + 2}, 3670016\ns_cselect_b64 {sr(SRD_C, 2)}, {sr(P_WQ, 2)}, {sr(SRD_C, 2)}')
        a(f's_lshl_b32 s{S_A}, s26, 3\ns_lshl_b32 s{S_Bs}, s26, 6')
        a(f's_cmp_eq_u32 s{S_ROLE}, 3\ns_cmovk_i32 s{S_Bs}, 128\ns_cselect_b32 s30, s31, s30\ns_lshl_b32 s{S_BASE}, s30, 7')
        a(f's_mov_b32 s{SRD_C + 3}, 0x20000')
        a(f'v_mad_u32_u24 v{V_DM}, v6, s26, v7')
        if cfg['abl'] & 2:
            a('s_barrier')
        else:
            dma(SRD_C, 7, L_W, bar=cfg['dbar'], qout='L_k0')
        a('s_branch L_k0\nL_k4:')
        common()
        a(f's_lshl_b32 s{S_LX}, s{S_W}, 14\ns_add_u32 s{S_LX}, s{S_LX}, {L_X}')

    vdone = 0
    g0 = NL // 4
    regg = [0] + list(range(g0 + 1, 16))
    korder = [regg[2], regg[0], regg[1]]
    rest = regg[3:]
    for p in range(1, g0 + 1, 2):
        korder += [('rd', p)] + rest[:1] + [g for g in (p, p + 1) if g <= g0]
        rest = rest[1:]
    korder += rest
    kdone = set()
    qn = [0]

    def qk_post(gi, d):
        t, u = gi >> 2, gi & 3
        dpp('v_add_f32', SC + u, d + 1, d, 'row_ror:8', 1 << t, 0x3)
        dpp('v_add_f32', SC + u, d + 2, d + 3, 'row_ror:8', 1 << t, 0xc)

    def qk_some(landed, maxn):
        prev = None
        while korder and maxn:
            g = korder[0]
            if isinstance(g, tuple):
                for n in range(4 * g[1], min(4 * g[1] + 8, NL + 4)):
                    a(f'ds_read_b128 {vr(kslot(n), 4)}, v3 offset:{1024 * (n - 4)}')
                korder.pop(0)
                continue
            if 4 * g + 3 > landed:
                break
            korder.pop(0)
            maxn -= 1
            if parked(4 * g) and g % 2 == 1:
                a('s_waitcnt lgkmcnt(0)')
            d = QD + 4 * (qn[0] & 1)
            qn[0] += 1
            for j in range(4):
                a(f'v_mfma_f32_16x16x32_bf16 {vr(d, 4)}, {vr(QA + 4 * j, 4)}, {vr(kslot(4 * g + j), 4)}, {vr(d, 4) if j else 0}')
            if prev:
                qk_post(*prev)
            prev = (g, d)
            kdone.add(g)
        if prev:
            qk_post(*prev)
            if len(kdone) == 16:
                a(f's_lshl_b32 s31, s{S_W}, 10\nv_lshl_add_u32 v3, v0, 4, s31\nds_write_b128 v3, {vr(SC, 4)} offset:{L_SC}\ns_waitcnt lgkmcnt(0)')
                flag_add(F_SC, 4)
                stamp(3)

    def perms(dst_of, e0, G, r):
        lo, hi = vslot(8 * G + e0) + r, vslot(8 * G + e0 + 1) + r
        a(f'v_perm_b32 v{dst_of(2 * r) + e0 // 2}, v{hi}, v{lo}, s38')
        a(f'v_perm_b32 v{dst_of(2 * r + 1) + e0 // 2}, v{hi}, v{lo}, s39')

    def pv_mfma(G, j, b):
        a(f'v_mfma_f32_16x16x32_bf16 {vr(ACC + 4 * j, 4)}, {vr(QD + 4 * (G & 1), 4)}, {vr(b, 4)}, {vr(ACC + 4 * j, 4) if G else 0}')

    def pv_group(G):
        a('s_waitcnt lgkmcnt(0)')
        a(f'ds_read_b128 {vr(QD + 4 * ((G + 1) & 1), 4)}, v3 offset:{L_P + 256 * (G + 1)}')
        tmp = lambda j: QA + 4 * (j & 3)
        for r in range(4):
            for e0 in (0, 2, 4, 6):
                perms(tmp, e0, G, r)
            if r:
                pv_mfma(G, 2 * r - 1, tmp(2 * r - 1))
            pv_mfma(G, 2 * r, tmp(2 * r))
        pv_mfma(G, 7, tmp(7))

    def op_addr(d, t):
        a(f'v_and_b32 v{d}, 7, v0\nv_lshlrev_b32 v{d}, 4, v{d}\nv_and_b32 v{t}, 8, v0\nv_lshl_or_b32 v{d}, v{t}, 5, v{d}\nv_and_b32 v{t}, 16, v0\nv_lshl_or_b32 v{d}, v{t}, 3, v{d}')
        a(f'v_and_b32 v{t}, 32, v0\nv_lshl_or_b32 v{d}, v{t}, 25, v{d}')

    cks = cfg['cks']
    if isinstance(cks, str):
        cks = eval(cks)
    NPW = 64 + cfg['vsync'] + 2
    xops = [m for m in cks for _ in range(2)]
    extra = lambda after, n: sum(1 for m in xops if after <= m < n)
    pend = None
    for n in range(128):
        isk = n < 64
        n0, d, lite, rmask = [x for x in seg if x[0] <= n][-1]
        if n == 4:
            stream_setup()
        if n == n0 and n and rmask >= 0:
            a(f's_bitcmp1_b32 {rmask}, s{S_ROLE}\ns_cselect_b64 vcc, -1, 0')
        if n == 5:
            a('s_cbranch_vccnz L_nb\ns_barrier\nL_nb:')
        if n >= d:
            a(f's_waitcnt vmcnt({d - 1 + extra(n - d, n)})')
        if pend is not None and n - d > cks[pend]:
            k = pend + 1
            a(f's_add_u32 s60, s58, {k}\nv_subrev_u32 v7, s60, v7\nv_cmp_gt_u32 vcc, {16 - k}, v7')
            a('s_bcnt1_i32_b64 s60, vcc\ns_cmp_ge_u32 s60, s59\ns_cselect_b64 vcc, -1, 0')
            pend = None
        if lite and n >= d - lite:
            skip = a.lab('L_dp')
            a(f's_cbranch_vccnz {skip}\ns_waitcnt vmcnt({d - 1 - lite + extra(n - d + lite, n)})\n{skip}:')
        landed = n - d
        if n == d - lite:
            stamp(10)
        if n == 2 * (d - lite):
            stamp(11)
        if n == 120:
            a('s_setprio 3')
        if n == cfg['dflag']:
            assert seg[0][3] == 14 and n >= 5
            skip = a.lab('L_df')
            a(f's_cbranch_vccz {skip}\ns_waitcnt vmcnt({cfg["dflag"]})\n{skip}:')
            flag_add(F_S1, 4)
        if n == NSYNC:
            stamp(1)
            if not cfg['abl'] & 9:
                spin_lds(F_Q, 1, 4)
            stamp(2)
            a('v_lshrrev_b32 v4, 1, v0\nv_and_b32 v4, 1, v4\nv_and_b32 v5, 1, v0\nv_lshrrev_b32 v6, 4, v0\nv_lshlrev_b32 v6, 4, v6')
            a('v_lshl_or_b32 v6, v5, 6, v6\nv_lshl_or_b32 v3, v4, 9, v6')
            for j in range(4):
                a(f'ds_read_b128 {vr(QA + 4 * j, 4)}, v3 offset:{L_Q + 128 * j}')
            a(f'v_lshl_add_u32 v3, v0, 4, s{S_LX}')
            a('s_waitcnt lgkmcnt(0)')
            qk_some(landed, 1 if NL >= 8 else 2)
        if isk:
            if n >= NSYNC:
                assert (n - 56) // 4 in kdone
            if n and n % 4 == 0:
                a(f's_xor_b32 s36, s36, {lin(KM[2], n >> 2) ^ lin(KM[2], (n >> 2) - 1)}')
            if parked(n):
                a(f's_add_u32 m0, s{S_LX}, {1024 * (n - 4) - 128 * (n & 3)}')
                a(f'buffer_load_dwordx4 v1, {sr(SRD_A, 4)}, s36 offen offset:{128 * (n & 3)} nt lds')
            else:
                a(f'buffer_load_dwordx4 {vr(kslot(n), 4)}, v1, {sr(SRD_A, 4)}, s36 offen offset:{128 * (n & 3)} nt')
        else:
            i = n - 64
            if i < 48:
                kn = vidx(i) + NL
                assert kn >= 64 or kn // 4 in kdone, (i, kdone)
            else:
                assert vdone > (i - 48) // 8
            a(f's_add_u32 s30, s37, {lin(KM[2], i >> 2) + lin(KM[0], i & 3)}')
            a(f'buffer_load_dwordx4 {vr(vslot(i), 4)}, v2, {sr(SRD_B, 4)}, s30 offen nt')
        if n == 8:
            a(f'v_and_b32 v4, 7, v0\nv_lshrrev_b32 v5, 3, v0\nv_lshlrev_b32 v4, 4, v4\nv_lshl_or_b32 v2, v5, 9, v4')
            a(f's_lshl_b32 s31, s{S_W}, 7\ns_or_b32 s37, s37, s31')
            a(f's_add_u32 s{SRD_B}, s{P_V}, s32\ns_addc_u32 s{SRD_B + 1}, s{P_V + 1}, 0\ns_mov_b32 s{SRD_B + 2}, 0x100000\ns_mov_b32 s{SRD_B + 3}, 0x20000')
            srd(SRD_WS, P_WS, WS_SIZE)
            a('s_mov_b32 s38, 0x05040100\ns_mov_b32 s39, 0x07060302')
            if cks:
                a(f's_load_dword s58, {sr(P_WS, 2)}, 0')
                a(f's_and_b32 s57, s{S_R}, 1\ns_lshl1_add_u32 s56, s{S_H}, s57\ns_lshl_b32 s56, s56, 9\ns_add_u32 s56, s56, {WS_PRG}\ns_lshr_b32 s57, s{S_R}, 1')
                a(f's_lshl2_add_u32 s57, s57, s{S_W}\ns_lshl1_add_u32 s57, s57, s56')
                a('s_xor_b32 s56, s56, 512')
                a(f's_cmp_eq_u32 s{S_H}, 0\ns_cselect_b32 s59, {cfg["thr0"]}, {cfg["thr"]}\ns_cmp_eq_u32 s{S_ROLE}, 3\ns_cselect_b32 s59, 0, s59')
        if n in cks:
            assert pend is None and not (NSYNC - d - 1 <= n <= NSYNC + 4) and n + d + 1 < 128 and n > 8
            pend = cks.index(n)
            if pend == 0:
                a('s_waitcnt lgkmcnt(0)\ns_add_u32 s58, s58, 1\ns_lshl_b32 s58, s58, 4\ns_and_b32 s58, s58, 0xffff')
            a(f'v_lshlrev_b32 v7, 1, v0\ns_add_u32 s60, s58, {pend + 1}\nv_mov_b32 v4, s60')
            a(f'buffer_load_ushort v7, v7, {sr(SRD_WS, 4)}, s56 offen sc1')
            a(f's_mov_b64 exec, 1\nbuffer_store_short v4, off, {sr(SRD_WS, 4)}, s57\ns_mov_b64 exec, -1')
        if n == cfg['ktrig']:
            assert n < NSYNC
            flag_add(F_KT, 4)
        if n == cfg['mtrig']:
            flag_add(F_MT, 4)
        if n == NPW:
            assert n < 112
            a(f's_lshl2_add_u32 s32, s{S_H}, s{S_W}\ns_lshl2_add_u32 s32, s32, s{S_D}\ns_lshl3_add_u32 s32, s32, s{S_B}\ns_lshl_b32 s32, s32, 9\ns_add_u32 s32, s32, {WS_OP}')
            pair_srd(8, 40)
        if n == 112:
            a(f's_lshl3_add_u32 s30, s{S_H}, s{S_D}\ns_mul_i32 s30, s30, 448\ns_add_u32 s30, s30, s{S_B}\ns_lshl2_add_u32 s31, s{S_H}, s{S_D}\ns_sub_u32 s31, s31, 4')
            a(f's_movk_i32 s26, 896\ns_movk_i32 s25, {BLK}\ns_mov_b32 s{SRD_C + 2}, 3670016\ns_mov_b32 s{SRD_C + 3}, 0x20000')
            a(f's_cmp_eq_u32 s{S_ROLE}, 3\ns_cmovk_i32 s26, 3584\ns_cmovk_i32 s25, {BLS}\ns_cmov_b32 s{SRD_C + 2}, 1605632')
            a(f's_cselect_b64 {sr(SRD_C, 2)}, {sr(P_W1, 2)}, {sr(P_WO, 2)}\ns_cselect_b32 s30, s31, s30\ns_lshl_b32 s30, s30, 7')
            a(f's_lshl_b32 s31, s{S_W}, 4\ns_mul_i32 s31, s31, s26\ns_add_u32 s{S_A}, s30, s31\ns_lshl3_add_u32 s{S_Bs}, s26, s{S_A}')
            a(f's_add_u32 s{S_BASE}, s{S_A}, 229376\ns_add_u32 s{S_XO}, s{S_Bs}, 229376')
            a(f's_lshl_b32 s31, s{S_W}, 1\ns_mul_i32 s31, s31, s25\ns_add_u32 m0, s31, {L_W}\ns_mul_i32 s24, s25, 7')
            a('v_bfe_u32 v4, v0, 1, 3\nv_and_b32 v5, 48, v0\nv_and_b32 v6, 1, v0\nv_lshlrev_b32 v5, 1, v5\nv_lshl_or_b32 v5, v6, 4, v5\nv_mad_u32_u24 v1, v4, s26, v5')
        if n == 127:
            for k, so in enumerate((S_A, S_Bs, S_BASE, S_XO)):
                if cfg['abl'] & 512:
                    a(f's_mov_b32 s{SRD_C + 2}, 0')
                a(f'buffer_load_dwordx4 v1, {sr(SRD_C, 4)}, s{so} offen nt lds')
                if k < 3:
                    a(f's_add_u32 m0, m0, s{24 if k == 1 else 25}')
        if n == cfg['fn'] and cfg['fpre']:
            flag_add(F_S4, 4, 16)
        if n >= NSYNC and korder:
            qk_some(landed, 4)
        if n == 64 + cfg['vsync']:
            assert len(kdone) == 16
            stamp(4)
            if not cfg['abl'] & 9:
                spin_lds(F_P, 1, 4, two=True)
            stamp(5)
            a(f'v_readfirstlane_b32 s{S_E}, v5\ns_sub_u32 s{S_FAST}, s31, 1')
            a('v_lshrrev_b32 v4, 1, v0\nv_and_b32 v4, 1, v4\nv_and_b32 v5, 1, v0\nv_lshrrev_b32 v6, 4, v0\nv_lshlrev_b32 v6, 5, v6')
            a('v_lshl_or_b32 v6, v5, 4, v6\nv_lshl_or_b32 v3, v4, 7, v6')
            a(f'ds_read_b128 {vr(QD, 4)}, v3 offset:{L_P}')
        if n >= 64 + cfg['vsync'] and vdone < 7 and 64 + 8 * vdone + 7 <= landed:
            pv_group(vdone)
            vdone += 1
    assert vdone == 7, vdone
    op_addr(8, 9)
    a('s_movk_i32 s31, 0xff')
    tag8(9)
    big = lambda j: vslot(24 + j)
    for pr in range(4):
        if 6 - 2 * pr < DV:
            a(f's_waitcnt vmcnt({10 - 2 * pr})')
        if pr < 3:
            for r in range(4):
                perms(big, 2 * pr, 7, r)
    stamp(6)
    a('s_waitcnt lgkmcnt(0)')

    def pv_post(j):
        d = ACC + 4 * j
        dpp('v_add_f32', 4 + (j & 3), d + 1, d, 'row_ror:8', 1 << (j >> 2), 0x3)
        dpp('v_add_f32', 4 + (j & 3), d + 2, d + 3, 'row_ror:8', 1 << (j >> 2), 0xc)
    perms(big, 6, 7, 0)
    perms(big, 6, 7, 1)
    pv_mfma(7, 0, big(0))
    perms(big, 6, 7, 2)
    pv_mfma(7, 1, big(1))
    perms(big, 6, 7, 3)
    for j in range(2, 8):
        pv_mfma(7, j, big(j))
        if j >= 4:
            pv_post(j - 4)
    for j in range(4, 8):
        pv_post(j)
    a('v_bfi_b32 v4, s31, v9, v4')
    a('s_mov_b32 exec_hi, 0')
    pair_store(4, 8, 32, 8, 40)
    a('s_mov_b32 exec_hi, -1')
    if not cfg['abl'] & 17:
        a(f's_cmp_eq_u32 s{S_ROLE}, 3\ns_cbranch_scc1 L_fs')
    a('s_waitcnt vmcnt(2)\ns_barrier')
    stamp(7)
    a('s_barrier\ns_branch L_exit')
    a('L_fs:\ns_barrier')
    stamp(7)
    a('s_waitcnt vmcnt(0)')
    flag_add(F_S2, 12)
    a(f's_cmp_lt_u32 s{S_W}, 3\ns_cbranch_scc1 L_fhelp')
    a('s_branch L_exit')

    W56, W112, T0 = 88, 144, 12
    MASK8 = 's[36:37]'

    def trread(dst, nops, vaddr):
        for s in range(nops):
            for rp in range(2):
                a(f'ds_read_b64_tr_b16 {vr(dst + 4 * s + 2 * rp, 2)}, v{vaddr} offset:{s * 4 * BLK + rp * 128}')

    a('L_chain:')
    if cfg['prio']:
        a(f's_setprio {cfg["prio"]}')
    if not cfg['stub']:
        a(clear)
    common()
    if cfg['stamps']:
        a(f's_mov_b64 {sr(S_ST0 + 18, 2)}, 0')
    decode(V_R8, V_NT)
    a(f'v_lshlrev_b32 v{V_L16}, 4, v0')
    a(f'v_and_b32 v11, 7, v0\nv_lshrrev_b32 v12, 3, v0\nv_lshlrev_b32 v13, 4, v11')
    a(f'v_mul_u32_u24 v{V_XA}, 896, v11\nv_lshl_add_u32 v{V_XA}, v12, 4, v{V_XA}\nv_lshl_or_b32 v{V_MA}, v12, 8, v13')
    a(f'v_lshl_or_b32 v{V_AR}, v10, 7, v13')
    a(f's_add_u32 s{S_KB1}, s{S_C}, 4\ns_min_u32 s{S_KB1}, s{S_KB1}, 6')
    a(f's_and_b32 s31, s{S_B}, 4\ns_lshl_b32 s31, s31, 15\ns_add_u32 s31, s31, {WS_Q}\ns_cmp_eq_u32 s{S_ROLE}, 1\ns_cselect_b32 s31, {WS_MOD}, s31\ns_lshl_b32 s{S_DST}, s30, 11\ns_add_u32 s{S_DST}, s{S_DST}, s31')
    a(f's_lshl_b32 s31, s{S_C}, 9\ns_add_u32 s{S_DST}, s{S_DST}, s31')
    a(f's_lshl_b32 s30, s{S_C}, 7\ns_lshl_b32 s31, s{S_KB1}, 7\nv_mov_b32 v13, 0')
    a(f's_mov_b32 s{SRD_C + 2}, 7168\ns_mov_b32 s{SRD_C + 3}, 0x20000')
    if not cfg['stub']:
        a('s_waitcnt lgkmcnt(0)\ns_barrier')
    if cfg['abl'] & 1:
        a('s_branch L_exit')
    srd(SRD_WS, P_WS, WS_SIZE)
    a(f's_cmp_eq_u32 s{S_ROLE}, 1\ns_cselect_b64 {sr(SRD_C, 2)}, {sr(P_C, 2)}, {sr(P_X, 2)}')
    epoch = f's_load_dword s{S_E}, {sr(P_WS, 2)}, 0'
    if cfg['pref']:
        skip = a.lab('L_np')
        a(f's_cmp_eq_u32 s{S_R}, 6\ns_cbranch_scc0 {skip}')
        a('s_getpc_b64 s[24:25]\nL_pc0:')
        a(f's_sub_u32 s24, s24, L_pc0-{NAME}_kernel\ns_subb_u32 s25, s25, 0')
        a(f's_lshl_b32 s26, s{S_C}, 13\nv_lshl_add_u32 v12, v0, 7, s26\nv_min_u32 v12, L_end-{NAME}_kernel, v12')
        a('global_load_dword v15, v12, s[24:25]')
        a(f'{skip}:')
    a(epoch)
    a('s_cmp_ge_u32 s2, 14\ns_cbranch_scc0 L_xl')
    spin_lds(F_S1, 4, 14)
    a('L_xl:')
    a(f's_lshl_b32 s26, s{S_KB1}, 7\ns_bitcmp1_b32 6, s{S_ROLE}\ns_cbranch_scc0 L_c0')
    a(f'buffer_load_dwordx4 v[228:231], v{V_XA}, {sr(SRD_C, 4)}, s30 offen')
    a(f'buffer_load_dwordx4 v[232:235], v{V_XA}, {sr(SRD_C, 4)}, s26 offen')
    a('L_c0:')
    a(f'v_mul_u32_u24 v{V_TR}, {BLK}, v10\nv_and_b32 v13, 15, v0\nv_lshl_add_u32 v{V_TR}, v13, 3, v{V_TR}')
    a(f's_lshl_b32 s26, s{S_C}, 8\ns_add_u32 s26, s26, {L_W}\nv_add_u32 v{V_TR}, s26, v{V_TR}')
    a('s_mov_b32 s36, 0x00ff00ff\ns_mov_b32 s37, 0x00ff00ff\nv_mov_b32 v85, 0')
    a('s_waitcnt vmcnt(0) lgkmcnt(0)')
    a(f's_add_u32 s{S_E}, s{S_E}, 1')
    a(f's_getreg_b32 s{S_XO}, hwreg(HW_REG_XCC_ID, 0, 3)\ns_lshl_b32 s{S_XO}, s{S_XO}, 29\ns_and_b32 s30, s{S_E}, 0x1fffffff\ns_or_b32 s{S_XO}, s{S_XO}, s30')
    a(f's_cmp_eq_u32 s{S_C}, 1\ns_cbranch_scc0 L_c1')
    a(f's_lshl_b32 s30, s{S_H}, 8\ns_lshl_b32 s31, s{S_R}, 2\ns_add_u32 s30, s30, s31\ns_add_u32 s30, s30, {WS_CEN}')
    a(f'v_mov_b32 v12, 0\nv_mov_b32 v14, s{S_XO}\ns_mov_b64 exec, 1\nbuffer_store_dword v14, v12, {sr(SRD_WS, 4)}, s30 offen\ns_mov_b64 exec, -1')
    a('L_c1:')
    a(f's_cmp_eq_u32 s{S_ROLE}, 0\ns_cbranch_scc1 L_mid')
    a(f's_cmp_eq_u32 s{S_ROLE}, 3\ns_cbranch_scc1 L_gemm0')
    for k in range(8):
        a(f'v_lshlrev_b32 v{12 + 2 * k}, 16, v{228 + k}\nv_and_b32 v{13 + 2 * k}, 0xffff0000, v{228 + k}')
    a(f's_cmp_eq_u32 s{S_ROLE}, 2\ns_cbranch_scc1 L_actQ')
    a(f's_mov_b32 s26, {LOG2E | 0x80000000:#x}')
    for k in range(16):
        a(f'v_mul_f32 v{28 + k}, s26, v{12 + k}')
    for k in range(16):
        a(f'v_exp_f32 v{28 + k}, v{28 + k}')
    for k in range(16):
        a(f'v_add_f32 v{28 + k}, 1.0, v{28 + k}')
    a('s_mov_b32 s27, 0x7f7fffff')
    for k in range(16):
        a(f'v_min_f32 v{28 + k}, s27, v{28 + k}')
    for k in range(16):
        a(f'v_rcp_f32 v{44 + k}, v{28 + k}')
    for k in range(0, 16, 2):
        a(f'v_pk_mul_f32 {vr(60 + k, 2)}, {vr(12 + k, 2)}, {vr(44 + k, 2)}')
    for k in range(0, 16, 2):
        a(f'v_pk_fma_f32 {vr(12 + k, 2)}, {vr(60 + k, 2)}, {vr(28 + k, 2)}, {vr(12 + k, 2)} neg_lo:[1,0,0] neg_hi:[1,0,0]')
    for k in range(0, 16, 2):
        a(f'v_pk_fma_f32 {vr(12 + k, 2)}, {vr(12 + k, 2)}, {vr(44 + k, 2)}, {vr(60 + k, 2)}')
    a('s_branch L_actW')

    def ln_scalars(mean, var, t):
        rnd(mean, mean)
        rnd(var, var)
        a(f'v_add_f32 v{var}, 0x3727c5ac, v{var}')
        rnd(var, var)
        a(f'v_sqrt_f32 v{var}, v{var}')
        rnd(t, var)
        a(f'v_rcp_f32 v{var}, v{t}')

    def ln_norm(x, n, mean2, rs2, exact=None):
        for k in range(0, n, 2):
            a(f'v_pk_add_f32 {vr(x + k, 2)}, {vr(x + k, 2)}, {vr(mean2, 2)} op_sel_hi:[1,0] neg_lo:[0,1] neg_hi:[0,1]')
        for k in range(n):
            rnd(x + k, x + k)
        for k in range(0, n, 2):
            a(f'v_pk_mul_f32 {vr((exact or x) + k, 2)}, {vr(x + k, 2)}, {vr(rs2, 2)} op_sel_hi:[1,0]')
        if exact:
            for k in range(0, n, 2):
                a(f'v_pk_fma_f32 {vr(x + k, 2)}, {vr(exact + k, 2)}, {vr(rs2, 2)}, {vr(x + k, 2)} op_sel:[0,1,0] op_sel_hi:[1,1,1] neg_lo:[1,0,0] neg_hi:[1,0,0]')
            for k in range(0, n, 2):
                a(f'v_pk_fma_f32 {vr(x + k, 2)}, {vr(x + k, 2)}, {vr(rs2, 2)}, {vr(exact + k, 2)} op_sel_hi:[1,0,1]')
        for k in range(n):
            rnd(x + k, x + k)

    def ln_mod(x, n, c1, sh):
        for k in range(0, n, 2):
            a(f'v_pk_mul_f32 {vr(x + k, 2)}, {vr(x + k, 2)}, {vr(c1 + k, 2)}')
        for k in range(n):
            rnd(x + k, x + k)
        for k in range(0, n, 2):
            a(f'v_pk_add_f32 {vr(x + k, 2)}, {vr(x + k, 2)}, {vr(sh + k, 2)}')

    def mod_params(blk_shift, blk_scale, sh, c1, raw, kbs):
        nb = len(kbs)
        for q, base in enumerate((blk_shift, blk_scale)):
            for j, kb in enumerate(kbs):
                a(f's_lshl_b32 s{24 + nb * q + j}, s{kb}, 11\ns_add_u32 s{24 + nb * q + j}, s{24 + nb * q + j}, {WS_MOD + base * 2048}')
        poll(a.lab('m'), [(raw + 8 * q + 4 * h, f'buffer_load_dwordx3 {vr(raw + 8 * q + 4 * h, 3)}, v{V_MA}, {sr(SRD_WS, 4)}, s{24 + q} offen offset:{128 * h} sc1')
                          for q in range(2 * nb) for h in range(2)], False)
        for k in range(2 * nb):
            for dw in range(2):
                a(f'v_lshlrev_b32 v{sh + 4 * k + 2 * dw}, 16, v{raw + 4 * k + 1 + dw}\nv_and_b32 v{sh + 4 * k + 2 * dw + 1}, 0xffff0000, v{raw + 4 * k + 1 + dw}')
                a(f'v_lshlrev_b32 v{c1 + 4 * k + 2 * dw}, 16, v{raw + 8 * nb + 4 * k + 1 + dw}\nv_and_b32 v{c1 + 4 * k + 2 * dw + 1}, 0xffff0000, v{raw + 8 * nb + 4 * k + 1 + dw}')
        for k in range(8 * nb):
            a(f'v_add_f32 v{c1 + k}, 1.0, v{c1 + k}')
        for k in range(8 * nb):
            rnd(c1 + k, c1 + k)

    def write_act(x):
        for k in range(8):
            a(f'v_cvt_pk_bf16_f32 v{x + k}, v{x + 2 * k}, v{x + 2 * k + 1}')
        a(f's_lshl_b32 s30, s{S_C}, 10\ns_lshl_b32 s31, s{S_KB1}, 10\nv_add_u32 v10, s30, v{V_L16}\nv_add_u32 v11, s31, v{V_L16}')
        a(f'ds_write_b128 v10, {vr(x, 4)} offset:{L_A}\nds_write_b128 v11, {vr(x + 4, 4)} offset:{L_A}')

    def stats_setup():
        a(f'v_lshrrev_b32 v47, 5, v0\nv_and_b32 v45, 0x70, v{V_AR}\nv_lshl_or_b32 v47, v47, 7, v45\ns_lshl_b32 s30, s{S_C}, 2\nv_add_u32 v47, s30, v47')
        a(f's_cmp_eq_u32 s{S_C}, 3\ns_cselect_b32 s30, 0, 1.0\nv_mov_b32 v44, s30')

    def stats_local():
        for q in range(2):
            x, p = 12 + 8 * q, 28 + 6 * q
            a(f'v_pk_add_f32 {vr(p, 2)}, {vr(x, 2)}, {vr(x + 2, 2)}\nv_pk_mul_f32 {vr(p + 2, 2)}, {vr(x, 2)}, {vr(x, 2)}\nv_pk_add_f32 {vr(p + 4, 2)}, {vr(x + 4, 2)}, {vr(x + 6, 2)}')
        for k in (2, 4, 6):
            for q in range(2):
                x, p = 12 + 8 * q, 28 + 6 * q
                a(f'v_pk_fma_f32 {vr(p + 2, 2)}, {vr(x + k, 2)}, {vr(x + k, 2)}, {vr(p + 2, 2)}')
                if k == 2:
                    a(f'v_pk_add_f32 {vr(p, 2)}, {vr(p, 2)}, {vr(p + 4, 2)}')
        a('v_pk_fma_f32 v[28:29], v[34:35], v[44:45], v[28:29] op_sel_hi:[1,0,1]\nv_pk_fma_f32 v[30:31], v[36:37], v[44:45], v[30:31] op_sel_hi:[1,0,1]')
        a('v_add_f32 v28, v28, v29\nv_add_f32 v30, v30, v31')
        a('v_permlane32_swap_b32 v28, v30\nv_add_f32 v28, v28, v30')
        a('v_mov_b32 v30, v28\nv_permlane16_swap_b32 v28, v30\nv_add_f32 v28, v28, v30')
        dpp('v_add_f32', 28, 28, 28, 'row_ror:8')
        a(f'ds_write_b32 v47, v28 offset:{L_ST}\ns_waitcnt lgkmcnt(0)')

    def stats_final():
        a(f'ds_read_b128 v[28:31], v45 offset:{L_ST}\nds_read_b128 v[32:35], v45 offset:{L_ST + 128}\ns_waitcnt lgkmcnt(0)')
        a('v_pk_add_f32 v[28:29], v[28:29], v[30:31]\nv_pk_add_f32 v[32:33], v[32:33], v[34:35]')
        a('v_add_f32 v28, v28, v29\nv_add_f32 v30, v32, v33\nv_mul_f32 v28, 0x3b124925, v28\nv_mul_f32 v30, 0x3b124925, v30')
        a('v_fma_f32 v30, -v28, v28, v30\nv_max_f32 v30, 0, v30')

    a('L_actQ:')
    stats_setup()
    stats_local()
    flag_add(F_S3, 10)
    spin_lds(F_S3, 4, 10)
    stats_final()
    ln_scalars(28, 30, 31)
    a(f's_cmp_lt_u32 s{S_B}, 4\ns_cselect_b32 s{S_KB1}, s{S_C}, s{S_KB1}\ns_cbranch_scc1 L_qh0')
    for k in range(8):
        a(f'v_mov_b32 v{12 + k}, v{20 + k}')
    a('L_qh0:')
    ln_norm(12, 8, 28, 30, exact=44)
    spin_lds(F_MT, 1, 10)
    stamp(1)
    census(76)
    mod_params(0, 7, 28, 44, 144, (S_KB1,))
    census_done(76)
    stamp(2)
    ln_mod(12, 8, 44, 28)
    for k in range(4):
        a(f'v_cvt_pk_bf16_f32 v{12 + k}, v{12 + 2 * k}, v{13 + 2 * k}')
    a(f's_lshl_b32 s30, s{S_C}, 10\nv_add_u32 v10, s30, v{V_L16}\nds_write_b128 v10, v[12:15] offset:{L_A}\ns_waitcnt lgkmcnt(0)')
    flag_add(F_S1, 10)
    spin_lds(F_S1, 8, 10)
    stamp(3)

    def gemm(n):
        for s in range(n):
            a(f'ds_read_b128 {vr(T0 + 4 * s, 4)}, v{V_AR} offset:{L_A + 512 * s}')
        a('s_waitcnt lgkmcnt(0)')
        for s in range(n):
            a(f'v_mfma_f32_16x16x32_bf16 v[68:71], {vr(W56 + 4 * s, 4)}, {vr(T0 + 4 * s, 4)}, {"v[68:71]" if s else 0}')
    trread(W56, 8, V_TR)
    gemm(8)
    a(f'v_and_b32 v12, 7, v0\nv_and_b32 v13, 48, v0\nv_lshl_or_b32 v12, v12, 8, v13\ns_lshl_b32 s30, s{S_C}, 6\nv_add_u32 v12, s30, v12')
    tag2(32)
    a(f'ds_write_b128 v12, v[68:71] offset:{L_A + 4096}\ns_waitcnt lgkmcnt(0)')
    flag_add(F_S4, 10)
    spin_lds(F_S4, 4, 10)
    a(f's_lshl_b32 s30, s{S_C}, 9\nv_add_u32 v12, s30, v{V_L16}\nds_read_b128 v[72:75], v12 offset:{L_A + 4096}\ns_waitcnt lgkmcnt(0)')
    for j in range(4):
        a(f'v_bfi_b32 v{72 + j}, 3, v{32 + j}, v{72 + j}')
    a('s_mov_b32 exec_hi, 0')
    group_store(f'buffer_store_dwordx4 v[72:75], v{V_L16}, {sr(SRD_WS, 4)}, s{S_DST} offen')
    a('s_mov_b64 exec, -1\ns_branch L_pub')

    a('L_actW:')
    write_act(12)
    a('L_gemm0:')
    a('s_waitcnt lgkmcnt(0)')
    flag_add(F_S1, 10)
    spin_lds(F_S1, 8, 10)
    stamp(3)
    trread(W56, 14, V_TR)
    a(f's_cmp_eq_u32 s{S_ROLE}, 3\ns_cbranch_scc1 L_mid')
    gemm(14)
    a(f'v_mov_b32 v72, s{S_E}\nv_mov_b32 v75, s{S_E}')
    a('v_cvt_pk_bf16_f32 v73, v68, v69\nv_cvt_pk_bf16_f32 v74, v70, v71')
    a(f's_mov_b64 exec, {MASK8}')
    a(f'buffer_store_dwordx4 v[72:75], v{V_AR}, {sr(SRD_WS, 4)}, s{S_DST} offen sc1')
    a('s_mov_b64 exec, -1')
    a('L_pub:')
    stamp(4)

    a('L_mid:')
    a('s_waitcnt lgkmcnt(0)')
    flag_add(F_VT, 12)
    a(f's_cmp_eq_u32 s{S_C}, 0\ns_cbranch_scc0 L_noq')
    spin_lds(F_KT, 1, 12)
    a(f's_lshl_b32 s30, s{S_H}, 14\ns_lshl_b32 s31, s{S_B}, 8\ns_add_u32 s30, s30, s31\ns_add_u32 s30, s30, {WS_Q}\ns_add_u32 s31, s30, 8192')
    a(f'v_lshrrev_b32 v12, 4, v0\nv_and_b32 v14, 0xf0, v{V_L16}\nv_lshl_or_b32 v14, v12, 11, v14\nv_lshlrev_b32 v15, 3, v0')
    a('s_add_u32 s24, s30, 0x20000\ns_add_u32 s25, s31, 0x20000')
    tag2(32)
    poll('q', [(16 + 4 * k, f'buffer_load_dwordx4 {vr(16 + 4 * k, 4)}, v14, {sr(SRD_WS, 4)}, s{(30, 31, 24, 25)[k]} offen sc1') for k in range(4)], 2)
    for k in range(0, 8, 2):
        a(f'v_pk_add_f32 {vr(16 + k, 2)}, {vr(16 + k, 2)}, {vr(24 + k, 2)}')
    for k in range(4):
        a(f'v_cvt_pk_bf16_f32 v{16 + k}, v{16 + 2 * k}, v{17 + 2 * k}')
    a(f'ds_write_b64 v15, v[16:17] offset:{L_Q}\nds_write_b64 v15, v[18:19] offset:{L_Q + 512}\ns_waitcnt lgkmcnt(0)')
    flag_add(F_Q, 12)
    stamp(5)
    a('L_noq:')
    F_SH, F_C1 = 52, 68
    a(f's_cmp_eq_u32 s{S_ROLE}, 3\ns_cbranch_scc0 L_nofp')
    spin_lds(F_Q, 1, 12)
    mod_params(21, 28, F_SH, F_C1, 144, (S_C, S_KB1))
    a(f's_lshl_b32 s30, s{S_C}, 12\ns_add_u32 s30, s30, {L_PAR}\nv_add_u32 v12, s30, v{V_L16}')
    for k, r in enumerate((F_SH + 8, F_SH + 12, F_C1 + 8, F_C1 + 12)):
        a(f'ds_write_b128 v12, {vr(r, 4)} offset:{1024 * k}')
    a('L_nofp:')
    a(f's_cmp_eq_u32 s{S_C}, 1\ns_cbranch_scc0 L_nosm')
    a(f's_lshl_b32 s26, s{S_B}, 3\ns_or_b32 s26, s26, s{S_H}\ns_lshl_b32 s26, s26, 9\ns_add_u32 s26, s26, {WS_ML}\ns_lshl_b32 s27, s{S_D}, 7\ns_add_u32 s27, s27, s26')
    a('v_lshrrev_b32 v13, 4, v0')
    a(f'v_mov_b32 v49, v{V_AR}')
    a('v_and_b32 v50, 15, v0\nv_lshlrev_b32 v50, 4, v50\nv_lshl_or_b32 v50, v13, 9, v50')
    a('s_mov_b32 s32, 0x3db8aa3b')
    spin_lds(F_KT, 1, 12)
    census(48)
    spin_lds(F_VT, 4, 12)
    spin_lds(F_SC, 4, 12)
    a('s_waitcnt vmcnt(0)')
    census_done(48)
    stamp(6)
    for w in range(4):
        a(f'ds_read_b128 {vr(12 + 4 * w, 4)}, v{V_L16} offset:{L_SC + 1024 * w}')
    a('s_waitcnt lgkmcnt(0)')
    for k in range(16):
        rnd(12 + k, 12 + k)
    a('v_max3_f32 v45, v12, v13, v14')
    for k in range(15, 27, 2):
        a(f'v_max3_f32 v45, v45, v{k}, v{k + 1}')
    a('v_max_f32 v45, v45, v27')

    def head_allreduce(op, x, t):
        dpp(op, x, x, x, 'quad_perm:[1,0,3,2]')
        dpp(op, x, x, x, 'quad_perm:[2,3,0,1]')
        dpp(op, x, x, x, 'row_half_mirror')
        rows_allreduce(op, x, t)

    def exps(m):
        for k in range(16):
            a(f'v_sub_f32 v{28 + k}, v{12 + k}, v{m}')
        for k in range(16):
            a(f'v_mul_f32 v{28 + k}, s32, v{28 + k}')
        for k in range(16):
            a(f'v_exp_f32 v{28 + k}, v{28 + k}')
    head_allreduce('v_max_f32', 45, 47)
    exps(45)
    for st in (8, 4, 2):
        for k in range(0, st, 2):
            a(f'v_pk_add_f32 {vr(28 + k, 2)}, {vr(28 + k, 2)}, {vr(28 + st + k, 2)}')
    a('v_add_f32 v46, v28, v29')
    head_allreduce('v_add_f32', 46, 47)
    a(f's_and_b32 s30, s{S_E}, 0xffff\ns_lshr_b32 s31, s{S_E}, 16\nv_or_b32 v28, s30, v45\nv_mov_b32 v29, v46\nv_mov_b32 v30, s31')
    a('v_mov_b32_dpp v31, v46 row_ror:8 row_mask:0xf bank_mask:0xf')
    dpp('v_or_b32', 30, 45, 30, 'row_ror:8')
    a('s_mov_b64 exec, 0xff')
    group_store(f'buffer_store_dwordx4 v[28:31], v{V_L16}, {sr(SRD_WS, 4)}, s27 offen')
    a('s_mov_b64 exec, -1')
    a('s_mov_b32 s30, 0x05040100')
    for k in range(4):
        a(f'v_mov_b32_dpp v{32 + k}, v{28 + k} row_newbcast:0 row_mask:0xf bank_mask:0xf')
    a(f's_lshl_b32 s31, s{S_D}, 4\ns_lshl_b64 s[8:9], 0xffff, s31\ns_not_b64 s[8:9], s[8:9]')
    a('L_mlpoll:')
    a(f's_mov_b64 exec, s[8:9]\nbuffer_load_dwordx4 v[32:35], v49, {sr(SRD_WS, 4)}, s26 offen sc1\ns_mov_b64 exec, -1\ns_waitcnt vmcnt(0)')
    a(f'v_perm_b32 v36, v34, v32, s30\nv_cmp_ne_u32 vcc, s{S_E}, v36\ns_cbranch_vccz L_mlgot')
    retry('L_mlpoll')
    a('L_mlgot:')
    stamp(7)
    a(f'v_cndmask_b32 v29, v34, v32, {MASK8}\nv_cndmask_b32 v30, v35, v33, {MASK8}\nv_and_b32 v29, 0xffff0000, v29')
    a('v_mov_b32 v45, v29')
    rows_allreduce('v_max_f32', 45, 47)
    a('v_sub_f32 v29, v29, v45\nv_mul_f32 v29, s32, v29\nv_exp_f32 v29, v29\nv_mul_f32 v46, v29, v30')
    rows_allreduce('v_add_f32', 46, 47)
    a('v_rcp_f32 v46, v46')
    exps(45)
    for k in range(0, 16, 2):
        a(f'v_pk_mul_f32 {vr(28 + k, 2)}, {vr(28 + k, 2)}, v[46:47] op_sel_hi:[1,0]')
    for uh in range(2):
        for dd in range(4):
            u, x = 2 * uh + (dd >> 1), dd & 1
            a(f'v_cvt_pk_bf16_f32 v{12 + 4 * uh + dd}, v{28 + 4 * (2 * x) + u}, v{28 + 4 * (2 * x + 1) + u}')
    a(f'ds_write_b128 v50, v[12:15] offset:{L_P}\nds_write_b128 v50, v[16:19] offset:{L_P + 256}')
    a(f's_add_u32 s30, s{S_FAST}, 1\nv_mov_b32 v20, s30\nv_mov_b32 v21, s{S_E}\nv_mov_b32 v22, 0\ns_waitcnt lgkmcnt(0)\nds_write_b64 v22, v[20:21] offset:{F_P}')
    stamp(8)
    a('L_nosm:')

    if cfg['abl'] & 16:
        a('s_branch L_exit')
    tag8(V_E8)
    a(f's_cmp_eq_u32 s{S_ROLE}, 3\ns_cbranch_scc1 L_ffn\ns_cmp_eq_u32 s{S_B}, 7\ns_cbranch_scc1 L_idle')
    Z_G, Z_X, Z_XA, Z_OA, Z_PA = 80, 72, 84, 85, 52
    S_Z = 39
    a(f's_lshl1_add_u32 s{S_Z}, s{S_R}, s{S_C}\ns_add_u32 s{S_Z}, s{S_Z}, 6\ns_cmp_ge_u32 s{S_Z}, 56\ns_cselect_b32 s30, 56, 0\ns_sub_u32 s{S_Z}, s{S_Z}, s30')
    a(f'v_and_b32 v86, 0xff, v{V_AR}\nv_and_b32 v12, 7, v0\nv_mul_u32_u24 v12, 896, v12\nv_and_b32 v13, 16, v0\nv_lshrrev_b32 v13, 1, v13')
    a(f's_lshl_b32 s27, s{S_Z}, 4\nv_add3_u32 v{Z_OA}, s27, v12, v13')
    a(f's_cmp_ge_u32 s{S_C}, 2\ns_cbranch_scc0 L_noz')
    spin_lds(F_Q, 1, 12)
    a(f's_mov_b64 {sr(SRD_C, 2)}, {sr(P_X, 2)}')
    a(f's_cmp_eq_u32 s{S_H}, 0\ns_cselect_b32 s31, {21 * 2048}, 0\ns_lshl_b32 s30, s{S_Z}, 8\ns_add_u32 s30, s30, s31\ns_add_u32 s30, s30, {WS_MOD + 14 * 2048}')
    a(f'buffer_load_dwordx2 v[20:21], v{Z_OA}, {sr(SRD_C, 4)}, 0 offen')
    a(f'L_zpoll:\nbuffer_load_dwordx3 v[16:18], v86, {sr(SRD_WS, 4)}, s30 offen sc1\ns_waitcnt vmcnt(0)')
    a(f'v_cmp_ne_u32 vcc, s{S_E}, v16\ns_cbranch_vccz L_zgot')
    retry('L_zpoll')
    a('L_zgot:')
    for d, r in ((Z_G, 17), (Z_G + 2, 18), (Z_X, 20), (Z_X + 2, 21)):
        a(f'v_lshlrev_b32 v{d}, 16, v{r}\nv_and_b32 v{d + 1}, 0xffff0000, v{r}')
    a('L_noz:')
    a(f'v_and_b32 v13, 40, v0\nv_lshl_or_b32 v{Z_OA}, v13, 24, v{Z_OA}\nv_lshl_or_b32 v{Z_XA}, v13, 24, v86')
    a(f'v_lshrrev_b32 v13, 5, v0\nv_add_u32 v14, {WS_PL - WS_PA}, v{V_L16}')
    for u in range(4):
        a(f's_sub_u32 s30, s{S_H}, {2 * u}\nv_cmp_eq_u32 vcc, s30, v13\nv_cndmask_b32 v{Z_PA + u}, v{V_L16}, v14, vcc')
    a(f's_lshl_b32 s{S_A}, s{S_Z}, 12\ns_add_u32 s{S_Bs}, s{S_A}, {WS_PF}\ns_add_u32 s{S_A}, s{S_A}, {WS_PA}')
    a(f's_lshl_b32 s32, s{S_H}, 6\ns_add_u32 s32, s32, s{S_Z}\ns_lshl_b32 s32, s32, 8\ns_add_u32 s32, s32, {WS_X1}')
    a('v_and_b32 v13, 1, v0\nv_lshlrev_b32 v13, 4, v13\nv_mov_b32 v14, 0x3f80\nv_lshlrev_b32 v14, v13, v14\nv_bfe_u32 v13, v0, 1, 2')
    for k in range(4):
        a(f'v_cmp_eq_u32 vcc, {k}, v13\nv_cndmask_b32 v{76 + k}, 0, v14, vcc')
    htags(13)
    a(f's_lshl_b32 s24, s{S_JJ}, 14\ns_lshl_b32 s30, s{S_C}, 7\ns_add_u32 s24, s24, s30\ns_add_u32 s24, s24, {WS_OP}')
    a('s_add_u32 s25, s24, 4096\ns_add_u32 s26, s24, 8192\ns_add_u32 s27, s24, 12288')
    a('v_and_b32 v12, 7, v0\nv_lshrrev_b32 v13, 3, v0\nv_lshlrev_b32 v14, 4, v12\nv_lshl_or_b32 v40, v13, 9, v14')
    if cfg['swz']:
        a('v_add_u32 v15, v12, v13\nv_and_b32 v15, 7, v15\nv_lshlrev_b32 v15, 4, v15\nv_lshl_or_b32 v41, v12, 7, v15')
        a('v_lshrrev_b32 v16, 4, v0\nv_add_u32 v15, v12, v16\nv_and_b32 v15, 7, v15\nv_lshlrev_b32 v15, 4, v15\nv_lshl_or_b32 v44, v16, 7, v15\nv_xor_b32 v45, 64, v44')
    else:
        a(f'v_lshlrev_b32 v15, 4, v13\nv_lshl_or_b32 v41, v12, 7, v15\nv_mov_b32 v44, v{V_AR}\nv_mov_b32 v45, v{V_AR}')
    a(f's_lshr_b32 s30, s{S_C}, 1\ns_lshl_b32 s30, s30, 10\ns_and_b32 s31, s{S_C}, 1\ns_lshl3_add_u32 s30, s31, s30\nv_add_u32 v41, s30, v41')
    a('v_and_b32 v13, 24, v0\nv_lshl_or_b32 v14, v13, 25, v14\nv_lshrrev_b32 v13, 5, v0\nv_lshl_or_b32 v42, v13, 12, v14')
    a(f's_lshl2_add_u32 s{S_DST}, s{S_B}, s{S_C}\ns_lshl_b32 s{S_DST}, s{S_DST}, 6\ns_add_u32 s{S_DST}, s{S_DST}, s{S_JJ}\ns_lshl_b32 s{S_DST}, s{S_DST}, 7')
    a(f's_add_u32 s{S_BASE}, s{S_DST}, {WS_PL}\ns_add_u32 s{S_DST}, s{S_DST}, {WS_PA}')
    srd(SRD_C, P_OUT, 7168)
    spin_lds(F_P, 1, 12)
    a(f's_sub_u32 s{S_FAST}, s31, 1')
    pair_srd(44, 56)
    GA = 56
    a('s_movk_i32 s60, 0xff\ns_movk_i32 s61, 0xff')
    a(f's_mov_b64 s[48:49], {sr(P_WS, 2)}\ns_mov_b32 s51, 0x20000\ns_cmp_eq_u32 s{S_H}, 1\ns_cselect_b32 s50, s{SRD_WS + 2}, 0\ns_sub_u32 s{S_KB1}, s32, 0x4000')
    wld = [(12 + 4 * s, f'buffer_load_dwordx4 {vr(12 + 4 * s, 4)}, v40, {sr(SRD_WS, 4)}, s{24 + s} offen sc1') for s in range(4)]
    a('s_barrier')
    stamp(9)
    if cfg['stamps'] == 5:
        a(f's_mov_b32 s{S_CNT}, 1')
    poll('w', wld, True, lambda: trread(W56, 4, V_TR), X=(40, 42, 52, 54))

    def sum4(g=12):
        a(f'v_pk_add_f32 v[14:15], {vr(g + 2, 2)}, {vr(g + 6, 2)}\nv_pk_add_f32 v[22:23], {vr(g + 10, 2)}, {vr(g + 14, 2)}')
        a(f'v_pk_add_f32 v[12:13], {vr(g, 2)}, {vr(g + 4, 2)}\nv_pk_add_f32 v[20:21], {vr(g + 8, 2)}, {vr(g + 12, 2)}')
        a('v_pk_add_f32 v[14:15], v[14:15], v[22:23]\nv_pk_add_f32 v[12:13], v[12:13], v[20:21]')
    if cfg['stamps'] == 5:
        stamp(3)
        a(f's_mov_b32 s{S_ST0 + 8}, s{S_CNT}')
    sum4()
    a('v_cvt_pk_bf16_f32 v12, v12, v13\nv_cvt_pk_bf16_f32 v13, v14, v15')
    a(f'ds_write_b64 v41, v[12:13] offset:{L_A}')
    a('s_waitcnt lgkmcnt(0)\ns_barrier')
    for s in range(4):
        a(f'ds_read_b128 {vr(12 + 4 * s, 4)}, v{44 + (s & 1)} offset:{L_A + 512 * s}')
    for s in range(4):
        a(f's_waitcnt lgkmcnt({3 - s})')
        a(f'v_mfma_f32_16x16x32_bf16 v[28:31], {vr(W56 + 4 * s, 4)}, {vr(12 + 4 * s, 4)}, {"v[28:31]" if s else 0}')
    a(f's_cmp_eq_u32 s{S_H}, 0')
    a('\n'.join(hpack(48, 28)))
    a('v_permlane16_swap_b32 v49, v51\nv_permlane16_swap_b32 v48, v50')
    a('s_mov_b64 exec, s[60:61]')
    a(f'buffer_store_dwordx4 v[48:51], v42, {sr(SRD_WS, 4)}, s{S_DST} offen sc1')
    stamp(10)
    a('s_cbranch_scc1 L_fin')
    a(f's_cmp_ge_u32 s{S_C}, 2')
    pair_store(48, 42, S_BASE, 44, 56)
    a('s_mov_b64 exec, -1\ns_cbranch_scc0 L_exit')

    hgather('a', GA, lambda u: f'buffer_load_dwordx4 {vr(GA + 4 * u, 4)}, v{Z_PA + u}, {sr(SRD_WS, 4)}, s{S_A} offen offset:{1024 * u} sc1')
    gated = f'v_pk_fma_f32 v[28:29], v[28:29], {vr(Z_G, 2)}, {vr(Z_X, 2)}\nv_pk_fma_f32 v[30:31], v[30:31], {vr(Z_G + 2, 2)}, {vr(Z_X + 2, 2)}'
    a(gated)
    for k in range(4):
        rnd(28 + k, 28 + k)
        if k == 1:
            a(f'v_or_b32 v28, v{V_E8}, v28')
    a('s_mov_b64 exec, 0xff00ff')
    pair_store(28, Z_XA, 32, 44, 56)
    a(f'buffer_store_dwordx4 v[28:31], v{Z_XA}, s[48:51], s{S_KB1} offen sc1')
    stamp(1)
    a('s_branch L_exit' if cfg['stamps'] else 's_endpgm')
    a('L_fin:\ns_mov_b64 exec, -1')
    a(f's_cmp_ge_u32 s{S_C}, 2\ns_cbranch_scc0 L_exit')
    a(f'v_mov_b32 v{GA + 12}, v{V_T0}\nv_mov_b32 v{GA + 13}, v{V_T0}\nv_mov_b32 v{GA + 14}, v{V_T1}\nv_mov_b32 v{GA + 15}, v{V_T1}')
    ldf = lambda u: f'buffer_load_dwordx4 {vr(GA + 4 * u, 4)}, v{V_L16}, {sr(SRD_WS, 4)}, s{S_Bs} offen offset:{1024 * u} sc1'
    for u in range(4):
        a(ldf(u) if u < 3 else f's_mov_b32 exec_hi, 0\n{ldf(u)}\ns_mov_b32 exec_hi, -1')
    a(f'L_ypoll:\nbuffer_load_dwordx4 {vr(Z_X, 4)}, v86, {sr(SRD_WS, 4)}, s32 offen sc1\ns_waitcnt vmcnt(0)')
    a(f'v_cmp_ne_u32_sdwa vcc, v{Z_X}, v{V_E8} src0_sel:BYTE_0 src1_sel:DWORD\ns_cbranch_vccz L_ygot')
    retry('L_ypoll')
    a(f'L_ygot:\nv_xor_b32 v{Z_X}, v{V_E8}, v{Z_X}')
    hgather('f', GA, ldf, True)
    a(gated)
    a('v_cvt_pk_bf16_f32 v28, v28, v29\nv_cvt_pk_bf16_f32 v29, v30, v31')
    a('s_mov_b64 exec, 0xff00ff')
    a(f'buffer_store_dwordx2 v[28:29], v{Z_OA}, {sr(SRD_C, 4)}, 0 offen')
    stamp(2)
    a('s_branch L_exit' if cfg['stamps'] else 's_endpgm')

    a(f'L_idle:\ns_or_b32 s30, s{S_D}, s{S_C}\ns_cbranch_scc1 L_exit')
    a(f's_barrier\ns_barrier\ns_mov_b32 s32, {WS_X1}\nv_and_b32 v52, 0x70, v{V_L16}\nv_mov_b32 v43, s{S_E}')
    a(f'L_ipoll:\nbuffer_load_dword v12, v52, {sr(SRD_WS, 4)}, s32 offen sc1\ns_waitcnt vmcnt(0)')
    a(f'v_cmp_ne_u32_sdwa vcc, v12, v{V_E8} src0_sel:BYTE_0 src1_sel:DWORD\ns_cbranch_vccz L_igot')
    retry('L_ipoll')
    a(f'L_igot:\ns_mov_b64 exec, 1\nbuffer_store_dword v43, off, {sr(SRD_WS, 4)}, 0 sc1')
    if cfg['wb']:
        a('buffer_wbl2 sc1')
    if cfg['stamps']:
        stamp(1)
        a('s_waitcnt vmcnt(0)')
        stamp(11)
    a('s_branch L_exit')

    a('L_ffn:')
    a(f's_sub_u32 s{S_JJ}, s{S_JJ}, 4')
    srd(SRD_A, P_W1, 1605632)
    srd(SRD_B, P_W3, 1605632)
    a(f's_movk_i32 s32, 3584\ns_movk_i32 s{S_A}, 28672\ns_mov_b32 s{S_Bs}, 229376\ns_lshl_b32 s{S_BASE}, s{S_JJ}, 7')
    a(f'v_mad_u32_u24 v{V_DM}, v{V_R8}, s32, v{V_NT}')
    a(f'v_lshrrev_b32 v12, 5, v0\nv_bfe_u32 v13, v0, 3, 1\nv_lshl_or_b32 v12, v12, 1, v13\nv_mul_u32_u24 v12, {BLS}, v12')
    a('v_and_b32 v13, 16, v0\nv_lshl_add_u32 v12, v13, 3, v12\nv_and_b32 v13, 7, v0\nv_lshl_add_u32 v12, v13, 3, v12')
    a(f's_lshl_b32 s30, s{S_C}, 8\ns_add_u32 s30, s30, {L_W}\nv_add_u32 v{V_TR}, s30, v12\nv_add_u32 v46, {56 * BLK}, v{V_TR}')
    a(f'v_and_b32 v14, 0x70, v{V_L16}\nv_lshrrev_b32 v13, 5, v0\nv_lshl_or_b32 v14, v13, 12, v14\nv_and_b32 v13, 24, v0\nv_lshl_or_b32 v48, v13, 12, v14')
    a('v_add_u32 v13, 8, v13\nv_and_b32 v13, 32, v13\nv_lshl_or_b32 v8, v13, 25, v48')
    a(f's_lshl_b32 s{S_DST}, s{S_JJ}, 7\ns_lshl_b32 s30, s{S_C}, 13\ns_add_u32 s{S_DST}, s{S_DST}, s30\ns_add_u32 s{S_DST}, s{S_DST}, {WS_PF}\ns_add_u32 s20, s{S_DST}, 0x20000')
    htags(13)
    a(f'v_mov_b32 v50, v{V_TW}')
    a('v_and_b32 v12, 7, v0\nv_lshlrev_b32 v12, 1, v12\nv_and_b32 v13, 8, v0\nv_lshl_or_b32 v12, v13, 4, v12\nv_and_b32 v13, 48, v0\nv_lshl_or_b32 v12, v13, 1, v12')
    a(f's_lshl_b32 s30, s{S_C}, 8\nv_add_u32 v49, s30, v12')
    a(f's_mov_b32 s39, {LOG2E | 0x80000000:#x}')
    a('v_and_b32 v12, 1, v0\nv_mul_u32_u24 v51, 0xaaaa, v12\nv_add_u32 v51, 0x4444, v51')
    a('v_lshlrev_b32 v12, 7, v12\nv_lshl_or_b32 v12, v13, 4, v12\nv_and_b32 v13, 14, v0\nv_lshl_or_b32 v10, v13, 3, v12')
    for k in list(range(76, 88)) + list(range(60, 68)) + list(range(40, 44)):
        a(f'v_mov_b32 v{k}, 0')
    a(f's_mov_b32 s{S_KB1}, s{S_C}')
    a(f's_add_u32 s{S_BASE}, s{S_BASE}, {2 * 229376}\ns_waitcnt vmcnt(0)')
    if cfg['fpre']:
        spin_lds(F_S4, 16 * cfg['fthr'], 12)
    dma(SRD_A, 5, L_W + 16 * BLS, bar=cfg['fpre'], BLK=BLS)
    a(f's_sub_u32 s{S_BASE}, s{S_BASE}, {2 * 229376}')
    dma(SRD_B, 7, L_W + 56 * BLK, bar=cfg['fpre'] - 10, BLK=BLS)
    for m, va in enumerate((V_TR, 46)):
        if cfg['stamps'] == 3 and m == 0:
            stamp(1)
        a(f's_waitcnt vmcnt({0 if m else 14})')
        if cfg['stamps'] == 3:
            stamp(4 if m else 2)
        flag_add(F_S3 if m else F_S2, 12)
        spin_lds(F_S3 if m else F_S2, 4 if m else 8, 12)
        for kb in range(7):
            for rp in range(4):
                a(f'ds_read_b64_tr_b16 {vr(W112 + 56 * m + 8 * kb + 2 * rp, 2)}, v{va} offset:{(8 * kb + 4 * (rp >> 1)) * BLS + (rp & 1) * 64}')
    a('s_branch L_ln')
    a('L_fhelp:')
    a(f's_mov_b64 exec, -1\ns_add_u32 s{S_KB1}, s{S_W}, 4')
    a(f'v_lshlrev_b32 v{V_L16}, 4, v0\nv_lshrrev_b32 v12, 3, v0\nv_and_b32 v13, 0x70, v{V_L16}\nv_lshl_or_b32 v{V_MA}, v12, 8, v13')
    a(f'v_mov_b32 v{V_E8}, v9')
    spin_lds(F_S3, 4, 12)
    a(f's_lshl_b32 s30, s{S_W}, 12\ns_add_u32 s30, s30, {L_PAR}\nv_add_u32 v12, s30, v{V_L16}')
    for k, r in enumerate((F_SH, F_SH + 4, F_C1, F_C1 + 4)):
        a(f'ds_read_b128 {vr(r, 4)}, v12 offset:{1024 * k}')
    a('L_ln:')
    a(f's_lshl_b32 s24, s{S_KB1}, 11\ns_add_u32 s24, s24, {WS_X1}')
    a(f's_lshl_b32 s31, s{S_H}, 14\ns_add_u32 s24, s24, s31')
    a(f'v_and_b32 v12, 7, v0\nv_and_b32 v13, 32, v0\nv_lshlrev_b32 v13, 3, v13\nv_lshl_or_b32 v45, v12, 5, v13\ns_lshl_b32 s30, s{S_KB1}, 2\nv_add_u32 v47, s30, v45')
    a(f's_lshl_b32 s30, s{S_KB1}, 10\nv_add_u32 v44, s30, v{V_L16}')
    a('s_waitcnt lgkmcnt(0)')
    stamp(9)
    poll('x', [(12 + 4 * h, f'buffer_load_dwordx4 {vr(12 + 4 * h, 4)}, v{V_MA}, {sr(SRD_WS, 4)}, s24 offen offset:{128 * h} sc1') for h in range(2)], True, X=(12, 14))
    stamp(10)
    if cfg['stamps'] == 4:
        a(f's_memtime {sr(S_ST0 + 2, 2)}')
    a('v_pk_mul_f32 v[30:31], v[14:15], v[14:15]\nv_pk_add_f32 v[28:29], v[14:15], v[18:19]\nv_pk_mul_f32 v[34:35], v[12:13], v[12:13]\nv_pk_add_f32 v[32:33], v[12:13], v[16:17]')
    a('v_pk_fma_f32 v[30:31], v[18:19], v[18:19], v[30:31]\nv_pk_fma_f32 v[34:35], v[16:17], v[16:17], v[34:35]')
    a('v_pk_add_f32 v[28:29], v[28:29], v[32:33]\nv_pk_add_f32 v[30:31], v[30:31], v[34:35]')
    a('v_add_f32 v28, v28, v29\nv_add_f32 v30, v30, v31')
    a('v_permlane32_swap_b32 v28, v30\nv_add_f32 v28, v28, v30')
    a('v_mov_b32 v30, v28\nv_permlane16_swap_b32 v28, v30\nv_add_f32 v28, v28, v30')
    dpp('v_add_f32', 28, 28, 28, 'row_ror:8')
    a(f'ds_write_b32 v47, v28 offset:{L_ST2}')
    a('s_waitcnt lgkmcnt(0)\ns_barrier')
    if cfg['stamps'] == 2:
        stamp(1)
    a(f'ds_read_b128 v[28:31], v45 offset:{L_ST2}\nds_read_b128 v[32:35], v45 offset:{L_ST2 + 16}')
    a('s_waitcnt lgkmcnt(0)')
    a('v_pk_add_f32 v[28:29], v[28:29], v[30:31]\nv_pk_add_f32 v[32:33], v[32:33], v[34:35]\nv_pk_add_f32 v[28:29], v[28:29], v[32:33]')
    a('v_add_f32 v29, v28, v29\nv_mul_f32 v28, 0x3b124925, v29\nv_mul_f32 v30, 0x3b124925, v29\nv_permlane32_swap_b32 v28, v30')
    a('v_fma_f32 v30, -v28, v28, v30')
    rnd(28, 28)
    a('v_max_f32 v30, 0, v30')
    sub = [f'v_pk_add_f32 {vr(12 + k, 2)}, {vr(12 + k, 2)}, v[28:29] op_sel_hi:[1,0] neg_lo:[0,1] neg_hi:[0,1]' for k in range(0, 8, 2)]
    sub += [f'v_cvt_pk_bf16_f32 v{12 + k}, 0, v{12 + k}' for k in range(8)]
    chain = ['v_cvt_pk_bf16_f32 v30, 0, v30', 'v_add_f32 v30, 0x3727c5ac, v30', 'v_cvt_pk_bf16_f32 v30, 0, v30', 'v_sqrt_f32 v30, v30',
             'v_cvt_pk_bf16_f32 v30, 0, v30', 'v_rcp_f32 v30, v30']
    if cfg['lnx']:
        for k in range(6):
            a(chain[k])
            a(sub[2 * k])
            a(sub[2 * k + 1])
        for k in range(0, 8, 2):
            a(f'v_pk_mul_f32 {vr(12 + k, 2)}, {vr(12 + k, 2)}, v[30:31] op_sel_hi:[1,0]')
        for k in range(8):
            rnd(12 + k, 12 + k)
        ln_mod(12, 8, F_C1, F_SH)
    else:
        sub = sub[:4] + [f'v_pk_mul_f32 {vr(12 + k, 2)}, {vr(12 + k, 2)}, {vr(F_C1 + k, 2)}' for k in range(0, 8, 2)]
        for k in range(6):
            a(chain[k])
            a(sub[k])
        a(sub[6])
        a(sub[7])
        for k in range(0, 8, 2):
            a(f'v_pk_fma_f32 {vr(12 + k, 2)}, {vr(12 + k, 2)}, v[30:31], {vr(F_SH + k, 2)} op_sel_hi:[1,0,1]')
    for k in range(4):
        a(f'v_cvt_pk_bf16_f32 v{12 + k}, v{12 + 2 * k}, v{13 + 2 * k}')
    a(f'ds_write_b128 v44, v[12:15] offset:{L_A}')
    a(f's_cmp_lt_u32 s{S_W}, 4\ns_cbranch_scc1 L_fhx')
    a('s_waitcnt lgkmcnt(0)\ns_barrier')
    if cfg['stamps'] == 2:
        stamp(2)
        a('s_waitcnt lgkmcnt(0)')
    for kb in range(7):
        a(f'ds_read_b128 {vr(12 + 4 * kb, 4)}, v10 offset:{L_A + 1024 * kb}')
    for kb in range(7):
        a(f's_waitcnt lgkmcnt({6 - kb})')
        a(f'v_smfmac_f32_16x16x64_bf16 v[76:79], {vr(12 + 4 * kb, 4)}, {vr(W112 + 8 * kb, 8)}, v51')
    gate = ['s_nop 1', 's_nop 2',
            'v_add_f32 v76, v76, v77\nv_add_f32 v77, v78, v79',
            'v_cvt_pk_bf16_f32 v76, 0, v76\nv_cvt_pk_bf16_f32 v77, 0, v77',
            'v_mul_f32 v78, s39, v76\nv_mul_f32 v79, s39, v77',
            'v_exp_f32 v78, v78', 'v_exp_f32 v79, v79']
    for kb in range(7):
        a(f'v_smfmac_f32_16x16x64_bf16 v[80:83], {vr(12 + 4 * kb, 4)}, {vr(W112 + 56 + 8 * kb, 8)}, v51')
        a(gate[kb])
    a('v_add_f32 v78, 1.0, v78\nv_add_f32 v79, 1.0, v79\nv_rcp_f32 v78, v78\nv_rcp_f32 v79, v79')
    a('v_mul_f32 v78, v78, v76\nv_mul_f32 v79, v79, v77')
    rnd(78, 78)
    a('v_add_f32 v80, v80, v81\nv_add_f32 v81, v82, v83')
    for r in (79, 80, 81):
        rnd(r, r)
    a('v_pk_mul_f32 v[12:13], v[78:79], v[80:81]\nv_cvt_pk_bf16_f32 v12, v12, v13')
    a(f'ds_write_b16 v49, v12 offset:{L_H}\nds_write_b16_d16_hi v49, v12 offset:{L_H + 16}')
    def down(fl):
        a('s_waitcnt lgkmcnt(0)\ns_barrier')
        if cfg['stamps'] == 2:
            stamp(4)
        HB = ((60, 64), (84, 40))
        a(f's_mov_b64 exec, {MASK8}\nds_read_b128 v[60:63], v{V_AR} offset:{L_H}\nds_read_b128 v[64:67], v{V_AR} offset:{L_H + 512}')
        a(f's_not_b64 exec, exec\nds_read_b128 v[84:87], v{V_AR} offset:{L_H}\nds_read_b128 v[40:43], v{V_AR} offset:{L_H + 512}\ns_mov_b64 exec, -1')
        pk = lambda p: [x.replace(f'v{V_TW},', 'v50,') for x in hpack(28 + 2 * p, 12 + 4 * p)]
        put = lambda k: [f'v_permlane16_swap_b32 v{29 + 4 * k}, v{31 + 4 * k}', f'v_permlane16_swap_b32 v{28 + 4 * k}, v{30 + 4 * k}',
                         f'buffer_store_dwordx4 {vr(28 + 4 * k, 4)}, v{8 if k else 48}, {sr(SRD_WS, 4)}, s{20 if k else S_DST} offen {fl}']
        p0, p1, p2, p3, s0 = pk(0), pk(1), pk(2), pk(3), put(0)
        fill = {4: ['s_nop 1'], 5: ['s_nop 2'], 6: p0[:2], 7: p0[2:4], 8: p0[4:6], 9: p0[6:], 10: p1[:3], 11: p1[3:6], 12: p1[6:] + p3[:1], 13: s0 + p3[1:]}
        for n, (i, st) in enumerate([(i, st) for i in (0, 1, 2, 3, 6, 4, 5) for st in range(2)]):
            d = vr(12 + 4 * (i >> 1), 4)
            if n < 4:
                a(f's_waitcnt lgkmcnt({3 - n})')
            a(f'v_mfma_f32_16x16x32_bf16 {d}, {vr(W56 + 8 * i + 4 * st, 4)}, {vr(HB[i & 1][st], 4)}, {d if (st or i & 1) else 0}')
            a('\n'.join(fill.get(n, [])))
        a('\n'.join(p2 + put(1)))
        stamp(11)
        if cfg['stamps'] == 4:
            a(f's_memtime {sr(S_ST0 + 4, 2)}')
    down('sc1')
    a('s_branch L_exit' if cfg['stamps'] else 's_endpgm')
    a('L_fhx:\ns_waitcnt lgkmcnt(0)\ns_barrier\ns_barrier')

    a('L_exit:')
    if cfg['probe']:
        pr = cfg['probe'].split('_')
        cls, k = pr[0][0], int(pr[0][1:])
        a(f's_waitcnt lgkmcnt(0)\ns_cmp_ge_u32 s{S_W}, 4\ns_cbranch_scc{1 if cls == "s" else 0} L_end')
        if cls == 's':
            a('s_barrier\ns_barrier\ns_barrier')
        for f in pr[1:]:
            if f[0] == 'r':
                a(f's_cmp_eq_u32 s{S_ROLE}, {f[1:]}\ns_cbranch_scc0 L_end')
            else:
                a(f's_bitcmp1_b32 {f[1:]}, s{S_H}\ns_cbranch_scc0 L_end')
        a(f's_cmp_eq_u32 s{S_ST0 + 2 * k}, 0\ns_cbranch_scc1 L_end\ns_mov_b32 s{S_CNT}, 0')
        a(f'L_pw:\ns_memrealtime s[30:31]\ns_waitcnt lgkmcnt(0)\ns_sub_u32 s30, s30, s{S_ST0 + 2 * k}\ns_cmp_ge_u32 s30, 6000\ns_cbranch_scc1 L_end')
        a(f's_add_u32 s{S_CNT}, s{S_CNT}, 1\ns_cmp_lt_u32 s{S_CNT}, 100000\ns_cbranch_scc1 L_pw\ns_branch L_end')
    if cfg['stamps']:
        a('s_waitcnt lgkmcnt(0)\ns_mov_b64 exec, 1')
        a(f's_lshl_b32 s30, s2, 3\ns_add_u32 s30, s30, s{S_W}\ns_lshl_b32 s30, s30, 6\ns_add_u32 s30, s30, {WS_STAMP}\nv_mov_b32 v0, s30')
        for q in range(3):
            for k in range(4):
                a(f'v_mov_b32 v{4 + k + 4 * q}, s{S_ST0 + 2 * (4 * q + k)}')
            a(f'global_store_dwordx4 v0, {vr(4 + 4 * q, 4)}, {sr(P_WS, 2)} offset:{16 * q}')
        a(f'v_mov_b32 v16, s{S_CNT}\nglobal_store_dword v0, v16, {sr(P_WS, 2)} offset:48')
    a('L_end:\ns_endpgm')
    a('.section .rodata,"a"\n.p2align 6')
    a(f'.amdhsa_kernel {NAME}_kernel')
    a('.amdhsa_next_free_vgpr 256\n.amdhsa_next_free_sgpr 102\n.amdhsa_accum_offset 256\n.amdhsa_group_segment_fixed_size 0')
    a('.amdhsa_kernarg_size 112\n.amdhsa_user_sgpr_count 2\n.amdhsa_user_sgpr_kernarg_segment_ptr 1\n.amdhsa_system_sgpr_workgroup_id_x 1')
    a('.amdhsa_float_denorm_mode_32 3\n.end_amdhsa_kernel')
    if cfg['abl'] & 4:
        k = a.lines.index('L_chain:')
        a.lines = [l for i, l in enumerate(a.lines) if i > k or not l.startswith(('v_mfma', 'v_perm', 'v_add_f32_dpp', 'ds_read_b128'))]
    return head + a.text()


if __name__ == '__main__':
    kw = {}
    for x in sys.argv[2:]:
        k, v = x.split('=')
        kw[k] = int(v) if v.lstrip('-').isdigit() else v
    open(sys.argv[1], 'w').write(gen(**kw))
```

```python
import sys
from asmlib import Asm, vr, sr

NAME = 'adaLN_cond__sliding_block_cached__glu_gated_swiglu__decode'

WS_EPOCH = 0x0
WS_MOD = 0x1000
WS_Q = 0x300000
WS_ML = 0x40000
WS_CEN = 0x50000
WS_PRG = 0x52000
WS_PL = 0x280000
WS_X1 = 0x60000
WS_OP = 0x80000
WS_PA = 0x100000
WS_PF = 0x180000
WS_STAMP = 0x200000
WS_SIZE = 0x400000

F_Q, F_SC, F_P, F_KT, F_VT, F_S1, F_S2, F_S3, F_S4, F_MT = 0, 4, 8, 16, 20, 24, 28, 32, 36, 40
L_ST, L_ST2 = 0x100, 0x200
L_Q, L_P, L_SC, L_A, L_H, L_W = 0x400, 0x800, 0x1000, 0x2000, 0x3C00, 0x4000
BLK = 1152
BLS = 1088
L_X = L_W + 56 * BLK
L_PAR = L_X + 64 * 1024
LDS_BYTES = L_X + 80 * 1024

S_W, S_H, S_B, S_D, S_R = 3, 4, 5, 6, 7
SRD_A, SRD_B, SRD_WS, SRD_C = 8, 12, 16, 20
S_E, S_C, S_CNT, S_JJ = 28, 29, 33, 34
S_XO, S_FAST, P_DBG = 71, 75, 64
P_X, P_K, P_V, P_WQ, P_WO, P_W1, P_W3, P_W2, P_C, P_WM, P_OUT, P_WS = 40, 42, 44, 46, 48, 52, 54, 56, 58, 60, 62, 66
S_ST0 = 76
SPIN_CAP = 400000
LOG2E = 0x3FB8AA3B

DEF = dict(seg=((0, 8, 3, 14),), cks=(16, 26, 36, 46, 56, 77, 87, 97, 107), thr=40, ktrig=60, mtrig=30, vsync=42, NL=16, dflag=6, dbar=8,
           prio=2, pref=1, wb=1, lnx=0, fast=1, stamps=0, probe='', abl=0, km=None, fpre=6, thr0=26, swz=1, stub=1, ktouch=0, vtouch=0, wtouch=0, lag='wafx',  fthr=4, fn=127)
S_A, S_Bs, S_BASE, S_KB1, S_DST, S_ROLE = 68, 69, 70, 72, 73, 74


def gen(**kw):
    cfg = dict(DEF)
    cfg.update(kw)
    a = Asm()
    seg = cfg['seg']
    if isinstance(seg, str):
        seg = eval(seg)
    DV = seg[-1][1]
    KM = cfg['km'] or ([2, 1], [8, 16], [4, 32, 64, 128])
    lin = lambda cols, x: sum(c for k, c in enumerate(cols) if x >> k & 1) << 12
    WFL = 'nt'

    def stamp(k):
        if cfg['stamps']:
            a(f's_memrealtime {sr(S_ST0 + 2 * k, 2)}')

    def srd(d, p, size):
        a(f's_mov_b32 s{d}, s{p}\ns_mov_b32 s{d + 1}, s{p + 1}\ns_mov_b32 s{d + 2}, {size}\ns_mov_b32 s{d + 3}, 0x20000')

    def retry(lab):
        a(f's_add_u32 s{S_CNT}, s{S_CNT}, 1\ns_cmp_lt_u32 s{S_CNT}, {SPIN_CAP}\ns_cbranch_scc1 {lab}\ns_branch L_exit')

    def spin_lds(flag, n, t, two=False):
        top, done = a.lab('L_spin'), a.lab('L_got')
        a(f'{top}:\nv_mov_b32 v{t}, 0')
        if two:
            a(f'ds_read_b64 {vr(t, 2)}, v{t} offset:{flag}')
        else:
            a(f'ds_read_b32 v{t}, v{t} offset:{flag}')
        a(f's_waitcnt lgkmcnt(0)\nv_readfirstlane_b32 s31, v{t}\ns_cmp_ge_u32 s31, {n}\ns_cbranch_scc1 {done}')
        retry(top)
        a(f'{done}:')

    PEND = (8, 10, 12, 14, 42, 44, 46, 50)

    def reload(p, ins):
        a(f's_quadmask_b64 {sr(p, 2)}, {sr(p, 2)}\ns_bitreplicate_b64_b32 {sr(p, 2)}, s{p}\ns_wqm_b32 s{p}, s{p}\ns_bitreplicate_b64_b32 exec, s{p}\n{ins}')

    def expand(p, x):
        a(f's_quadmask_b64 {sr(p, 2)}, {sr(p, 2)}\ns_bitreplicate_b64_b32 {sr(p, 2)}, s{p}\ns_wqm_b32 s{p}, s{p}\ns_bitreplicate_b64_b32 {sr(x, 2)}, s{p}')

    V_E8 = 11

    def tag8(d):
        a(f'v_and_b32 v{d}, 3, v0\nv_mul_u32_u24 v{d}, 7, v{d}\nv_lshrrev_b32 v{d}, v{d}, s{S_E}\nv_and_b32 v{d}, 0xff, v{d}\nv_bfi_b32 v{d}, 1, s{S_E}, v{d}')

    def tag2(d):
        a(f'v_and_b32 v{d + 3}, 3, v0\nv_mul_u32_u24 v{d + 3}, 6, v{d + 3}\nv_lshrrev_b32 v{d + 3}, v{d + 3}, s{S_E}\nv_mov_b32 v{d}, s{S_E}')
        for j in range(1, 4):
            a(f'v_lshrrev_b32 v{d + j}, {2 * j}, v{d + 3}')

    def poll(name, loads, kind, between=None, X=None):
        top, chk, done = f'L_{name}poll', f'L_{name}chk', f'L_{name}got'
        for r, ins in loads:
            a(ins)
        if between:
            between()
        if name not in cfg['lag']:
            X = None
        for x in X or ():
            a(f's_mov_b64 {sr(x, 2)}, -1')
        a(f's_branch {chk}')
        a(f'{top}:')
        for k, (r, ins) in enumerate(loads):
            if X:
                a(f's_mov_b64 exec, {sr(X[k], 2)}\n{ins}')
            else:
                reload(PEND[k], ins)
        for k, x in enumerate(X or ()):
            expand(PEND[k], x)
        a(f's_mov_b64 exec, -1\ns_add_u32 s{S_CNT}, s{S_CNT}, 1\ns_cmp_lt_u32 s{S_CNT}, {SPIN_CAP}\ns_cbranch_scc0 L_exit')
        a(f'{chk}:')
        a('s_waitcnt vmcnt(0)')
        for k, (r, ins) in enumerate(loads):
            if kind == 2:
                a(f'v_xor_b32 v10, v32, v{r}')
                for j in range(1, 4):
                    a(f'v_bitop3_b32 v10, v10, v{r + j}, v{32 + j} bitop3:0xf6')
                a(f'v_and_b32 v10, 3, v10\nv_cmp_ne_u32_e64 {sr(PEND[k], 2)}, 0, v10')
            elif kind:
                a(f'v_cmp_ne_u32_sdwa {sr(PEND[k], 2)}, v{r}, v{V_E8} src0_sel:BYTE_0 src1_sel:DWORD')
            else:
                a(f'v_cmp_ne_u32_e64 {sr(PEND[k], 2)}, s{S_E}, v{r}')
        a(f's_or_b64 vcc, {sr(PEND[0], 2)}, {sr(PEND[1], 2)}')
        for k in range(2, len(loads)):
            a(f's_or_b64 vcc, vcc, {sr(PEND[k], 2)}')
        a(f's_cbranch_scc1 {top}')
        if kind == 2:
            for r, ins in loads:
                for j in range(4):
                    a(f'v_and_b32 v{r + j}, -4, v{r + j}')
        elif kind:
            for r, ins in loads:
                a(f'v_xor_b32 v{r}, v{V_E8}, v{r}')

    V_T0, V_T1, V_TW = 36, 37, 43

    def htags(t):
        a(f'v_and_b32 v{t}, 7, v0\nv_mul_u32_u24 v{t}, 3, v{t}\nv_lshrrev_b32 v{t}, v{t}, s{S_E}\ns_mov_b32 s38, 0x10001\ns_and_b32 s30, s{S_E}, 1')
        a(f'v_bfe_u32 v{V_T0}, v{t}, 1, 1\nv_lshl_or_b32 v{V_T0}, v{V_T0}, 16, s30')
        a(f'v_bfe_u32 v{V_T1}, v{t}, 2, 1\nv_bfe_u32 v{t}, v{t}, 3, 1\nv_lshl_or_b32 v{V_T1}, v{t}, 16, v{V_T1}')
        a(f'v_mov_b32 v{V_TW}, v{V_T0}\nv_mov_b32_dpp v{V_TW}, v{V_T1} quad_perm:[0,1,2,3] row_mask:0xa bank_mask:0xf')

    def hpack(d, x):
        return [f'v_add_u32 v{x + k}, 0x8000, v{x + k}' for k in range(4)] + [
            f'v_cvt_pk_bf16_f32 v{d + 1}, v{x + 2}, v{x + 3}', f'v_cvt_pk_bf16_f32 v{d}, v{x}, v{x + 1}',
            f'v_bfi_b32 v{d + 1}, s38, v{V_TW}, v{d + 1}', f'v_bfi_b32 v{d}, s38, v{V_TW}, v{d}']

    def hgather(name, g, ld, issued=False):
        top, chk = f'L_{name}poll', f'L_{name}chk'
        if not issued:
            for u in range(4):
                a(ld(u))
        X = (40, 42, 52, 54) if name in cfg['lag'] else None
        for x in X or ():
            a(f's_mov_b64 {sr(x, 2)}, -1')
        if X and issued:
            a(f's_mov_b32 s{X[3] + 1}, 0')
        a(f's_branch {chk}\n{top}:')
        if X:
            for u in range(4):
                a(f's_mov_b64 exec, {sr(X[u], 2)}\n{ld(u)}')
            a('s_mov_b64 exec, -1')
        for u in range(4):
            a(f'v_bitop3_b32 v32, v{12 + 2 * u}, v{13 + 2 * u}, s38 bitop3:0xa8\nv_cmp_ne_u32_e64 {sr(PEND[u], 2)}, 0, v32')
        for u in range(4):
            if X:
                expand(PEND[u], X[u])
            else:
                reload(PEND[u], ld(u))
        a(f's_mov_b64 exec, -1\ns_add_u32 s{S_CNT}, s{S_CNT}, 1\ns_cmp_lt_u32 s{S_CNT}, {SPIN_CAP}\ns_cbranch_scc0 L_exit')
        a(f'{chk}:')
        a('s_waitcnt vmcnt(0)')
        for k in range(8):
            a(f'v_bitop3_b32 v{12 + k}, v{g + 2 * k}, v{g + 2 * k + 1}, v{V_T1 if k & 1 else V_T0} bitop3:0x7e')
        a('v_or3_b32 v32, v12, v13, v14\nv_or3_b32 v33, v15, v16, v17\nv_or3_b32 v32, v32, v18, v19\nv_bitop3_b32 v32, v32, v33, s38 bitop3:0xa8\nv_cmp_ne_u32 vcc, 0, v32')
        a(f's_cbranch_vccnz {top}')
        clean = [f'v_xor_b32 v{g + k}, v{V_T1 if k & 2 else V_T0}, v{g + k}' for k in range(16)]
        a('\n'.join(clean[:6]))
        for u in range(4):
            a(f'v_mfma_f32_16x16x32_bf16 v[28:31], v[76:79], {vr(g + 4 * u, 4)}, {"v[28:31]" if u else 0}')
            a('\n'.join(clean[6 + 4 * u:10 + 4 * u]))
        for k in range(4):
            dpp('v_add_f32', 28 + k, 28 + k, 28 + k, 'row_ror:8')

    def census(t):
        a(f's_lshl_b32 s30, s{S_H}, 8\ns_add_u32 s30, s30, {WS_CEN}\nv_and_b32 v{t}, 31, v0\nv_lshlrev_b32 v{t}, 2, v{t}')
        a(f'buffer_load_dword v{t}, v{t}, {sr(SRD_WS, 4)}, s30 offen sc1')

    def census_done(t):
        a(f'v_cmp_eq_u32 vcc, s{S_XO}, v{t}\ns_bcnt1_i32_b32 s{S_FAST}, vcc_lo')

    def group_store(ins, cond=None):
        slow, done = a.lab('L_st'), a.lab('L_std')
        a(cond or f's_cmp_eq_u32 s{S_FAST}, {32 if cfg["fast"] else 99}')
        a(f's_cbranch_scc0 {slow}\n{ins}\ns_branch {done}\n{slow}:\n{ins} sc1\n{done}:')

    def pair_srd(p, w):
        a(f's_mov_b64 {sr(p, 2)}, {sr(P_WS, 2)}\ns_mov_b64 {sr(w, 2)}, {sr(P_WS, 2)}\ns_mov_b32 s{p + 3}, 0x20000\ns_mov_b32 s{w + 3}, 0x20000')
        a(f's_cmp_eq_u32 s{S_FAST}, {32 if cfg["fast"] else 99}\ns_cselect_b32 s{p + 2}, s{SRD_WS + 2}, 0\ns_cselect_b32 s{w + 2}, 0, s{SRD_WS + 2}')

    def pair_store(data, addr, soff, p, w):
        a(f'buffer_store_dwordx4 {vr(data, 4)}, v{addr}, {sr(p, 4)}, s{soff} offen\nbuffer_store_dwordx4 {vr(data, 4)}, v{addr}, {sr(w, 4)}, s{soff} offen sc1')

    def flag_add(flag, t, inc=1):
        a(f'v_mov_b32 v{t}, 0\nv_mov_b32 v{t + 1}, {inc}\ns_mov_b64 exec, 1\nds_add_u32 v{t}, v{t + 1} offset:{flag}\ns_mov_b64 exec, -1')

    def rnd(d, s):
        a(f'v_cvt_pk_bf16_f32 v{d}, 0, v{s}')

    def rows_allreduce(op, x, t):
        a(f'v_mov_b32 v{t}, v{x}\nv_permlane16_swap_b32 v{x}, v{t}\n{op} v{x}, v{x}, v{t}')
        a(f'v_mov_b32 v{t}, v{x}\nv_permlane32_swap_b32 v{x}, v{t}\n{op} v{x}, v{x}, v{t}')

    def dpp(op, d, s0, s1, ctl, rm=0xf, bm=0xf):
        a(f'{op}_dpp v{d}, v{s0}, v{s1} {ctl} row_mask:{rm:#x} bank_mask:{bm:#x}')

    hdr = open('cdna_kernels/' + NAME + '.s.ref').read().split('; Override launch')[0]
    head = hdr + f'; @launch grid=(256,1,1) block=(512,1,1) lds={LDS_BYTES}\n'
    a('.amdgcn_target "amdgcn-amd-amdhsa--gfx950"\n.text')
    a(f'.globl {NAME}_kernel\n.p2align 8\n.type {NAME}_kernel,@function\n{NAME}_kernel:')
    a('s_load_dwordx16 s[40:55], s[0:1], 0\ns_load_dwordx8 s[56:63], s[0:1], 64\ns_load_dwordx4 s[64:67], s[0:1], 96')
    stamp(0)
    a(f'v_lshrrev_b32 v1, 6, v0\ns_lshr_b32 s{S_B}, s2, 5\ns_cmp_ge_u32 s{S_B}, 8\ns_cbranch_scc1 L_end')
    a(f'v_readfirstlane_b32 s{S_W}, v1\nv_and_b32 v0, 63, v0')
    a(f's_and_b32 s{S_H}, s2, 7\ns_lshr_b32 s{S_R}, s2, 3\ns_and_b32 s{S_D}, s{S_R}, 3')
    a(f's_lshl_b32 s30, s{S_B}, 1\ns_lshr_b32 s{S_ROLE}, 0xcaa0, s30\ns_and_b32 s{S_ROLE}, s{S_ROLE}, 3')
    a(f's_and_b32 s30, s2, 0xe7\ns_cmpk_eq_u32 s30, 0xe0\ns_cselect_b32 s{S_ROLE}, 0, s{S_ROLE}')
    a(f's_cmp_lt_u32 s2, 42\ns_cselect_b32 s{S_ROLE}, 1, s{S_ROLE}')
    a(f's_cmp_ge_u32 s{S_W}, 4\ns_cbranch_scc1 {"L_cstub" if cfg["stub"] else "L_chain"}')
    clear = 'v_mov_b32 v4, 0\nv_mov_b32 v5, 0\nv_mov_b32 v6, 0\nv_mov_b32 v7, 0\nv_lshlrev_b32 v8, 4, v0\nds_write_b128 v8, v[4:7]'

    def common():
        if cfg['stamps']:
            for k in range(1, 12):
                if k != 9:
                    a(f's_mov_b64 {sr(S_ST0 + 2 * k, 2)}, 0')
        a(f's_mov_b32 s{S_CNT}, 0')

    def decode(vrow, vnt):
        a(f's_lshl2_add_u32 s{S_JJ}, s{S_H}, s{S_D}\ns_and_b32 s{S_C}, s{S_W}, 3')
        a(f's_and_b32 s31, s{S_R}, 7\ns_lshl3_add_u32 s30, s{S_H}, s31\ns_cmp_lt_u32 s2, 42\ns_cselect_b32 s30, s2, s30')
        a(f'v_bfe_u32 v{vrow}, v0, 1, 3')
        a(f'v_lshrrev_b32 v10, 4, v0\nv_and_b32 v11, 1, v0\nv_lshlrev_b32 v11, 4, v11\nv_lshl_or_b32 v{vnt}, v10, 5, v11')

    V_R8, V_NT, V_TR, V_AR, V_L16, V_XA, V_MA, V_DM = 1, 2, 3, 4, 5, 6, 7, 9

    def dma(srdn, nt, lds0, bar=-1, BLK=BLK, qout=None):
        a(f's_lshl_b32 s30, s{S_C}, 1\ns_mul_i32 s31, s30, {BLK}\ns_add_u32 m0, s31, {lds0}')
        a(f's_mul_i32 s30, s30, s{S_A}\ns_add_u32 s30, s30, s{S_BASE}\ns_add_u32 s31, s30, s{S_A}')
        for t in range(nt):
            for u in range(2):
                k = 2 * t + u
                if k == bar:
                    a('s_barrier')
                if k == 8 and qout:
                    a(f's_cmp_eq_u32 s{S_ROLE}, 2\ns_cbranch_scc1 {qout}')
                a(f'buffer_load_dwordx4 v{V_DM}, {sr(srdn, 4)}, s{30 + u} offen {WFL} lds')
                if k < 2 * nt - 1:
                    a(f's_addk_i32 m0, {BLK if u == 0 else 7 * BLK}\ns_add_u32 s{30 + u}, s{30 + u}, s{S_Bs}')

    QA, QD, SC = 8, 24, 4
    RING = 32
    slot = lambda k: RING + 4 * k
    NL = cfg['NL']
    NSYNC = 56 + NL
    ACC = slot(0)
    parked = lambda n: 4 <= n < 4 + NL
    kslot = lambda n: slot((n - 4) % 8) if parked(n) else slot(n if n < 4 else n - NL)
    vidx = lambda i: 8 + (56 - NL + i) % 48
    vslot = lambda i: slot(vidx(i))
    S_LX = 27
    assert 8 <= NL <= 16
    if cfg['abl'] & 1024:
        a('v_and_b32 v4, 7, v0\nv_lshrrev_b32 v5, 3, v0\nv_lshlrev_b32 v4, 4, v4\nv_lshl_or_b32 v1, v5, 9, v4')
    else:
        a('v_and_b32 v4, 7, v0\nv_and_b32 v5, 48, v0\nv_lshl_or_b32 v1, v4, 9, v5\nv_and_b32 v5, 8, v0\nv_lshl_or_b32 v1, v5, 3, v1')
    a(f's_lshl3_add_u32 s32, s{S_B}, s{S_H}\ns_lshl2_add_u32 s32, s32, 3\ns_lshl_b32 s32, s32, 20')
    if cfg['km']:
        tab = lambda c: sum((lin(c, x) >> 12) << (8 * x) for x in range(4))
        a(f's_lshl_b32 s31, s{S_D}, 3\ns_lshr_b32 s37, {tab(KM[1])}, s31\ns_lshl_b32 s31, s{S_W}, 3\ns_lshr_b32 s36, {tab(KM[0])}, s31')
        a('s_or_b32 s36, s36, s37\ns_lshl_b32 s36, s36, 24\ns_lshr_b32 s36, s36, 12\ns_lshl_b32 s37, s37, 24\ns_lshr_b32 s37, s37, 12')
    else:
        a(f's_lshl_b32 s37, s{S_D}, 15\ns_brev_b32 s31, s{S_W}\ns_lshr_b32 s31, s31, 18\ns_or_b32 s36, s37, s31')
    a(f's_mov_b32 s{SRD_A + 2}, 0x100000\ns_mov_b32 s{SRD_A + 3}, 0x20000')
    a(f's_bitcmp1_b32 14, s{S_ROLE}\ns_cselect_b64 vcc, -1, 0')
    a('s_cbranch_scc1 L_role\ns_waitcnt lgkmcnt(0)\nL_k0:')
    a(f's_add_u32 s{SRD_A}, s{P_K}, s32\ns_addc_u32 s{SRD_A + 1}, s{P_K + 1}, 0')
    stamp(9)

    def stream_setup():
        a('s_branch L_k4')
        if cfg['stub']:
            a(f'L_cstub:\n{clear}\ns_waitcnt lgkmcnt(0)\ns_barrier\ns_branch L_chain')
        a('L_role:')
        decode(6, 7)
        a(f's_movk_i32 s26, 896\ns_mov_b32 s{SRD_C + 2}, 1605632\ns_and_b32 s31, s{S_B}, 4\ns_lshl_b32 s31, s31, 12\ns_add_u32 s30, s30, s31\ns_sub_u32 s31, s{S_JJ}, 4\ns_mulk_i32 s31, 448\ns_waitcnt lgkmcnt(0)')
        if cfg['ktouch']:
            a(f's_load_dword s24, {sr(P_K, 2)}, s32')
        a(f's_cmp_eq_u32 s{S_ROLE}, 1\ns_cmovk_i32 s26, 5376\ns_cmov_b32 s{SRD_C + 2}, 2408448\ns_cselect_b64 {sr(SRD_C, 2)}, {sr(P_WM, 2)}, {sr(P_W2, 2)}')
        a(f's_cmp_eq_u32 s{S_ROLE}, 2\ns_cmovk_i32 s26, 8192\ns_cmov_b32 s{SRD_C + 2}, 3670016\ns_cselect_b64 {sr(SRD_C, 2)}, {sr(P_WQ, 2)}, {sr(SRD_C, 2)}')
        a(f's_lshl_b32 s{S_A}, s26, 3\ns_lshl_b32 s{S_Bs}, s26, 6')
        a(f's_cmp_eq_u32 s{S_ROLE}, 3\ns_cmovk_i32 s{S_Bs}, 128\ns_cselect_b32 s30, s31, s30\ns_lshl_b32 s{S_BASE}, s30, 7')
        a(f's_mov_b32 s{SRD_C + 3}, 0x20000')
        a(f'v_mad_u32_u24 v{V_DM}, v6, s26, v7')
        if cfg['abl'] & 2:
            a('s_barrier')
        else:
            dma(SRD_C, 7, L_W, bar=cfg['dbar'], qout='L_k0')
        a('s_branch L_k0\nL_k4:')
        common()
        a(f's_lshl_b32 s{S_LX}, s{S_W}, 14\ns_add_u32 s{S_LX}, s{S_LX}, {L_X}')

    vdone = 0
    g0 = NL // 4
    regg = [0] + list(range(g0 + 1, 16))
    korder = [regg[2], regg[0], regg[1]]
    rest = regg[3:]
    for p in range(1, g0 + 1, 2):
        korder += [('rd', p)] + rest[:1] + [g for g in (p, p + 1) if g <= g0]
        rest = rest[1:]
    korder += rest
    kdone = set()
    qn = [0]

    def qk_post(gi, d):
        t, u = gi >> 2, gi & 3
        dpp('v_add_f32', SC + u, d + 1, d, 'row_ror:8', 1 << t, 0x3)
        dpp('v_add_f32', SC + u, d + 2, d + 3, 'row_ror:8', 1 << t, 0xc)

    def qk_some(landed, maxn):
        prev = None
        while korder and maxn:
            g = korder[0]
            if isinstance(g, tuple):
                for n in range(4 * g[1], min(4 * g[1] + 8, NL + 4)):
                    a(f'ds_read_b128 {vr(kslot(n), 4)}, v3 offset:{1024 * (n - 4)}')
                korder.pop(0)
                continue
            if 4 * g + 3 > landed:
                break
            korder.pop(0)
            maxn -= 1
            if parked(4 * g) and g % 2 == 1:
                a('s_waitcnt lgkmcnt(0)')
            d = QD + 4 * (qn[0] & 1)
            qn[0] += 1
            for j in range(4):
                a(f'v_mfma_f32_16x16x32_bf16 {vr(d, 4)}, {vr(QA + 4 * j, 4)}, {vr(kslot(4 * g + j), 4)}, {vr(d, 4) if j else 0}')
            if prev:
                qk_post(*prev)
            prev = (g, d)
            kdone.add(g)
        if prev:
            qk_post(*prev)
            if len(kdone) == 16:
                a(f's_lshl_b32 s31, s{S_W}, 10\nv_lshl_add_u32 v3, v0, 4, s31\nds_write_b128 v3, {vr(SC, 4)} offset:{L_SC}\ns_waitcnt lgkmcnt(0)')
                flag_add(F_SC, 4)
                stamp(3)

    def perms(dst_of, e0, G, r):
        lo, hi = vslot(8 * G + e0) + r, vslot(8 * G + e0 + 1) + r
        a(f'v_perm_b32 v{dst_of(2 * r) + e0 // 2}, v{hi}, v{lo}, s38')
        a(f'v_perm_b32 v{dst_of(2 * r + 1) + e0 // 2}, v{hi}, v{lo}, s39')

    def pv_mfma(G, j, b):
        a(f'v_mfma_f32_16x16x32_bf16 {vr(ACC + 4 * j, 4)}, {vr(QD + 4 * (G & 1), 4)}, {vr(b, 4)}, {vr(ACC + 4 * j, 4) if G else 0}')

    def pv_group(G):
        a('s_waitcnt lgkmcnt(0)')
        a(f'ds_read_b128 {vr(QD + 4 * ((G + 1) & 1), 4)}, v3 offset:{L_P + 256 * (G + 1)}')
        tmp = lambda j: QA + 4 * (j & 3)
        for r in range(4):
            for e0 in (0, 2, 4, 6):
                perms(tmp, e0, G, r)
            if r:
                pv_mfma(G, 2 * r - 1, tmp(2 * r - 1))
            pv_mfma(G, 2 * r, tmp(2 * r))
        pv_mfma(G, 7, tmp(7))

    def op_addr(d, t):
        a(f'v_and_b32 v{d}, 7, v0\nv_lshlrev_b32 v{d}, 4, v{d}\nv_and_b32 v{t}, 8, v0\nv_lshl_or_b32 v{d}, v{t}, 5, v{d}\nv_and_b32 v{t}, 16, v0\nv_lshl_or_b32 v{d}, v{t}, 3, v{d}')
        a(f'v_and_b32 v{t}, 32, v0\nv_lshl_or_b32 v{d}, v{t}, 25, v{d}')

    cks = cfg['cks']
    if isinstance(cks, str):
        cks = eval(cks)
    NPW = 64 + cfg['vsync'] + 2
    xops = [m for m in cks for _ in range(2)]
    extra = lambda after, n: sum(1 for m in xops if after <= m < n)
    pend = None
    for n in range(128):
        isk = n < 64
        n0, d, lite, rmask = [x for x in seg if x[0] <= n][-1]
        if n == 4:
            stream_setup()
        if n == n0 and n and rmask >= 0:
            a(f's_bitcmp1_b32 {rmask}, s{S_ROLE}\ns_cselect_b64 vcc, -1, 0')
        if n == 5:
            a('s_cbranch_vccnz L_nb\ns_barrier\nL_nb:')
        if n >= d:
            a(f's_waitcnt vmcnt({d - 1 + extra(n - d, n)})')
        if pend is not None and n - d > cks[pend]:
            k = pend + 1
            a(f's_add_u32 s60, s58, {k}\nv_subrev_u32 v7, s60, v7\nv_cmp_gt_u32 vcc, {16 - k}, v7')
            a('s_bcnt1_i32_b64 s60, vcc\ns_cmp_ge_u32 s60, s59\ns_cselect_b64 vcc, -1, 0')
            pend = None
        if lite and n >= d - lite:
            skip = a.lab('L_dp')
            a(f's_cbranch_vccnz {skip}\ns_waitcnt vmcnt({d - 1 - lite + extra(n - d + lite, n)})\n{skip}:')
        landed = n - d
        if n == d - lite:
            stamp(10)
        if n == 2 * (d - lite):
            stamp(11)
        if n == 120:
            a('s_setprio 3')
        if n == cfg['dflag']:
            assert seg[0][3] == 14 and n >= 5
            skip = a.lab('L_df')
            a(f's_cbranch_vccz {skip}\ns_waitcnt vmcnt({cfg["dflag"]})\n{skip}:')
            flag_add(F_S1, 4)
        if n == NSYNC:
            stamp(1)
            if not cfg['abl'] & 9:
                spin_lds(F_Q, 1, 4)
            stamp(2)
            a('v_lshrrev_b32 v4, 1, v0\nv_and_b32 v4, 1, v4\nv_and_b32 v5, 1, v0\nv_lshrrev_b32 v6, 4, v0\nv_lshlrev_b32 v6, 4, v6')
            a('v_lshl_or_b32 v6, v5, 6, v6\nv_lshl_or_b32 v3, v4, 9, v6')
            for j in range(4):
                a(f'ds_read_b128 {vr(QA + 4 * j, 4)}, v3 offset:{L_Q + 128 * j}')
            a(f'v_lshl_add_u32 v3, v0, 4, s{S_LX}')
            a('s_waitcnt lgkmcnt(0)')
            qk_some(landed, 1 if NL >= 8 else 2)
        if isk:
            if n >= NSYNC:
                assert (n - 56) // 4 in kdone
            if n and n % 4 == 0:
                a(f's_xor_b32 s36, s36, {lin(KM[2], n >> 2) ^ lin(KM[2], (n >> 2) - 1)}')
            if parked(n):
                a(f's_add_u32 m0, s{S_LX}, {1024 * (n - 4) - 128 * (n & 3)}')
                a(f'buffer_load_dwordx4 v1, {sr(SRD_A, 4)}, s36 offen offset:{128 * (n & 3)} nt lds')
            else:
                a(f'buffer_load_dwordx4 {vr(kslot(n), 4)}, v1, {sr(SRD_A, 4)}, s36 offen offset:{128 * (n & 3)} nt')
        else:
            i = n - 64
            if i < 48:
                kn = vidx(i) + NL
                assert kn >= 64 or kn // 4 in kdone, (i, kdone)
            else:
                assert vdone > (i - 48) // 8
            a(f's_add_u32 s30, s37, {lin(KM[2], i >> 2) + lin(KM[0], i & 3)}')
            a(f'buffer_load_dwordx4 {vr(vslot(i), 4)}, v2, {sr(SRD_B, 4)}, s30 offen nt')
        if n == 8:
            a(f'v_and_b32 v4, 7, v0\nv_lshrrev_b32 v5, 3, v0\nv_lshlrev_b32 v4, 4, v4\nv_lshl_or_b32 v2, v5, 9, v4')
            a(f's_lshl_b32 s31, s{S_W}, 7\ns_or_b32 s37, s37, s31')
            a(f's_add_u32 s{SRD_B}, s{P_V}, s32\ns_addc_u32 s{SRD_B + 1}, s{P_V + 1}, 0\ns_mov_b32 s{SRD_B + 2}, 0x100000\ns_mov_b32 s{SRD_B + 3}, 0x20000')
            srd(SRD_WS, P_WS, WS_SIZE)
            a('s_mov_b32 s38, 0x05040100\ns_mov_b32 s39, 0x07060302')
            if cks:
                a(f's_load_dword s58, {sr(P_WS, 2)}, 0')
                a(f's_and_b32 s57, s{S_R}, 1\ns_lshl1_add_u32 s56, s{S_H}, s57\ns_lshl_b32 s56, s56, 9\ns_add_u32 s56, s56, {WS_PRG}\ns_lshr_b32 s57, s{S_R}, 1')
                a(f's_lshl2_add_u32 s57, s57, s{S_W}\ns_lshl1_add_u32 s57, s57, s56')
                a('s_xor_b32 s56, s56, 512')
                a(f's_cmp_eq_u32 s{S_H}, 0\ns_cselect_b32 s59, {cfg["thr0"]}, {cfg["thr"]}\ns_cmp_eq_u32 s{S_ROLE}, 3\ns_cselect_b32 s59, 0, s59')
        if n in cks:
            assert pend is None and not (NSYNC - d - 1 <= n <= NSYNC + 4) and n + d + 1 < 128 and n > 8
            pend = cks.index(n)
            if pend == 0:
                a('s_waitcnt lgkmcnt(0)\ns_add_u32 s58, s58, 1\ns_lshl_b32 s58, s58, 4\ns_and_b32 s58, s58, 0xffff')
            a(f'v_lshlrev_b32 v7, 1, v0\ns_add_u32 s60, s58, {pend + 1}\nv_mov_b32 v4, s60')
            a(f'buffer_load_ushort v7, v7, {sr(SRD_WS, 4)}, s56 offen sc1')
            a(f's_mov_b64 exec, 1\nbuffer_store_short v4, off, {sr(SRD_WS, 4)}, s57\ns_mov_b64 exec, -1')
        if n == cfg['vtouch'] > 0:
            a(f's_load_dword s24, {sr(SRD_B, 2)}, 0')
        if n == cfg['wtouch'] > 0:
            a(f's_mul_i32 s31, s{S_H}, 458752\ns_load_dword s24, {sr(P_WO, 2)}, s31\ns_load_dword s25, {sr(P_WO, 2)}, s31 offset:458748')
            a(f's_load_dword s26, {sr(P_W1, 2)}, 0\ns_load_dword s27, {sr(P_W3, 2)}, 0\ns_load_dword s35, {sr(P_OUT, 2)}, 0')
        if n == cfg['ktrig']:
            assert n < NSYNC
            flag_add(F_KT, 4)
        if n == cfg['mtrig']:
            flag_add(F_MT, 4)
        if n == NPW:
            assert n < 112
            a(f's_lshl2_add_u32 s32, s{S_H}, s{S_W}\ns_lshl2_add_u32 s32, s32, s{S_D}\ns_lshl3_add_u32 s32, s32, s{S_B}\ns_lshl_b32 s32, s32, 9\ns_add_u32 s32, s32, {WS_OP}')
            pair_srd(8, 40)
        if n == 112:
            a(f's_lshl3_add_u32 s30, s{S_H}, s{S_D}\ns_mul_i32 s30, s30, 448\ns_add_u32 s30, s30, s{S_B}\ns_lshl2_add_u32 s31, s{S_H}, s{S_D}\ns_sub_u32 s31, s31, 4')
            a(f's_movk_i32 s26, 896\ns_movk_i32 s25, {BLK}\ns_mov_b32 s{SRD_C + 2}, 3670016\ns_mov_b32 s{SRD_C + 3}, 0x20000')
            a(f's_cmp_eq_u32 s{S_ROLE}, 3\ns_cmovk_i32 s26, 3584\ns_cmovk_i32 s25, {BLS}\ns_cmov_b32 s{SRD_C + 2}, 1605632')
            a(f's_cselect_b64 {sr(SRD_C, 2)}, {sr(P_W1, 2)}, {sr(P_WO, 2)}\ns_cselect_b32 s30, s31, s30\ns_lshl_b32 s30, s30, 7')
            a(f's_lshl_b32 s31, s{S_W}, 4\ns_mul_i32 s31, s31, s26\ns_add_u32 s{S_A}, s30, s31\ns_lshl3_add_u32 s{S_Bs}, s26, s{S_A}')
            a(f's_add_u32 s{S_BASE}, s{S_A}, 229376\ns_add_u32 s{S_XO}, s{S_Bs}, 229376')
            a(f's_lshl_b32 s31, s{S_W}, 1\ns_mul_i32 s31, s31, s25\ns_add_u32 m0, s31, {L_W}\ns_mul_i32 s24, s25, 7')
            a('v_bfe_u32 v4, v0, 1, 3\nv_and_b32 v5, 48, v0\nv_and_b32 v6, 1, v0\nv_lshlrev_b32 v5, 1, v5\nv_lshl_or_b32 v5, v6, 4, v5\nv_mad_u32_u24 v1, v4, s26, v5')
        if n == 127:
            for k, so in enumerate((S_A, S_Bs, S_BASE, S_XO)):
                if cfg['abl'] & 512:
                    a(f's_mov_b32 s{SRD_C + 2}, 0')
                a(f'buffer_load_dwordx4 v1, {sr(SRD_C, 4)}, s{so} offen nt lds')
                if k < 3:
                    a(f's_add_u32 m0, m0, s{24 if k == 1 else 25}')
        if n == cfg['fn'] and cfg['fpre']:
            flag_add(F_S4, 4, 16)
        if n >= NSYNC and korder:
            qk_some(landed, 4)
        if n == 64 + cfg['vsync']:
            assert len(kdone) == 16
            stamp(4)
            if not cfg['abl'] & 9:
                spin_lds(F_P, 1, 4, two=True)
            stamp(5)
            a(f'v_readfirstlane_b32 s{S_E}, v5\ns_sub_u32 s{S_FAST}, s31, 1')
            a('v_lshrrev_b32 v4, 1, v0\nv_and_b32 v4, 1, v4\nv_and_b32 v5, 1, v0\nv_lshrrev_b32 v6, 4, v0\nv_lshlrev_b32 v6, 5, v6')
            a('v_lshl_or_b32 v6, v5, 4, v6\nv_lshl_or_b32 v3, v4, 7, v6')
            a(f'ds_read_b128 {vr(QD, 4)}, v3 offset:{L_P}')
        if n >= 64 + cfg['vsync'] and vdone < 7 and 64 + 8 * vdone + 7 <= landed:
            pv_group(vdone)
            vdone += 1
    assert vdone == 7, vdone
    op_addr(8, 9)
    a('s_movk_i32 s31, 0xff')
    tag8(9)
    big = lambda j: vslot(24 + j)
    for pr in range(4):
        if 6 - 2 * pr < DV:
            a(f's_waitcnt vmcnt({10 - 2 * pr})')
        if pr < 3:
            for r in range(4):
                perms(big, 2 * pr, 7, r)
    stamp(6)
    a('s_waitcnt lgkmcnt(0)')

    def pv_post(j):
        d = ACC + 4 * j
        dpp('v_add_f32', 4 + (j & 3), d + 1, d, 'row_ror:8', 1 << (j >> 2), 0x3)
        dpp('v_add_f32', 4 + (j & 3), d + 2, d + 3, 'row_ror:8', 1 << (j >> 2), 0xc)
    perms(big, 6, 7, 0)
    perms(big, 6, 7, 1)
    pv_mfma(7, 0, big(0))
    perms(big, 6, 7, 2)
    pv_mfma(7, 1, big(1))
    perms(big, 6, 7, 3)
    for j in range(2, 8):
        pv_mfma(7, j, big(j))
        if j >= 4:
            pv_post(j - 4)
    for j in range(4, 8):
        pv_post(j)
    a('v_bfi_b32 v4, s31, v9, v4')
    a('s_mov_b32 exec_hi, 0')
    pair_store(4, 8, 32, 8, 40)
    a('s_mov_b32 exec_hi, -1')
    if not cfg['abl'] & 17:
        a(f's_cmp_eq_u32 s{S_ROLE}, 3\ns_cbranch_scc1 L_fs')
    a('s_waitcnt vmcnt(2)\ns_barrier')
    stamp(7)
    a('s_barrier\ns_branch L_exit')
    a('L_fs:\ns_barrier')
    stamp(7)
    a('s_waitcnt vmcnt(0)')
    flag_add(F_S2, 12)
    a(f's_cmp_lt_u32 s{S_W}, 3\ns_cbranch_scc1 L_fhelp')
    a('s_branch L_exit')

    W56, W112, T0 = 88, 144, 12
    MASK8 = 's[36:37]'

    def trread(dst, nops, vaddr):
        for s in range(nops):
            for rp in range(2):
                a(f'ds_read_b64_tr_b16 {vr(dst + 4 * s + 2 * rp, 2)}, v{vaddr} offset:{s * 4 * BLK + rp * 128}')

    a('L_chain:')
    if cfg['prio']:
        a(f's_setprio {cfg["prio"]}')
    if not cfg['stub']:
        a(clear)
    common()
    if cfg['stamps']:
        a(f's_mov_b64 {sr(S_ST0 + 18, 2)}, 0')
    decode(V_R8, V_NT)
    a(f'v_lshlrev_b32 v{V_L16}, 4, v0')
    a(f'v_and_b32 v11, 7, v0\nv_lshrrev_b32 v12, 3, v0\nv_lshlrev_b32 v13, 4, v11')
    a(f'v_mul_u32_u24 v{V_XA}, 896, v11\nv_lshl_add_u32 v{V_XA}, v12, 4, v{V_XA}\nv_lshl_or_b32 v{V_MA}, v12, 8, v13')
    a(f'v_lshl_or_b32 v{V_AR}, v10, 7, v13')
    a(f's_add_u32 s{S_KB1}, s{S_C}, 4\ns_min_u32 s{S_KB1}, s{S_KB1}, 6')
    a(f's_and_b32 s31, s{S_B}, 4\ns_lshl_b32 s31, s31, 15\ns_add_u32 s31, s31, {WS_Q}\ns_cmp_eq_u32 s{S_ROLE}, 1\ns_cselect_b32 s31, {WS_MOD}, s31\ns_lshl_b32 s{S_DST}, s30, 11\ns_add_u32 s{S_DST}, s{S_DST}, s31')
    a(f's_lshl_b32 s31, s{S_C}, 9\ns_add_u32 s{S_DST}, s{S_DST}, s31')
    a(f's_lshl_b32 s30, s{S_C}, 7\ns_lshl_b32 s31, s{S_KB1}, 7\nv_mov_b32 v13, 0')
    a(f's_mov_b32 s{SRD_C + 2}, 7168\ns_mov_b32 s{SRD_C + 3}, 0x20000')
    if not cfg['stub']:
        a('s_waitcnt lgkmcnt(0)\ns_barrier')
    if cfg['abl'] & 1:
        a('s_branch L_exit')
    srd(SRD_WS, P_WS, WS_SIZE)
    a(f's_cmp_eq_u32 s{S_ROLE}, 1\ns_cselect_b64 {sr(SRD_C, 2)}, {sr(P_C, 2)}, {sr(P_X, 2)}')
    epoch = f's_load_dword s{S_E}, {sr(P_WS, 2)}, 0'
    if cfg['pref']:
        skip = a.lab('L_np')
        a(f's_cmp_eq_u32 s{S_R}, 6\ns_cbranch_scc0 {skip}')
        a('s_getpc_b64 s[24:25]\nL_pc0:')
        a(f's_sub_u32 s24, s24, L_pc0-{NAME}_kernel\ns_subb_u32 s25, s25, 0')
        a(f's_lshl_b32 s26, s{S_C}, 13\nv_lshl_add_u32 v12, v0, 7, s26\nv_min_u32 v12, L_end-{NAME}_kernel, v12')
        a('global_load_dword v15, v12, s[24:25]')
        a(f'{skip}:')
    a(epoch)
    a('s_cmp_ge_u32 s2, 14\ns_cbranch_scc0 L_xl')
    spin_lds(F_S1, 4, 14)
    a('L_xl:')
    a(f's_lshl_b32 s26, s{S_KB1}, 7\ns_bitcmp1_b32 6, s{S_ROLE}\ns_cbranch_scc0 L_c0')
    a(f'buffer_load_dwordx4 v[228:231], v{V_XA}, {sr(SRD_C, 4)}, s30 offen')
    a(f'buffer_load_dwordx4 v[232:235], v{V_XA}, {sr(SRD_C, 4)}, s26 offen')
    a('L_c0:')
    a(f'v_mul_u32_u24 v{V_TR}, {BLK}, v10\nv_and_b32 v13, 15, v0\nv_lshl_add_u32 v{V_TR}, v13, 3, v{V_TR}')
    a(f's_lshl_b32 s26, s{S_C}, 8\ns_add_u32 s26, s26, {L_W}\nv_add_u32 v{V_TR}, s26, v{V_TR}')
    a('s_mov_b32 s36, 0x00ff00ff\ns_mov_b32 s37, 0x00ff00ff\nv_mov_b32 v85, 0')
    a('s_waitcnt vmcnt(0) lgkmcnt(0)')
    a(f's_add_u32 s{S_E}, s{S_E}, 1')
    a(f's_getreg_b32 s{S_XO}, hwreg(HW_REG_XCC_ID, 0, 3)\ns_lshl_b32 s{S_XO}, s{S_XO}, 29\ns_and_b32 s30, s{S_E}, 0x1fffffff\ns_or_b32 s{S_XO}, s{S_XO}, s30')
    a(f's_cmp_eq_u32 s{S_C}, 1\ns_cbranch_scc0 L_c1')
    a(f's_lshl_b32 s30, s{S_H}, 8\ns_lshl_b32 s31, s{S_R}, 2\ns_add_u32 s30, s30, s31\ns_add_u32 s30, s30, {WS_CEN}')
    a(f'v_mov_b32 v12, 0\nv_mov_b32 v14, s{S_XO}\ns_mov_b64 exec, 1\nbuffer_store_dword v14, v12, {sr(SRD_WS, 4)}, s30 offen\ns_mov_b64 exec, -1')
    a('L_c1:')
    a(f's_cmp_eq_u32 s{S_ROLE}, 0\ns_cbranch_scc1 L_mid')
    a(f's_cmp_eq_u32 s{S_ROLE}, 3\ns_cbranch_scc1 L_gemm0')
    for k in range(8):
        a(f'v_lshlrev_b32 v{12 + 2 * k}, 16, v{228 + k}\nv_and_b32 v{13 + 2 * k}, 0xffff0000, v{228 + k}')
    a(f's_cmp_eq_u32 s{S_ROLE}, 2\ns_cbranch_scc1 L_actQ')
    a(f's_mov_b32 s26, {LOG2E | 0x80000000:#x}')
    for k in range(16):
        a(f'v_mul_f32 v{28 + k}, s26, v{12 + k}')
    for k in range(16):
        a(f'v_exp_f32 v{28 + k}, v{28 + k}')
    for k in range(16):
        a(f'v_add_f32 v{28 + k}, 1.0, v{28 + k}')
    a('s_mov_b32 s27, 0x7f7fffff')
    for k in range(16):
        a(f'v_min_f32 v{28 + k}, s27, v{28 + k}')
    for k in range(16):
        a(f'v_rcp_f32 v{44 + k}, v{28 + k}')
    for k in range(0, 16, 2):
        a(f'v_pk_mul_f32 {vr(60 + k, 2)}, {vr(12 + k, 2)}, {vr(44 + k, 2)}')
    for k in range(0, 16, 2):
        a(f'v_pk_fma_f32 {vr(12 + k, 2)}, {vr(60 + k, 2)}, {vr(28 + k, 2)}, {vr(12 + k, 2)} neg_lo:[1,0,0] neg_hi:[1,0,0]')
    for k in range(0, 16, 2):
        a(f'v_pk_fma_f32 {vr(12 + k, 2)}, {vr(12 + k, 2)}, {vr(44 + k, 2)}, {vr(60 + k, 2)}')
    a('s_branch L_actW')

    def ln_scalars(mean, var, t):
        rnd(mean, mean)
        rnd(var, var)
        a(f'v_add_f32 v{var}, 0x3727c5ac, v{var}')
        rnd(var, var)
        a(f'v_sqrt_f32 v{var}, v{var}')
        rnd(t, var)
        a(f'v_rcp_f32 v{var}, v{t}')

    def ln_norm(x, n, mean2, rs2, exact=None):
        for k in range(0, n, 2):
            a(f'v_pk_add_f32 {vr(x + k, 2)}, {vr(x + k, 2)}, {vr(mean2, 2)} op_sel_hi:[1,0] neg_lo:[0,1] neg_hi:[0,1]')
        for k in range(n):
            rnd(x + k, x + k)
        for k in range(0, n, 2):
            a(f'v_pk_mul_f32 {vr((exact or x) + k, 2)}, {vr(x + k, 2)}, {vr(rs2, 2)} op_sel_hi:[1,0]')
        if exact:
            for k in range(0, n, 2):
                a(f'v_pk_fma_f32 {vr(x + k, 2)}, {vr(exact + k, 2)}, {vr(rs2, 2)}, {vr(x + k, 2)} op_sel:[0,1,0] op_sel_hi:[1,1,1] neg_lo:[1,0,0] neg_hi:[1,0,0]')
            for k in range(0, n, 2):
                a(f'v_pk_fma_f32 {vr(x + k, 2)}, {vr(x + k, 2)}, {vr(rs2, 2)}, {vr(exact + k, 2)} op_sel_hi:[1,0,1]')
        for k in range(n):
            rnd(x + k, x + k)

    def ln_mod(x, n, c1, sh):
        for k in range(0, n, 2):
            a(f'v_pk_mul_f32 {vr(x + k, 2)}, {vr(x + k, 2)}, {vr(c1 + k, 2)}')
        for k in range(n):
            rnd(x + k, x + k)
        for k in range(0, n, 2):
            a(f'v_pk_add_f32 {vr(x + k, 2)}, {vr(x + k, 2)}, {vr(sh + k, 2)}')

    def mod_params(blk_shift, blk_scale, sh, c1, raw, kbs):
        nb = len(kbs)
        for q, base in enumerate((blk_shift, blk_scale)):
            for j, kb in enumerate(kbs):
                a(f's_lshl_b32 s{24 + nb * q + j}, s{kb}, 11\ns_add_u32 s{24 + nb * q + j}, s{24 + nb * q + j}, {WS_MOD + base * 2048}')
        poll(a.lab('m'), [(raw + 8 * q + 4 * h, f'buffer_load_dwordx3 {vr(raw + 8 * q + 4 * h, 3)}, v{V_MA}, {sr(SRD_WS, 4)}, s{24 + q} offen offset:{128 * h} sc1')
                          for q in range(2 * nb) for h in range(2)], False)
        for k in range(2 * nb):
            for dw in range(2):
                a(f'v_lshlrev_b32 v{sh + 4 * k + 2 * dw}, 16, v{raw + 4 * k + 1 + dw}\nv_and_b32 v{sh + 4 * k + 2 * dw + 1}, 0xffff0000, v{raw + 4 * k + 1 + dw}')
                a(f'v_lshlrev_b32 v{c1 + 4 * k + 2 * dw}, 16, v{raw + 8 * nb + 4 * k + 1 + dw}\nv_and_b32 v{c1 + 4 * k + 2 * dw + 1}, 0xffff0000, v{raw + 8 * nb + 4 * k + 1 + dw}')
        for k in range(8 * nb):
            a(f'v_add_f32 v{c1 + k}, 1.0, v{c1 + k}')
        for k in range(8 * nb):
            rnd(c1 + k, c1 + k)

    def write_act(x):
        for k in range(8):
            a(f'v_cvt_pk_bf16_f32 v{x + k}, v{x + 2 * k}, v{x + 2 * k + 1}')
        a(f's_lshl_b32 s30, s{S_C}, 10\ns_lshl_b32 s31, s{S_KB1}, 10\nv_add_u32 v10, s30, v{V_L16}\nv_add_u32 v11, s31, v{V_L16}')
        a(f'ds_write_b128 v10, {vr(x, 4)} offset:{L_A}\nds_write_b128 v11, {vr(x + 4, 4)} offset:{L_A}')

    def stats_setup():
        a(f'v_lshrrev_b32 v47, 5, v0\nv_and_b32 v45, 0x70, v{V_AR}\nv_lshl_or_b32 v47, v47, 7, v45\ns_lshl_b32 s30, s{S_C}, 2\nv_add_u32 v47, s30, v47')
        a(f's_cmp_eq_u32 s{S_C}, 3\ns_cselect_b32 s30, 0, 1.0\nv_mov_b32 v44, s30')

    def stats_local():
        for q in range(2):
            x, p = 12 + 8 * q, 28 + 6 * q
            a(f'v_pk_add_f32 {vr(p, 2)}, {vr(x, 2)}, {vr(x + 2, 2)}\nv_pk_mul_f32 {vr(p + 2, 2)}, {vr(x, 2)}, {vr(x, 2)}\nv_pk_add_f32 {vr(p + 4, 2)}, {vr(x + 4, 2)}, {vr(x + 6, 2)}')
        for k in (2, 4, 6):
            for q in range(2):
                x, p = 12 + 8 * q, 28 + 6 * q
                a(f'v_pk_fma_f32 {vr(p + 2, 2)}, {vr(x + k, 2)}, {vr(x + k, 2)}, {vr(p + 2, 2)}')
                if k == 2:
                    a(f'v_pk_add_f32 {vr(p, 2)}, {vr(p, 2)}, {vr(p + 4, 2)}')
        a('v_pk_fma_f32 v[28:29], v[34:35], v[44:45], v[28:29] op_sel_hi:[1,0,1]\nv_pk_fma_f32 v[30:31], v[36:37], v[44:45], v[30:31] op_sel_hi:[1,0,1]')
        a('v_add_f32 v28, v28, v29\nv_add_f32 v30, v30, v31')
        a('v_permlane32_swap_b32 v28, v30\nv_add_f32 v28, v28, v30')
        a('v_mov_b32 v30, v28\nv_permlane16_swap_b32 v28, v30\nv_add_f32 v28, v28, v30')
        dpp('v_add_f32', 28, 28, 28, 'row_ror:8')
        a(f'ds_write_b32 v47, v28 offset:{L_ST}\ns_waitcnt lgkmcnt(0)')

    def stats_final():
        a(f'ds_read_b128 v[28:31], v45 offset:{L_ST}\nds_read_b128 v[32:35], v45 offset:{L_ST + 128}\ns_waitcnt lgkmcnt(0)')
        a('v_pk_add_f32 v[28:29], v[28:29], v[30:31]\nv_pk_add_f32 v[32:33], v[32:33], v[34:35]')
        a('v_add_f32 v28, v28, v29\nv_add_f32 v30, v32, v33\nv_mul_f32 v28, 0x3b124925, v28\nv_mul_f32 v30, 0x3b124925, v30')
        a('v_fma_f32 v30, -v28, v28, v30\nv_max_f32 v30, 0, v30')

    a('L_actQ:')
    stats_setup()
    stats_local()
    flag_add(F_S3, 10)
    spin_lds(F_S3, 4, 10)
    stats_final()
    ln_scalars(28, 30, 31)
    a(f's_cmp_lt_u32 s{S_B}, 4\ns_cselect_b32 s{S_KB1}, s{S_C}, s{S_KB1}\ns_cbranch_scc1 L_qh0')
    for k in range(8):
        a(f'v_mov_b32 v{12 + k}, v{20 + k}')
    a('L_qh0:')
    ln_norm(12, 8, 28, 30, exact=44)
    spin_lds(F_MT, 1, 10)
    stamp(1)
    census(76)
    mod_params(0, 7, 28, 44, 144, (S_KB1,))
    census_done(76)
    stamp(2)
    ln_mod(12, 8, 44, 28)
    for k in range(4):
        a(f'v_cvt_pk_bf16_f32 v{12 + k}, v{12 + 2 * k}, v{13 + 2 * k}')
    a(f's_lshl_b32 s30, s{S_C}, 10\nv_add_u32 v10, s30, v{V_L16}\nds_write_b128 v10, v[12:15] offset:{L_A}\ns_waitcnt lgkmcnt(0)')
    flag_add(F_S1, 10)
    spin_lds(F_S1, 8, 10)
    stamp(3)

    def gemm(n):
        for s in range(n):
            a(f'ds_read_b128 {vr(T0 + 4 * s, 4)}, v{V_AR} offset:{L_A + 512 * s}')
        a('s_waitcnt lgkmcnt(0)')
        for s in range(n):
            a(f'v_mfma_f32_16x16x32_bf16 v[68:71], {vr(W56 + 4 * s, 4)}, {vr(T0 + 4 * s, 4)}, {"v[68:71]" if s else 0}')
    trread(W56, 8, V_TR)
    gemm(8)
    a(f'v_and_b32 v12, 7, v0\nv_and_b32 v13, 48, v0\nv_lshl_or_b32 v12, v12, 8, v13\ns_lshl_b32 s30, s{S_C}, 6\nv_add_u32 v12, s30, v12')
    tag2(32)
    a(f'ds_write_b128 v12, v[68:71] offset:{L_A + 4096}\ns_waitcnt lgkmcnt(0)')
    flag_add(F_S4, 10)
    spin_lds(F_S4, 4, 10)
    a(f's_lshl_b32 s30, s{S_C}, 9\nv_add_u32 v12, s30, v{V_L16}\nds_read_b128 v[72:75], v12 offset:{L_A + 4096}\ns_waitcnt lgkmcnt(0)')
    for j in range(4):
        a(f'v_bfi_b32 v{72 + j}, 3, v{32 + j}, v{72 + j}')
    a('s_mov_b32 exec_hi, 0')
    group_store(f'buffer_store_dwordx4 v[72:75], v{V_L16}, {sr(SRD_WS, 4)}, s{S_DST} offen')
    a('s_mov_b64 exec, -1\ns_branch L_pub')

    a('L_actW:')
    write_act(12)
    a('L_gemm0:')
    a('s_waitcnt lgkmcnt(0)')
    flag_add(F_S1, 10)
    spin_lds(F_S1, 8, 10)
    stamp(3)
    trread(W56, 14, V_TR)
    a(f's_cmp_eq_u32 s{S_ROLE}, 3\ns_cbranch_scc1 L_mid')
    gemm(14)
    a(f'v_mov_b32 v72, s{S_E}\nv_mov_b32 v75, s{S_E}')
    a('v_cvt_pk_bf16_f32 v73, v68, v69\nv_cvt_pk_bf16_f32 v74, v70, v71')
    a(f's_mov_b64 exec, {MASK8}')
    a(f'buffer_store_dwordx4 v[72:75], v{V_AR}, {sr(SRD_WS, 4)}, s{S_DST} offen sc1')
    a('s_mov_b64 exec, -1')
    a('L_pub:')
    stamp(4)

    a('L_mid:')
    a('s_waitcnt lgkmcnt(0)')
    flag_add(F_VT, 12)
    a(f's_cmp_eq_u32 s{S_C}, 0\ns_cbranch_scc0 L_noq')
    spin_lds(F_KT, 1, 12)
    a(f's_lshl_b32 s30, s{S_H}, 14\ns_lshl_b32 s31, s{S_B}, 8\ns_add_u32 s30, s30, s31\ns_add_u32 s30, s30, {WS_Q}\ns_add_u32 s31, s30, 8192')
    a(f'v_lshrrev_b32 v12, 4, v0\nv_and_b32 v14, 0xf0, v{V_L16}\nv_lshl_or_b32 v14, v12, 11, v14\nv_lshlrev_b32 v15, 3, v0')
    a('s_add_u32 s24, s30, 0x20000\ns_add_u32 s25, s31, 0x20000')
    tag2(32)
    poll('q', [(16 + 4 * k, f'buffer_load_dwordx4 {vr(16 + 4 * k, 4)}, v14, {sr(SRD_WS, 4)}, s{(30, 31, 24, 25)[k]} offen sc1') for k in range(4)], 2)
    for k in range(0, 8, 2):
        a(f'v_pk_add_f32 {vr(16 + k, 2)}, {vr(16 + k, 2)}, {vr(24 + k, 2)}')
    for k in range(4):
        a(f'v_cvt_pk_bf16_f32 v{16 + k}, v{16 + 2 * k}, v{17 + 2 * k}')
    a(f'ds_write_b64 v15, v[16:17] offset:{L_Q}\nds_write_b64 v15, v[18:19] offset:{L_Q + 512}\ns_waitcnt lgkmcnt(0)')
    flag_add(F_Q, 12)
    stamp(5)
    a('L_noq:')
    F_SH, F_C1 = 52, 68
    a(f's_cmp_eq_u32 s{S_ROLE}, 3\ns_cbranch_scc0 L_nofp')
    spin_lds(F_Q, 1, 12)
    mod_params(21, 28, F_SH, F_C1, 144, (S_C, S_KB1))
    a(f's_lshl_b32 s30, s{S_C}, 12\ns_add_u32 s30, s30, {L_PAR}\nv_add_u32 v12, s30, v{V_L16}')
    for k, r in enumerate((F_SH + 8, F_SH + 12, F_C1 + 8, F_C1 + 12)):
        a(f'ds_write_b128 v12, {vr(r, 4)} offset:{1024 * k}')
    a('L_nofp:')
    a(f's_cmp_eq_u32 s{S_C}, 1\ns_cbranch_scc0 L_nosm')
    a(f's_lshl_b32 s26, s{S_B}, 3\ns_or_b32 s26, s26, s{S_H}\ns_lshl_b32 s26, s26, 9\ns_add_u32 s26, s26, {WS_ML}\ns_lshl_b32 s27, s{S_D}, 7\ns_add_u32 s27, s27, s26')
    a('v_lshrrev_b32 v13, 4, v0')
    a(f'v_mov_b32 v49, v{V_AR}')
    a('v_and_b32 v50, 15, v0\nv_lshlrev_b32 v50, 4, v50\nv_lshl_or_b32 v50, v13, 9, v50')
    a('s_mov_b32 s32, 0x3db8aa3b')
    spin_lds(F_KT, 1, 12)
    census(48)
    spin_lds(F_VT, 4, 12)
    spin_lds(F_SC, 4, 12)
    a('s_waitcnt vmcnt(0)')
    census_done(48)
    stamp(6)
    for w in range(4):
        a(f'ds_read_b128 {vr(12 + 4 * w, 4)}, v{V_L16} offset:{L_SC + 1024 * w}')
    a('s_waitcnt lgkmcnt(0)')
    for k in range(16):
        rnd(12 + k, 12 + k)
    a('v_max3_f32 v45, v12, v13, v14')
    for k in range(15, 27, 2):
        a(f'v_max3_f32 v45, v45, v{k}, v{k + 1}')
    a('v_max_f32 v45, v45, v27')

    def head_allreduce(op, x, t):
        dpp(op, x, x, x, 'quad_perm:[1,0,3,2]')
        dpp(op, x, x, x, 'quad_perm:[2,3,0,1]')
        dpp(op, x, x, x, 'row_half_mirror')
        rows_allreduce(op, x, t)

    def exps(m):
        for k in range(16):
            a(f'v_sub_f32 v{28 + k}, v{12 + k}, v{m}')
        for k in range(16):
            a(f'v_mul_f32 v{28 + k}, s32, v{28 + k}')
        for k in range(16):
            a(f'v_exp_f32 v{28 + k}, v{28 + k}')
    head_allreduce('v_max_f32', 45, 47)
    exps(45)
    for st in (8, 4, 2):
        for k in range(0, st, 2):
            a(f'v_pk_add_f32 {vr(28 + k, 2)}, {vr(28 + k, 2)}, {vr(28 + st + k, 2)}')
    a('v_add_f32 v46, v28, v29')
    head_allreduce('v_add_f32', 46, 47)
    a(f's_and_b32 s30, s{S_E}, 0xffff\ns_lshr_b32 s31, s{S_E}, 16\nv_or_b32 v28, s30, v45\nv_mov_b32 v29, v46\nv_mov_b32 v30, s31')
    a('v_mov_b32_dpp v31, v46 row_ror:8 row_mask:0xf bank_mask:0xf')
    dpp('v_or_b32', 30, 45, 30, 'row_ror:8')
    a('s_mov_b64 exec, 0xff')
    group_store(f'buffer_store_dwordx4 v[28:31], v{V_L16}, {sr(SRD_WS, 4)}, s27 offen')
    a('s_mov_b64 exec, -1')
    a('s_mov_b32 s30, 0x05040100')
    for k in range(4):
        a(f'v_mov_b32_dpp v{32 + k}, v{28 + k} row_newbcast:0 row_mask:0xf bank_mask:0xf')
    a(f's_lshl_b32 s31, s{S_D}, 4\ns_lshl_b64 s[8:9], 0xffff, s31\ns_not_b64 s[8:9], s[8:9]')
    a('L_mlpoll:')
    a(f's_mov_b64 exec, s[8:9]\nbuffer_load_dwordx4 v[32:35], v49, {sr(SRD_WS, 4)}, s26 offen sc1\ns_mov_b64 exec, -1\ns_waitcnt vmcnt(0)')
    a(f'v_perm_b32 v36, v34, v32, s30\nv_cmp_ne_u32 vcc, s{S_E}, v36\ns_cbranch_vccz L_mlgot')
    retry('L_mlpoll')
    a('L_mlgot:')
    stamp(7)
    a(f'v_cndmask_b32 v29, v34, v32, {MASK8}\nv_cndmask_b32 v30, v35, v33, {MASK8}\nv_and_b32 v29, 0xffff0000, v29')
    a('v_mov_b32 v45, v29')
    rows_allreduce('v_max_f32', 45, 47)
    a('v_sub_f32 v29, v29, v45\nv_mul_f32 v29, s32, v29\nv_exp_f32 v29, v29\nv_mul_f32 v46, v29, v30')
    rows_allreduce('v_add_f32', 46, 47)
    a('v_rcp_f32 v46, v46')
    exps(45)
    for k in range(0, 16, 2):
        a(f'v_pk_mul_f32 {vr(28 + k, 2)}, {vr(28 + k, 2)}, v[46:47] op_sel_hi:[1,0]')
    for uh in range(2):
        for dd in range(4):
            u, x = 2 * uh + (dd >> 1), dd & 1
            a(f'v_cvt_pk_bf16_f32 v{12 + 4 * uh + dd}, v{28 + 4 * (2 * x) + u}, v{28 + 4 * (2 * x + 1) + u}')
    a(f'ds_write_b128 v50, v[12:15] offset:{L_P}\nds_write_b128 v50, v[16:19] offset:{L_P + 256}')
    a(f's_add_u32 s30, s{S_FAST}, 1\nv_mov_b32 v20, s30\nv_mov_b32 v21, s{S_E}\nv_mov_b32 v22, 0\ns_waitcnt lgkmcnt(0)\nds_write_b64 v22, v[20:21] offset:{F_P}')
    stamp(8)
    a('L_nosm:')

    if cfg['abl'] & 16:
        a('s_branch L_exit')
    tag8(V_E8)
    a(f's_cmp_eq_u32 s{S_ROLE}, 3\ns_cbranch_scc1 L_ffn\ns_cmp_eq_u32 s{S_B}, 7\ns_cbranch_scc1 L_idle')
    Z_G, Z_X, Z_XA, Z_OA, Z_PA = 80, 72, 84, 85, 52
    S_Z = 39
    a(f's_lshl1_add_u32 s{S_Z}, s{S_R}, s{S_C}\ns_add_u32 s{S_Z}, s{S_Z}, 6\ns_cmp_ge_u32 s{S_Z}, 56\ns_cselect_b32 s30, 56, 0\ns_sub_u32 s{S_Z}, s{S_Z}, s30')
    a(f'v_and_b32 v86, 0xff, v{V_AR}\nv_and_b32 v12, 7, v0\nv_mul_u32_u24 v12, 896, v12\nv_and_b32 v13, 16, v0\nv_lshrrev_b32 v13, 1, v13')
    a(f's_lshl_b32 s27, s{S_Z}, 4\nv_add3_u32 v{Z_OA}, s27, v12, v13')
    a(f's_cmp_ge_u32 s{S_C}, 2\ns_cbranch_scc0 L_noz')
    spin_lds(F_Q, 1, 12)
    a(f's_mov_b64 {sr(SRD_C, 2)}, {sr(P_X, 2)}')
    a(f's_cmp_eq_u32 s{S_H}, 0\ns_cselect_b32 s31, {21 * 2048}, 0\ns_lshl_b32 s30, s{S_Z}, 8\ns_add_u32 s30, s30, s31\ns_add_u32 s30, s30, {WS_MOD + 14 * 2048}')
    a(f'buffer_load_dwordx2 v[20:21], v{Z_OA}, {sr(SRD_C, 4)}, 0 offen')
    a(f'L_zpoll:\nbuffer_load_dwordx3 v[16:18], v86, {sr(SRD_WS, 4)}, s30 offen sc1\ns_waitcnt vmcnt(0)')
    a(f'v_cmp_ne_u32 vcc, s{S_E}, v16\ns_cbranch_vccz L_zgot')
    retry('L_zpoll')
    a('L_zgot:')
    for d, r in ((Z_G, 17), (Z_G + 2, 18), (Z_X, 20), (Z_X + 2, 21)):
        a(f'v_lshlrev_b32 v{d}, 16, v{r}\nv_and_b32 v{d + 1}, 0xffff0000, v{r}')
    a('L_noz:')
    a(f'v_and_b32 v13, 40, v0\nv_lshl_or_b32 v{Z_OA}, v13, 24, v{Z_OA}\nv_lshl_or_b32 v{Z_XA}, v13, 24, v86')
    a(f'v_lshrrev_b32 v13, 5, v0\nv_add_u32 v14, {WS_PL - WS_PA}, v{V_L16}')
    for u in range(4):
        a(f's_sub_u32 s30, s{S_H}, {2 * u}\nv_cmp_eq_u32 vcc, s30, v13\nv_cndmask_b32 v{Z_PA + u}, v{V_L16}, v14, vcc')
    a(f's_lshl_b32 s{S_A}, s{S_Z}, 12\ns_add_u32 s{S_Bs}, s{S_A}, {WS_PF}\ns_add_u32 s{S_A}, s{S_A}, {WS_PA}')
    a(f's_lshl_b32 s32, s{S_H}, 6\ns_add_u32 s32, s32, s{S_Z}\ns_lshl_b32 s32, s32, 8\ns_add_u32 s32, s32, {WS_X1}')
    a('v_and_b32 v13, 1, v0\nv_lshlrev_b32 v13, 4, v13\nv_mov_b32 v14, 0x3f80\nv_lshlrev_b32 v14, v13, v14\nv_bfe_u32 v13, v0, 1, 2')
    for k in range(4):
        a(f'v_cmp_eq_u32 vcc, {k}, v13\nv_cndmask_b32 v{76 + k}, 0, v14, vcc')
    htags(13)
    a(f's_lshl_b32 s24, s{S_JJ}, 14\ns_lshl_b32 s30, s{S_C}, 7\ns_add_u32 s24, s24, s30\ns_add_u32 s24, s24, {WS_OP}')
    a('s_add_u32 s25, s24, 4096\ns_add_u32 s26, s24, 8192\ns_add_u32 s27, s24, 12288')
    a('v_and_b32 v12, 7, v0\nv_lshrrev_b32 v13, 3, v0\nv_lshlrev_b32 v14, 4, v12\nv_lshl_or_b32 v40, v13, 9, v14')
    if cfg['swz']:
        a('v_add_u32 v15, v12, v13\nv_and_b32 v15, 7, v15\nv_lshlrev_b32 v15, 4, v15\nv_lshl_or_b32 v41, v12, 7, v15')
        a('v_lshrrev_b32 v16, 4, v0\nv_add_u32 v15, v12, v16\nv_and_b32 v15, 7, v15\nv_lshlrev_b32 v15, 4, v15\nv_lshl_or_b32 v44, v16, 7, v15\nv_xor_b32 v45, 64, v44')
    else:
        a(f'v_lshlrev_b32 v15, 4, v13\nv_lshl_or_b32 v41, v12, 7, v15\nv_mov_b32 v44, v{V_AR}\nv_mov_b32 v45, v{V_AR}')
    a(f's_lshr_b32 s30, s{S_C}, 1\ns_lshl_b32 s30, s30, 10\ns_and_b32 s31, s{S_C}, 1\ns_lshl3_add_u32 s30, s31, s30\nv_add_u32 v41, s30, v41')
    a('v_and_b32 v13, 24, v0\nv_lshl_or_b32 v14, v13, 25, v14\nv_lshrrev_b32 v13, 5, v0\nv_lshl_or_b32 v42, v13, 12, v14')
    a(f's_lshl2_add_u32 s{S_DST}, s{S_B}, s{S_C}\ns_lshl_b32 s{S_DST}, s{S_DST}, 6\ns_add_u32 s{S_DST}, s{S_DST}, s{S_JJ}\ns_lshl_b32 s{S_DST}, s{S_DST}, 7')
    a(f's_add_u32 s{S_BASE}, s{S_DST}, {WS_PL}\ns_add_u32 s{S_DST}, s{S_DST}, {WS_PA}')
    srd(SRD_C, P_OUT, 7168)
    spin_lds(F_P, 1, 12)
    a(f's_sub_u32 s{S_FAST}, s31, 1')
    pair_srd(44, 56)
    GA = 56
    a('s_movk_i32 s60, 0xff\ns_movk_i32 s61, 0xff')
    a(f's_mov_b64 s[48:49], {sr(P_WS, 2)}\ns_mov_b32 s51, 0x20000\ns_cmp_eq_u32 s{S_H}, 1\ns_cselect_b32 s50, s{SRD_WS + 2}, 0\ns_sub_u32 s{S_KB1}, s32, 0x4000')
    wld = [(12 + 4 * s, f'buffer_load_dwordx4 {vr(12 + 4 * s, 4)}, v40, {sr(SRD_WS, 4)}, s{24 + s} offen sc1') for s in range(4)]
    a('s_barrier')
    stamp(9)
    if cfg['stamps'] == 5:
        a(f's_mov_b32 s{S_CNT}, 1')
    poll('w', wld, True, lambda: trread(W56, 4, V_TR), X=(40, 42, 52, 54))

    def sum4(g=12):
        a(f'v_pk_add_f32 v[14:15], {vr(g + 2, 2)}, {vr(g + 6, 2)}\nv_pk_add_f32 v[22:23], {vr(g + 10, 2)}, {vr(g + 14, 2)}')
        a(f'v_pk_add_f32 v[12:13], {vr(g, 2)}, {vr(g + 4, 2)}\nv_pk_add_f32 v[20:21], {vr(g + 8, 2)}, {vr(g + 12, 2)}')
        a('v_pk_add_f32 v[14:15], v[14:15], v[22:23]\nv_pk_add_f32 v[12:13], v[12:13], v[20:21]')
    if cfg['stamps'] == 5:
        stamp(3)
        a(f's_mov_b32 s{S_ST0 + 8}, s{S_CNT}')
    sum4()
    a('v_cvt_pk_bf16_f32 v12, v12, v13\nv_cvt_pk_bf16_f32 v13, v14, v15')
    a(f'ds_write_b64 v41, v[12:13] offset:{L_A}')
    a('s_waitcnt lgkmcnt(0)\ns_barrier')
    for s in range(4):
        a(f'ds_read_b128 {vr(12 + 4 * s, 4)}, v{44 + (s & 1)} offset:{L_A + 512 * s}')
    for s in range(4):
        a(f's_waitcnt lgkmcnt({3 - s})')
        a(f'v_mfma_f32_16x16x32_bf16 v[28:31], {vr(W56 + 4 * s, 4)}, {vr(12 + 4 * s, 4)}, {"v[28:31]" if s else 0}')
    a(f's_cmp_eq_u32 s{S_H}, 0')
    a('\n'.join(hpack(48, 28)))
    a('v_permlane16_swap_b32 v49, v51\nv_permlane16_swap_b32 v48, v50')
    a('s_mov_b64 exec, s[60:61]')
    a(f'buffer_store_dwordx4 v[48:51], v42, {sr(SRD_WS, 4)}, s{S_DST} offen sc1')
    stamp(10)
    a('s_cbranch_scc1 L_fin')
    a(f's_cmp_ge_u32 s{S_C}, 2')
    pair_store(48, 42, S_BASE, 44, 56)
    a('s_mov_b64 exec, -1\ns_cbranch_scc0 L_exit')

    hgather('a', GA, lambda u: f'buffer_load_dwordx4 {vr(GA + 4 * u, 4)}, v{Z_PA + u}, {sr(SRD_WS, 4)}, s{S_A} offen offset:{1024 * u} sc1')
    gated = f'v_pk_fma_f32 v[28:29], v[28:29], {vr(Z_G, 2)}, {vr(Z_X, 2)}\nv_pk_fma_f32 v[30:31], v[30:31], {vr(Z_G + 2, 2)}, {vr(Z_X + 2, 2)}'
    a(gated)
    for k in range(4):
        rnd(28 + k, 28 + k)
        if k == 1:
            a(f'v_or_b32 v28, v{V_E8}, v28')
    a('s_mov_b64 exec, 0xff00ff')
    pair_store(28, Z_XA, 32, 44, 56)
    a(f'buffer_store_dwordx4 v[28:31], v{Z_XA}, s[48:51], s{S_KB1} offen sc1')
    stamp(1)
    a('s_branch L_exit' if cfg['stamps'] else 's_endpgm')
    a('L_fin:\ns_mov_b64 exec, -1')
    a(f's_cmp_ge_u32 s{S_C}, 2\ns_cbranch_scc0 L_exit')
    a(f'v_mov_b32 v{GA + 12}, v{V_T0}\nv_mov_b32 v{GA + 13}, v{V_T0}\nv_mov_b32 v{GA + 14}, v{V_T1}\nv_mov_b32 v{GA + 15}, v{V_T1}')
    ldf = lambda u: f'buffer_load_dwordx4 {vr(GA + 4 * u, 4)}, v{V_L16}, {sr(SRD_WS, 4)}, s{S_Bs} offen offset:{1024 * u} sc1'
    for u in range(4):
        a(ldf(u) if u < 3 else f's_mov_b32 exec_hi, 0\n{ldf(u)}\ns_mov_b32 exec_hi, -1')
    a(f'L_ypoll:\nbuffer_load_dwordx4 {vr(Z_X, 4)}, v86, {sr(SRD_WS, 4)}, s32 offen sc1\ns_waitcnt vmcnt(0)')
    a(f'v_cmp_ne_u32_sdwa vcc, v{Z_X}, v{V_E8} src0_sel:BYTE_0 src1_sel:DWORD\ns_cbranch_vccz L_ygot')
    retry('L_ypoll')
    a(f'L_ygot:\nv_xor_b32 v{Z_X}, v{V_E8}, v{Z_X}')
    hgather('f', GA, ldf, True)
    a(gated)
    a('v_cvt_pk_bf16_f32 v28, v28, v29\nv_cvt_pk_bf16_f32 v29, v30, v31')
    a('s_mov_b64 exec, 0xff00ff')
    a(f'buffer_store_dwordx2 v[28:29], v{Z_OA}, {sr(SRD_C, 4)}, 0 offen')
    stamp(2)
    a('s_branch L_exit' if cfg['stamps'] else 's_endpgm')

    a(f'L_idle:\ns_or_b32 s30, s{S_D}, s{S_C}\ns_cbranch_scc1 L_exit')
    a(f's_barrier\ns_barrier\ns_mov_b32 s32, {WS_X1}\nv_and_b32 v52, 0x70, v{V_L16}\nv_mov_b32 v43, s{S_E}')
    a(f'L_ipoll:\nbuffer_load_dword v12, v52, {sr(SRD_WS, 4)}, s32 offen sc1\ns_waitcnt vmcnt(0)')
    a(f'v_cmp_ne_u32_sdwa vcc, v12, v{V_E8} src0_sel:BYTE_0 src1_sel:DWORD\ns_cbranch_vccz L_igot')
    retry('L_ipoll')
    a(f'L_igot:\ns_mov_b64 exec, 1\nbuffer_store_dword v43, off, {sr(SRD_WS, 4)}, 0 sc1')
    if cfg['wb']:
        a('buffer_wbl2 sc1')
    if cfg['stamps']:
        stamp(1)
        a('s_waitcnt vmcnt(0)')
        stamp(11)
    a('s_branch L_exit')

    a('L_ffn:')
    a(f's_sub_u32 s{S_JJ}, s{S_JJ}, 4')
    srd(SRD_A, P_W1, 1605632)
    srd(SRD_B, P_W3, 1605632)
    a(f's_movk_i32 s32, 3584\ns_movk_i32 s{S_A}, 28672\ns_mov_b32 s{S_Bs}, 229376\ns_lshl_b32 s{S_BASE}, s{S_JJ}, 7')
    a(f'v_mad_u32_u24 v{V_DM}, v{V_R8}, s32, v{V_NT}')
    a(f'v_lshrrev_b32 v12, 5, v0\nv_bfe_u32 v13, v0, 3, 1\nv_lshl_or_b32 v12, v12, 1, v13\nv_mul_u32_u24 v12, {BLS}, v12')
    a('v_and_b32 v13, 16, v0\nv_lshl_add_u32 v12, v13, 3, v12\nv_and_b32 v13, 7, v0\nv_lshl_add_u32 v12, v13, 3, v12')
    a(f's_lshl_b32 s30, s{S_C}, 8\ns_add_u32 s30, s30, {L_W}\nv_add_u32 v{V_TR}, s30, v12\nv_add_u32 v46, {56 * BLK}, v{V_TR}')
    a(f'v_and_b32 v14, 0x70, v{V_L16}\nv_lshrrev_b32 v13, 5, v0\nv_lshl_or_b32 v14, v13, 12, v14\nv_and_b32 v13, 24, v0\nv_lshl_or_b32 v48, v13, 12, v14')
    a('v_add_u32 v13, 8, v13\nv_and_b32 v13, 32, v13\nv_lshl_or_b32 v8, v13, 25, v48')
    a(f's_lshl_b32 s{S_DST}, s{S_JJ}, 7\ns_lshl_b32 s30, s{S_C}, 13\ns_add_u32 s{S_DST}, s{S_DST}, s30\ns_add_u32 s{S_DST}, s{S_DST}, {WS_PF}\ns_add_u32 s20, s{S_DST}, 0x20000')
    htags(13)
    a(f'v_mov_b32 v50, v{V_TW}')
    a('v_and_b32 v12, 7, v0\nv_lshlrev_b32 v12, 1, v12\nv_and_b32 v13, 8, v0\nv_lshl_or_b32 v12, v13, 4, v12\nv_and_b32 v13, 48, v0\nv_lshl_or_b32 v12, v13, 1, v12')
    a(f's_lshl_b32 s30, s{S_C}, 8\nv_add_u32 v49, s30, v12')
    a(f's_mov_b32 s39, {LOG2E | 0x80000000:#x}')
    a('v_and_b32 v12, 1, v0\nv_mul_u32_u24 v51, 0xaaaa, v12\nv_add_u32 v51, 0x4444, v51')
    a('v_lshlrev_b32 v12, 7, v12\nv_lshl_or_b32 v12, v13, 4, v12\nv_and_b32 v13, 14, v0\nv_lshl_or_b32 v10, v13, 3, v12')
    for k in list(range(76, 88)) + list(range(60, 68)) + list(range(40, 44)):
        a(f'v_mov_b32 v{k}, 0')
    a(f's_mov_b32 s{S_KB1}, s{S_C}')
    a(f's_add_u32 s{S_BASE}, s{S_BASE}, {2 * 229376}\ns_waitcnt vmcnt(0)')
    if cfg['fpre']:
        spin_lds(F_S4, 16 * cfg['fthr'], 12)
    dma(SRD_A, 5, L_W + 16 * BLS, bar=cfg['fpre'], BLK=BLS)
    a(f's_sub_u32 s{S_BASE}, s{S_BASE}, {2 * 229376}')
    dma(SRD_B, 7, L_W + 56 * BLK, bar=cfg['fpre'] - 10, BLK=BLS)
    for m, va in enumerate((V_TR, 46)):
        if cfg['stamps'] == 3 and m == 0:
            stamp(1)
        a(f's_waitcnt vmcnt({0 if m else 14})')
        if cfg['stamps'] == 3:
            stamp(4 if m else 2)
        flag_add(F_S3 if m else F_S2, 12)
        spin_lds(F_S3 if m else F_S2, 4 if m else 8, 12)
        for kb in range(7):
            for rp in range(4):
                a(f'ds_read_b64_tr_b16 {vr(W112 + 56 * m + 8 * kb + 2 * rp, 2)}, v{va} offset:{(8 * kb + 4 * (rp >> 1)) * BLS + (rp & 1) * 64}')
    a('s_branch L_ln')
    a('L_fhelp:')
    a(f's_mov_b64 exec, -1\ns_add_u32 s{S_KB1}, s{S_W}, 4')
    a(f'v_lshlrev_b32 v{V_L16}, 4, v0\nv_lshrrev_b32 v12, 3, v0\nv_and_b32 v13, 0x70, v{V_L16}\nv_lshl_or_b32 v{V_MA}, v12, 8, v13')
    a(f'v_mov_b32 v{V_E8}, v9')
    spin_lds(F_S3, 4, 12)
    a(f's_lshl_b32 s30, s{S_W}, 12\ns_add_u32 s30, s30, {L_PAR}\nv_add_u32 v12, s30, v{V_L16}')
    for k, r in enumerate((F_SH, F_SH + 4, F_C1, F_C1 + 4)):
        a(f'ds_read_b128 {vr(r, 4)}, v12 offset:{1024 * k}')
    a('L_ln:')
    a(f's_lshl_b32 s24, s{S_KB1}, 11\ns_add_u32 s24, s24, {WS_X1}')
    a(f's_lshl_b32 s31, s{S_H}, 14\ns_add_u32 s24, s24, s31')
    a(f'v_and_b32 v12, 7, v0\nv_and_b32 v13, 32, v0\nv_lshlrev_b32 v13, 3, v13\nv_lshl_or_b32 v45, v12, 5, v13\ns_lshl_b32 s30, s{S_KB1}, 2\nv_add_u32 v47, s30, v45')
    a(f's_lshl_b32 s30, s{S_KB1}, 10\nv_add_u32 v44, s30, v{V_L16}')
    a('s_waitcnt lgkmcnt(0)')
    stamp(9)
    poll('x', [(12 + 4 * h, f'buffer_load_dwordx4 {vr(12 + 4 * h, 4)}, v{V_MA}, {sr(SRD_WS, 4)}, s24 offen offset:{128 * h} sc1') for h in range(2)], True, X=(12, 14))
    stamp(10)
    if cfg['stamps'] == 4:
        a(f's_memtime {sr(S_ST0 + 2, 2)}')
    a('v_pk_mul_f32 v[30:31], v[14:15], v[14:15]\nv_pk_add_f32 v[28:29], v[14:15], v[18:19]\nv_pk_mul_f32 v[34:35], v[12:13], v[12:13]\nv_pk_add_f32 v[32:33], v[12:13], v[16:17]')
    a('v_pk_fma_f32 v[30:31], v[18:19], v[18:19], v[30:31]\nv_pk_fma_f32 v[34:35], v[16:17], v[16:17], v[34:35]')
    a('v_pk_add_f32 v[28:29], v[28:29], v[32:33]\nv_pk_add_f32 v[30:31], v[30:31], v[34:35]')
    a('v_add_f32 v28, v28, v29\nv_add_f32 v30, v30, v31')
    a('v_permlane32_swap_b32 v28, v30\nv_add_f32 v28, v28, v30')
    a('v_mov_b32 v30, v28\nv_permlane16_swap_b32 v28, v30\nv_add_f32 v28, v28, v30')
    dpp('v_add_f32', 28, 28, 28, 'row_ror:8')
    a(f'ds_write_b32 v47, v28 offset:{L_ST2}')
    a('s_waitcnt lgkmcnt(0)\ns_barrier')
    if cfg['stamps'] == 2:
        stamp(1)
    a(f'ds_read_b128 v[28:31], v45 offset:{L_ST2}\nds_read_b128 v[32:35], v45 offset:{L_ST2 + 16}')
    a('s_waitcnt lgkmcnt(0)')
    a('v_pk_add_f32 v[28:29], v[28:29], v[30:31]\nv_pk_add_f32 v[32:33], v[32:33], v[34:35]\nv_pk_add_f32 v[28:29], v[28:29], v[32:33]')
    a('v_add_f32 v29, v28, v29\nv_mul_f32 v28, 0x3b124925, v29\nv_mul_f32 v30, 0x3b124925, v29\nv_permlane32_swap_b32 v28, v30')
    a('v_fma_f32 v30, -v28, v28, v30')
    rnd(28, 28)
    a('v_max_f32 v30, 0, v30')
    sub = [f'v_pk_add_f32 {vr(12 + k, 2)}, {vr(12 + k, 2)}, v[28:29] op_sel_hi:[1,0] neg_lo:[0,1] neg_hi:[0,1]' for k in range(0, 8, 2)]
    sub += [f'v_cvt_pk_bf16_f32 v{12 + k}, 0, v{12 + k}' for k in range(8)]
    chain = ['v_cvt_pk_bf16_f32 v30, 0, v30', 'v_add_f32 v30, 0x3727c5ac, v30', 'v_cvt_pk_bf16_f32 v30, 0, v30', 'v_sqrt_f32 v30, v30',
             'v_cvt_pk_bf16_f32 v30, 0, v30', 'v_rcp_f32 v30, v30']
    if cfg['lnx']:
        for k in range(6):
            a(chain[k])
            a(sub[2 * k])
            a(sub[2 * k + 1])
        for k in range(0, 8, 2):
            a(f'v_pk_mul_f32 {vr(12 + k, 2)}, {vr(12 + k, 2)}, v[30:31] op_sel_hi:[1,0]')
        for k in range(8):
            rnd(12 + k, 12 + k)
        ln_mod(12, 8, F_C1, F_SH)
    else:
        sub = sub[:4] + [f'v_pk_mul_f32 {vr(12 + k, 2)}, {vr(12 + k, 2)}, {vr(F_C1 + k, 2)}' for k in range(0, 8, 2)]
        for k in range(6):
            a(chain[k])
            a(sub[k])
        a(sub[6])
        a(sub[7])
        for k in range(0, 8, 2):
            a(f'v_pk_fma_f32 {vr(12 + k, 2)}, {vr(12 + k, 2)}, v[30:31], {vr(F_SH + k, 2)} op_sel_hi:[1,0,1]')
    for k in range(4):
        a(f'v_cvt_pk_bf16_f32 v{12 + k}, v{12 + 2 * k}, v{13 + 2 * k}')
    a(f'ds_write_b128 v44, v[12:15] offset:{L_A}')
    a(f's_cmp_lt_u32 s{S_W}, 4\ns_cbranch_scc1 L_fhx')
    a('s_waitcnt lgkmcnt(0)\ns_barrier')
    if cfg['stamps'] == 2:
        stamp(2)
        a('s_waitcnt lgkmcnt(0)')
    for kb in range(7):
        a(f'ds_read_b128 {vr(12 + 4 * kb, 4)}, v10 offset:{L_A + 1024 * kb}')
    for kb in range(7):
        a(f's_waitcnt lgkmcnt({6 - kb})')
        a(f'v_smfmac_f32_16x16x64_bf16 v[76:79], {vr(12 + 4 * kb, 4)}, {vr(W112 + 8 * kb, 8)}, v51')
    gate = ['s_nop 1', 's_nop 2',
            'v_add_f32 v76, v76, v77\nv_add_f32 v77, v78, v79',
            'v_cvt_pk_bf16_f32 v76, 0, v76\nv_cvt_pk_bf16_f32 v77, 0, v77',
            'v_mul_f32 v78, s39, v76\nv_mul_f32 v79, s39, v77',
            'v_exp_f32 v78, v78', 'v_exp_f32 v79, v79']
    for kb in range(7):
        a(f'v_smfmac_f32_16x16x64_bf16 v[80:83], {vr(12 + 4 * kb, 4)}, {vr(W112 + 56 + 8 * kb, 8)}, v51')
        a(gate[kb])
    a('v_add_f32 v78, 1.0, v78\nv_add_f32 v79, 1.0, v79\nv_rcp_f32 v78, v78\nv_rcp_f32 v79, v79')
    a('v_mul_f32 v78, v78, v76\nv_mul_f32 v79, v79, v77')
    rnd(78, 78)
    a('v_add_f32 v80, v80, v81\nv_add_f32 v81, v82, v83')
    for r in (79, 80, 81):
        rnd(r, r)
    a('v_pk_mul_f32 v[12:13], v[78:79], v[80:81]\nv_cvt_pk_bf16_f32 v12, v12, v13')
    a(f'ds_write_b16 v49, v12 offset:{L_H}\nds_write_b16_d16_hi v49, v12 offset:{L_H + 16}')
    def down(fl):
        a('s_waitcnt lgkmcnt(0)\ns_barrier')
        if cfg['stamps'] == 2:
            stamp(4)
        HB = ((60, 64), (84, 40))
        a(f's_mov_b64 exec, {MASK8}\nds_read_b128 v[60:63], v{V_AR} offset:{L_H}\nds_read_b128 v[64:67], v{V_AR} offset:{L_H + 512}')
        a(f's_not_b64 exec, exec\nds_read_b128 v[84:87], v{V_AR} offset:{L_H}\nds_read_b128 v[40:43], v{V_AR} offset:{L_H + 512}\ns_mov_b64 exec, -1')
        pk = lambda p: [x.replace(f'v{V_TW},', 'v50,') for x in hpack(28 + 2 * p, 12 + 4 * p)]
        put = lambda k: [f'v_permlane16_swap_b32 v{29 + 4 * k}, v{31 + 4 * k}', f'v_permlane16_swap_b32 v{28 + 4 * k}, v{30 + 4 * k}',
                         f'buffer_store_dwordx4 {vr(28 + 4 * k, 4)}, v{8 if k else 48}, {sr(SRD_WS, 4)}, s{20 if k else S_DST} offen {fl}']
        p0, p1, p2, p3, s0 = pk(0), pk(1), pk(2), pk(3), put(0)
        fill = {4: ['s_nop 1'], 5: ['s_nop 2'], 6: p0[:2], 7: p0[2:4], 8: p0[4:6], 9: p0[6:], 10: p1[:3], 11: p1[3:6], 12: p1[6:] + p3[:1], 13: s0 + p3[1:]}
        for n, (i, st) in enumerate([(i, st) for i in (0, 1, 2, 3, 6, 4, 5) for st in range(2)]):
            d = vr(12 + 4 * (i >> 1), 4)
            if n < 4:
                a(f's_waitcnt lgkmcnt({3 - n})')
            a(f'v_mfma_f32_16x16x32_bf16 {d}, {vr(W56 + 8 * i + 4 * st, 4)}, {vr(HB[i & 1][st], 4)}, {d if (st or i & 1) else 0}')
            a('\n'.join(fill.get(n, [])))
        a('\n'.join(p2 + put(1)))
        stamp(11)
        if cfg['stamps'] == 4:
            a(f's_memtime {sr(S_ST0 + 4, 2)}')
    down('sc1')
    a('s_branch L_exit' if cfg['stamps'] else 's_endpgm')
    a('L_fhx:\ns_waitcnt lgkmcnt(0)\ns_barrier\ns_barrier')

    a('L_exit:')
    if cfg['probe']:
        pr = cfg['probe'].split('_')
        cls, k = pr[0][0], int(pr[0][1:])
        a(f's_waitcnt lgkmcnt(0)\ns_cmp_ge_u32 s{S_W}, 4\ns_cbranch_scc{1 if cls == "s" else 0} L_end')
        if cls == 's':
            a('s_barrier\ns_barrier\ns_barrier')
        for f in pr[1:]:
            if f[0] == 'r':
                a(f's_cmp_eq_u32 s{S_ROLE}, {f[1:]}\ns_cbranch_scc0 L_end')
            else:
                a(f's_bitcmp1_b32 {f[1:]}, s{S_H}\ns_cbranch_scc0 L_end')
        a(f's_cmp_eq_u32 s{S_ST0 + 2 * k}, 0\ns_cbranch_scc1 L_end\ns_mov_b32 s{S_CNT}, 0')
        a(f'L_pw:\ns_memrealtime s[30:31]\ns_waitcnt lgkmcnt(0)\ns_sub_u32 s30, s30, s{S_ST0 + 2 * k}\ns_cmp_ge_u32 s30, 6000\ns_cbranch_scc1 L_end')
        a(f's_add_u32 s{S_CNT}, s{S_CNT}, 1\ns_cmp_lt_u32 s{S_CNT}, 100000\ns_cbranch_scc1 L_pw\ns_branch L_end')
    if cfg['stamps']:
        a('s_waitcnt lgkmcnt(0)\ns_mov_b64 exec, 1')
        a(f's_lshl_b32 s30, s2, 3\ns_add_u32 s30, s30, s{S_W}\ns_lshl_b32 s30, s30, 6\ns_add_u32 s30, s30, {WS_STAMP}\nv_mov_b32 v0, s30')
        for q in range(3):
            for k in range(4):
                a(f'v_mov_b32 v{4 + k + 4 * q}, s{S_ST0 + 2 * (4 * q + k)}')
            a(f'global_store_dwordx4 v0, {vr(4 + 4 * q, 4)}, {sr(P_WS, 2)} offset:{16 * q}')
        a(f'v_mov_b32 v16, s{S_CNT}\nglobal_store_dword v0, v16, {sr(P_WS, 2)} offset:48')
    a('L_end:\ns_endpgm')
    a('.section .rodata,"a"\n.p2align 6')
    a(f'.amdhsa_kernel {NAME}_kernel')
    a('.amdhsa_next_free_vgpr 256\n.amdhsa_next_free_sgpr 102\n.amdhsa_accum_offset 256\n.amdhsa_group_segment_fixed_size 0')
    a('.amdhsa_kernarg_size 112\n.amdhsa_user_sgpr_count 2\n.amdhsa_user_sgpr_kernarg_segment_ptr 1\n.amdhsa_system_sgpr_workgroup_id_x 1')
    a('.amdhsa_float_denorm_mode_32 3\n.end_amdhsa_kernel')
    if cfg['abl'] & 4:
        k = a.lines.index('L_chain:')
        a.lines = [l for i, l in enumerate(a.lines) if i > k or not l.startswith(('v_mfma', 'v_perm', 'v_add_f32_dpp', 'ds_read_b128'))]
    return head + a.text()


if __name__ == '__main__':
    kw = {}
    for x in sys.argv[2:]:
        k, v = x.split('=')
        kw[k] = int(v) if v.lstrip('-').isdigit() else v
    open(sys.argv[1], 'w').write(gen(**kw))
```
